```python
import torch

def _softmax(x, axis=-1):
    return torch.softmax(x, dim=axis)
def _gelu(x):
    return torch.nn.functional.gelu(x, approximate="tanh")
def _silu(x):
    return torch.nn.functional.silu(x)
def _sigmoid(x):
    return torch.sigmoid(x)
def _layernorm(x, axis=-1, eps=1e-5):
    m = x.mean(dim=axis, keepdim=True)
    v = x.var(dim=axis, keepdim=True, unbiased=False)
    return (x - m) / torch.sqrt(v + eps)
def _scatter_add(tgt, idx, src, axis=0):
    return tgt.clone().index_add_(axis, idx, src)
def _segment_sum(src, seg, n):
    out = torch.zeros((n,) + src.shape[1:], dtype=src.dtype)
    return out.index_add_(0, seg, src)
def _pad(x, pw):
    flat = tuple(v for pair in reversed(pw) for v in pair)
    return torch.nn.functional.pad(x, flat)

kernel_name = 'parallel_sum__sliding_local_dilated__moe_arch_mod__prompt'

def setup_inputs():

    _w = (lambda a: (lambda t: t.to(torch.bfloat16) if t.is_floating_point() else t)(torch.as_tensor(a)))
    def _A_setup():
        B, S, D = 1, 2048, 640
        return {
            "x": _w((lambda *s: torch.randn(*s, dtype=torch.bfloat16) * 0.05)(B, S, D)),
            "wqkv": _w((lambda *s: torch.randn(*s, dtype=torch.bfloat16) * 0.05)(D, 3 * D)),
            "wo": _w((lambda *s: torch.randn(*s, dtype=torch.bfloat16) * 0.05)(D, D)),
        }
    _A_in = _A_setup()

    def _B_setup():
        B, S, D, F, C = 1, 2048, 640, 1536, 2
        return {
            "x": _w((lambda *s: torch.randn(*s, dtype=torch.bfloat16) * 0.05)(B, S, D)),
            "w_r": _w((lambda *s: torch.randn(*s, dtype=torch.bfloat16) * 0.05)(D)),
            "w_gate": _w((lambda *s: torch.randn(*s, dtype=torch.bfloat16) * 0.05)(D, F)),
            "w_up": _w((lambda *s: torch.randn(*s, dtype=torch.bfloat16) * 0.05)(D, F)),
            "w_down": _w((lambda *s: torch.randn(*s, dtype=torch.bfloat16) * 0.05)(F, D)),
        }
    _B_in = _B_setup()

    return {
        "A_x": _A_in["x"],
        "A_wqkv": _A_in["wqkv"],
        "A_wo": _A_in["wo"],
        "B_x": _B_in["x"],
        "B_w_r": _B_in["w_r"],
        "B_w_gate": _B_in["w_gate"],
        "B_w_up": _B_in["w_up"],
        "B_w_down": _B_in["w_down"],
    }

def reference(A_x, A_wqkv, A_wo, B_x, B_w_r, B_w_gate, B_w_up, B_w_down):
    def _A_ref(x, wqkv, wo):
        B, S, D = x.shape
        H = 32; Dh = D // H
        W, dil = 8, 2
        qkv = (lambda x, *d: x.permute(*d))((x @ wqkv).reshape(B, S, 3, H, Dh), 2, 0, 3, 1, 4)
        q, k, v = qkv[0], qkv[1], qkv[2]
        scale = Dh ** -0.5
        pos = torch.arange(S)
        off = torch.arange(W) * dil
        idx = pos[:, None] - off[None, :]
        mask = idx >= 0
        idx_c = torch.where(mask, idx, 0).reshape(-1)
        kg = k[:, :, idx_c, :].reshape(B, H, S, W, Dh)
        vg = v[:, :, idx_c, :].reshape(B, H, S, W, Dh)
        logits = torch.einsum("bhsd,bhswd->bhsw", q, kg) * scale
        logits = torch.where(mask[None, None, :, :], logits, -1e9)
        attn = _softmax(logits, axis=-1)
        o = torch.einsum("bhsw,bhswd->bhsd", attn, vg)
        return (lambda x, *d: x.permute(*d))(o, 0, 2, 1, 3).reshape(B, S, D) @ wo

    def _B_ref(x, w_r, w_gate, w_up, w_down):
        B, S, D = x.shape
        C = 2
        r = x @ w_r
        idx = torch.argsort(-r, axis=-1)[:, :C]
        idx_e = (lambda x, n, axis: torch.repeat_interleave(x, n, dim=axis))(idx.reshape(B, C, 1), D, axis=2)
        x_sel = (lambda x, i, axis: torch.take_along_dim(x, i, dim=axis))(x, idx_e, axis=1)
        g = _silu(x_sel @ w_gate)
        u = x_sel @ w_up
        y = (g * u) @ w_down
        r_sel = _sigmoid((lambda x, i, axis: torch.take_along_dim(x, i, dim=axis))(r, idx, axis=1))
        y = y * r_sel.reshape(B, C, 1)
        b_off = (torch.arange(B) * S).reshape(B, 1)
        flat_idx = (idx + b_off).reshape(B * C)
        zero = (x * 0.0).reshape(B * S, D)
        upd = _scatter_add(zero, flat_idx, y.reshape(B * C, D), axis=0)
        return x + upd.reshape(B, S, D)

    x = A_x
    xn = _layernorm(x, axis=-1)
    return x + _A_ref(xn, A_wqkv, A_wo) + _B_ref(xn, B_w_r, B_w_gate, B_w_up, B_w_down)
```

```python
import re
TRANS = ('v_exp_f32', 'v_log_f32', 'v_rcp_f32', 'v_rsq_f32', 'v_sqrt_f32', 'v_sin_f32', 'v_cos_f32')
_R = re.compile(r'^(-|\|)?(abs\()?([vs])(\d+|\[(\d+):(\d+)\])\)?\|?$')

def regs(op):
    op = op.strip()
    if op in ('vcc', 'exec'):
        return {op}
    if op in ('vcc_lo', 'vcc_hi'):
        return {'vcc'}
    if op in ('exec_lo', 'exec_hi'):
        return {'exec'}
    if op == 'm0':
        return {'m0'}
    m = _R.match(op)
    if not m:
        return set()
    k = m.group(3)
    if m.group(5) is not None:
        return {k + str(i) for i in range(int(m.group(5)), int(m.group(6)) + 1)}
    return {k + m.group(4)}

class Ins:
    def __init__(self, text):
        self.text = text
        t = text.split(';')[0].strip()
        self.label = t.endswith(':')
        self.op = t.split()[0] if t and not self.label else ''
        rest = t[len(self.op):].strip()
        ops = [o.strip() for o in rest.split(',')] if rest else []
        mods = ''
        if ops:
            parts = ops[-1].split()
        ops = []; cur = ''; depth = 0
        for ch in rest:
            if ch == '[': depth += 1
            if ch == ']': depth -= 1
            if ch == ',' and depth == 0:
                ops.append(cur.strip()); cur = ''
            else:
                cur += ch
        if cur.strip():
            ops.append(cur.strip())
        if ops:
            last = ops[-1].split(None, 1)
            ops[-1] = last[0]
            mods = last[1] if len(last) > 1 else ''
        self.ops = ops; self.mods = mods
        op = self.op
        self.mfma = op.startswith('v_mfma')
        self.valu = op.startswith('v_') and not self.mfma
        self.trans = any(op.startswith(x) for x in TRANS)
        self.dot = op.startswith('v_dot')
        self.ds = op.startswith('ds_')
        self.vmem = op.startswith(('buffer_', 'global_'))
        self.salu = op.startswith('s_')
        self.dpp = '_dpp' in op or any(k in mods for k in ('row_', 'quad_perm', 'wave_'))
        self.perml = op.startswith('v_permlane')
        self.rdlane = op.startswith(('v_readfirstlane', 'v_readlane'))
        self.lds_dma = self.vmem and (' lds' in ' ' + mods or 'load_lds' in op)
        R = [regs(o) for o in ops]
        self.w = set(); self.r = set(); self.sdata = set()
        U = lambda l: set().union(*l) if l else set()
        if self.mfma:
            self.w = R[0]; self.ra = R[1] | R[2]; self.rc = R[3]; self.r = self.ra | self.rc
        elif self.valu:
            if self.perml:
                self.w = R[0] | R[1]; self.r = R[0] | R[1]
            elif op.startswith(('v_add_co', 'v_sub_co', 'v_addc_co', 'v_subb_co', 'v_div_scale', 'v_mad_u64')):
                self.w = R[0] | R[1]; self.r = U(R[2:])
            else:
                self.w = R[0]; self.r = U(R[1:])
                if op.startswith(('v_fmac', 'v_dot2c', 'v_pk_fmac')) or self.dpp or op.startswith('v_writelane'):
                    self.r |= R[0]
                if op.startswith('v_cndmask') and len(ops) == 3:
                    self.r |= {'vcc'}
        elif self.ds:
            if op.startswith(('ds_read', 'ds_bpermute', 'ds_swizzle', 'ds_permute')):
                self.w = R[0]; self.r = U(R[1:])
            else:
                self.r = U(R)
        elif self.vmem:
            if self.lds_dma:
                self.r = U(R) | {'m0'}
            elif '_load' in op:
                self.w = R[0]; self.r = U(R[1:])
            elif op in ('buffer_wbl2', 'buffer_inv'):
                pass
            else:
                self.r = U(R)
                if op.endswith(('x3', 'x4')):
                    self.sdata = R[0] if op.startswith('buffer_') else R[1]
                if 'atomic' in op and 'sc0' in mods:
                    self.w = R[0]; self.r = U(R[1:])
        elif self.salu:
            if op.startswith(('s_cmp', 's_cbranch', 's_branch', 's_waitcnt', 's_barrier', 's_nop', 's_sleep', 's_endpgm', 's_setprio', 's_bitcmp')):
                self.r = U(R)
            else:
                self.w = R[0] if R else set(); self.r = U(R[1:])
                if 'saveexec' in op:
                    self.w |= {'exec'}
        self.slots = 1
        if op == 's_nop':
            self.slots = int(ops[0], 0) + 1

def isv(x): return x[0] == 'v' and x[1:].isdigit()
def iss(x): return (x[0] == 's' and x[1:].isdigit()) or x == 'vcc'

def need(p, c):
    n = 0
    pv = {x for x in p.w if isv(x)}; ps = {x for x in p.w if iss(x)}
    if p.valu:
        if c.mfma and pv & c.r: n = max(n, 2)
        if c.vmem and ps & c.r: n = max(n, 5)
        if c.valu and ps & c.r: n = max(n, 4 if c.op.startswith(('v_readlane', 'v_writelane')) else 2)
        if c.rdlane and pv & c.r: n = max(n, 1)
        if c.valu and c.dpp and pv & c.r: n = max(n, 2)
        if c.perml and pv & c.r: n = max(n, 2)
        if p.trans and (c.valu or c.ds or c.vmem) and not c.trans and pv & c.r: n = max(n, 1)
        if p.dot:
            if c.op == p.op:
                srcs = set().union(*[regs(o) for o in c.ops[1:3]])
                if pv & srcs: n = max(n, 3)
            elif pv & (c.r | c.w): n = max(n, 3)
        if 'sdwa' in p.op and c.valu and pv & c.r: n = max(n, 1)
        if 'exec' in p.w and (c.mfma): n = max(n, 4)
    if p.mfma:
        big = '32x32' in p.op
        a, b = (12, 10) if big else (8, 6)
        if c.mfma:
            if pv & c.ra: n = max(n, a)
            if pv & c.rc and not (c.rc == p.w and c.op == p.op): n = max(n, b)
            if pv & c.w and not (c.rc == p.w): n = max(n, b)
        elif (c.valu or c.ds or c.vmem) and pv & (c.r | c.w): n = max(n, a)
        if c.valu and p.rc & c.w: n = max(n, 7 if big else 3)
    if p.salu and 'm0' in p.w and c.lds_dma: n = max(n, 1)
    if p.sdata and p.sdata & c.w: n = max(n, 2 if c.valu else 1)
    return n

def _pad(hist, c):
    dist = 0; pad = 0
    for p in reversed(hist):
        if dist >= 20: break
        pad = max(pad, need(p, c) - dist)
        dist += p.slots
    return pad

def fix(lines):
    out = []; hists = [[]]; pending = {}; seen = {}; back = []
    added = 0
    for ln in lines:
        s = ln.split(';')[0].strip()
        if not s or s.startswith('.'):
            out.append(ln); continue
        c = Ins(ln)
        if c.label:
            name = s[:-1]
            seen[name] = len(out)
            hists = hists + pending.pop(name, [])
            out.append(ln); continue
        pad = max([_pad(h, c) for h in hists] + [0])
        while pad > 0:
            k = min(pad, 16)
            nop = '    s_nop %d' % (k - 1)
            out.append(nop)
            for h in hists: h.append(Ins(nop))
            pad -= k; added += 1
        out.append(ln)
        for h in hists: h.append(c)
        hists = [h[-24:] for h in hists]
        uniq = {}
        for h in hists: uniq[tuple(id(x) for x in h[-20:])] = h
        hists = list(uniq.values())
        if c.op.startswith(('s_cbranch', 's_branch')):
            tgt = c.ops[0]
            if tgt in seen:
                back.append((tgt, [list(h) for h in hists]))
            else:
                pending.setdefault(tgt, []).extend([list(h) for h in hists])
        if c.op in ('s_branch', 's_endpgm'):
            hists = [[]]
    for tgt, hs in back:
        for h in hs:
            h = list(h); n = 0
            for ln in out[seen[tgt] + 1:]:
                s = ln.split(';')[0].strip()
                if not s or s.startswith('.') or s.endswith(':'): continue
                c = Ins(ln)
                if _pad(h, c) > 0:
                    raise RuntimeError('hazard across back edge to %s at: %s' % (tgt, ln))
                h.append(c); n += c.slots
                if n > 20 or c.op in ('s_branch', 's_endpgm'): break
    return out, added
```

```python
import sys
sys.path.insert(0, 'dev')
import hz

NAME = 'parallel_sum__sliding_local_dilated__moe_arch_mod__prompt'
XB, WB, WOB, GB = 2621440, 2457600, 819200, 1966080
WSB = 0x800000
WS_EPOCH, WS_SEL, WS_YFLAG, WS_STAT, WS_FLAG = 0x0, 0x100, 0x200, 0x1000, 0x9000
WS_XCH, WS_O, WS_Y, WS_DBG = 0x10000, 0x300000, 0x600000, 0x680000
WS_TS = 0x7c0000
SLOT, XPART, DEPTH = 38912, 14336, 3
P = 496
WOIMG = 61440
LDS_BYTES = 163840
SPIN = 200000

sXCD, sSLOT, sWAVE, sI, sLL, sL, sROLE, sTAG = 's3', 's4', 's5', 's6', 's7', 's8', 's9', 's10'
pX, pW, pWO, pWR, pG, pU, pD, pOUT, pDBG, pWS = 16, 18, 20, 24, 26, 28, 30, 32, 34, 36
rX, rW, rWO, rWS, rOUT, rU, rD = 40, 44, 48, 52, 56, 60, 64

def sp(n): return 's[%d:%d]' % (n, n + 1)
def sq(n): return 's[%d:%d]' % (n, n + 3)
def vr(n, k=1): return 'v%d' % n if k == 1 else 'v[%d:%d]' % (n, n + k - 1)

class G:
    def __init__(self, opt):
        self.L = []; self.opt = opt; self.nl = 0; self.nts = 0
    def e(self, s):
        for ln in s.strip('\n').split('\n'):
            ln = ln.strip()
            if not ln: continue
            self.L.append(ln if ln.endswith(':') else '    ' + ln)
    def lab(self, base):
        self.nl += 1
        return 'L_%s_%d' % (base, self.nl)
    def srd(self, r, p, nbytes):
        self.e('s_mov_b32 s%d, s%d\ns_mov_b32 s%d, s%d\ns_mov_b32 s%d, %d\ns_mov_b32 s%d, 0x20000' % (r, p, r + 1, p + 1, r + 2, nbytes, r + 3))
    def ts(self, k):
        if self.opt.get('ts'):
            self.e('s_memrealtime s[%d:%d]' % (80 + 2 * k, 81 + 2 * k))
    def allreduce16(self, v, op='v_add_f32'):
        for n in (8, 4, 2, 1):
            self.e('%s_dpp v%d, v%d, v%d row_ror:%d row_mask:0xf bank_mask:0xf' % (op, v, v, v, n))
    def get_tag(self, vt, vz):
        lo = self.lab('tag'); ok = self.lab('tagok')
        self.e('''v_mov_b32 v%d, 0
        s_mov_b32 s11, %d
        %s:
        global_load_dword v%d, v%d, %s sc1
        s_waitcnt vmcnt(0)
        v_readfirstlane_b32 %s, v%d
        s_cmp_lg_u32 %s, 0
        s_cbranch_scc1 %s
        s_sub_u32 s11, s11, 1
        s_cmp_lg_u32 s11, 0
        s_cbranch_scc1 %s
        %s:''' % (vz, SPIN, lo, vt, vz, sp(pDBG), sTAG, vt, sTAG, ok, lo, ok))

    def prologue(self):
        e = self.e
        self.ts(0)
        e('''s_load_dwordx16 s[16:31], s[0:1], 0
        s_load_dwordx4 s[32:35], s[0:1], 64
        s_load_dwordx2 s[36:37], s[0:1], 80
        s_cmp_ge_u32 s2, 256
        s_cbranch_scc1 L_end
        v_lshrrev_b32 v1, 6, v0
        v_and_b32 v0, 63, v0
        s_and_b32 s3, s2, 7
        v_readfirstlane_b32 s5, v1
        s_lshr_b32 s4, s2, 3
        s_and_b32 s11, s3, 3
        s_mul_i32 s11, s11, 28
        s_add_u32 s11, s11, s4
        s_mul_i32 s6, s11, 13108
        s_lshr_b32 s6, s6, 16
        s_mul_i32 s12, s6, 5
        s_sub_u32 s7, s11, s12
        s_lshr_b32 s12, s3, 2
        s_mul_i32 s12, s12, 5
        s_add_u32 s8, s7, s12
        s_mov_b32 s10, 0
        s_mov_b32 s9, 0
        s_cmp_ge_u32 s11, 110
        s_cselect_b32 s9, 2, s9
        s_cmp_ge_u32 s4, 28
        s_cselect_b32 s9, 1, s9
        s_cmp_eq_u32 s4, 31
        s_cselect_b32 s9, 2, s9''')
        e('''s_cmp_lg_u32 s9, 0
        s_cbranch_scc1 L_notld
        s_cmp_ge_u32 s5, 4
        s_cbranch_scc1 L_loader
        L_notld:''')
        e('''s_cmp_lg_u32 s5, 3
        s_cbranch_scc1 L_nopf
        s_getpc_b64 s[12:13]
        s_and_b32 s14, s4, %d
        s_lshl_b32 s14, s14, 13
        v_lshlrev_b32 v2, 7, v0
        v_add_u32 v2, s14, v2
        v_min_u32 v2, CODE_LAST, v2
        global_load_dword v255, v2, s[12:13]
        L_nopf:
        s_waitcnt lgkmcnt(0)''' % (self.opt.get('pfblocks', 4) - 1))
        self.srd(rX, pX, XB); self.srd(rWS, pWS, WSB)
        e('''s_cmp_lg_u32 s2, 0
        s_cbranch_scc1 L_notag
        s_cmp_lg_u32 s5, 2
        s_cbranch_scc1 L_notag
        v_mov_b32 v2, 0
        global_load_dword v3, v2, %s sc1
        s_waitcnt vmcnt(0)
        v_add_u32 v3, 1, v3
        v_max_u32 v3, 1, v3
        s_mov_b64 exec, 1
        global_store_dword v2, v3, %s sc1
        global_store_dword v2, v3, %s sc1
        s_mov_b64 exec, -1
        L_notag:''' % (sp(pWS), sp(pDBG), sp(pWS)))
        e('''s_cmp_ge_u32 s5, 2
        s_cbranch_scc1 L_nostat''')
        self.stats()
        e('L_nostat:')
        e('''s_cmp_eq_u32 s9, 1
        s_cbranch_scc1 L_expert
        s_cmp_eq_u32 s9, 2
        s_cbranch_scc1 L_idle''')

    def stats(self):
        e = self.e
        X, Wr, F = 20, 40, 60
        e('''s_and_b32 s11, s3, 3
        s_lshl_b32 s11, s11, 6
        s_lshr_b32 s12, s3, 2
        s_lshl_b32 s12, s12, 5
        s_add_u32 s11, s11, s12
        s_add_u32 s11, s11, s4
        s_lshl_b32 s11, s11, 1
        s_add_u32 s11, s11, s5
        s_lshl_b32 s11, s11, 2
        v_lshrrev_b32 v2, 4, v0
        v_add_u32 v2, s11, v2
        v_and_b32 v3, 15, v0
        v_lshlrev_b32 v4, 4, v3
        v_mul_u32_u24 v5, 1280, v2
        v_add_u32 v5, v5, v4''')
        for j in range(5):
            e('buffer_load_dwordx4 %s, v5, %s, 0 offen offset:%d' % (vr(X + 4 * j, 4), sq(rX), 256 * j))
        for j in range(5):
            e('global_load_dwordx4 %s, v4, %s offset:%d' % (vr(Wr + 4 * j, 4), sp(pWR), 256 * j))
        e('s_waitcnt vmcnt(5)')
        for d in range(20):
            e('v_lshlrev_b32 v%d, 16, v%d\nv_and_b32 v%d, 0xffff0000, v%d' % (F + 2 * d, X + d, F + 2 * d + 1, X + d))
        e('v_pk_add_f32 v[6:7], %s, %s\nv_pk_add_f32 v[8:9], %s, %s' % (vr(F, 2), vr(F + 2, 2), vr(F + 4, 2), vr(F + 6, 2)))
        for d in range(4, 20):
            a = 6 + 2 * (d & 1)
            e('v_pk_add_f32 %s, %s, %s' % (vr(a, 2), vr(a, 2), vr(F + 2 * d, 2)))
        e('v_pk_add_f32 v[6:7], v[6:7], v[8:9]\nv_add_f32 v6, v6, v7')
        self.allreduce16(6)
        e('v_mul_f32 v6, 0x3acccccd, v6')
        e('v_mov_b32 v10, 0\nv_mov_b32 v11, 0\nv_mov_b32 v12, 0\nv_mov_b32 v13, 0')
        for d in range(20):
            t = 14 + 2 * (d & 1); a = 10 + 2 * (d & 1)
            e('v_pk_add_f32 %s, %s, v[6:7] op_sel_hi:[1,0] neg_lo:[0,1] neg_hi:[0,1]' % (vr(t, 2), vr(F + 2 * d, 2)))
            e('v_pk_fma_f32 %s, %s, %s, %s' % (vr(a, 2), vr(t, 2), vr(t, 2), vr(a, 2)))
        e('v_pk_add_f32 v[10:11], v[10:11], v[12:13]\nv_add_f32 v10, v10, v11')
        self.allreduce16(10)
        e('''v_mul_f32 v10, 0x3acccccd, v10
        v_cvt_pk_bf16_f32 v8, v6, v10
        v_lshlrev_b32 v6, 16, v8
        v_and_b32 v10, 0xffff0000, v8
        v_add_f32 v10, 0x3727c5ac, v10
        v_cvt_pk_bf16_f32 v10, v10, v10
        v_and_b32 v10, 0xffff0000, v10
        v_sqrt_f32 v10, v10
        v_cvt_pk_bf16_f32 v10, v10, v10
        v_and_b32 v10, 0xffff0000, v10
        v_rcp_f32 v12, v10
        v_lshrrev_b32 v8, 16, v6
        v_or_b32 v16, v8, v10
        v_mov_b32 v10, 0
        v_mov_b32 v11, 0
        s_waitcnt vmcnt(0)''')
        for d in range(20):
            f = F + 2 * d
            e('v_pk_add_f32 %s, %s, v[6:7] op_sel_hi:[1,0] neg_lo:[0,1] neg_hi:[0,1]' % (vr(f, 2), vr(f, 2)))
        for d in range(20):
            e('v_cvt_pk_bf16_f32 v%d, v%d, v%d' % (X + d, F + 2 * d, F + 2 * d + 1))
        for d in range(20):
            e('v_lshlrev_b32 v%d, 16, v%d\nv_and_b32 v%d, 0xffff0000, v%d' % (F + 2 * d, X + d, F + 2 * d + 1, X + d))
        for d in range(20):
            f = F + 2 * d
            e('v_pk_mul_f32 %s, %s, v[12:13] op_sel_hi:[1,0]' % (vr(f, 2), vr(f, 2)))
        for d in range(20):
            e('v_cvt_pk_bf16_f32 v%d, v%d, v%d' % (X + d, F + 2 * d, F + 2 * d + 1))
        for d in range(20):
            e('v_dot2c_f32_bf16 v%d, v%d, v%d' % (10 + (d & 1), X + d, Wr + d))
        e('v_add_f32 v10, v10, v11')
        self.allreduce16(10)
        e('''v_cvt_pk_bf16_f32 v10, v10, v10
        v_bfe_i32 v11, v10, 15, 1
        v_or_b32 v11, 0x8000, v11
        v_xor_b32 v10, v10, v11
        v_lshlrev_b32 v10, 16, v10
        v_sub_u32 v11, 2047, v2
        v_or_b32 v18, v10, v11''')
        self.get_tag(8, 9)
        e('''v_mov_b32 v17, %s
        v_mov_b32 v19, %s
        v_lshlrev_b32 v2, 4, v2
        v_cmp_eq_u32 vcc, 0, v3
        s_mov_b32 s11, %d
        s_and_saveexec_b64 s[12:13], vcc
        buffer_store_dwordx4 v[16:19], v2, %s, s11 offen sc1
        s_mov_b64 exec, -1''' % (sTAG, sTAG, WS_STAT, sq(rWS)))

    def wo_setup(self, vb):
        e = self.e
        self.srd(rWO, pWO, WOB)
        e('''s_and_b32 s11, s4, 7
        s_mul_i32 s11, s11, 160
        s_lshr_b32 s70, s4, 3
        s_mul_i32 s70, s70, 5''')
        for j in range(5):
            e('''v_add_u32 v2, %d, v0
            v_mul_u32_u24 v3, 6554, v2
            v_lshrrev_b32 v3, 16, v3
            v_mul_u32_u24 v4, 10, v3
            v_sub_u32 v4, v2, v4
            v_bfe_u32 v5, v3, 3, 1
            v_lshlrev_b32 v5, 2, v5
            v_xor_b32 v3, v3, v5
            v_mul_u32_u24 v3, 1280, v3
            v_lshl_add_u32 v3, v4, 4, v3
            v_add_u32 v%d, s11, v3''' % (64 * j, vb + j))
    def wo_block(self, vb, spos):
        e = self.e
        e('''s_add_u32 s12, %s, s70
        s_cmp_ge_u32 s12, 20
        s_cselect_b32 s13, 20, 0
        s_sub_u32 s12, s12, s13
        s_mul_i32 s12, s12, 40960
        s_mul_i32 s13, %s, 5120
        s_add_u32 s13, s13, %d''' % (spos, spos, WOIMG))
        for j in range(5):
            e('s_add_u32 m0, s13, %d' % (1024 * j))
            e('buffer_load_dwordx4 v%d, %s, s12 offen lds' % (vb + j, sq(rWO)))

    def loader(self):
        e = self.e
        e('L_loader:')
        e('''s_sub_u32 s14, s5, 4
        s_and_b32 s15, s14, 1
        v_lshrrev_b32 v2, 3, v0
        v_and_b32 v3, 7, v0
        v_lshrrev_b32 v4, 4, v0
        s_lshl_b32 s11, s15, 2
        v_add_u32 v5, s11, v4
        v_xor_b32 v5, v3, v5
        s_mul_i32 s11, s6, 96
        s_lshl_b32 s12, s14, 3
        s_add_u32 s11, s11, s12
        s_sub_u32 s11, s11, 16
        s_mul_i32 s11, s11, 1280
        v_mul_u32_u24 v6, 1280, v2
        v_lshl_add_u32 v6, v5, 4, v6
        v_add_u32 v10, s11, v6
        v_add_u32 v11, 40960, v10
        v_add_u32 v12, 0x14000, v10
        v_add_u32 v13, 0x1e000, v10
        v_and_b32 v4, 1, v4
        v_lshl_or_b32 v4, s15, 1, v4
        v_lshlrev_b32 v4, 1, v4
        v_xor_b32 v4, v3, v4
        v_add_u32 v2, s12, v2
        v_mul_u32_u24 v2, 3840, v2
        v_lshl_add_u32 v2, v4, 4, v2
        s_lshl_b32 s11, s8, 7
        v_add_u32 v14, s11, v2
        s_lshl_b32 s68, s7, 1
        s_mul_i32 s11, s6, %d
        s_add_u32 s68, s68, s11
        s_mul_i32 s11, s68, 6554
        s_lshr_b32 s11, s11, 16
        s_mul_i32 s11, s11, 10
        s_sub_u32 s68, s68, s11
        s_lshl_b32 s69, s14, 10
        s_cmp_eq_u32 s14, 0
        s_cselect_b32 s72, 0xffff0000, -1
        s_mov_b32 s73, -1
        s_waitcnt lgkmcnt(0)''' % self.opt.get('rot', 3))
        self.srd(rX, pX, XB); self.srd(rW, pW, WB)
        self.ts(1)
        def issue(c):
            base = (c % DEPTH) * SLOT
            sk = self.lab('xs')
            e('s_lshl_b32 s11, s68, 7\ns_mul_i32 s12, s68, 245760')
            e('s_add_u32 m0, s69, %d\ns_mov_b64 exec, s[72:73]' % base)
            e('buffer_load_dwordx4 v10, %s, s11 offen lds\ns_mov_b64 exec, -1' % sq(rX))
            for a in (1, 2):
                e('s_add_u32 m0, s69, %d' % (base + a * 4096))
                e('buffer_load_dwordx4 v%d, %s, s11 offen lds' % (10 + a, sq(rX)))
            e('s_cmp_ge_u32 s14, 2\ns_cbranch_scc1 %s' % sk)
            e('s_add_u32 m0, s69, %d' % (base + 3 * 4096))
            e('buffer_load_dwordx4 v13, %s, s11 offen lds' % sq(rX))
            e('%s:' % sk)
            for y in range(3):
                for hb in range(2):
                    e('s_add_u32 m0, s69, %d' % (base + XPART + y * 8192 + hb * 4096))
                    if y or hb:
                        e('s_add_u32 s13, s12, %d' % (y * 1280 + hb * 122880))
                        e('buffer_load_dwordx4 v14, %s, s13 offen lds' % sq(rW))
                    else:
                        e('buffer_load_dwordx4 v14, %s, s12 offen lds' % sq(rW))
            e('s_add_u32 s68, s68, 1\ns_cmp_eq_u32 s68, 10\ns_cselect_b32 s68, 0, s68')
        for c in range(DEPTH - 1):
            issue(c)
        self.srd(rWS, pWS, WSB)
        self.wo_setup(20)
        for c in range(10):
            if c == 9:
                e('s_waitcnt vmcnt(5)')
            else:
                e('s_waitcnt vmcnt(9)')
            e('s_barrier')
            if c == 0: self.ts(2)
            if c + DEPTH - 1 < 10:
                issue(c + DEPTH - 1)
            elif c == 8:
                e('s_add_u32 s71, s14, 16'); self.wo_block(20, 's71')
            elif c == 9:
                e('s_add_u32 s71, s14, 12'); self.wo_block(20, 's71')
        self.ts(3)
        e('s_barrier')
        e('''v_lshlrev_b32 v2, 0, v0
        s_lshl_b32 s11, s14, 6
        v_add_u32 v2, s11, v2
        v_lshrrev_b32 v3, 1, v2
        v_and_b32 v4, 1, v2
        v_mul_u32_u24 v3, %d, v3
        v_mul_u32_u24 v4, 160, v4
        v_add_u32 v3, v3, v4
        v_mov_b32 v4, 0
        v_mov_b32 v5, 0
        v_cmp_gt_u32 vcc, 224, v2
        s_and_saveexec_b64 s[12:13], vcc''' % P)
        for z in range(4):
            e('''s_cmp_gt_u32 s7, %d
            s_cselect_b32 s11, %d, %d
            v_add_u32 v6, s11, v3
            ds_write_b64 v6, v[4:5]''' % (z, 8 * z, 8 * (16 + z)))
        e('s_mov_b64 exec, -1')
        e('s_cmp_lt_u32 s14, 2\ns_cbranch_scc1 L_ld_att')
        e('s_add_u32 s71, s14, 8')
        self.wo_block(20, 's71')
        e('s_waitcnt lgkmcnt(0)\ns_barrier')
        for b in range(5):
            e('s_add_u32 s71, s14, %d' % (2 * b - 2) if b else 's_sub_u32 s71, s14, 2')
            self.wo_block(20, 's71')
        e('ds_read_b32 v2, v4 offset:480\ns_waitcnt lgkmcnt(0)\nv_readfirstlane_b32 %s, v2' % sTAG)
        e('s_branch L_phase2')
        e('L_ld_att:')
        e('s_waitcnt lgkmcnt(0)\ns_branch L_img')

    def gemm1(self):
        e = self.e
        ACC, BA, BB, ST = 16, 100, 140, 180
        def acc(y, T): return ACC + (y * 7 + T) * 4
        e('''s_cmp_lg_u32 s5, 2
        s_cbranch_scc1 L_noones
        v_mov_b32 v4, 0x3f803f80
        v_mov_b32 v5, v4
        v_mov_b32 v6, v4
        v_mov_b32 v7, v4
        v_and_b32 v2, 15, v0
        v_lshlrev_b32 v2, 4, v2
        v_lshrrev_b32 v3, 4, v0
        v_min_u32 v3, %d, v3
        v_mul_u32_u24 v3, %d, v3
        v_add_u32 v2, v2, v3
        ds_write_b128 v2, v[4:7]
        L_noones:''' % (DEPTH - 1, SLOT))
        e('''v_and_b32 v1, 15, v0
        v_lshrrev_b32 v2, 4, v0
        v_lshrrev_b32 v3, 1, v1
        v_xor_b32 v3, v2, v3
        v_lshlrev_b32 v3, 4, v3
        v_lshl_add_u32 v8, v1, 7, v3
        v_xor_b32 v9, 64, v8
        v_lshrrev_b32 v3, 2, v1
        v_and_b32 v4, 3, v1
        v_lshrrev_b32 v5, 1, v3
        v_and_b32 v6, 1, v2
        v_lshl_or_b32 v5, v6, 1, v5
        v_xor_b32 v5, s5, v5
        v_lshl_add_u32 v3, v2, 3, v3
        v_lshlrev_b32 v3, 7, v3
        v_lshl_add_u32 v3, v5, 5, v3
        v_lshl_add_u32 v3, v4, 3, v3
        v_add_u32 v10, %d, v3''' % XPART)
        for r in range(84):
            e('v_mov_b32 v%d, 0' % (ACC + r))
        for r in range(40):
            e('v_mov_b32 v%d, 0' % (BB + r))
        e('''s_cmp_lt_u32 s5, 2
        s_cbranch_scc1 L_hastag''')
        self.get_tag(4, 5)
        e('L_hastag:')
        e('''s_mul_i32 s11, s6, 96
        s_sub_u32 s11, s11, 16
        v_add_u32 v14, s11, v1
        v_lshlrev_b32 v15, 4, v14
        v_add_u32 v15, %d, v15
        s_mov_b32 s68, 0
        s_mov_b32 s69, 0
        s_waitcnt lgkmcnt(0)''' % WS_STAT)
        def reads(buf, t):
            ops = []
            for y in range(3):
                for hh in range(2):
                    ops.append('ds_read_b64_tr_b16 %s, v13 offset:%d' % (vr(buf + 28 + 4 * y + 2 * hh, 2), y * 8192 + (32 * t + 4 * hh) * 128))
            for T in range(7):
                ops.append('ds_read_b128 %s, v%d offset:%d' % (vr(buf + 4 * T, 4), 11 + t, T * 2048))
            return ops
        def mfmas(buf):
            return ['v_mfma_f32_16x16x32_bf16 %s, %s, %s, %s' % (vr(acc(y, T), 4), vr(buf + 28 + 4 * y, 4), vr(buf + 4 * T, 4), vr(acc(y, T), 4))
                    for T in range(7) for y in range(3)]
        def half(rbuf, t, mbuf):
            R = reads(rbuf, t); M = mfmas(mbuf)
            for k in range(21):
                if k < len(R): e(R[k])
                e(M[k])
            e('s_waitcnt lgkmcnt(0)')
        e('L_kloop:')
        e('''v_add_u32 v11, s69, v8
        v_add_u32 v12, s69, v9
        v_add_u32 v13, s69, v10
        s_barrier''')
        half(BA, 0, BB)
        half(BB, 1, BA)
        e('''s_cmp_lg_u32 s68, 6
        s_cbranch_scc1 L_nost''')
        for T in range(7):
            e('buffer_load_dwordx2 %s, v15, %s, 0 offen offset:%d sc1' % (vr(ST + 2 * T, 2), sq(rWS), 256 * T))
        e('''L_nost:
        s_add_u32 s69, s69, %d
        s_cmp_eq_u32 s69, %d
        s_cselect_b32 s69, 0, s69
        s_add_u32 s68, s68, 1
        s_cmp_lt_u32 s68, 10
        s_cbranch_scc1 L_kloop
        s_barrier''' % (SLOT, SLOT * DEPTH))
        for m in mfmas(BB): e(m)
        self.ts(3)
        e('s_mov_b32 s15, %d\ns_movk_i32 s75, 2048\nv_mov_b32 v7, 0x3f800000' % SPIN)
        e('L_stchk:\ns_waitcnt vmcnt(0)\ns_mov_b64 s[12:13], 0')
        for T in range(7):
            e('''v_add_u32 v3, %d, v14
            v_cmp_gt_u32 s[70:71], s75, v3
            v_cmp_ne_u32 vcc, %s, v%d
            s_and_b64 vcc, vcc, s[70:71]
            s_or_b64 s[12:13], s[12:13], vcc''' % (16 * T, sTAG, ST + 2 * T + 1))
        e('''s_cmp_eq_u64 s[12:13], 0
        s_cbranch_scc1 L_stok
        s_sub_u32 s15, s15, 1
        s_cmp_eq_u32 s15, 0
        s_cbranch_scc1 L_stok''')
        for T in range(7):
            e('buffer_load_dwordx2 %s, v15, %s, 0 offen offset:%d sc1' % (vr(ST + 2 * T, 2), sq(rWS), 256 * T))
        e('s_branch L_stchk\nL_stok:')
        for T in range(7):
            a = ST + 2 * T
            e('''v_add_u32 v3, %d, v14
            v_cmp_gt_u32 vcc, s75, v3
            v_cndmask_b32 v4, v7, v%d, vcc
            v_and_b32 v5, 0xffff0000, v4
            v_rcp_f32 v%d, v5
            v_lshlrev_b32 v4, 16, v4
            v_mul_f32 v%d, -v4, v%d''' % (16 * T, a, a, a + 1, a))
        CS = BA
        for y in range(3):
            for r in range(4):
                e('v_mov_b32_dpp v%d, v%d row_newbcast:0 row_mask:0xf bank_mask:0xf' % (CS + 4 * y + r, acc(y, 0) + r))
        e('''s_lshl_b32 s11, s5, 2
        s_add_u32 s11, s11, s7
        v_add_u32 v3, s11, v2
        v_mul_u32_u24 v4, %d, v1
        v_lshl_add_u32 v3, v3, 3, v4''' % P)
        for y in range(3):
            for T in range(7):
                if y == 0 and T == 0: continue
                a = acc(y, T); st = vr(ST + 2 * T, 2)
                for h in range(2):
                    e('v_pk_mul_f32 %s, %s, %s op_sel_hi:[1,0]' % (vr(a + 2 * h, 2), vr(a + 2 * h, 2), st))
                for h in range(2):
                    e('v_pk_fma_f32 %s, %s, %s, %s op_sel:[0,1,0] op_sel_hi:[1,1,1]' % (vr(a + 2 * h, 2), vr(CS + 4 * y + 2 * h, 2), st, vr(a + 2 * h, 2)))
                e('v_cvt_pk_bf16_f32 v%d, v%d, v%d' % (a, a, a + 1))
                e('v_cvt_pk_bf16_f32 v%d, v%d, v%d' % (a + 1, a + 2, a + 3))
                e('ds_write_b64 v3, %s offset:%d' % (vr(a, 2), T * 16 * P + y * 160))
        e('''v_mov_b32 v4, 0
        v_mov_b32 v5, %s
        ds_write_b32 v4, v5 offset:480
        s_waitcnt lgkmcnt(0)''' % sTAG)


    def attention(self):
        e = self.e
        Q, K, V, LG, XR, O = 16, 32, 112, 192, 208, 224
        e('L_img:\ns_barrier')
        self.ts(4)
        if self.opt.get('dump_img'):
            e("""s_mul_i32 s11, s6, 10
            s_add_u32 s11, s11, s8
            s_mul_i32 s11, s11, 0x10000
            s_add_u32 s11, s11, 0x1000000
            s_lshl_b32 s12, s5, 10
            v_lshlrev_b32 v2, 4, v0
            v_add_u32 v2, s12, v2
            s_mov_b32 s54, 0x10000000""")
            for j in range(10):
                e("""ds_read_b128 v[4:7], v2
                s_waitcnt lgkmcnt(0)
                buffer_store_dwordx4 v[4:7], v2, %s, s11 offen
                v_add_u32 v2, 6144, v2
                s_waitcnt vmcnt(0)""" % sq(rWS))
        e("""v_lshrrev_b32 v2, 4, v0
        v_and_b32 v3, 1, v2
        v_mul_u32_u24 v4, 40, v2
        v_lshl_add_u32 v5, v3, 3, v4
        v_lshrrev_b32 v6, 4, v5
        v_add_u32 v6, v6, v0
        v_and_b32 v1, 15, v6
        s_lshl_b32 s11, s5, 4
        s_add_u32 s11, s11, 2
        v_add_u32 v6, s11, v1
        v_mul_u32_u24 v6, %d, v6
        v_add_u32 v8, v6, v5
        v_xor_b32 v3, 1, v3
        v_lshl_add_u32 v4, v3, 5, v4
        v_add_u32 v9, v6, v4
        v_mov_b32 v4, 0
        ds_read_b32 v7, v4 offset:480""" % P)
        def rd(dst, y, w):
            off = (14 - 2 * w) * P + y * 160
            return ['ds_read_b128 %s, v8 offset:%d' % (vr(dst, 4), off), 'ds_read_b128 %s, v8 offset:%d' % (vr(dst + 4, 4), off + 16),
                    'ds_read_b64 %s, v9 offset:%d' % (vr(dst + 8, 2), off)]
        for x in rd(Q, 0, 0): e(x)
        for w in range(3):
            for x in rd(K + 10 * w, 1, w): e(x)
        e("""s_mul_i32 s11, s6, 10
        s_add_u32 s11, s11, s8
        s_mul_i32 s11, s11, 12
        s_add_u32 s11, s11, s5
        s_lshl_b32 s11, s11, 10
        s_add_u32 s11, s11, %d
        v_lshrrev_b32 v3, 1, v2
        v_mul_u32_u24 v4, 6144, v3
        v_lshl_add_u32 v4, v1, 4, v4
        v_add_u32 v10, s11, v4
        v_mul_u32_u24 v4, 12288, v3
        v_add_u32 v11, v10, v4
        v_subrev_u32 v11, 6144, v11
        s_cmp_ge_u32 s7, 1
        s_cselect_b32 s72, 0xffff, 0
        s_cmp_le_u32 s7, 3
        s_cselect_b32 s73, 0xffff0000, 0
        s_waitcnt lgkmcnt(9)
        v_readfirstlane_b32 %s, v7""" % (WS_XCH, sTAG))
        for w in range(8):
            e('v_mov_b32 v%d, 0\nv_mov_b32 v%d, v7' % (LG + 2 * w, LG + 2 * w + 1))
        pend = [x for w in range(3, 8) for x in rd(K + 10 * w, 1, w)] + [x for w in range(8) for x in rd(V + 10 * w, 2, w)]
        issued = 9
        for w in range(0, 8, 2):
            want = 3 * (w + 2)
            while issued < min(want + 9, 48):
                e(pend.pop(0)); issued += 1
            e('s_waitcnt lgkmcnt(%d)' % (issued - want))
            for j in range(10):
                for ww in (w, w + 1):
                    e('v_dot2c_f32_bf16 v%d, v%d, v%d' % (LG + 2 * ww, Q + j, K + 10 * ww + j))
        e('s_mov_b64 exec, s[72:73]')
        for k4 in range(4):
            e('buffer_store_dwordx4 %s, v10, %s, 0 offen offset:%d sc1' % (vr(LG + 4 * k4, 4), sq(rWS), 256 * k4))
        for k4 in range(4):
            e('buffer_load_dwordx4 %s, v11, %s, 0 offen offset:%d sc1' % (vr(XR + 4 * k4, 4), sq(rWS), 256 * k4))
        e('s_mov_b64 exec, -1')
        self.ts(5)
        e('s_mov_b32 s70, 0x05040100\ns_mov_b32 s71, 0x07060302')
        for w in range(0, 8, 2):
            while pend and issued < min(24 + 3 * (w + 2) + 9, 48):
                e(pend.pop(0)); issued += 1
            e('s_waitcnt lgkmcnt(%d)' % (issued - 24 - 3 * (w + 2)))
            for j in range(10):
                e('v_perm_b32 v%d, v%d, v%d, s70' % (K + 10 * w + 2 * j, V + 10 * (w + 1) + j, V + 10 * w + j))
                e('v_perm_b32 v%d, v%d, v%d, s71' % (K + 10 * w + 2 * j + 1, V + 10 * (w + 1) + j, V + 10 * w + j))
        for j in range(20):
            e('v_mov_b32 v%d, 0' % (O + j))
        e('s_mov_b32 s15, %d\ns_mov_b64 exec, s[72:73]' % SPIN)
        e('L_xchk:\ns_waitcnt vmcnt(0)')
        e('v_xor_b32 v3, v7, v%d\nv_xor_b32 v4, v7, v%d' % (XR + 1, XR + 3))
        for w in range(2, 8):
            e('v_xor_b32 v5, v7, v%d\nv_or_b32 v%d, v%d, v5' % (XR + 2 * w + 1, 3 + (w & 1), 3 + (w & 1)))
        e("""v_or_b32 v3, v3, v4
        v_cmp_ne_u32 vcc, 0, v3
        s_cmp_eq_u64 vcc, 0
        s_cbranch_scc1 L_xok
        s_sub_u32 s15, s15, 1
        s_cmp_eq_u32 s15, 0
        s_cbranch_scc1 L_xok""")
        for k4 in range(4):
            e('buffer_load_dwordx4 %s, v11, %s, 0 offen offset:%d sc1' % (vr(XR + 4 * k4, 4), sq(rWS), 256 * k4))
        e('s_branch L_xchk\nL_xok:')
        for w in range(8):
            e('v_add_f32 v%d, v%d, v%d' % (LG + 2 * w, LG + 2 * w, XR + 2 * w))
        e('s_mov_b64 exec, -1')
        self.ts(6)
        E = XR
        for w in range(0, 8, 2):
            e('v_cvt_pk_bf16_f32 v%d, v%d, v%d' % (LG + w, LG + 2 * w, LG + 2 * w + 2))
        for w in range(0, 8, 2):
            e('v_lshlrev_b32 v%d, 16, v%d\nv_and_b32 v%d, 0xffff0000, v%d' % (E + w, LG + w, E + w + 1, LG + w))
        for w in range(8):
            e('v_mul_f32 v%d, 0x3e64f92e, v%d' % (E + w, E + w))
        for w in range(0, 8, 2):
            e('v_cvt_pk_bf16_f32 v%d, v%d, v%d' % (LG + w, E + w, E + w + 1))
        for w in range(0, 8, 2):
            e('v_lshlrev_b32 v%d, 16, v%d\nv_and_b32 v%d, 0xffff0000, v%d' % (E + w, LG + w, E + w + 1, LG + w))
        e("""s_or_b32 s11, s6, s5
        s_cmp_lg_u32 s11, 0
        s_cbranch_scc1 L_nomask
        v_mov_b32 v3, 0xce6e6b28""")
        for w in range(1, 8):
            e('v_cmp_le_u32 vcc, %d, v1\nv_cndmask_b32 v%d, v3, v%d, vcc' % (2 * w, E + w, E + w))
        e('L_nomask:')
        e("""v_max3_f32 v3, v%d, v%d, v%d
        v_max3_f32 v4, v%d, v%d, v%d
        v_max3_f32 v3, v%d, v%d, v3
        v_max_f32 v3, v3, v4""" % tuple(E + w for w in range(8)))
        for w in range(8):
            e('v_sub_f32 v%d, v%d, v3' % (E + w, E + w))
        for w in range(8):
            e('v_mul_f32 v%d, 0x3fb8aa3b, v%d' % (E + w, E + w))
        for w in range(8):
            e('v_exp_f32 v%d, v%d' % (E + w, E + w))
        e("""v_add_f32 v3, v%d, v%d
        v_add_f32 v4, v%d, v%d
        v_add_f32 v5, v%d, v%d
        v_add_f32 v6, v%d, v%d
        v_add_f32 v3, v3, v4
        v_add_f32 v5, v5, v6
        v_add_f32 v3, v3, v5
        v_rcp_f32 v3, v3""" % tuple(E + w for w in range(8)))
        for w in range(8):
            e('v_mul_f32 v%d, v%d, v3' % (E + w, E + w))
        for w in range(0, 8, 2):
            e('v_cvt_pk_bf16_f32 v%d, v%d, v%d' % (LG + w, E + w, E + w + 1))
        for w in range(0, 8, 2):
            for j in range(20):
                e('v_dot2c_f32_bf16 v%d, v%d, v%d' % (O + j, LG + w, K + 10 * w + j))
        for j in range(10):
            e('v_cvt_pk_bf16_f32 v%d, v%d, v%d' % (Q + j, O + 2 * j, O + 2 * j + 1))
        off = 14 * P
        e('ds_write_b128 v8, %s offset:%d\nds_write_b128 v8, %s offset:%d\nds_write_b64 v9, %s offset:%d' % (vr(Q, 4), off, vr(Q + 4, 4), off + 16, vr(Q + 8, 2), off))
        e("""v_and_b32 v3, 15, v0
        s_lshl_b32 s11, s5, 4
        s_add_u32 s11, s11, 16
        v_add_u32 v3, s11, v3
        v_mul_u32_u24 v3, %d, v3
        v_lshl_add_u32 v3, v2, 4, v3
        s_lshl_b32 s11, s7, 3
        v_add_u32 v3, s11, v3
        s_mul_i32 s12, s6, 6
        s_add_u32 s12, s12, s5
        s_mul_i32 s13, s12, 20
        s_lshl_b32 s11, s8, 1
        s_add_u32 s13, s13, s11
        s_lshl_b32 s13, s13, 10
        s_add_u32 s13, s13, %d
        v_lshlrev_b32 v4, 4, v0
        s_waitcnt lgkmcnt(0)
        ds_read2_b64 v[32:35], v3 offset0:0 offset1:1
        ds_read2_b64 v[36:39], v3 offset0:8 offset1:9
        s_cmp_ge_u32 s12, 128
        s_cbranch_scc1 L_phase2
        s_lshl_b32 s12, s12, 6
        s_lshl_b32 s11, s8, 2
        s_add_u32 s12, s12, s11
        s_add_u32 s12, s12, %d
        v_mov_b32 v5, 0
        s_waitcnt lgkmcnt(1)
        buffer_store_dwordx4 v[32:35], v4, %s, s13 offen sc1
        s_waitcnt lgkmcnt(0)
        buffer_store_dwordx4 v[36:39], v4, %s, s13 offen offset:1024 sc1
        s_waitcnt vmcnt(0)
        s_mov_b64 exec, 1
        buffer_store_dword v7, v5, %s, s12 offen sc1
        s_mov_b64 exec, -1""" % (P, WS_O, WS_FLAG, sq(rWS), sq(rWS), sq(rWS)))

    def phase2(self):
        e = self.e
        NPRE = 7
        WF, OF, AC, XF, XN = 16, 156, 196, 216, 228
        e('L_phase2:')
        self.ts(7)
        self.srd(rOUT, pOUT, XB)
        e("""s_lshl_b32 s68, s3, 2
        s_lshr_b32 s11, s4, 3
        s_add_u32 s68, s68, s11
        s_lshl_b32 s68, s68, 2
        s_and_b32 s12, s5, 3
        s_add_u32 s68, s68, s12
        s_lshr_b32 s69, s5, 2
        s_and_b32 s74, s4, 7
        s_mul_i32 s74, s74, 80
        s_mul_i32 s12, s69, 48
        s_add_u32 s74, s74, s12
        v_and_b32 v1, 15, v0
        v_lshrrev_b32 v2, 4, v0
        s_lshl_b32 s12, s68, 4
        v_add_u32 v3, s12, v1
        v_lshlrev_b32 v4, 4, v3
        v_add_u32 v4, %d, v4
        v_mul_u32_u24 v3, 1280, v3
        v_lshl_add_u32 v3, v2, 3, v3
        s_lshl_b32 s12, s74, 1
        v_add_u32 v14, s12, v3
        v_mov_b32 v15, 0
        buffer_load_dwordx2 v[240:241], v4, %s, 0 offen sc1
        buffer_load_dwordx4 v[244:247], v15, %s, 0 offen offset:%d sc1""" % (WS_STAT, sq(rWS), sq(rWS), WS_SEL))
        for k in range(3):
            e('buffer_load_dwordx2 %s, v14, %s, 0 offen offset:%d' % (vr(248 + 2 * k, 2), sq(rX), 32 * k))
        e("""v_lshrrev_b32 v3, 2, v1
        v_and_b32 v5, 3, v1
        v_and_b32 v6, 1, v2
        v_lshl_add_u32 v3, v2, 3, v3
        v_lshl_add_u32 v7, v6, 2, v3
        v_xor_b32 v6, 1, v6
        v_lshl_add_u32 v3, v6, 2, v3
        v_mul_u32_u24 v7, 160, v7
        v_mul_u32_u24 v3, 160, v3
        v_lshl_add_u32 v7, v5, 3, v7
        v_lshl_add_u32 v3, v5, 3, v3
        s_lshl_b32 s12, s69, 1
        s_sub_u32 s12, s12, s11
        s_and_b32 s13, s12, 3
        s_mul_i32 s13, s13, 25600
        s_add_u32 s13, s13, %d
        v_add_u32 v8, s13, v7
        v_add_u32 v9, s13, v3
        s_add_u32 s12, s12, 1
        s_and_b32 s13, s12, 3
        s_mul_i32 s13, s13, 25600
        s_add_u32 s13, s13, %d
        v_add_u32 v10, s13, v7
        v_add_u32 v11, s13, v3
        s_waitcnt vmcnt(0) lgkmcnt(0)
        s_barrier""" % (WOIMG, WOIMG))
        def wrd(ks, slot):
            ops = []
            for t in range(5):
                for hh in range(2):
                    ops.append('ds_read_b64_tr_b16 %s, v%d offset:%d' % (vr(WF + 20 * slot + 4 * t + 2 * hh, 2), 8 + 2 * (ks // 5) + hh, (ks % 5) * 5120 + 32 * t))
            return ops
        for ks in range(NPRE):
            for x in wrd(ks, ks): e(x)
        e('s_mov_b32 s15, %d' % SPIN)
        e("""L_p2chk:
        v_xor_b32 v3, %s, v241
        v_xor_b32 v5, %s, v245
        v_xor_b32 v6, %s, v247
        v_or3_b32 v3, v3, v5, v6
        v_cmp_ne_u32 vcc, 0, v3
        s_cmp_eq_u64 vcc, 0
        s_cbranch_scc1 L_p2ok
        s_sub_u32 s15, s15, 1
        s_cmp_eq_u32 s15, 0
        s_cbranch_scc1 L_p2ok
        buffer_load_dwordx2 v[240:241], v4, %s, 0 offen sc1
        buffer_load_dwordx4 v[244:247], v15, %s, 0 offen offset:%d sc1
        s_waitcnt vmcnt(0)
        s_branch L_p2chk
        L_p2ok:
        v_and_b32 v3, 0xffff0000, v240
        v_rcp_f32 v242, v3
        v_lshlrev_b32 v240, 16, v240""" % (sTAG, sTAG, sTAG, sq(rWS), sq(rWS), WS_SEL))
        for d in range(6):
            e('v_lshlrev_b32 v%d, 16, v%d\nv_and_b32 v%d, 0xffff0000, v%d' % (XF + 2 * d, 248 + d, XF + 2 * d + 1, 248 + d))
        for d in range(6):
            e('v_pk_add_f32 %s, %s, v[240:241] op_sel_hi:[1,0] neg_lo:[0,1] neg_hi:[0,1]' % (vr(XN + 2 * d, 2), vr(XF + 2 * d, 2)))
        def rnd(base, n):
            for d in range(n):
                e('v_cvt_pk_bf16_f32 v%d, v%d, v%d' % (248 + d, base + 2 * d, base + 2 * d + 1))
            for d in range(n):
                e('v_lshlrev_b32 v%d, 16, v%d\nv_and_b32 v%d, 0xffff0000, v%d' % (base + 2 * d, 248 + d, base + 2 * d + 1, 248 + d))
        rnd(XN, 6)
        for d in range(6):
            e('v_pk_mul_f32 %s, %s, v[242:243] op_sel_hi:[1,0]' % (vr(XN + 2 * d, 2), vr(XN + 2 * d, 2)))
        rnd(XN, 6)
        e('v_readfirstlane_b32 s76, v244\nv_readfirstlane_b32 s77, v246\ns_mov_b32 s78, 0')
        e("""L_exrow:
        s_and_b32 s11, s76, 0xffff
        s_sub_u32 s11, 2047, s11
        s_lshr_b32 s12, s11, 4
        s_cmp_lg_u32 s12, s68
        s_cbranch_scc1 L_exnext
        s_and_b32 s79, s11, 15
        v_lshlrev_b32 v3, 2, v0
        v_add_u32 v3, %d, v3
        s_mov_b32 s15, %d
        s_mov_b64 exec, 0xffffff
        L_yf:
        buffer_load_dword v5, v3, %s, 0 offen sc1
        s_waitcnt vmcnt(0)
        v_cmp_ne_u32 vcc, %s, v5
        s_cmp_eq_u64 vcc, 0
        s_cbranch_scc1 L_yok
        s_sub_u32 s15, s15, 1
        s_cmp_lg_u32 s15, 0
        s_cbranch_scc1 L_yf
        L_yok:
        s_mov_b64 exec, -1
        v_mul_u32_u24 v3, 5120, v1
        v_lshl_add_u32 v3, v2, 4, v3
        v_add_u32 v5, 0x14000, v3
        v_mov_b32 v6, 0x7f000000
        v_cmp_gt_u32 vcc, 8, v1
        v_cndmask_b32 v5, v6, v5, vcc
        s_mul_i32 s12, s78, 2560
        s_lshl_b32 s13, s74, 2
        s_add_u32 s12, s12, s13
        s_add_u32 s12, s12, %d""" % (WS_YFLAG, SPIN, sq(rWS), sTAG, WS_Y))
        for k in range(3):
            e('buffer_load_dwordx4 %s, v3, %s, s12 offen offset:%d sc1' % (vr(OF + 4 * k, 4), sq(rWS), 64 * k))
            e('buffer_load_dwordx4 %s, v5, %s, s12 offen offset:%d sc1' % (vr(OF + 12 + 4 * k, 4), sq(rWS), 64 * k))
        e("""s_lshr_b32 s11, s76, 16
        s_bitcmp1_b32 s11, 15
        s_cselect_b32 s13, 0x8000, 0xffff
        s_xor_b32 s11, s11, s13
        s_lshl_b32 s11, s11, 16
        v_mov_b32 v6, 0xbfb8aa3b
        v_mul_f32 v6, s11, v6
        v_exp_f32 v6, v6
        v_add_f32 v6, 1.0, v6
        v_rcp_f32 v6, v6
        v_cvt_pk_bf16_f32 v6, v6, v6
        v_and_b32 v6, 0xffff0000, v6
        v_cmp_eq_u32 vcc, s79, v1
        s_waitcnt vmcnt(0)""".replace('s_cselect_b32 s13, 0x8000, 0xffff', 's_mov_b32 s13, 0xffff\ns_cmov_b32 s13, 0x8000'))
        for r in range(12):
            e('v_add_f32 v%d, v%d, v%d' % (OF + r, OF + r, OF + 12 + r))
        for n in (8, 4, 2, 1):
            for r in range(12):
                e('v_add_f32_dpp v%d, v%d, v%d row_ror:%d row_mask:0xf bank_mask:0xf' % (OF + r, OF + r, OF + r, n))
        rnd(OF, 6)
        for r in range(12):
            e('v_mul_f32 v%d, v%d, v6' % (OF + r, OF + r))
        rnd(OF, 6)
        for r in range(12):
            e('v_add_f32 v%d, v%d, v%d' % (OF + r, OF + r, XN + r))
        rnd(OF, 6)
        for r in range(12):
            e('v_cndmask_b32 v%d, v%d, v%d, vcc' % (XN + r, XN + r, OF + r))
        e("""L_exnext:
        s_mov_b32 s76, s77
        s_add_u32 s78, s78, 1
        s_cmp_lt_u32 s78, 2
        s_cbranch_scc1 L_exrow""")
        e("""s_lshl_b32 s12, s68, 6
        s_mul_i32 s13, s69, 20
        s_add_u32 s12, s12, s13
        s_add_u32 s12, s12, %d
        v_lshlrev_b32 v3, 2, v0
        v_lshlrev_b32 v4, 4, v0
        s_mul_i32 s13, s68, 20
        s_mul_i32 s14, s69, 10
        s_add_u32 s13, s13, s14
        s_lshl_b32 s13, s13, 10
        s_add_u32 s13, s13, %d
        s_mov_b32 s15, %d
        s_mov_b64 exec, 31
        L_of:
        buffer_load_dword v5, v3, %s, s12 offen sc1
        s_waitcnt vmcnt(0)
        v_cmp_ne_u32 vcc, %s, v5
        s_cmp_eq_u64 vcc, 0
        s_cbranch_scc1 L_ook
        s_sub_u32 s15, s15, 1
        s_cmp_lg_u32 s15, 0
        s_cbranch_scc1 L_of
        L_ook:
        s_mov_b64 exec, -1""" % (WS_FLAG, WS_O, SPIN, sq(rWS), sTAG))
        self.ts(8)
        for ks in range(10):
            if ks and ks % 4 == 0:
                e('s_add_u32 s13, s13, 4096')
            e('buffer_load_dwordx4 %s, v4, %s, s13 offen offset:%d sc1' % (vr(OF + 4 * ks, 4), sq(rWS), 1024 * (ks % 4)))
        e('s_waitcnt lgkmcnt(0)')
        for ks in range(10):
            slot = ks if ks < NPRE else ks - NPRE
            e('s_waitcnt vmcnt(%d)' % (9 - ks))
            if ks >= NPRE:
                e('s_waitcnt lgkmcnt(%d)' % min(15, 10 * (9 - ks)))
            for t in range(5):
                c = '0' if ks == 0 else vr(AC + 4 * t, 4)
                e('v_mfma_f32_16x16x32_bf16 %s, %s, %s, %s' % (vr(AC + 4 * t, 4), vr(WF + 20 * slot + 4 * t, 4), vr(OF + 4 * ks, 4), c))
            if ks + NPRE < 10:
                for x in wrd(ks + NPRE, ks): e(x)
        e("""s_and_b32 s11, s5, 3
        s_mul_i32 s11, s11, 5120
        v_add_u32 v4, s11, v4
        s_cmp_eq_u32 s69, 0
        s_cbranch_scc0 L_red1""")
        for t in (3, 4):
            e('ds_write_b128 v4, %s offset:%d' % (vr(AC + 4 * t, 4), 1024 * t))
        e('s_waitcnt lgkmcnt(0)\ns_barrier')
        for t in range(3):
            e('ds_read_b128 %s, v4 offset:%d' % (vr(OF + 4 * t, 4), 1024 * t))
        e('s_branch L_red2\nL_red1:')
        for t in range(3):
            e('ds_write_b128 v4, %s offset:%d' % (vr(AC + 4 * t, 4), 1024 * t))
        e('s_waitcnt lgkmcnt(0)\ns_barrier')
        for t in (3, 4):
            e('ds_read_b128 %s, v4 offset:%d' % (vr(OF + 4 * (t - 3), 4), 1024 * t))
        for r in range(8):
            e('v_mov_b32 v%d, v%d' % (AC + r, AC + 12 + r))
        e('L_red2:\ns_waitcnt lgkmcnt(0)')
        for d in range(6):
            e('v_pk_add_f32 %s, %s, %s' % (vr(AC + 2 * d, 2), vr(AC + 2 * d, 2), vr(OF + 2 * d, 2)))
        rnd(AC, 6)
        for d in range(6):
            e('v_pk_add_f32 %s, %s, %s' % (vr(AC + 2 * d, 2), vr(AC + 2 * d, 2), vr(XF + 2 * d, 2)))
        rnd(AC, 6)
        for d in range(6):
            e('v_pk_add_f32 %s, %s, %s' % (vr(AC + 2 * d, 2), vr(AC + 2 * d, 2), vr(XN + 2 * d, 2)))
        for d in range(6):
            e('v_cvt_pk_bf16_f32 v%d, v%d, v%d' % (248 + d, AC + 2 * d, AC + 2 * d + 1))
        e('buffer_store_dwordx2 v[248:249], v14, %s, 0 offen' % sq(rOUT))
        e('buffer_store_dwordx2 v[250:251], v14, %s, 0 offen offset:32' % sq(rOUT))
        e('s_cmp_lg_u32 s69, 0\ns_cbranch_scc1 L_fin')
        e('buffer_store_dwordx2 v[252:253], v14, %s, 0 offen offset:64' % sq(rOUT))
        e('L_fin:')
        if self.opt.get('ts'):
            e('s_waitcnt vmcnt(0)')
            self.ts(9)
            e('s_waitcnt lgkmcnt(0)')
            for k in range(10):
                e('v_mov_b32 v%d, s%d' % (16 + k, 80 + 2 * k))
            e("""s_lshl_b32 s11, s2, 3
            s_add_u32 s11, s11, s5
            s_lshl_b32 s11, s11, 6
            s_add_u32 s11, s11, %d
            s_mov_b64 exec, 1
            buffer_store_dwordx4 v[16:19], v15, %s, s11 offen
            buffer_store_dwordx4 v[20:23], v15, %s, s11 offen offset:16
            buffer_store_dwordx2 v[24:25], v15, %s, s11 offen offset:32""" % (WS_TS, sq(rWS), sq(rWS), sq(rWS)))
        e('s_endpgm')

    def wo_all(self):
        e = self.e
        self.wo_setup(20)
        sk = self.lab('wos')
        e('s_mov_b32 s71, s5'); self.wo_block(20, 's71')
        e('s_add_u32 s71, s5, 8'); self.wo_block(20, 's71')
        e('s_cmp_ge_u32 s5, 4\ns_cbranch_scc1 %s' % sk)
        e('s_add_u32 s71, s5, 16'); self.wo_block(20, 's71')
        e('%s:' % sk)

    def idle(self):
        e = self.e
        e('L_idle:')
        e('s_cmp_lt_u32 s5, 2\ns_cbranch_scc1 L_idle2')
        self.get_tag(4, 5)
        e('L_idle2:')
        self.wo_all()
        e('s_branch L_phase2')

    def expert(self):
        e = self.e
        WG_, WD, XS = 32, 112, 152
        BUF = 40960
        e('L_expert:')
        e("""s_mul_i32 s68, s3, 3
        s_add_u32 s68, s68, s4
        s_sub_u32 s68, s68, 28
        s_and_b32 s14, s5, 3
        s_lshr_b32 s69, s5, 2
        s_cmp_eq_u32 s69, 0
        s_cselect_b32 s44, s26, s28
        s_cselect_b32 s45, s27, s29
        s_mov_b32 s46, %d
        s_mov_b32 s47, 0x20000""" % GB)
        self.srd(rD, pD, GB)
        e("""v_lshrrev_b32 v2, 3, v0
        v_and_b32 v3, 7, v0
        v_bfe_u32 v4, v0, 4, 1
        s_and_b32 s11, s14, 1
        v_lshl_or_b32 v4, s11, 1, v4
        v_lshlrev_b32 v4, 1, v4
        v_xor_b32 v4, v3, v4
        s_lshl_b32 s11, s14, 3
        v_add_u32 v2, s11, v2
        v_mul_u32_u24 v2, 3072, v2
        v_lshl_add_u32 v2, v4, 4, v2
        s_lshl_b32 s11, s68, 7
        v_add_u32 v10, s11, v2
        s_mul_i32 s70, s69, 20480
        s_lshl_b32 s11, s14, 10
        s_add_u32 s71, s70, s11
        s_mul_i32 s72, s5, 5120
        s_mul_i32 s73, s68, 81920
        s_add_u32 s73, s73, s72
        s_bfe_u32 s11, s5, 0x10001
        s_lshl_b32 s11, s11, 2""")
        for a in range(5):
            e("""v_add_u32 v2, %d, v0
            v_mul_u32_u24 v3, 820, v2
            v_lshrrev_b32 v3, 16, v3
            v_mul_u32_u24 v4, 80, v3
            v_sub_u32 v4, v2, v4
            v_or_b32 v5, s11, v3
            v_lshlrev_b32 v5, 1, v5
            v_xor_b32 v4, v4, v5
            v_mul_u32_u24 v3, 1280, v3
            v_lshl_add_u32 v%d, v4, 4, v3""" % (64 * a, 11 + a))
        nt = ' nt' if self.opt.get('nt', 1) else ''
        def issue(s):
            base = (s % 3) * BUF
            for a in range(5):
                if s < 4:
                    e('s_add_u32 m0, s71, %d\ns_mov_b32 s12, %d' % (base + a * 4096, (160 * s + 32 * a) * 3072))
                    e('buffer_load_dwordx4 v10, %s, s12 offen%s lds' % (sq(rW), nt))
                else:
                    e('s_add_u32 m0, s72, %d\ns_add_u32 s12, s73, %d' % (base + a * 1024, (s - 4) * 40960))
                    e('buffer_load_dwordx4 v%d, %s, s12 offen%s lds' % (11 + a, sq(rD), nt))
        for s in range(3): issue(s)
        e("""v_and_b32 v1, 15, v0
        v_lshrrev_b32 v2, 4, v0
        v_lshrrev_b32 v3, 2, v1
        v_and_b32 v4, 3, v1
        v_lshrrev_b32 v5, 1, v3
        v_and_b32 v6, 1, v2
        v_lshl_or_b32 v5, v6, 1, v5
        v_xor_b32 v5, s14, v5
        v_lshl_add_u32 v7, v2, 3, v3
        v_lshlrev_b32 v8, 7, v7
        v_lshl_add_u32 v8, v5, 5, v8
        v_lshl_add_u32 v8, v4, 3, v8
        v_add_u32 v16, s70, v8
        v_lshl_or_b32 v5, v6, 2, v3
        v_mul_u32_u24 v7, 1280, v7
        v_lshl_add_u32 v7, v4, 3, v7
        s_mul_i32 s11, s5, 5""")
        for j in range(5):
            e("""s_add_u32 s12, s11, %d
            v_xor_b32 v8, s12, v5
            v_lshl_add_u32 v%d, v8, 5, v7""" % (j, 17 + j))
        for s in range(6):
            base = (s % 3) * BUF
            e('s_waitcnt vmcnt(%d)\ns_barrier' % (5 * min(2, 5 - s)))
            if s < 4:
                e('v_add_u32 v8, %d, v16' % base)
                for a in range(5):
                    for hh in range(2):
                        e('ds_read_b64_tr_b16 %s, v8 offset:%d' % (vr(WG_ + 20 * s + 4 * a + 2 * hh, 2), (32 * a + 4 * hh) * 128))
            else:
                for j in range(5):
                    e('v_add_u32 v8, %d, v%d' % (base, 17 + j))
                    for hh in range(2):
                        e('ds_read_b64_tr_b16 %s, v8 offset:%d' % (vr(WD + 20 * (s - 4) + 4 * j + 2 * hh, 2), 5120 * hh))
            e('s_waitcnt lgkmcnt(0)\ns_barrier')
            if s + 3 < 6: issue(s + 3)
        self.ts(2)
        e('s_cmp_lt_u32 s5, 2\ns_cbranch_scc1 L_ex2')
        self.get_tag(4, 5)
        e('L_ex2:')
        e("""s_lshl_b32 s11, s5, 6
        v_add_u32 v3, s11, v0
        v_lshlrev_b32 v4, 4, v3
        v_add_u32 v4, %d, v4
        s_mov_b32 s15, %d
        L_sweep:""" % (WS_STAT + 8, SPIN))
        for j in range(4):
            e('s_mov_b32 s12, %d\nbuffer_load_dwordx2 %s, v4, %s, s12 offen sc1' % (8192 * j, vr(22 + 2 * j, 2), sq(rWS)))
        e("""s_waitcnt vmcnt(0)
        v_xor_b32 v5, %s, v23
        v_xor_b32 v6, %s, v25
        v_xor_b32 v7, %s, v27
        v_xor_b32 v8, %s, v29
        v_or3_b32 v5, v5, v6, v7
        v_or_b32 v5, v5, v8
        v_cmp_ne_u32 vcc, 0, v5
        s_cmp_eq_u64 vcc, 0
        s_cbranch_scc1 L_swok
        s_sub_u32 s15, s15, 1
        s_cmp_lg_u32 s15, 0
        s_cbranch_scc1 L_sweep
        L_swok:""" % (sTAG, sTAG, sTAG, sTAG))
        def wavemax(dst):
            e('v_max3_u32 v5, v22, v24, v26\nv_max_u32 v5, v5, v28')
            self.allreduce16(5, 'v_max_u32')
            e("""v_readlane_b32 s11, v5, 0
            v_readlane_b32 s12, v5, 16
            v_readlane_b32 s13, v5, 32
            v_readlane_b32 %s, v5, 48
            s_max_u32 s11, s11, s12
            s_max_u32 s13, s13, %s
            s_max_u32 %s, s11, s13""" % (dst, dst, dst))
        wavemax('s76')
        for j in range(4):
            e('v_cmp_ne_u32 vcc, s76, v%d\nv_cndmask_b32 v%d, 0, v%d, vcc' % (22 + 2 * j, 22 + 2 * j, 22 + 2 * j))
        wavemax('s77')
        e("""v_mov_b32 v6, s76
        v_mov_b32 v7, s77
        s_lshl_b32 s11, s5, 3
        v_mov_b32 v5, s11
        ds_write_b64 v5, v[6:7]
        s_waitcnt lgkmcnt(0)
        s_barrier
        v_lshlrev_b32 v5, 2, v1
        ds_read_b32 v6, v5
        s_waitcnt lgkmcnt(0)
        v_mov_b32 v5, v6""")
        self.allreduce16(5, 'v_max_u32')
        e("""v_readfirstlane_b32 s76, v5
        v_cmp_ne_u32 vcc, s76, v6
        v_cndmask_b32 v5, 0, v6, vcc""")
        self.allreduce16(5, 'v_max_u32')
        e('v_readfirstlane_b32 s77, v5')
        e("""s_or_b32 s11, s68, s5
        s_cmp_lg_u32 s11, 0
        s_cbranch_scc1 L_nosel
        v_mov_b32 v22, s76
        v_mov_b32 v23, %s
        v_mov_b32 v24, s77
        v_mov_b32 v25, %s
        v_mov_b32 v5, 0
        s_mov_b64 exec, 1
        buffer_store_dwordx4 v[22:25], v5, %s, 0 offen offset:%d sc1
        s_mov_b64 exec, -1
        L_nosel:""" % (sTAG, sTAG, sq(rWS), WS_SEL))
        e("""s_and_b32 s11, s76, 0xffff
        s_sub_u32 s11, 2047, s11
        s_and_b32 s12, s77, 0xffff
        s_sub_u32 s12, 2047, s12
        v_mov_b32 v5, s11
        v_mov_b32 v6, s12
        v_cmp_gt_u32 vcc, 80, v3
        v_cndmask_b32 v5, v6, v5, vcc
        v_subrev_u32 v6, 80, v3
        v_cndmask_b32 v6, v6, v3, vcc
        v_mov_b32 v7, 1296
        v_cndmask_b32 v7, v7, 0, vcc
        v_lshl_add_u32 v7, v6, 4, v7
        v_lshlrev_b32 v8, 4, v5
        v_add_u32 v8, %d, v8
        v_mul_u32_u24 v5, 1280, v5
        v_lshl_add_u32 v5, v6, 4, v5
        s_cmp_ge_u32 s5, 3
        s_cbranch_scc1 L_noxn
        v_cmp_gt_u32 vcc, 160, v3
        s_and_saveexec_b64 s[12:13], vcc
        buffer_load_dwordx4 v[22:25], v5, %s, 0 offen
        buffer_load_dword v26, v8, %s, 0 offen sc1
        s_waitcnt vmcnt(0)
        v_and_b32 v27, 0xffff0000, v26
        v_rcp_f32 v28, v27
        v_lshlrev_b32 v26, 16, v26""" % (WS_STAT, sq(rX), sq(rWS)))
        F = 232
        def unp():
            for d in range(4):
                e('v_lshlrev_b32 v%d, 16, v%d\nv_and_b32 v%d, 0xffff0000, v%d' % (F + 2 * d, 22 + d, F + 2 * d + 1, 22 + d))
        def pk():
            for d in range(4):
                e('v_cvt_pk_bf16_f32 v%d, v%d, v%d' % (22 + d, F + 2 * d, F + 2 * d + 1))
        unp()
        for r in range(8): e('v_sub_f32 v%d, v%d, v26' % (F + r, F + r))
        pk(); unp()
        for r in range(8): e('v_mul_f32 v%d, v%d, v28' % (F + r, F + r))
        pk()
        e("""ds_write_b128 v7, v[22:25] offset:256
        s_mov_b64 exec, -1
        L_noxn:
        v_and_b32 v5, 1, v1
        v_mul_u32_u24 v6, 1296, v5
        v_lshl_add_u32 v6, v2, 4, v6
        s_waitcnt lgkmcnt(0)
        s_barrier""")
        for ks in range(20):
            e('ds_read_b128 %s, v6 offset:%d' % (vr(XS + 4 * ks, 4), 256 + 64 * ks))
        for ks in range(20):
            e('s_waitcnt lgkmcnt(%d)' % min(15, 19 - ks)) if ks >= 4 or ks == 0 else None
            e('v_mfma_f32_16x16x32_bf16 v[22:25], %s, %s, %s' % (vr(WG_ + 4 * ks, 4), vr(XS + 4 * ks, 4), '0' if ks == 0 else 'v[22:25]'))
        e("""v_cvt_pk_bf16_f32 v26, v22, v23
        v_cvt_pk_bf16_f32 v27, v24, v25
        s_lshl_b32 s11, s14, 9
        v_lshlrev_b32 v7, 3, v0
        v_add_u32 v7, s11, v7
        s_cmp_eq_u32 s69, 0
        s_cbranch_scc1 L_exg
        ds_write_b64 v7, v[26:27] offset:4096
        s_waitcnt lgkmcnt(0)
        s_barrier
        s_branch L_exh
        L_exg:
        v_lshlrev_b32 v22, 16, v26
        v_and_b32 v23, 0xffff0000, v26
        v_lshlrev_b32 v24, 16, v27
        v_and_b32 v25, 0xffff0000, v27""")
        for r in range(4): e('v_mul_f32 v%d, 0xbfb8aa3b, v%d' % (F + r, 22 + r))
        for r in range(4): e('v_exp_f32 v%d, v%d' % (F + r, F + r))
        for r in range(4): e('v_add_f32 v%d, 1.0, v%d' % (F + r, F + r))
        for r in range(4): e('v_rcp_f32 v%d, v%d' % (F + r, F + r))
        for r in range(4): e('v_mul_f32 v%d, v%d, v%d' % (22 + r, 22 + r, F + r))
        e("""v_cvt_pk_bf16_f32 v26, v22, v23
        v_cvt_pk_bf16_f32 v27, v24, v25
        v_lshlrev_b32 v22, 16, v26
        v_and_b32 v23, 0xffff0000, v26
        v_lshlrev_b32 v24, 16, v27
        v_and_b32 v25, 0xffff0000, v27
        s_barrier
        ds_read_b64 v[26:27], v7 offset:4096
        v_lshlrev_b32 v8, 7, v1
        v_lshl_add_u32 v8, v2, 3, v8
        s_lshl_b32 s11, s14, 5
        v_add_u32 v8, s11, v8
        s_waitcnt lgkmcnt(0)
        v_lshlrev_b32 v28, 16, v26
        v_and_b32 v29, 0xffff0000, v26
        v_lshlrev_b32 v30, 16, v27
        v_and_b32 v31, 0xffff0000, v27
        v_mul_f32 v22, v22, v28
        v_mul_f32 v23, v23, v29
        v_mul_f32 v24, v24, v30
        v_mul_f32 v25, v25, v31
        v_cvt_pk_bf16_f32 v26, v22, v23
        v_cvt_pk_bf16_f32 v27, v24, v25
        ds_write_b64 v8, v[26:27] offset:8192
        s_waitcnt lgkmcnt(0)
        L_exh:
        v_lshlrev_b32 v6, 7, v5
        v_lshl_add_u32 v6, v2, 4, v6
        s_barrier
        ds_read_b128 v[22:25], v6 offset:8192
        ds_read_b128 v[26:29], v6 offset:8256
        v_mul_u32_u24 v7, 2560, v1
        v_lshl_add_u32 v7, v2, 4, v7
        s_mul_i32 s11, s68, 5120
        s_mul_i32 s12, s5, 320
        s_add_u32 s11, s11, s12
        s_add_u32 s11, s11, %d
        s_waitcnt lgkmcnt(0)""" % WS_Y)
        for j in range(5):
            e('v_mfma_f32_16x16x32_bf16 %s, %s, v[22:25], 0' % (vr(XS + 4 * j, 4), vr(WD + 4 * j, 4)))
        for j in range(5):
            e('v_mfma_f32_16x16x32_bf16 %s, %s, v[26:29], %s' % (vr(XS + 4 * j, 4), vr(WD + 20 + 4 * j, 4), vr(XS + 4 * j, 4)))
        e('v_cmp_gt_u32 vcc, 2, v1\ns_and_saveexec_b64 s[12:13], vcc')
        for j in range(5):
            e('buffer_store_dwordx4 %s, v7, %s, s11 offen offset:%d sc1' % (vr(XS + 4 * j, 4), sq(rWS), 64 * j))
        e("""s_mov_b64 exec, -1
        s_waitcnt vmcnt(0)
        s_barrier
        s_cmp_lg_u32 s5, 0
        s_cbranch_scc1 L_noyf
        s_lshl_b32 s11, s68, 2
        v_mov_b32 v5, s11
        v_mov_b32 v6, %s
        s_mov_b64 exec, 1
        buffer_store_dword v6, v5, %s, 0 offen offset:%d sc1
        s_mov_b64 exec, -1
        L_noyf:""" % (sTAG, sq(rWS), WS_YFLAG))
        self.ts(3)
        self.wo_all()
        e('s_branch L_phase2')

    def build(self):
        self.prologue()
        self.gemm1()
        self.attention()
        self.phase2()
        self.loader()
        self.expert()
        self.idle()
        self.e('L_end:\ns_endpgm')
        return self.L

HEAD = open('cdna_kernels/%s.s.ref' % NAME).read().split('; Override launch')[0]

def generate(opt):
    g = G(opt)
    L = g.build()
    L, added = hz.fix(L)
    k = NAME + '_kernel'
    s = HEAD + '; @launch grid=(256,1,1) block=(512,1,1) lds=%d\n' % LDS_BYTES
    s += '.amdgcn_target "amdgcn-amd-amdhsa--gfx950"\n.text\n.globl %s\n.p2align 8\n.type %s,@function\n%s:\n' % (k, k, k)
    s += '\n'.join(L) + '\n'
    s += """.section .rodata,"a"
.p2align 6
.amdhsa_kernel %s
  .amdhsa_next_free_vgpr 256
  .amdhsa_next_free_sgpr 102
  .amdhsa_accum_offset 256
  .amdhsa_group_segment_fixed_size 0
  .amdhsa_kernarg_size 88
  .amdhsa_user_sgpr_count 2
  .amdhsa_user_sgpr_kernarg_segment_ptr 1
  .amdhsa_system_sgpr_workgroup_id_x 1
  .amdhsa_float_denorm_mode_32 3
.end_amdhsa_kernel
""" % k
    import subprocess, re, os, tempfile
    d = tempfile.mkdtemp()
    open(d + '/a.s', 'w').write(s.replace('CODE_LAST', '0x1000'))
    subprocess.run(['clang', '-x', 'assembler', '-target', 'amdgcn-amd-amdhsa', '-mcpu=gfx950', '-c', d + '/a.s', '-o', d + '/a.o'], check=True)
    h = subprocess.run(['llvm-objdump', '-h', d + '/a.o'], capture_output=True, text=True).stdout
    size = int(re.search(r'\.text\s+([0-9a-f]+)', h).group(1), 16)
    generate.size = size
    return s.replace('CODE_LAST', hex((size - 512) & ~3))

if __name__ == '__main__':
    opt = {}
    out = 'cdna_kernels/%s.s' % NAME
    for a in sys.argv[1:]:
        if a.startswith('-o'):
            out = a[2:]
        else:
            kx, vx = a.split('=')
            opt[kx] = int(vx)
    open(out, 'w').write(generate(opt))
    print('wrote', out, 'code bytes', generate.size)
```

```python
def kernel_desc(name, vgpr=256, sgpr=102, accum=None, wgy=False):
    if accum is None:
        accum = min(256, (vgpr + 3) // 4 * 4)
    return '''.section .rodata,"a"
.p2align 6
.amdhsa_kernel %s
  .amdhsa_next_free_vgpr %d
  .amdhsa_next_free_sgpr %d
  .amdhsa_accum_offset %d
  .amdhsa_group_segment_fixed_size 0
  .amdhsa_kernarg_size 88
  .amdhsa_user_sgpr_count 2
  .amdhsa_user_sgpr_kernarg_segment_ptr 1
  .amdhsa_system_sgpr_workgroup_id_x 1
%s.end_amdhsa_kernel
''' % (name, vgpr, sgpr, accum, '  .amdhsa_system_sgpr_workgroup_id_y 1\n' if wgy else '')

def kernel_head(name):
    return '''.text
.globl %s
.p2align 8
.type %s,@function
%s:
''' % (name, name, name)

TARGET = '.amdgcn_target "amdgcn-amd-amdhsa--gfx950"\n'
```

```python
import sys
sys.path.insert(0, 'dev')
import hz

NAME = 'parallel_sum__sliding_local_dilated__moe_arch_mod__prompt'
XB, WB, WOB, GB = 2621440, 2457600, 819200, 1966080
WSB = 0x800000
WS_EPOCH, WS_SEL, WS_YFLAG, WS_STAT, WS_FLAG = 0x0, 0x100, 0x200, 0x1000, 0x9000
WS_XCH, WS_O, WS_Y, WS_DBG = 0x10000, 0x300000, 0x600000, 0x680000
WS_TS = 0x7c0000
SLOT, XPART, DEPTH = 38912, 14336, 3
P = 496
WOIMG = 61440
LDS_BYTES = 163840
SPIN = 200000

sXCD, sSLOT, sWAVE, sI, sLL, sL, sROLE, sTAG = 's3', 's4', 's5', 's6', 's7', 's8', 's9', 's10'
pX, pW, pWO, pWR, pG, pU, pD, pOUT, pDBG, pWS = 16, 18, 20, 24, 26, 28, 30, 32, 34, 36
rX, rW, rWO, rWS, rOUT, rU, rD = 40, 44, 48, 52, 56, 60, 64

def sp(n): return 's[%d:%d]' % (n, n + 1)
def sq(n): return 's[%d:%d]' % (n, n + 3)
def vr(n, k=1): return 'v%d' % n if k == 1 else 'v[%d:%d]' % (n, n + k - 1)

class G:
    def __init__(self, opt):
        self.L = []; self.opt = opt; self.nl = 0; self.nts = 0
    def e(self, s):
        for ln in s.strip('\n').split('\n'):
            ln = ln.strip()
            if not ln: continue
            self.L.append(ln if ln.endswith(':') else '    ' + ln)
    def lab(self, base):
        self.nl += 1
        return 'L_%s_%d' % (base, self.nl)
    def srd(self, r, p, nbytes):
        self.e('s_mov_b32 s%d, s%d\ns_mov_b32 s%d, s%d\ns_mov_b32 s%d, %d\ns_mov_b32 s%d, 0x20000' % (r, p, r + 1, p + 1, r + 2, nbytes, r + 3))
    def ts(self, k):
        if self.opt.get('ts'):
            self.e('s_memrealtime s[%d:%d]' % (80 + 2 * k, 81 + 2 * k))
    def allreduce16(self, v, op='v_add_f32'):
        for n in (8, 4, 2, 1):
            self.e('%s_dpp v%d, v%d, v%d row_ror:%d row_mask:0xf bank_mask:0xf' % (op, v, v, v, n))
    def get_tag(self, vt, vz):
        lo = self.lab('tag'); ok = self.lab('tagok')
        self.e('''v_mov_b32 v%d, 0
        s_mov_b32 s11, %d
        %s:
        global_load_dword v%d, v%d, %s sc1
        s_waitcnt vmcnt(0)
        v_readfirstlane_b32 %s, v%d
        s_cmp_lg_u32 %s, 0
        s_cbranch_scc1 %s
        s_sleep 4
        s_sub_u32 s11, s11, 1
        s_cmp_lg_u32 s11, 0
        s_cbranch_scc1 %s
        %s:''' % (vz, SPIN, lo, vt, vz, sp(pDBG), sTAG, vt, sTAG, ok, lo, ok))

    def prologue(self):
        e = self.e
        self.ts(0)
        e('''s_load_dwordx16 s[16:31], s[0:1], 0
        s_load_dwordx4 s[32:35], s[0:1], 64
        s_load_dwordx2 s[36:37], s[0:1], 80
        s_cmp_ge_u32 s2, 256
        s_cbranch_scc1 L_end
        v_lshrrev_b32 v1, 6, v0
        v_and_b32 v0, 63, v0
        s_and_b32 s3, s2, 7
        v_readfirstlane_b32 s5, v1
        s_lshr_b32 s4, s2, 3
        s_and_b32 s11, s3, 3
        s_mul_i32 s11, s11, 28
        s_add_u32 s11, s11, s4
        s_mul_i32 s6, s11, 13108
        s_lshr_b32 s6, s6, 16
        s_mul_i32 s12, s6, 5
        s_sub_u32 s7, s11, s12
        s_lshr_b32 s12, s3, 2
        s_mul_i32 s12, s12, 5
        s_add_u32 s8, s7, s12
        s_mov_b32 s10, 0
        s_mov_b32 s9, 0
        s_cmp_ge_u32 s11, 110
        s_cselect_b32 s9, 2, s9
        s_cmp_ge_u32 s4, 28
        s_cselect_b32 s9, 1, s9
        s_cmp_eq_u32 s4, 31
        s_cselect_b32 s9, 2, s9''')
        e('''s_cmp_lg_u32 s9, 0
        s_cbranch_scc1 L_notld
        s_cmp_ge_u32 s5, 4
        s_cbranch_scc1 L_loader
        L_notld:''')
        e('''s_cmp_lg_u32 s5, 3
        s_cbranch_scc1 L_nopf
        s_getpc_b64 s[12:13]
        s_and_b32 s14, s4, %d
        s_lshl_b32 s14, s14, 13
        v_lshlrev_b32 v2, 7, v0
        v_add_u32 v2, s14, v2
        v_min_u32 v2, CODE_LAST, v2
        global_load_dword v255, v2, s[12:13]
        L_nopf:
        s_waitcnt lgkmcnt(0)''' % (self.opt.get('pfblocks', 4) - 1))
        self.srd(rX, pX, XB); self.srd(rWS, pWS, WSB)
        e('''s_cmp_lg_u32 s2, 0
        s_cbranch_scc1 L_notag
        s_cmp_lg_u32 s5, 2
        s_cbranch_scc1 L_notag
        v_mov_b32 v2, 0
        global_load_dword v3, v2, %s sc1
        s_waitcnt vmcnt(0)
        v_add_u32 v3, 1, v3
        v_max_u32 v3, 1, v3
        s_mov_b64 exec, 1
        global_store_dword v2, v3, %s sc1
        global_store_dword v2, v3, %s sc1
        s_mov_b64 exec, -1
        L_notag:''' % (sp(pWS), sp(pDBG), sp(pWS)))
        e('''s_cmp_ge_u32 s5, 2
        s_cbranch_scc1 L_nostat''')
        self.stats()
        e('L_nostat:')
        e('''s_cmp_eq_u32 s9, 1
        s_cbranch_scc1 L_expert
        s_cmp_eq_u32 s9, 2
        s_cbranch_scc1 L_idle''')

    def stats(self):
        e = self.e
        X, Wr, F = 20, 40, 60
        e('''s_and_b32 s11, s3, 3
        s_lshl_b32 s11, s11, 6
        s_lshr_b32 s12, s3, 2
        s_lshl_b32 s12, s12, 5
        s_add_u32 s11, s11, s12
        s_add_u32 s11, s11, s4
        s_lshl_b32 s11, s11, 1
        s_add_u32 s11, s11, s5
        s_lshl_b32 s11, s11, 2
        v_lshrrev_b32 v2, 4, v0
        v_add_u32 v2, s11, v2
        v_and_b32 v3, 15, v0
        v_lshlrev_b32 v4, 4, v3
        v_mul_u32_u24 v5, 1280, v2
        v_add_u32 v5, v5, v4''')
        for j in range(5):
            e('buffer_load_dwordx4 %s, v5, %s, 0 offen offset:%d' % (vr(X + 4 * j, 4), sq(rX), 256 * j))
        for j in range(5):
            e('global_load_dwordx4 %s, v4, %s offset:%d' % (vr(Wr + 4 * j, 4), sp(pWR), 256 * j))
        e('s_waitcnt vmcnt(5)')
        for d in range(20):
            e('v_lshlrev_b32 v%d, 16, v%d\nv_and_b32 v%d, 0xffff0000, v%d' % (F + 2 * d, X + d, F + 2 * d + 1, X + d))
        e('v_pk_add_f32 v[6:7], %s, %s\nv_pk_add_f32 v[8:9], %s, %s' % (vr(F, 2), vr(F + 2, 2), vr(F + 4, 2), vr(F + 6, 2)))
        for d in range(4, 20):
            a = 6 + 2 * (d & 1)
            e('v_pk_add_f32 %s, %s, %s' % (vr(a, 2), vr(a, 2), vr(F + 2 * d, 2)))
        e('v_pk_add_f32 v[6:7], v[6:7], v[8:9]\nv_add_f32 v6, v6, v7')
        self.allreduce16(6)
        e('v_mul_f32 v6, 0x3acccccd, v6')
        e('v_mov_b32 v10, 0\nv_mov_b32 v11, 0\nv_mov_b32 v12, 0\nv_mov_b32 v13, 0')
        for d in range(20):
            t = 14 + 2 * (d & 1); a = 10 + 2 * (d & 1)
            e('v_pk_add_f32 %s, %s, v[6:7] op_sel_hi:[1,0] neg_lo:[0,1] neg_hi:[0,1]' % (vr(t, 2), vr(F + 2 * d, 2)))
            e('v_pk_fma_f32 %s, %s, %s, %s' % (vr(a, 2), vr(t, 2), vr(t, 2), vr(a, 2)))
        e('v_pk_add_f32 v[10:11], v[10:11], v[12:13]\nv_add_f32 v10, v10, v11')
        self.allreduce16(10)
        e('''v_mul_f32 v10, 0x3acccccd, v10
        v_cvt_pk_bf16_f32 v8, v6, v10
        v_lshlrev_b32 v6, 16, v8
        v_and_b32 v10, 0xffff0000, v8
        v_add_f32 v10, 0x3727c5ac, v10
        v_cvt_pk_bf16_f32 v10, v10, v10
        v_and_b32 v10, 0xffff0000, v10
        v_sqrt_f32 v10, v10
        v_cvt_pk_bf16_f32 v10, v10, v10
        v_and_b32 v10, 0xffff0000, v10
        v_rcp_f32 v12, v10
        v_lshrrev_b32 v8, 16, v6
        v_or_b32 v16, v8, v10
        v_mov_b32 v10, 0
        v_mov_b32 v11, 0
        s_waitcnt vmcnt(0)''')
        for d in range(20):
            f = F + 2 * d
            e('v_pk_add_f32 %s, %s, v[6:7] op_sel_hi:[1,0] neg_lo:[0,1] neg_hi:[0,1]' % (vr(f, 2), vr(f, 2)))
        for d in range(20):
            e('v_cvt_pk_bf16_f32 v%d, v%d, v%d' % (X + d, F + 2 * d, F + 2 * d + 1))
        for d in range(20):
            e('v_lshlrev_b32 v%d, 16, v%d\nv_and_b32 v%d, 0xffff0000, v%d' % (F + 2 * d, X + d, F + 2 * d + 1, X + d))
        for d in range(20):
            f = F + 2 * d
            e('v_pk_mul_f32 %s, %s, v[12:13] op_sel_hi:[1,0]' % (vr(f, 2), vr(f, 2)))
        for d in range(20):
            e('v_cvt_pk_bf16_f32 v%d, v%d, v%d' % (X + d, F + 2 * d, F + 2 * d + 1))
        for d in range(20):
            e('v_dot2c_f32_bf16 v%d, v%d, v%d' % (10 + (d & 1), X + d, Wr + d))
        e('v_add_f32 v10, v10, v11')
        self.allreduce16(10)
        e('''v_cvt_pk_bf16_f32 v10, v10, v10
        v_bfe_i32 v11, v10, 15, 1
        v_or_b32 v11, 0x8000, v11
        v_xor_b32 v10, v10, v11
        v_lshlrev_b32 v10, 16, v10
        v_sub_u32 v11, 2047, v2
        v_or_b32 v18, v10, v11''')
        self.get_tag(8, 9)
        e('''v_mov_b32 v17, %s
        v_mov_b32 v19, %s
        v_lshlrev_b32 v2, 4, v2
        v_cmp_eq_u32 vcc, 0, v3
        s_mov_b32 s11, %d
        s_and_saveexec_b64 s[12:13], vcc
        buffer_store_dwordx4 v[16:19], v2, %s, s11 offen sc1
        s_mov_b64 exec, -1''' % (sTAG, sTAG, WS_STAT, sq(rWS)))

    def wo_setup(self, vb):
        e = self.e
        self.srd(rWO, pWO, WOB)
        e('''s_and_b32 s11, s4, 7
        s_mul_i32 s11, s11, 160
        s_lshr_b32 s70, s4, 3
        s_mul_i32 s70, s70, 5''')
        for j in range(5):
            e('''v_add_u32 v2, %d, v0
            v_mul_u32_u24 v3, 6554, v2
            v_lshrrev_b32 v3, 16, v3
            v_mul_u32_u24 v4, 10, v3
            v_sub_u32 v4, v2, v4
            v_bfe_u32 v5, v3, 3, 1
            v_lshlrev_b32 v5, 2, v5
            v_xor_b32 v3, v3, v5
            v_mul_u32_u24 v3, 1280, v3
            v_lshl_add_u32 v3, v4, 4, v3
            v_add_u32 v%d, s11, v3''' % (64 * j, vb + j))
    def wo_block(self, vb, spos):
        e = self.e
        e('''s_add_u32 s12, %s, s70
        s_cmp_ge_u32 s12, 20
        s_cselect_b32 s13, 20, 0
        s_sub_u32 s12, s12, s13
        s_mul_i32 s12, s12, 40960
        s_mul_i32 s13, %s, 5120
        s_add_u32 s13, s13, %d''' % (spos, spos, WOIMG))
        for j in range(5):
            e('s_add_u32 m0, s13, %d' % (1024 * j))
            e('buffer_load_dwordx4 v%d, %s, s12 offen lds' % (vb + j, sq(rWO)))

    def loader(self):
        e = self.e
        e('L_loader:')
        e('''s_sub_u32 s14, s5, 4
        s_and_b32 s15, s14, 1
        v_lshrrev_b32 v2, 3, v0
        v_and_b32 v3, 7, v0
        v_lshrrev_b32 v4, 4, v0
        s_lshl_b32 s11, s15, 2
        v_add_u32 v5, s11, v4
        v_xor_b32 v5, v3, v5
        s_mul_i32 s11, s6, 96
        s_lshl_b32 s12, s14, 3
        s_add_u32 s11, s11, s12
        s_sub_u32 s11, s11, 16
        s_mul_i32 s11, s11, 1280
        v_mul_u32_u24 v6, 1280, v2
        v_lshl_add_u32 v6, v5, 4, v6
        v_add_u32 v10, s11, v6
        v_add_u32 v11, 40960, v10
        v_add_u32 v12, 0x14000, v10
        v_add_u32 v13, 0x1e000, v10
        v_and_b32 v4, 1, v4
        v_lshl_or_b32 v4, s15, 1, v4
        v_lshlrev_b32 v4, 1, v4
        v_xor_b32 v4, v3, v4
        v_add_u32 v2, s12, v2
        v_mul_u32_u24 v2, 3840, v2
        v_lshl_add_u32 v2, v4, 4, v2
        s_lshl_b32 s11, s8, 7
        v_add_u32 v14, s11, v2
        s_lshl_b32 s68, s7, 1
        s_mul_i32 s11, s6, %d
        s_add_u32 s68, s68, s11
        s_mul_i32 s11, s68, 6554
        s_lshr_b32 s11, s11, 16
        s_mul_i32 s11, s11, 10
        s_sub_u32 s68, s68, s11
        s_lshl_b32 s69, s14, 10
        s_cmp_eq_u32 s14, 0
        s_cselect_b32 s72, 0xffff0000, -1
        s_mov_b32 s73, -1
        s_waitcnt lgkmcnt(0)''' % self.opt.get('rot', 3))
        self.srd(rX, pX, XB); self.srd(rW, pW, WB)
        self.ts(1)
        def issue(c):
            base = (c % DEPTH) * SLOT
            sk = self.lab('xs')
            e('s_lshl_b32 s11, s68, 7\ns_mul_i32 s12, s68, 245760')
            e('s_add_u32 m0, s69, %d\ns_mov_b64 exec, s[72:73]' % base)
            e('buffer_load_dwordx4 v10, %s, s11 offen lds\ns_mov_b64 exec, -1' % sq(rX))
            for a in (1, 2):
                e('s_add_u32 m0, s69, %d' % (base + a * 4096))
                e('buffer_load_dwordx4 v%d, %s, s11 offen lds' % (10 + a, sq(rX)))
            e('s_cmp_ge_u32 s14, 2\ns_cbranch_scc1 %s' % sk)
            e('s_add_u32 m0, s69, %d' % (base + 3 * 4096))
            e('buffer_load_dwordx4 v13, %s, s11 offen lds' % sq(rX))
            e('%s:' % sk)
            for y in range(3):
                for hb in range(2):
                    e('s_add_u32 m0, s69, %d' % (base + XPART + y * 8192 + hb * 4096))
                    if y or hb:
                        e('s_add_u32 s13, s12, %d' % (y * 1280 + hb * 122880))
                        e('buffer_load_dwordx4 v14, %s, s13 offen lds' % sq(rW))
                    else:
                        e('buffer_load_dwordx4 v14, %s, s12 offen lds' % sq(rW))
            e('s_add_u32 s68, s68, 1\ns_cmp_eq_u32 s68, 10\ns_cselect_b32 s68, 0, s68')
        for c in range(DEPTH - 1):
            issue(c)
        self.srd(rWS, pWS, WSB)
        self.wo_setup(20)
        WOA, WOB_ = self.opt.get('woa', 3), self.opt.get('wob', 5)
        extra = {}
        for c in range(10):
            n = (9 if c < 9 else 0) + 5 * ((c - 2) in extra) + 5 * ((c - 1) in extra)
            e('s_waitcnt vmcnt(%d)' % n)
            e('s_barrier')
            if c == 0: self.ts(2)
            if c + DEPTH - 1 < 10:
                issue(c + DEPTH - 1)
            if c == WOA:
                e('s_add_u32 s71, s14, 16'); self.wo_block(20, 's71'); extra[c] = 1
            elif c == WOB_:
                e('s_add_u32 s71, s14, 12'); self.wo_block(20, 's71'); extra[c] = 1
            elif c == 8:
                e('s_cmp_eq_u32 s14, 3\ns_cselect_b32 s71, 11, s14'); self.wo_block(20, 's71'); extra[c] = 1
            elif c == 9:
                e('s_add_u32 s71, s14, 3'); self.wo_block(20, 's71')
                e('s_add_u32 s71, s14, 7'); self.wo_block(20, 's71')
        self.ts(3)
        e('s_barrier')
        e('''v_lshlrev_b32 v2, 0, v0
        s_lshl_b32 s11, s14, 6
        v_add_u32 v2, s11, v2
        v_lshrrev_b32 v3, 1, v2
        v_and_b32 v4, 1, v2
        v_mul_u32_u24 v3, %d, v3
        v_mul_u32_u24 v4, 160, v4
        v_add_u32 v3, v3, v4
        v_mov_b32 v4, 0
        v_mov_b32 v5, 0
        v_cmp_gt_u32 vcc, 224, v2
        s_and_saveexec_b64 s[12:13], vcc''' % P)
        for z in range(4):
            e('''s_cmp_gt_u32 s7, %d
            s_cselect_b32 s11, %d, %d
            v_add_u32 v6, s11, v3
            ds_write_b64 v6, v[4:5]''' % (z, 8 * z, 8 * (16 + z)))
        e('s_mov_b64 exec, -1')
        e('s_cmp_lt_u32 s14, 2\ns_cbranch_scc1 L_ld_att')
        e('s_waitcnt lgkmcnt(0)\ns_barrier')
        e('ds_read_b32 v2, v4 offset:480\ns_waitcnt lgkmcnt(0)\nv_readfirstlane_b32 %s, v2' % sTAG)
        e('s_branch L_phase2')
        e('L_ld_att:')
        e('s_waitcnt lgkmcnt(0)\ns_branch L_img')

    def gemm1(self):
        e = self.e
        ACC, BA, BB, ST = 16, 100, 140, 180
        def acc(y, T): return ACC + (y * 7 + T) * 4
        e('''s_cmp_lg_u32 s5, 2
        s_cbranch_scc1 L_noones
        v_mov_b32 v4, 0x3f803f80
        v_mov_b32 v5, v4
        v_mov_b32 v6, v4
        v_mov_b32 v7, v4
        v_and_b32 v2, 15, v0
        v_lshlrev_b32 v2, 4, v2
        v_lshrrev_b32 v3, 4, v0
        v_min_u32 v3, %d, v3
        v_mul_u32_u24 v3, %d, v3
        v_add_u32 v2, v2, v3
        ds_write_b128 v2, v[4:7]
        L_noones:''' % (DEPTH - 1, SLOT))
        e('''v_and_b32 v1, 15, v0
        v_lshrrev_b32 v2, 4, v0
        v_lshrrev_b32 v3, 1, v1
        v_xor_b32 v3, v2, v3
        v_lshlrev_b32 v3, 4, v3
        v_lshl_add_u32 v8, v1, 7, v3
        v_xor_b32 v9, 64, v8
        v_lshrrev_b32 v3, 2, v1
        v_and_b32 v4, 3, v1
        v_lshrrev_b32 v5, 1, v3
        v_and_b32 v6, 1, v2
        v_lshl_or_b32 v5, v6, 1, v5
        v_xor_b32 v5, s5, v5
        v_lshl_add_u32 v3, v2, 3, v3
        v_lshlrev_b32 v3, 7, v3
        v_lshl_add_u32 v3, v5, 5, v3
        v_lshl_add_u32 v3, v4, 3, v3
        v_add_u32 v10, %d, v3''' % XPART)
        for r in range(84):
            e('v_mov_b32 v%d, 0' % (ACC + r))
        for r in range(40):
            e('v_mov_b32 v%d, 0' % (BB + r))
        e('v_mov_b32 v194, 0')
        e('''s_mul_i32 s11, s6, 96
        s_sub_u32 s11, s11, 16
        v_add_u32 v14, s11, v1
        v_lshlrev_b32 v15, 4, v14
        v_add_u32 v15, %d, v15
        s_mov_b32 s68, 0
        s_mov_b32 s69, 0
        s_waitcnt lgkmcnt(0)''' % WS_STAT)
        def reads(buf, t):
            ops = []
            for y in range(3):
                for hh in range(2):
                    ops.append('ds_read_b64_tr_b16 %s, v13 offset:%d' % (vr(buf + 28 + 4 * y + 2 * hh, 2), y * 8192 + (32 * t + 4 * hh) * 128))
            for T in range(7):
                ops.append('ds_read_b128 %s, v%d offset:%d' % (vr(buf + 4 * T, 4), 11 + t, T * 2048))
            return ops
        def mfmas(buf):
            return ['v_mfma_f32_16x16x32_bf16 %s, %s, %s, %s' % (vr(acc(y, T), 4), vr(buf + 28 + 4 * y, 4), vr(buf + 4 * T, 4), vr(acc(y, T), 4))
                    for T in range(7) for y in range(3)]
        def half(rbuf, t, mbuf):
            R = reads(rbuf, t); M = mfmas(mbuf)
            if self.opt.get('noread'): R = []
            for k in range(21):
                if k < len(R): e(R[k])
                if not self.opt.get('nomfma'): e(M[k])
            e('s_waitcnt lgkmcnt(0)')
        e('L_kloop:')
        e('''v_add_u32 v11, s69, v8
        v_add_u32 v12, s69, v9
        v_add_u32 v13, s69, v10
        s_barrier''')
        half(BA, 0, BB)
        half(BB, 1, BA)
        e('''s_cmp_lg_u32 s68, 6
        s_cbranch_scc1 L_nost''')
        def stloads():
            e('global_load_dword v195, v194, %s sc1' % sp(pDBG))
            for T in range(7):
                e('buffer_load_dwordx2 %s, v15, %s, 0 offen offset:%d sc1' % (vr(ST + 2 * T, 2), sq(rWS), 256 * T))
        stloads()
        e('''L_nost:
        s_add_u32 s69, s69, %d
        s_cmp_eq_u32 s69, %d
        s_cselect_b32 s69, 0, s69
        s_add_u32 s68, s68, 1
        s_cmp_lt_u32 s68, 10
        s_cbranch_scc1 L_kloop
        s_barrier''' % (SLOT, SLOT * DEPTH))
        for m in mfmas(BB): e(m)
        self.ts(3)
        e('s_mov_b32 s15, %d\ns_movk_i32 s75, 2048\nv_mov_b32 v7, 0x3f800000' % SPIN)
        e('L_stchk:\ns_waitcnt vmcnt(0)\nv_readfirstlane_b32 %s, v195\ns_cmp_eq_u32 %s, 0\ns_cselect_b32 s12, 1, 0\ns_mov_b32 s13, 0' % (sTAG, sTAG))
        for T in range(7):
            e('''v_add_u32 v3, %d, v14
            v_cmp_gt_u32 s[70:71], s75, v3
            v_cmp_ne_u32 vcc, %s, v%d
            s_and_b64 vcc, vcc, s[70:71]
            s_or_b64 s[12:13], s[12:13], vcc''' % (16 * T, sTAG, ST + 2 * T + 1))
        e('''s_cmp_eq_u64 s[12:13], 0
        s_cbranch_scc1 L_stok
        s_sub_u32 s15, s15, 1
        s_cmp_eq_u32 s15, 0
        s_cbranch_scc1 L_stok
        s_sleep 4''')
        stloads()
        e('s_branch L_stchk\nL_stok:')
        for T in range(7):
            a = ST + 2 * T
            e('''v_add_u32 v3, %d, v14
            v_cmp_gt_u32 vcc, s75, v3
            v_cndmask_b32 v4, v7, v%d, vcc
            v_and_b32 v5, 0xffff0000, v4
            v_rcp_f32 v%d, v5
            v_lshlrev_b32 v4, 16, v4
            v_mul_f32 v%d, -v4, v%d''' % (16 * T, a, a, a + 1, a))
        CS = BA
        for y in range(3):
            for r in range(4):
                e('v_mov_b32_dpp v%d, v%d row_newbcast:0 row_mask:0xf bank_mask:0xf' % (CS + 4 * y + r, acc(y, 0) + r))
        e('''s_lshl_b32 s11, s5, 2
        s_add_u32 s11, s11, s7
        v_add_u32 v3, s11, v2
        v_mul_u32_u24 v4, %d, v1
        v_lshl_add_u32 v3, v3, 3, v4''' % P)
        for y in range(3):
            for T in range(7):
                if y == 0 and T == 0: continue
                a = acc(y, T); st = vr(ST + 2 * T, 2)
                for h in range(2):
                    e('v_pk_mul_f32 %s, %s, %s op_sel_hi:[1,0]' % (vr(a + 2 * h, 2), vr(a + 2 * h, 2), st))
                for h in range(2):
                    e('v_pk_fma_f32 %s, %s, %s, %s op_sel:[0,1,0] op_sel_hi:[1,1,1]' % (vr(a + 2 * h, 2), vr(CS + 4 * y + 2 * h, 2), st, vr(a + 2 * h, 2)))
                e('v_cvt_pk_bf16_f32 v%d, v%d, v%d' % (a, a, a + 1))
                e('v_cvt_pk_bf16_f32 v%d, v%d, v%d' % (a + 1, a + 2, a + 3))
                e('ds_write_b64 v3, %s offset:%d' % (vr(a, 2), T * 16 * P + y * 160))
        e('''v_mov_b32 v4, 0
        v_mov_b32 v5, %s
        ds_write_b32 v4, v5 offset:480
        s_waitcnt lgkmcnt(0)''' % sTAG)


    def attention(self):
        e = self.e
        Q, K, V, LG, XR, O = 16, 32, 112, 192, 208, 224
        e('L_img:\ns_barrier')
        self.ts(4)
        if self.opt.get('dump_img'):
            e("""s_mul_i32 s11, s6, 10
            s_add_u32 s11, s11, s8
            s_mul_i32 s11, s11, 0x10000
            s_add_u32 s11, s11, 0x1000000
            s_lshl_b32 s12, s5, 10
            v_lshlrev_b32 v2, 4, v0
            v_add_u32 v2, s12, v2
            s_mov_b32 s54, 0x10000000""")
            for j in range(10):
                e("""ds_read_b128 v[4:7], v2
                s_waitcnt lgkmcnt(0)
                buffer_store_dwordx4 v[4:7], v2, %s, s11 offen
                v_add_u32 v2, 6144, v2
                s_waitcnt vmcnt(0)""" % sq(rWS))
        e("""v_lshrrev_b32 v2, 4, v0
        v_and_b32 v3, 1, v2
        v_mul_u32_u24 v4, 40, v2
        v_lshl_add_u32 v5, v3, 3, v4
        v_lshrrev_b32 v6, 4, v5
        v_add_u32 v6, v6, v0
        v_and_b32 v1, 15, v6
        s_lshl_b32 s11, s5, 4
        s_add_u32 s11, s11, 2
        v_add_u32 v6, s11, v1
        v_mul_u32_u24 v6, %d, v6
        v_add_u32 v8, v6, v5
        v_xor_b32 v3, 1, v3
        v_lshl_add_u32 v4, v3, 5, v4
        v_add_u32 v9, v6, v4
        v_mov_b32 v4, 0
        ds_read_b32 v7, v4 offset:480""" % P)
        def rd(dst, y, w):
            off = (14 - 2 * w) * P + y * 160
            return ['ds_read_b128 %s, v8 offset:%d' % (vr(dst, 4), off), 'ds_read_b128 %s, v8 offset:%d' % (vr(dst + 4, 4), off + 16),
                    'ds_read_b64 %s, v9 offset:%d' % (vr(dst + 8, 2), off)]
        for x in rd(Q, 0, 0): e(x)
        for w in range(3):
            for x in rd(K + 10 * w, 1, w): e(x)
        e("""s_mul_i32 s11, s6, 10
        s_add_u32 s11, s11, s8
        s_mul_i32 s11, s11, 12
        s_add_u32 s11, s11, s5
        s_lshl_b32 s11, s11, 10
        s_add_u32 s11, s11, %d
        v_lshrrev_b32 v3, 1, v2
        v_mul_u32_u24 v4, 6144, v3
        v_lshl_add_u32 v4, v1, 4, v4
        v_add_u32 v10, s11, v4
        v_mul_u32_u24 v4, 12288, v3
        v_add_u32 v11, v10, v4
        v_subrev_u32 v11, 6144, v11
        s_cmp_ge_u32 s7, 1
        s_cselect_b32 s72, 0xffff, 0
        s_cmp_le_u32 s7, 3
        s_cselect_b32 s73, 0xffff0000, 0
        s_waitcnt lgkmcnt(9)
        v_readfirstlane_b32 %s, v7""" % (WS_XCH, sTAG))
        for w in range(8):
            e('v_mov_b32 v%d, 0\nv_mov_b32 v%d, v7' % (LG + 2 * w, LG + 2 * w + 1))
        pend = [x for w in range(3, 8) for x in rd(K + 10 * w, 1, w)] + [x for w in range(8) for x in rd(V + 10 * w, 2, w)]
        issued = 9
        for w in range(0, 8, 2):
            want = 3 * (w + 2)
            while issued < min(want + 9, 48):
                e(pend.pop(0)); issued += 1
            e('s_waitcnt lgkmcnt(%d)' % (issued - want))
            for j in range(10):
                for ww in (w, w + 1):
                    e('v_dot2c_f32_bf16 v%d, v%d, v%d' % (LG + 2 * ww, Q + j, K + 10 * ww + j))
        e('s_mov_b64 exec, s[72:73]')
        for k4 in range(4):
            e('buffer_store_dwordx4 %s, v10, %s, 0 offen offset:%d sc1' % (vr(LG + 4 * k4, 4), sq(rWS), 256 * k4))
        for k4 in range(4):
            e('buffer_load_dwordx4 %s, v11, %s, 0 offen offset:%d sc1' % (vr(XR + 4 * k4, 4), sq(rWS), 256 * k4))
        e('s_mov_b64 exec, -1')
        self.ts(5)
        e('s_mov_b32 s70, 0x05040100\ns_mov_b32 s71, 0x07060302')
        for w in range(0, 8, 2):
            while pend and issued < min(24 + 3 * (w + 2) + 9, 48):
                e(pend.pop(0)); issued += 1
            e('s_waitcnt lgkmcnt(%d)' % (issued - 24 - 3 * (w + 2)))
            for j in range(10):
                e('v_perm_b32 v%d, v%d, v%d, s70' % (K + 10 * w + 2 * j, V + 10 * (w + 1) + j, V + 10 * w + j))
                e('v_perm_b32 v%d, v%d, v%d, s71' % (K + 10 * w + 2 * j + 1, V + 10 * (w + 1) + j, V + 10 * w + j))
        for j in range(20):
            e('v_mov_b32 v%d, 0' % (O + j))
        e('s_mov_b32 s15, %d\ns_mov_b64 exec, s[72:73]' % SPIN)
        e('L_xchk:\ns_waitcnt vmcnt(0)')
        e('v_xor_b32 v3, v7, v%d\nv_xor_b32 v4, v7, v%d' % (XR + 1, XR + 3))
        for w in range(2, 8):
            e('v_xor_b32 v5, v7, v%d\nv_or_b32 v%d, v%d, v5' % (XR + 2 * w + 1, 3 + (w & 1), 3 + (w & 1)))
        e("""v_or_b32 v3, v3, v4
        v_cmp_ne_u32 vcc, 0, v3
        s_cmp_eq_u64 vcc, 0
        s_cbranch_scc1 L_xok
        s_sub_u32 s15, s15, 1
        s_cmp_eq_u32 s15, 0
        s_cbranch_scc1 L_xok""")
        for k4 in range(4):
            e('buffer_load_dwordx4 %s, v11, %s, 0 offen offset:%d sc1' % (vr(XR + 4 * k4, 4), sq(rWS), 256 * k4))
        e('s_branch L_xchk\nL_xok:')
        for w in range(8):
            e('v_add_f32 v%d, v%d, v%d' % (LG + 2 * w, LG + 2 * w, XR + 2 * w))
        e('s_mov_b64 exec, -1')
        self.ts(6)
        E = XR
        for w in range(0, 8, 2):
            e('v_cvt_pk_bf16_f32 v%d, v%d, v%d' % (LG + w, LG + 2 * w, LG + 2 * w + 2))
        for w in range(0, 8, 2):
            e('v_lshlrev_b32 v%d, 16, v%d\nv_and_b32 v%d, 0xffff0000, v%d' % (E + w, LG + w, E + w + 1, LG + w))
        for w in range(8):
            e('v_mul_f32 v%d, 0x3e64f92e, v%d' % (E + w, E + w))
        for w in range(0, 8, 2):
            e('v_cvt_pk_bf16_f32 v%d, v%d, v%d' % (LG + w, E + w, E + w + 1))
        for w in range(0, 8, 2):
            e('v_lshlrev_b32 v%d, 16, v%d\nv_and_b32 v%d, 0xffff0000, v%d' % (E + w, LG + w, E + w + 1, LG + w))
        e("""s_or_b32 s11, s6, s5
        s_cmp_lg_u32 s11, 0
        s_cbranch_scc1 L_nomask
        v_mov_b32 v3, 0xce6e6b28""")
        for w in range(1, 8):
            e('v_cmp_le_u32 vcc, %d, v1\nv_cndmask_b32 v%d, v3, v%d, vcc' % (2 * w, E + w, E + w))
        e('L_nomask:')
        e("""v_max3_f32 v3, v%d, v%d, v%d
        v_max3_f32 v4, v%d, v%d, v%d
        v_max3_f32 v3, v%d, v%d, v3
        v_max_f32 v3, v3, v4""" % tuple(E + w for w in range(8)))
        for w in range(8):
            e('v_sub_f32 v%d, v%d, v3' % (E + w, E + w))
        for w in range(8):
            e('v_mul_f32 v%d, 0x3fb8aa3b, v%d' % (E + w, E + w))
        for w in range(8):
            e('v_exp_f32 v%d, v%d' % (E + w, E + w))
        e("""v_add_f32 v3, v%d, v%d
        v_add_f32 v4, v%d, v%d
        v_add_f32 v5, v%d, v%d
        v_add_f32 v6, v%d, v%d
        v_add_f32 v3, v3, v4
        v_add_f32 v5, v5, v6
        v_add_f32 v3, v3, v5
        v_rcp_f32 v3, v3""" % tuple(E + w for w in range(8)))
        for w in range(8):
            e('v_mul_f32 v%d, v%d, v3' % (E + w, E + w))
        for w in range(0, 8, 2):
            e('v_cvt_pk_bf16_f32 v%d, v%d, v%d' % (LG + w, E + w, E + w + 1))
        for w in range(0, 8, 2):
            for j in range(20):
                e('v_dot2c_f32_bf16 v%d, v%d, v%d' % (O + j, LG + w, K + 10 * w + j))
        for j in range(10):
            e('v_cvt_pk_bf16_f32 v%d, v%d, v%d' % (Q + j, O + 2 * j, O + 2 * j + 1))
        off = 14 * P
        e('ds_write_b128 v8, %s offset:%d\nds_write_b128 v8, %s offset:%d\nds_write_b64 v9, %s offset:%d' % (vr(Q, 4), off, vr(Q + 4, 4), off + 16, vr(Q + 8, 2), off))
        e("""v_and_b32 v3, 15, v0
        s_lshl_b32 s11, s5, 4
        s_add_u32 s11, s11, 16
        v_add_u32 v3, s11, v3
        v_mul_u32_u24 v3, %d, v3
        v_lshl_add_u32 v3, v2, 4, v3
        s_lshl_b32 s11, s7, 3
        v_add_u32 v3, s11, v3
        s_mul_i32 s12, s6, 6
        s_add_u32 s12, s12, s5
        s_mul_i32 s13, s12, 20
        s_lshl_b32 s11, s8, 1
        s_add_u32 s13, s13, s11
        s_lshl_b32 s13, s13, 10
        s_add_u32 s13, s13, %d
        v_lshlrev_b32 v4, 4, v0
        s_waitcnt lgkmcnt(0)
        ds_read2_b64 v[32:35], v3 offset0:0 offset1:1
        ds_read2_b64 v[36:39], v3 offset0:8 offset1:9
        s_cmp_ge_u32 s12, 128
        s_cbranch_scc1 L_phase2
        s_lshl_b32 s12, s12, 6
        s_lshl_b32 s11, s8, 2
        s_add_u32 s12, s12, s11
        s_add_u32 s12, s12, %d
        v_mov_b32 v5, 0
        s_waitcnt lgkmcnt(1)
        buffer_store_dwordx4 v[32:35], v4, %s, s13 offen sc1
        s_waitcnt lgkmcnt(0)
        buffer_store_dwordx4 v[36:39], v4, %s, s13 offen offset:1024 sc1
        s_waitcnt vmcnt(0)
        s_mov_b64 exec, 1
        buffer_store_dword v7, v5, %s, s12 offen sc1
        s_mov_b64 exec, -1""" % (P, WS_O, WS_FLAG, sq(rWS), sq(rWS), sq(rWS)))

    def phase2(self):
        e = self.e
        NPRE = 7
        WF, OF, AC, XF, XN = 16, 156, 196, 216, 228
        e('L_phase2:')
        self.ts(7)
        self.srd(rOUT, pOUT, XB)
        e("""s_lshl_b32 s68, s3, 2
        s_lshr_b32 s11, s4, 3
        s_add_u32 s68, s68, s11
        s_lshl_b32 s68, s68, 2
        s_and_b32 s12, s5, 3
        s_add_u32 s68, s68, s12
        s_lshr_b32 s69, s5, 2
        s_and_b32 s74, s4, 7
        s_mul_i32 s74, s74, 80
        s_mul_i32 s12, s69, 48
        s_add_u32 s74, s74, s12
        v_and_b32 v1, 15, v0
        v_lshrrev_b32 v2, 4, v0
        s_lshl_b32 s12, s68, 4
        v_add_u32 v3, s12, v1
        v_lshlrev_b32 v4, 4, v3
        v_add_u32 v4, %d, v4
        v_mul_u32_u24 v3, 1280, v3
        v_lshl_add_u32 v3, v2, 3, v3
        s_lshl_b32 s12, s74, 1
        v_add_u32 v14, s12, v3
        v_mov_b32 v15, 0
        buffer_load_dwordx2 v[240:241], v4, %s, 0 offen sc1
        buffer_load_dwordx4 v[244:247], v15, %s, 0 offen offset:%d sc1""" % (WS_STAT, sq(rWS), sq(rWS), WS_SEL))
        for k in range(3):
            e('buffer_load_dwordx2 %s, v14, %s, 0 offen offset:%d' % (vr(248 + 2 * k, 2), sq(rX), 32 * k))
        e("""v_lshrrev_b32 v3, 2, v1
        v_and_b32 v5, 3, v1
        v_and_b32 v6, 1, v2
        v_lshl_add_u32 v3, v2, 3, v3
        v_lshl_add_u32 v7, v6, 2, v3
        v_xor_b32 v6, 1, v6
        v_lshl_add_u32 v3, v6, 2, v3
        v_mul_u32_u24 v7, 160, v7
        v_mul_u32_u24 v3, 160, v3
        v_lshl_add_u32 v7, v5, 3, v7
        v_lshl_add_u32 v3, v5, 3, v3
        s_lshl_b32 s12, s69, 1
        s_sub_u32 s12, s12, s11
        s_and_b32 s13, s12, 3
        s_mul_i32 s13, s13, 25600
        s_add_u32 s13, s13, %d
        v_add_u32 v8, s13, v7
        v_add_u32 v9, s13, v3
        s_add_u32 s12, s12, 1
        s_and_b32 s13, s12, 3
        s_mul_i32 s13, s13, 25600
        s_add_u32 s13, s13, %d
        v_add_u32 v10, s13, v7
        v_add_u32 v11, s13, v3
        s_waitcnt vmcnt(0) lgkmcnt(0)
        s_barrier""" % (WOIMG, WOIMG))
        def wrd(ks, slot):
            ops = []
            for t in range(5):
                for hh in range(2):
                    ops.append('ds_read_b64_tr_b16 %s, v%d offset:%d' % (vr(WF + 20 * slot + 4 * t + 2 * hh, 2), 8 + 2 * (ks // 5) + hh, (ks % 5) * 5120 + 32 * t))
            return ops
        for ks in range(NPRE):
            for x in wrd(ks, ks): e(x)
        e('s_mov_b32 s15, %d' % SPIN)
        e("""L_p2chk:
        v_xor_b32 v3, %s, v241
        v_xor_b32 v5, %s, v245
        v_xor_b32 v6, %s, v247
        v_or3_b32 v3, v3, v5, v6
        v_cmp_ne_u32 vcc, 0, v3
        s_cmp_eq_u64 vcc, 0
        s_cbranch_scc1 L_p2ok
        s_sub_u32 s15, s15, 1
        s_cmp_eq_u32 s15, 0
        s_cbranch_scc1 L_p2ok
        s_sleep 16
        buffer_load_dwordx2 v[240:241], v4, %s, 0 offen sc1
        buffer_load_dwordx4 v[244:247], v15, %s, 0 offen offset:%d sc1
        s_waitcnt vmcnt(0)
        s_branch L_p2chk
        L_p2ok:
        v_and_b32 v3, 0xffff0000, v240
        v_rcp_f32 v242, v3
        v_lshlrev_b32 v240, 16, v240""" % (sTAG, sTAG, sTAG, sq(rWS), sq(rWS), WS_SEL))
        for d in range(6):
            e('v_lshlrev_b32 v%d, 16, v%d\nv_and_b32 v%d, 0xffff0000, v%d' % (XF + 2 * d, 248 + d, XF + 2 * d + 1, 248 + d))
        for d in range(6):
            e('v_pk_add_f32 %s, %s, v[240:241] op_sel_hi:[1,0] neg_lo:[0,1] neg_hi:[0,1]' % (vr(XN + 2 * d, 2), vr(XF + 2 * d, 2)))
        def rnd(base, n):
            for d in range(n):
                e('v_cvt_pk_bf16_f32 v%d, v%d, v%d' % (248 + d, base + 2 * d, base + 2 * d + 1))
            for d in range(n):
                e('v_lshlrev_b32 v%d, 16, v%d\nv_and_b32 v%d, 0xffff0000, v%d' % (base + 2 * d, 248 + d, base + 2 * d + 1, 248 + d))
        rnd(XN, 6)
        for d in range(6):
            e('v_pk_mul_f32 %s, %s, v[242:243] op_sel_hi:[1,0]' % (vr(XN + 2 * d, 2), vr(XN + 2 * d, 2)))
        rnd(XN, 6)
        e('v_readfirstlane_b32 s76, v244\nv_readfirstlane_b32 s77, v246\ns_mov_b32 s78, 0')
        e("""L_exrow:
        s_and_b32 s11, s76, 0xffff
        s_sub_u32 s11, 2047, s11
        s_lshr_b32 s12, s11, 4
        s_cmp_lg_u32 s12, s68
        s_cbranch_scc1 L_exnext
        s_and_b32 s79, s11, 15
        v_lshlrev_b32 v3, 2, v0
        v_add_u32 v3, %d, v3
        s_mov_b32 s15, %d
        s_mov_b64 exec, 0xffffff
        L_yf:
        buffer_load_dword v5, v3, %s, 0 offen sc1
        s_waitcnt vmcnt(0)
        v_cmp_ne_u32 vcc, %s, v5
        s_cmp_eq_u64 vcc, 0
        s_cbranch_scc1 L_yok
        s_sleep 4
        s_sub_u32 s15, s15, 1
        s_cmp_lg_u32 s15, 0
        s_cbranch_scc1 L_yf
        L_yok:
        s_mov_b64 exec, -1
        v_mul_u32_u24 v3, 5120, v1
        v_lshl_add_u32 v3, v2, 4, v3
        v_add_u32 v5, 0x14000, v3
        v_mov_b32 v6, 0x7f000000
        v_cmp_gt_u32 vcc, 8, v1
        v_cndmask_b32 v5, v6, v5, vcc
        s_mul_i32 s12, s78, 2560
        s_lshl_b32 s13, s74, 2
        s_add_u32 s12, s12, s13
        s_add_u32 s12, s12, %d""" % (WS_YFLAG, SPIN, sq(rWS), sTAG, WS_Y))
        for k in range(3):
            e('buffer_load_dwordx4 %s, v3, %s, s12 offen offset:%d sc1' % (vr(OF + 4 * k, 4), sq(rWS), 64 * k))
            e('buffer_load_dwordx4 %s, v5, %s, s12 offen offset:%d sc1' % (vr(OF + 12 + 4 * k, 4), sq(rWS), 64 * k))
        e("""s_lshr_b32 s11, s76, 16
        s_bitcmp1_b32 s11, 15
        s_cselect_b32 s13, 0x8000, 0xffff
        s_xor_b32 s11, s11, s13
        s_lshl_b32 s11, s11, 16
        v_mov_b32 v6, 0xbfb8aa3b
        v_mul_f32 v6, s11, v6
        v_exp_f32 v6, v6
        v_add_f32 v6, 1.0, v6
        v_rcp_f32 v6, v6
        v_cvt_pk_bf16_f32 v6, v6, v6
        v_and_b32 v6, 0xffff0000, v6
        v_cmp_eq_u32 vcc, s79, v1
        s_waitcnt vmcnt(0)""".replace('s_cselect_b32 s13, 0x8000, 0xffff', 's_mov_b32 s13, 0xffff\ns_cmov_b32 s13, 0x8000'))
        for r in range(12):
            e('v_add_f32 v%d, v%d, v%d' % (OF + r, OF + r, OF + 12 + r))
        for n in (8, 4, 2, 1):
            for r in range(12):
                e('v_add_f32_dpp v%d, v%d, v%d row_ror:%d row_mask:0xf bank_mask:0xf' % (OF + r, OF + r, OF + r, n))
        rnd(OF, 6)
        for r in range(12):
            e('v_mul_f32 v%d, v%d, v6' % (OF + r, OF + r))
        rnd(OF, 6)
        for r in range(12):
            e('v_add_f32 v%d, v%d, v%d' % (OF + r, OF + r, XN + r))
        rnd(OF, 6)
        for r in range(12):
            e('v_cndmask_b32 v%d, v%d, v%d, vcc' % (XN + r, XN + r, OF + r))
        e("""L_exnext:
        s_mov_b32 s76, s77
        s_add_u32 s78, s78, 1
        s_cmp_lt_u32 s78, 2
        s_cbranch_scc1 L_exrow""")
        e("""s_lshl_b32 s12, s68, 6
        s_mul_i32 s13, s69, 20
        s_add_u32 s12, s12, s13
        s_add_u32 s12, s12, %d
        v_lshlrev_b32 v3, 2, v0
        v_lshlrev_b32 v4, 4, v0
        s_mul_i32 s13, s68, 20
        s_mul_i32 s14, s69, 10
        s_add_u32 s13, s13, s14
        s_lshl_b32 s13, s13, 10
        s_add_u32 s13, s13, %d
        s_mov_b32 s15, %d
        s_mov_b64 exec, 31
        L_of:
        buffer_load_dword v5, v3, %s, s12 offen sc1
        s_waitcnt vmcnt(0)
        v_cmp_ne_u32 vcc, %s, v5
        s_cmp_eq_u64 vcc, 0
        s_cbranch_scc1 L_ook
        s_sleep 2
        s_sub_u32 s15, s15, 1
        s_cmp_lg_u32 s15, 0
        s_cbranch_scc1 L_of
        L_ook:
        s_mov_b64 exec, -1""" % (WS_FLAG, WS_O, SPIN, sq(rWS), sTAG))
        self.ts(8)
        for ks in range(10):
            if ks and ks % 4 == 0:
                e('s_add_u32 s13, s13, 4096')
            e('buffer_load_dwordx4 %s, v4, %s, s13 offen offset:%d sc1' % (vr(OF + 4 * ks, 4), sq(rWS), 1024 * (ks % 4)))
        e('s_waitcnt lgkmcnt(0)')
        for ks in range(10):
            slot = ks if ks < NPRE else ks - NPRE
            e('s_waitcnt vmcnt(%d)' % (9 - ks))
            if ks >= NPRE:
                e('s_waitcnt lgkmcnt(%d)' % min(15, 10 * (9 - ks)))
            for t in range(5):
                c = '0' if ks == 0 else vr(AC + 4 * t, 4)
                e('v_mfma_f32_16x16x32_bf16 %s, %s, %s, %s' % (vr(AC + 4 * t, 4), vr(WF + 20 * slot + 4 * t, 4), vr(OF + 4 * ks, 4), c))
            if ks + NPRE < 10:
                for x in wrd(ks + NPRE, ks): e(x)
        e("""s_and_b32 s11, s5, 3
        s_mul_i32 s11, s11, 5120
        v_add_u32 v4, s11, v4
        s_cmp_eq_u32 s69, 0
        s_cbranch_scc0 L_red1""")
        for t in (3, 4):
            e('ds_write_b128 v4, %s offset:%d' % (vr(AC + 4 * t, 4), 1024 * t))
        e('s_waitcnt lgkmcnt(0)\ns_barrier')
        for t in range(3):
            e('ds_read_b128 %s, v4 offset:%d' % (vr(OF + 4 * t, 4), 1024 * t))
        e('s_branch L_red2\nL_red1:')
        for t in range(3):
            e('ds_write_b128 v4, %s offset:%d' % (vr(AC + 4 * t, 4), 1024 * t))
        e('s_waitcnt lgkmcnt(0)\ns_barrier')
        for t in (3, 4):
            e('ds_read_b128 %s, v4 offset:%d' % (vr(OF + 4 * (t - 3), 4), 1024 * t))
        for r in range(8):
            e('v_mov_b32 v%d, v%d' % (AC + r, AC + 12 + r))
        e('L_red2:\ns_waitcnt lgkmcnt(0)')
        for d in range(6):
            e('v_pk_add_f32 %s, %s, %s' % (vr(AC + 2 * d, 2), vr(AC + 2 * d, 2), vr(OF + 2 * d, 2)))
        rnd(AC, 6)
        for d in range(6):
            e('v_pk_add_f32 %s, %s, %s' % (vr(AC + 2 * d, 2), vr(AC + 2 * d, 2), vr(XF + 2 * d, 2)))
        rnd(AC, 6)
        for d in range(6):
            e('v_pk_add_f32 %s, %s, %s' % (vr(AC + 2 * d, 2), vr(AC + 2 * d, 2), vr(XN + 2 * d, 2)))
        for d in range(6):
            e('v_cvt_pk_bf16_f32 v%d, v%d, v%d' % (248 + d, AC + 2 * d, AC + 2 * d + 1))
        e('buffer_store_dwordx2 v[248:249], v14, %s, 0 offen' % sq(rOUT))
        e('buffer_store_dwordx2 v[250:251], v14, %s, 0 offen offset:32' % sq(rOUT))
        e('s_cmp_lg_u32 s69, 0\ns_cbranch_scc1 L_fin')
        e('buffer_store_dwordx2 v[252:253], v14, %s, 0 offen offset:64' % sq(rOUT))
        e('L_fin:')
        if self.opt.get('ts'):
            e('s_waitcnt vmcnt(0)')
            self.ts(9)
            e('s_waitcnt lgkmcnt(0)')
            for k in range(10):
                e('v_mov_b32 v%d, s%d' % (16 + k, 80 + 2 * k))
            e("""s_lshl_b32 s11, s2, 3
            s_add_u32 s11, s11, s5
            s_lshl_b32 s11, s11, 6
            s_add_u32 s11, s11, %d
            s_mov_b64 exec, 1
            buffer_store_dwordx4 v[16:19], v15, %s, s11 offen
            buffer_store_dwordx4 v[20:23], v15, %s, s11 offen offset:16
            buffer_store_dwordx2 v[24:25], v15, %s, s11 offen offset:32""" % (WS_TS, sq(rWS), sq(rWS), sq(rWS)))
        e('s_endpgm')

    def wo_all(self):
        e = self.e
        self.wo_setup(20)
        sk = self.lab('wos')
        e('s_mov_b32 s71, s5'); self.wo_block(20, 's71')
        e('s_add_u32 s71, s5, 8'); self.wo_block(20, 's71')
        e('s_cmp_ge_u32 s5, 4\ns_cbranch_scc1 %s' % sk)
        e('s_add_u32 s71, s5, 16'); self.wo_block(20, 's71')
        e('%s:' % sk)

    def idle(self):
        e = self.e
        e('L_idle:')
        self.wo_all()
        e('s_cmp_lt_u32 s5, 2\ns_cbranch_scc1 L_phase2')
        self.get_tag(4, 5)
        e('s_branch L_phase2')

    def expert(self):
        e = self.e
        WG_, WD, XS = 32, 112, 152
        BUF = 40960
        e('L_expert:')
        e("""s_mul_i32 s68, s3, 3
        s_add_u32 s68, s68, s4
        s_sub_u32 s68, s68, 28
        s_and_b32 s14, s5, 3
        s_lshr_b32 s69, s5, 2
        s_cmp_eq_u32 s69, 0
        s_cselect_b32 s44, s26, s28
        s_cselect_b32 s45, s27, s29
        s_mov_b32 s46, %d
        s_mov_b32 s47, 0x20000""" % GB)
        self.srd(rD, pD, GB)
        e("""v_lshrrev_b32 v2, 3, v0
        v_and_b32 v3, 7, v0
        v_bfe_u32 v4, v0, 4, 1
        s_and_b32 s11, s14, 1
        v_lshl_or_b32 v4, s11, 1, v4
        v_lshlrev_b32 v4, 1, v4
        v_xor_b32 v4, v3, v4
        s_lshl_b32 s11, s14, 3
        v_add_u32 v2, s11, v2
        v_mul_u32_u24 v2, 3072, v2
        v_lshl_add_u32 v2, v4, 4, v2
        s_lshl_b32 s11, s68, 7
        v_add_u32 v10, s11, v2
        s_mul_i32 s70, s69, 20480
        s_lshl_b32 s11, s14, 10
        s_add_u32 s71, s70, s11
        s_mul_i32 s72, s5, 5120
        s_mul_i32 s73, s68, 81920
        s_add_u32 s73, s73, s72
        s_bfe_u32 s11, s5, 0x10001
        s_lshl_b32 s11, s11, 2""")
        for a in range(5):
            e("""v_add_u32 v2, %d, v0
            v_mul_u32_u24 v3, 820, v2
            v_lshrrev_b32 v3, 16, v3
            v_mul_u32_u24 v4, 80, v3
            v_sub_u32 v4, v2, v4
            v_or_b32 v5, s11, v3
            v_lshlrev_b32 v5, 1, v5
            v_xor_b32 v4, v4, v5
            v_mul_u32_u24 v3, 1280, v3
            v_lshl_add_u32 v%d, v4, 4, v3""" % (64 * a, 11 + a))
        nt = ' nt' if self.opt.get('nt', 1) else ''
        def issue(s):
            base = (s % 3) * BUF
            for a in range(5):
                if s < 4:
                    e('s_add_u32 m0, s71, %d\ns_mov_b32 s12, %d' % (base + a * 4096, (160 * s + 32 * a) * 3072))
                    e('buffer_load_dwordx4 v10, %s, s12 offen%s lds' % (sq(rW), nt))
                else:
                    e('s_add_u32 m0, s72, %d\ns_add_u32 s12, s73, %d' % (base + a * 1024, (s - 4) * 40960))
                    e('buffer_load_dwordx4 v%d, %s, s12 offen%s lds' % (11 + a, sq(rD), nt))
        for s in range(3): issue(s)
        e("""v_and_b32 v1, 15, v0
        v_lshrrev_b32 v2, 4, v0
        v_lshrrev_b32 v3, 2, v1
        v_and_b32 v4, 3, v1
        v_lshrrev_b32 v5, 1, v3
        v_and_b32 v6, 1, v2
        v_lshl_or_b32 v5, v6, 1, v5
        v_xor_b32 v5, s14, v5
        v_lshl_add_u32 v7, v2, 3, v3
        v_lshlrev_b32 v8, 7, v7
        v_lshl_add_u32 v8, v5, 5, v8
        v_lshl_add_u32 v8, v4, 3, v8
        v_add_u32 v16, s70, v8
        v_lshl_or_b32 v5, v6, 2, v3
        v_mul_u32_u24 v7, 1280, v7
        v_lshl_add_u32 v7, v4, 3, v7
        s_mul_i32 s11, s5, 5""")
        for j in range(5):
            e("""s_add_u32 s12, s11, %d
            v_xor_b32 v8, s12, v5
            v_lshl_add_u32 v%d, v8, 5, v7""" % (j, 17 + j))
        for s in range(6):
            base = (s % 3) * BUF
            e('s_waitcnt vmcnt(%d)\ns_barrier' % (5 * min(2, 5 - s)))
            if s < 4:
                e('v_add_u32 v8, %d, v16' % base)
                for a in range(5):
                    for hh in range(2):
                        e('ds_read_b64_tr_b16 %s, v8 offset:%d' % (vr(WG_ + 20 * s + 4 * a + 2 * hh, 2), (32 * a + 4 * hh) * 128))
            else:
                for j in range(5):
                    e('v_add_u32 v8, %d, v%d' % (base, 17 + j))
                    for hh in range(2):
                        e('ds_read_b64_tr_b16 %s, v8 offset:%d' % (vr(WD + 20 * (s - 4) + 4 * j + 2 * hh, 2), 5120 * hh))
            e('s_waitcnt lgkmcnt(0)\ns_barrier')
            if s + 3 < 6: issue(s + 3)
        self.ts(2)
        e('s_cmp_lt_u32 s5, 2\ns_cbranch_scc1 L_ex2')
        self.get_tag(4, 5)
        e('L_ex2:')
        e("""s_lshl_b32 s11, s5, 6
        v_add_u32 v3, s11, v0
        v_lshlrev_b32 v4, 4, v3
        v_add_u32 v4, %d, v4
        s_mov_b32 s15, %d
        L_sweep:""" % (WS_STAT + 8, SPIN))
        for j in range(4):
            e('s_mov_b32 s12, %d\nbuffer_load_dwordx2 %s, v4, %s, s12 offen sc1' % (8192 * j, vr(22 + 2 * j, 2), sq(rWS)))
        e("""s_waitcnt vmcnt(0)
        v_xor_b32 v5, %s, v23
        v_xor_b32 v6, %s, v25
        v_xor_b32 v7, %s, v27
        v_xor_b32 v8, %s, v29
        v_or3_b32 v5, v5, v6, v7
        v_or_b32 v5, v5, v8
        v_cmp_ne_u32 vcc, 0, v5
        s_cmp_eq_u64 vcc, 0
        s_cbranch_scc1 L_swok
        s_sleep 8
        s_sub_u32 s15, s15, 1
        s_cmp_lg_u32 s15, 0
        s_cbranch_scc1 L_sweep
        L_swok:""" % (sTAG, sTAG, sTAG, sTAG))
        def wavemax(dst):
            e('v_max3_u32 v5, v22, v24, v26\nv_max_u32 v5, v5, v28')
            self.allreduce16(5, 'v_max_u32')
            e("""v_readlane_b32 s11, v5, 0
            v_readlane_b32 s12, v5, 16
            v_readlane_b32 s13, v5, 32
            v_readlane_b32 %s, v5, 48
            s_max_u32 s11, s11, s12
            s_max_u32 s13, s13, %s
            s_max_u32 %s, s11, s13""" % (dst, dst, dst))
        wavemax('s76')
        for j in range(4):
            e('v_cmp_ne_u32 vcc, s76, v%d\nv_cndmask_b32 v%d, 0, v%d, vcc' % (22 + 2 * j, 22 + 2 * j, 22 + 2 * j))
        wavemax('s77')
        e("""v_mov_b32 v6, s76
        v_mov_b32 v7, s77
        s_lshl_b32 s11, s5, 3
        v_mov_b32 v5, s11
        ds_write_b64 v5, v[6:7]
        s_waitcnt lgkmcnt(0)
        s_barrier
        v_lshlrev_b32 v5, 2, v1
        ds_read_b32 v6, v5
        s_waitcnt lgkmcnt(0)
        v_mov_b32 v5, v6""")
        self.allreduce16(5, 'v_max_u32')
        e("""v_readfirstlane_b32 s76, v5
        v_cmp_ne_u32 vcc, s76, v6
        v_cndmask_b32 v5, 0, v6, vcc""")
        self.allreduce16(5, 'v_max_u32')
        e('v_readfirstlane_b32 s77, v5')
        e("""s_or_b32 s11, s68, s5
        s_cmp_lg_u32 s11, 0
        s_cbranch_scc1 L_nosel
        v_mov_b32 v22, s76
        v_mov_b32 v23, %s
        v_mov_b32 v24, s77
        v_mov_b32 v25, %s
        v_mov_b32 v5, 0
        s_mov_b64 exec, 1
        buffer_store_dwordx4 v[22:25], v5, %s, 0 offen offset:%d sc1
        s_mov_b64 exec, -1
        L_nosel:""" % (sTAG, sTAG, sq(rWS), WS_SEL))
        e("""s_and_b32 s11, s76, 0xffff
        s_sub_u32 s11, 2047, s11
        s_and_b32 s12, s77, 0xffff
        s_sub_u32 s12, 2047, s12
        v_mov_b32 v5, s11
        v_mov_b32 v6, s12
        v_cmp_gt_u32 vcc, 80, v3
        v_cndmask_b32 v5, v6, v5, vcc
        v_subrev_u32 v6, 80, v3
        v_cndmask_b32 v6, v6, v3, vcc
        v_mov_b32 v7, 1296
        v_cndmask_b32 v7, v7, 0, vcc
        v_lshl_add_u32 v7, v6, 4, v7
        v_lshlrev_b32 v8, 4, v5
        v_add_u32 v8, %d, v8
        v_mul_u32_u24 v5, 1280, v5
        v_lshl_add_u32 v5, v6, 4, v5
        s_cmp_ge_u32 s5, 3
        s_cbranch_scc1 L_noxn
        v_cmp_gt_u32 vcc, 160, v3
        s_and_saveexec_b64 s[12:13], vcc
        buffer_load_dwordx4 v[22:25], v5, %s, 0 offen
        buffer_load_dword v26, v8, %s, 0 offen sc1
        s_waitcnt vmcnt(0)
        v_and_b32 v27, 0xffff0000, v26
        v_rcp_f32 v28, v27
        v_lshlrev_b32 v26, 16, v26""" % (WS_STAT, sq(rX), sq(rWS)))
        F = 232
        def unp():
            for d in range(4):
                e('v_lshlrev_b32 v%d, 16, v%d\nv_and_b32 v%d, 0xffff0000, v%d' % (F + 2 * d, 22 + d, F + 2 * d + 1, 22 + d))
        def pk():
            for d in range(4):
                e('v_cvt_pk_bf16_f32 v%d, v%d, v%d' % (22 + d, F + 2 * d, F + 2 * d + 1))
        unp()
        for r in range(8): e('v_sub_f32 v%d, v%d, v26' % (F + r, F + r))
        pk(); unp()
        for r in range(8): e('v_mul_f32 v%d, v%d, v28' % (F + r, F + r))
        pk()
        e("""ds_write_b128 v7, v[22:25] offset:256
        s_mov_b64 exec, -1
        L_noxn:
        v_and_b32 v5, 1, v1
        v_mul_u32_u24 v6, 1296, v5
        v_lshl_add_u32 v6, v2, 4, v6
        s_waitcnt lgkmcnt(0)
        s_barrier""")
        for ks in range(20):
            e('ds_read_b128 %s, v6 offset:%d' % (vr(XS + 4 * ks, 4), 256 + 64 * ks))
        for ks in range(20):
            e('s_waitcnt lgkmcnt(%d)' % min(15, 19 - ks)) if ks >= 4 or ks == 0 else None
            e('v_mfma_f32_16x16x32_bf16 v[22:25], %s, %s, %s' % (vr(WG_ + 4 * ks, 4), vr(XS + 4 * ks, 4), '0' if ks == 0 else 'v[22:25]'))
        e("""v_cvt_pk_bf16_f32 v26, v22, v23
        v_cvt_pk_bf16_f32 v27, v24, v25
        s_lshl_b32 s11, s14, 9
        v_lshlrev_b32 v7, 3, v0
        v_add_u32 v7, s11, v7
        s_cmp_eq_u32 s69, 0
        s_cbranch_scc1 L_exg
        ds_write_b64 v7, v[26:27] offset:4096
        s_waitcnt lgkmcnt(0)
        s_barrier
        s_branch L_exh
        L_exg:
        v_lshlrev_b32 v22, 16, v26
        v_and_b32 v23, 0xffff0000, v26
        v_lshlrev_b32 v24, 16, v27
        v_and_b32 v25, 0xffff0000, v27""")
        for r in range(4): e('v_mul_f32 v%d, 0xbfb8aa3b, v%d' % (F + r, 22 + r))
        for r in range(4): e('v_exp_f32 v%d, v%d' % (F + r, F + r))
        for r in range(4): e('v_add_f32 v%d, 1.0, v%d' % (F + r, F + r))
        for r in range(4): e('v_rcp_f32 v%d, v%d' % (F + r, F + r))
        for r in range(4): e('v_mul_f32 v%d, v%d, v%d' % (22 + r, 22 + r, F + r))
        e("""v_cvt_pk_bf16_f32 v26, v22, v23
        v_cvt_pk_bf16_f32 v27, v24, v25
        v_lshlrev_b32 v22, 16, v26
        v_and_b32 v23, 0xffff0000, v26
        v_lshlrev_b32 v24, 16, v27
        v_and_b32 v25, 0xffff0000, v27
        s_barrier
        ds_read_b64 v[26:27], v7 offset:4096
        v_lshlrev_b32 v8, 7, v1
        v_lshl_add_u32 v8, v2, 3, v8
        s_lshl_b32 s11, s14, 5
        v_add_u32 v8, s11, v8
        s_waitcnt lgkmcnt(0)
        v_lshlrev_b32 v28, 16, v26
        v_and_b32 v29, 0xffff0000, v26
        v_lshlrev_b32 v30, 16, v27
        v_and_b32 v31, 0xffff0000, v27
        v_mul_f32 v22, v22, v28
        v_mul_f32 v23, v23, v29
        v_mul_f32 v24, v24, v30
        v_mul_f32 v25, v25, v31
        v_cvt_pk_bf16_f32 v26, v22, v23
        v_cvt_pk_bf16_f32 v27, v24, v25
        ds_write_b64 v8, v[26:27] offset:8192
        s_waitcnt lgkmcnt(0)
        L_exh:
        v_lshlrev_b32 v6, 7, v5
        v_lshl_add_u32 v6, v2, 4, v6
        s_barrier
        ds_read_b128 v[22:25], v6 offset:8192
        ds_read_b128 v[26:29], v6 offset:8256
        v_mul_u32_u24 v7, 2560, v1
        v_lshl_add_u32 v7, v2, 4, v7
        s_mul_i32 s11, s68, 5120
        s_mul_i32 s12, s5, 320
        s_add_u32 s11, s11, s12
        s_add_u32 s11, s11, %d
        s_waitcnt lgkmcnt(0)""" % WS_Y)
        for j in range(5):
            e('v_mfma_f32_16x16x32_bf16 %s, %s, v[22:25], 0' % (vr(XS + 4 * j, 4), vr(WD + 4 * j, 4)))
        for j in range(5):
            e('v_mfma_f32_16x16x32_bf16 %s, %s, v[26:29], %s' % (vr(XS + 4 * j, 4), vr(WD + 20 + 4 * j, 4), vr(XS + 4 * j, 4)))
        e('v_cmp_gt_u32 vcc, 2, v1\ns_and_saveexec_b64 s[12:13], vcc')
        for j in range(5):
            e('buffer_store_dwordx4 %s, v7, %s, s11 offen offset:%d sc1' % (vr(XS + 4 * j, 4), sq(rWS), 64 * j))
        e("""s_mov_b64 exec, -1
        s_waitcnt vmcnt(0)
        s_barrier
        s_cmp_lg_u32 s5, 0
        s_cbranch_scc1 L_noyf
        s_lshl_b32 s11, s68, 2
        v_mov_b32 v5, s11
        v_mov_b32 v6, %s
        s_mov_b64 exec, 1
        buffer_store_dword v6, v5, %s, 0 offen offset:%d sc1
        s_mov_b64 exec, -1
        L_noyf:""" % (sTAG, sq(rWS), WS_YFLAG))
        self.ts(3)
        self.wo_all()
        e('s_branch L_phase2')

    def build(self):
        self.prologue()
        self.gemm1()
        self.attention()
        self.phase2()
        self.loader()
        self.expert()
        self.idle()
        self.e('L_end:\ns_endpgm')
        return self.L

HEAD = open('cdna_kernels/%s.s.ref' % NAME).read().split('; Override launch')[0]

def generate(opt):
    g = G(opt)
    L = g.build()
    L, added = hz.fix(L)
    k = NAME + '_kernel'
    s = HEAD + '; @launch grid=(256,1,1) block=(512,1,1) lds=%d\n' % LDS_BYTES
    s += '.amdgcn_target "amdgcn-amd-amdhsa--gfx950"\n.text\n.globl %s\n.p2align 8\n.type %s,@function\n%s:\n' % (k, k, k)
    s += '\n'.join(L) + '\n'
    s += """.section .rodata,"a"
.p2align 6
.amdhsa_kernel %s
  .amdhsa_next_free_vgpr 256
  .amdhsa_next_free_sgpr 102
  .amdhsa_accum_offset 256
  .amdhsa_group_segment_fixed_size 0
  .amdhsa_kernarg_size 88
  .amdhsa_user_sgpr_count 2
  .amdhsa_user_sgpr_kernarg_segment_ptr 1
  .amdhsa_system_sgpr_workgroup_id_x 1
  .amdhsa_float_denorm_mode_32 3
.end_amdhsa_kernel
""" % k
    import subprocess, re, os, tempfile
    d = tempfile.mkdtemp()
    open(d + '/a.s', 'w').write(s.replace('CODE_LAST', '0x1000'))
    subprocess.run(['clang', '-x', 'assembler', '-target', 'amdgcn-amd-amdhsa', '-mcpu=gfx950', '-c', d + '/a.s', '-o', d + '/a.o'], check=True)
    h = subprocess.run(['llvm-objdump', '-h', d + '/a.o'], capture_output=True, text=True).stdout
    size = int(re.search(r'\.text\s+([0-9a-f]+)', h).group(1), 16)
    generate.size = size
    return s.replace('CODE_LAST', hex((size - 512) & ~3))

if __name__ == '__main__':
    opt = {}
    out = 'cdna_kernels/%s.s' % NAME
    for a in sys.argv[1:]:
        if a.startswith('-o'):
            out = a[2:]
        else:
            kx, vx = a.split('=')
            opt[kx] = int(vx)
    open(out, 'w').write(generate(opt))
    print('wrote', out, 'code bytes', generate.size)
```

```python
import sys; sys.path.insert(0, 'dev')
import gen, re
from asmlib import *
K = gen.NAME + '_kernel'
def variant(seq, path, opt={}, extra_src='', extra_desc='', geo={}):
    s = gen.generate(opt)
    line = re.search(r'; @launch grid=.*\n', s).group(0)
    ll = ''
    for k in seq:
        if k == 'K':
            ll += '; @launch kernel=%s grid=(256,1,1) block=(512,1,1) lds=%d\n' % (K, gen.LDS_BYTES)
        elif k == 'E':
            ll += '; @launch kernel=e_kernel grid=(256,1,1) block=(256,1,1) lds=0\n'
        else:
            ll += '; @launch kernel=%s grid=(256,1,1) block=(%d,1,1) lds=%d\n' % (k, geo[k][0], geo[k][1])
    s = s.replace(line, ll)
    i = s.index('.section .rodata')
    s = s[:i] + kernel_head('e_kernel') + '    s_endpgm\n' + extra_src + s[i:] + kernel_desc('e_kernel', 16, 16) + extra_desc
    open(path, 'w').write(s)
if __name__ == '__main__':
    for name, seq in (('A', 'K'), ('B', 'KE'), ('C', 'KK'), ('D', 'EK'), ('E', 'EEEK'), ('F', 'KKK')):
        variant(list(seq), 'var_%s.s' % name)
```

```python
import sys
sys.path.insert(0, 'dev')
import hz

NAME = 'parallel_sum__sliding_local_dilated__moe_arch_mod__prompt'
XB, WB, WOB, GB = 2621440, 2457600, 819200, 1966080
WSB = 0xb00000
WS_EPOCH, WS_SEL, WS_YFLAG, WS_STAT, WS_KEY, WS_FLAG = 0x0, 0x100, 0x9000, 0x1000, 0x5000, 0x2b0000
WS_XCH, WS_O, WS_Y, WS_XCB = 0x10000, 0x300000, 0x600000, 0x800000
WS_TS = 0x7c0000
WS_CHK = 0x580000
WS_PRES = 0x2e0000
WS_H = 0x5d0000
WS_XN = 0xe000
SLOT, XPART, DEPTH = 38912, 14336, 3
P = 496
WOIMG = 55552
TAB = 157952
LDS_BYTES = 163840
SPIN = 200000

sXCD, sSLOT, sWAVE, sI, sLL, sL, sROLE, sTAG = 's3', 's4', 's5', 's6', 's7', 's8', 's9', 's10'
pX, pW, pWO, pWR, pG, pU, pD, pOUT, pDBG, pWS = 16, 18, 20, 24, 26, 28, 30, 32, 34, 36
rX, rW, rWO, rWS, rOUT, rU, rD = 40, 44, 48, 52, 56, 60, 64

def sp(n): return 's[%d:%d]' % (n, n + 1)
def sq(n): return 's[%d:%d]' % (n, n + 3)
def vr(n, k=1): return 'v%d' % n if k == 1 else 'v[%d:%d]' % (n, n + k - 1)

class G:
    def __init__(self, opt):
        self.L = []; self.opt = opt; self.nl = 0; self.nts = 0
    def e(self, s):
        for ln in s.strip('\n').split('\n'):
            ln = ln.strip()
            if not ln: continue
            self.L.append(ln if ln.endswith(':') else '    ' + ln)
    def lab(self, base):
        self.nl += 1
        return 'L_%s_%d' % (base, self.nl)
    def srd(self, r, p, nbytes):
        self.e('s_mov_b32 s%d, s%d\ns_mov_b32 s%d, s%d\ns_mov_b32 s%d, %d\ns_mov_b32 s%d, 0x20000' % (r, p, r + 1, p + 1, r + 2, nbytes, r + 3))
    def ts(self, k):
        if self.opt.get('ts') and not (self.opt.get('ts_off') and k in (4, 5, 6)):
            self.e('%s s[%d:%d]' % ('s_memtime' if self.opt.get('cyc') else 's_memrealtime', 80 + 2 * k, 81 + 2 * k))
    def allreduce16(self, v, op='v_add_f32'):
        for n in (8, 4, 2, 1):
            self.e('%s_dpp v%d, v%d, v%d row_ror:%d row_mask:0xf bank_mask:0xf' % (op, v, v, v, n))
    def tag_load(self):
        self.e('s_load_dword s10, s[36:37], %d' % WS_EPOCH)
    def count_in(self, wave, va=4):
        lab = self.lab('cnt')
        self.e('''s_cmp_lg_u32 s5, %d
        s_cbranch_scc1 %s
        s_lshl_b32 s11, s2, 7
        s_add_u32 s11, s11, %d
        v_mov_b32 v%d, s11
        v_mov_b32 v%d, s10
        s_mov_b64 exec, 1
        buffer_store_dword v%d, v%d, %s, 0 offen sc1
        s_mov_b64 exec, -1
        %s:''' % (wave, lab, WS_PRES, va, va + 1, va + 1, va, sq(rWS), lab))
    def tag_ready(self):
        self.e('s_waitcnt lgkmcnt(0)\ns_add_u32 s10, s10, 1')

    def prologue(self):
        e = self.e
        self.ts(0)
        e("""s_load_dwordx16 s[16:31], s[0:1], 0
        s_load_dwordx4 s[32:35], s[0:1], 64
        s_load_dwordx2 s[36:37], s[0:1], 80
        s_cmp_ge_u32 s2, 256
        s_cbranch_scc1 L_end
        v_lshrrev_b32 v1, 6, v0
        v_and_b32 v0, 63, v0
        s_lshr_b32 s4, s2, 3
        v_readfirstlane_b32 s5, v1
        s_and_b32 s3, s2, 7""")
        e("""s_cmp_lg_u32 s5, 3
        s_cbranch_scc1 L_nopf
        s_getpc_b64 s[12:13]
        L_pc:
        s_and_b32 s14, s4, %d
        s_lshl_b32 s14, s14, 13
        v_lshl_add_u32 v2, v0, 7, s14
        v_min_u32 v2, CODE_LAST, v2
        global_load_dword v255, v2, s[12:13]
        L_nopf:""" % (self.opt.get('pfblocks', 4) - 1))
        if self.opt.get('ts'):
            for k in range(1, 10): e('s_mov_b32 s%d, 0' % (80 + 2 * k))
        e("""s_bfe_u32 s76, s2, 0x10001
        s_and_b32 s77, s2, 1
        s_bfe_u32 s78, s2, 0x10002
        s_mul_i32 s11, s4, 52
        s_lshr_b32 s11, s11, 8
        s_mul_i32 s12, s11, 5
        s_sub_u32 s7, s4, s12
        s_mul_i32 s12, s78, 11
        s_add_u32 s6, s11, s12
        s_mul_i32 s12, s76, 6
        s_add_u32 s6, s6, s12
        s_mul_i32 s12, s77, 5
        s_add_u32 s8, s7, s12
        s_mul_i32 s12, s76, 5
        s_sub_u32 s12, 30, s12
        s_sub_u32 s79, s4, s12
        s_cmp_ge_u32 s4, s12
        s_cbranch_scc1 L_aux
        s_cmp_ge_u32 s5, 4
        s_cbranch_scc1 L_loader
        s_mul_i32 s12, s5, 10
        s_add_u32 s12, s12, s8
        s_cmp_ge_u32 s12, 24
        s_cbranch_scc1 L_w23
        s_mul_i32 s11, s6, 96
        s_lshl_b32 s12, s12, 2
        s_add_u32 s11, s11, s12""")
        e("""L_stats:
        s_setprio 3
        v_lshrrev_b32 v2, 4, v0
        v_add_u32 v2, s11, v2
        v_and_b32 v3, 15, v0
        v_lshlrev_b32 v4, 4, v3
        v_mul_u32_u24 v5, 1280, v2
        v_add_u32 v5, v5, v4
        s_waitcnt lgkmcnt(0)""")
        for j in range(5):
            e('global_load_dwordx4 %s, v4, %s offset:%d' % (vr(40 + 4 * j, 4), sp(pWR), 256 * j))
        self.srd(rX, pX, XB)
        for j in range(5):
            e('buffer_load_dwordx4 %s, v5, %s, 0 offen offset:%d' % (vr(20 + 4 * j, 4), sq(rX), 256 * j))
        e('s_branch L_stats2')

    def att_setup(self):
        self.e("""v_and_b32 v100, 15, v0
        v_lshrrev_b32 v101, 4, v0
        s_lshl_b32 s11, s5, 4
        v_add_u32 v102, s11, v100
        v_mul_u32_u24 v102, %d, v102
        v_lshlrev_b32 v103, 3, v101
        v_mov_b32 v104, 0x08100800
        v_lshrrev_b32 v103, v103, v104
        v_and_b32 v103, 0xff, v103
        v_add_u32 v231, v102, v103
        v_add_u32 v228, %d, v231
        v_add_u32 v102, %d, v102
        v_lshl_add_u32 v230, v101, 3, v102
        v_lshl_add_u32 v233, v101, 4, v102
        s_lshl_b32 s12, s7, 3
        v_add_u32 v233, s12, v233
        v_lshrrev_b32 v102, 2, v0
        v_add_u32 v102, s11, v102
        v_mul_u32_u24 v102, %d, v102
        v_and_b32 v103, 3, v0
        v_lshl_add_u32 v229, v103, 3, v102
        v_and_b32 v102, 1, v0
        v_lshl_add_u32 v103, v101, 2, v102
        v_lshlrev_b32 v102, 4, v102
        v_mov_b32 v104, 0xffff
        v_lshlrev_b32 v104, v102, v104
        v_cmp_le_u32 vcc, v103, v100
        v_cndmask_b32 v212, 0, v104, vcc
        v_xor_b32 v214, v212, v104
        v_add_u32 v103, 2, v103
        v_cmp_le_u32 vcc, v103, v100
        v_cndmask_b32 v213, 0, v104, vcc
        v_xor_b32 v215, v213, v104""" % (P, 16 * P, 16 * P, P))
        for r in range(16):
            self.e('v_mov_b32 v%d, 0' % (196 + r))

    def p2_setup(self):
        self.e("""s_lshl_b32 s60, s3, 2
        s_and_b32 s11, s4, 3
        s_add_u32 s60, s60, s11
        s_lshl_b32 s60, s60, 2
        s_and_b32 s12, s5, 3
        s_add_u32 s60, s60, s12
        s_lshr_b32 s61, s5, 2
        s_lshr_b32 s62, s4, 2
        s_mul_i32 s62, s62, 80
        s_mul_i32 s12, s61, 48
        s_add_u32 s62, s62, s12
        s_mov_b32 s38, 0
        v_and_b32 v100, 15, v0
        v_lshrrev_b32 v101, 4, v0
        s_lshl_b32 s12, s60, 4
        v_add_u32 v102, s12, v100
        v_lshlrev_b32 v235, 3, v102
        v_add_u32 v235, %d, v235
        v_mul_u32_u24 v102, 1280, v102
        v_lshl_add_u32 v102, v101, 3, v102
        s_lshl_b32 s12, s62, 1
        v_add_u32 v234, s12, v102
        v_lshlrev_b32 v254, 4, v0
        v_lshrrev_b32 v102, 2, v100
        v_and_b32 v103, 3, v100
        v_and_b32 v104, 1, v101
        v_lshl_add_u32 v102, v101, 3, v102
        v_lshl_add_u32 v105, v104, 2, v102
        v_xor_b32 v104, 1, v104
        v_lshl_add_u32 v102, v104, 2, v102
        v_mul_u32_u24 v105, 160, v105
        v_mul_u32_u24 v102, 160, v102
        v_lshl_add_u32 v105, v103, 3, v105
        v_lshl_add_u32 v102, v103, 3, v102
        s_lshl_b32 s12, s61, 1
        s_sub_u32 s12, s12, s11
        s_and_b32 s13, s12, 3
        s_mul_i32 s13, s13, 25600
        s_add_u32 s13, s13, %d
        v_add_u32 v244, s13, v105
        v_add_u32 v245, s13, v102
        s_add_u32 s12, s12, 1
        s_and_b32 s13, s12, 3
        s_mul_i32 s13, s13, 25600
        s_add_u32 s13, s13, %d
        v_add_u32 v246, s13, v105
        v_add_u32 v247, s13, v102""" % (WS_STAT, WOIMG, WOIMG))
        self.srd(rOUT, pOUT, XB)

    def p2_loads(self):
        self.e('buffer_load_dwordx2 v[236:237], v235, %s, 0 offen sc1' % sq(rWS))
        for k in range(3):
            self.e('buffer_load_dwordx2 %s, v234, %s, 0 offen offset:%d' % (vr(238 + 2 * k, 2), sq(rX), 32 * k))

    def w23(self):
        e = self.e
        e('L_w23:\ns_waitcnt lgkmcnt(0)')
        self.tag_load()
        self.srd(rX, pX, XB); self.srd(rWS, pWS, WSB)
        self.att_setup(); self.p2_setup()
        self.tag_ready()
        e('s_branch L_gemm')

    def stats(self):
        e = self.e
        X, Wr, F = 20, 40, 60
        e('L_stats2:')
        self.tag_load()
        self.srd(rWS, pWS, WSB)
        self.att_setup(); self.p2_setup()
        e('v_mov_b32 v9, 0x3f803f80\nv_mov_b32 v10, 0\nv_mov_b32 v11, 0\nv_mov_b32 v12, 0\nv_mov_b32 v13, 0')
        e('s_waitcnt vmcnt(0)')
        if self.opt.get('sts') == 1: self.ts(2)
        for d in range(20):
            e('v_dot2c_f32_bf16 v%d, v%d, v9' % (10 + (d & 3), X + d))
        for d in range(10):
            e('v_lshlrev_b32 v%d, 16, v%d\nv_and_b32 v%d, 0xffff0000, v%d' % (F + 2 * d, X + d, F + 2 * d + 1, X + d))
        e('v_add_f32 v10, v10, v11\nv_add_f32 v12, v12, v13\nv_add_f32 v6, v10, v12')
        for k, n in enumerate((8, 4, 2, 1)):
            for d in (10 + 2 * k, 11 + 2 * k):
                e('v_lshlrev_b32 v%d, 16, v%d\nv_and_b32 v%d, 0xffff0000, v%d' % (F + 2 * d, X + d, F + 2 * d + 1, X + d))
            e('v_add_f32_dpp v6, v6, v6 row_ror:%d row_mask:0xf bank_mask:0xf' % n)
        for d in (18, 19):
            e('v_lshlrev_b32 v%d, 16, v%d\nv_and_b32 v%d, 0xffff0000, v%d' % (F + 2 * d, X + d, F + 2 * d + 1, X + d))
        e("""v_mul_f32 v7, 0x3acccccd, v6
        v_cvt_pk_bf16_f32 v8, v7, v7
        v_lshlrev_b32 v6, 16, v8
        v_mov_b32 v10, 0
        v_mov_b32 v11, 0
        v_mov_b32 v12, 0
        v_mov_b32 v13, 0""")
        for r in range(40):
            e('v_sub_f32 v%d, v%d, v6' % (F + r, F + r))
        for r in range(40):
            e('v_fmac_f32 v%d, v%d, v%d' % (10 + (r & 3), F + r, F + r))
        e('v_sub_f32 v7, v7, v6\nv_add_f32 v10, v10, v11\nv_add_f32 v12, v12, v13\nv_add_f32 v14, v10, v12')
        e('v_mov_b32 v10, 0\nv_mov_b32 v11, 0')
        for k, n in enumerate((8, 4, 2, 1)):
            for d in range(5 * k, 5 * k + 5):
                e('v_cvt_pk_bf16_f32 v%d, v%d, v%d' % (X + d, F + 2 * d, F + 2 * d + 1))
            e('v_add_f32_dpp v14, v14, v14 row_ror:%d row_mask:0xf bank_mask:0xf' % n)
        e('s_waitcnt vmcnt(0)')
        for d in range(20):
            e('v_dot2c_f32_bf16 v%d, v%d, v%d' % (10 + (d & 1), X + d, Wr + d))
        e("""v_mul_f32 v14, 0x3acccccd, v14
        v_fma_f32 v14, -v7, v7, v14
        v_max_f32 v14, 0, v14
        v_cvt_pk_bf16_f32 v14, v14, v14
        v_add_f32 v10, v10, v11
        v_and_b32 v14, 0xffff0000, v14
        v_add_f32 v14, 0x3727c5ac, v14
        v_add_f32_dpp v10, v10, v10 row_ror:8 row_mask:0xf bank_mask:0xf
        v_cvt_pk_bf16_f32 v14, v14, v14
        v_and_b32 v14, 0xffff0000, v14
        v_add_f32_dpp v10, v10, v10 row_ror:4 row_mask:0xf bank_mask:0xf
        v_sqrt_f32 v14, v14
        v_and_b32 v8, 0xffff, v8
        v_add_f32_dpp v10, v10, v10 row_ror:2 row_mask:0xf bank_mask:0xf
        v_cvt_pk_bf16_f32 v14, v14, v14
        v_and_b32 v14, 0xffff0000, v14
        v_add_f32_dpp v10, v10, v10 row_ror:1 row_mask:0xf bank_mask:0xf
        v_rcp_f32 v12, v14
        v_or_b32 v16, v8, v14
        v_mul_f32 v10, v10, v12""")
        e("""v_cvt_pk_bf16_f32 v10, v10, v10
        v_bfe_i32 v11, v10, 15, 1
        v_or_b32 v11, 0x8000, v11
        v_xor_b32 v10, v10, v11
        v_lshlrev_b32 v10, 16, v10
        v_sub_u32 v11, 2047, v2
        v_or_b32 v18, v10, v11
        v_cmp_eq_u32 vcc, 0, v3
        v_cndmask_b32 v16, v18, v16, vcc
        v_lshlrev_b32 v5, 14, v3
        v_lshl_add_u32 v5, v2, 3, v5
        s_movk_i32 s14, 2048
        v_cmp_gt_u32 vcc, 2, v3
        v_cmp_gt_u32 s[12:13], s14, v2
        s_and_b64 s[70:71], vcc, s[12:13]""")
        if self.opt.get('sts') == 2: self.ts(2)
        self.tag_ready()
        if self.opt.get('sts') == 3: self.ts(2)
        e("""v_mov_b32 v17, s10
        s_mov_b32 s11, %d
        s_mov_b64 exec, s[70:71]
        s_cbranch_execz L_stend
        buffer_store_dwordx2 v[16:17], v5, %s, s11 offen sc1
        L_stend:
        s_mov_b64 exec, -1""" % (WS_STAT, sq(rWS)))
        assert WS_KEY - WS_STAT == 1 << 14

    def wo_setup(self, vb):
        e = self.e
        self.srd(rWO, pWO, WOB)
        e('''s_lshr_b32 s11, s4, 2
        s_mul_i32 s11, s11, 160
        s_and_b32 s70, s4, 3
        s_mul_i32 s70, s70, 5
        s_lshr_b32 s39, s4, 2
        s_mul_i32 s39, s39, ROTON
        s_cmp_ge_u32 s39, 10
        s_cselect_b32 s12, 10, 0
        s_sub_u32 s39, s39, s12'''.replace('ROTON', str(2 * self.opt.get('orot', 1))))
        for j in range(5):
            e('''v_add_u32 v2, %d, v0
            v_mul_u32_u24 v3, 6554, v2
            v_lshrrev_b32 v3, 16, v3
            v_mul_u32_u24 v4, 10, v3
            v_sub_u32 v4, v2, v4
            v_bfe_u32 v5, v3, 3, 1
            v_lshlrev_b32 v5, 2, v5
            v_xor_b32 v3, v3, v5
            v_mul_u32_u24 v3, 1280, v3
            v_lshl_add_u32 v3, v4, 4, v3
            v_add_u32 v%d, s11, v3''' % (64 * j, vb + j))
    def wo_block(self, vb, spos):
        e = self.e
        e('''s_add_u32 s12, %s, s70
        s_cmp_ge_u32 s12, 20
        s_cselect_b32 s13, 20, 0
        s_sub_u32 s12, s12, s13
        s_cmp_ge_u32 s12, 10
        s_cselect_b32 s13, 20, 10
        s_add_u32 s12, s12, s39
        s_cmp_ge_u32 s12, s13
        s_cselect_b32 s13, 10, 0
        s_sub_u32 s12, s12, s13
        s_mul_i32 s12, s12, 40960
        s_mul_i32 s13, %s, 5120
        s_add_u32 s13, s13, %d''' % (spos, spos, WOIMG))
        for j in range(5):
            e('s_add_u32 m0, s13, %d' % (1024 * j))
            e('buffer_load_dwordx4 v%d, %s, s12 offen lds' % (vb + j, sq(rWO)))

    def loader(self):
        e = self.e
        e('L_loader:')
        RA, RB, RM, RS = (self.opt.get(k, d) for k, d in (('ra', 1), ('rb', 1), ('rm', 4), ('rs', 3)))
        assert all((x * (65536 // RM + 1)) >> 16 == x // RM for x in range(200)) and (RM - 1) * RS < 10
        e('''s_sub_u32 s14, s5, 4
        s_and_b32 s15, s14, 1
        v_lshrrev_b32 v2, 3, v0
        v_and_b32 v3, 7, v0
        v_lshrrev_b32 v4, 4, v0
        s_lshl_b32 s11, s15, 2
        v_add_u32 v5, s11, v4
        v_xor_b32 v5, v3, v5
        s_mul_i32 s11, s6, 96
        s_lshl_b32 s12, s14, 3
        s_add_u32 s11, s11, s12
        s_sub_u32 s11, s11, 16
        s_mul_i32 s11, s11, 1280
        v_mul_u32_u24 v6, 1280, v2
        v_lshl_add_u32 v6, v5, 4, v6
        v_add_u32 v10, s11, v6
        v_add_u32 v11, 40960, v10
        v_add_u32 v12, 0x14000, v10
        v_add_u32 v13, 0x1e000, v10
        v_and_b32 v4, 1, v4
        v_lshl_or_b32 v4, s15, 1, v4
        v_lshlrev_b32 v4, 1, v4
        v_xor_b32 v4, v3, v4
        v_add_u32 v2, s12, v2
        v_mul_u32_u24 v2, 3840, v2
        v_lshl_add_u32 v2, v4, 4, v2
        s_lshl_b32 s11, s8, 7
        v_add_u32 v14, s11, v2
        s_mul_i32 s68, s7, %d
        s_mul_i32 s11, s6, %d
        s_add_u32 s68, s68, s11
        s_mul_i32 s11, s68, %d
        s_lshr_b32 s11, s11, 16
        s_mul_i32 s11, s11, %d
        s_sub_u32 s68, s68, s11
        s_mul_i32 s68, s68, %d
        s_lshl_b32 s69, s14, 10
        s_cmp_eq_u32 s14, 0
        s_cselect_b32 s72, 0xffff0000, -1
        s_mov_b32 s73, -1
        s_waitcnt lgkmcnt(0)''' % (RA, RB, 65536 // RM + 1, RM, RS))
        self.srd(rX, pX, XB); self.srd(rW, pW, WB)
        self.ts(1)
        def issue(c):
            base = ((c + 2) % DEPTH) * SLOT
            sk = self.lab('xs')
            e('s_lshl_b32 s11, s68, 7\ns_mul_i32 s12, s68, 245760')
            e('s_add_u32 m0, s69, %d\ns_mov_b64 exec, s[72:73]' % base)
            e('buffer_load_dwordx4 v10, %s, s11 offen lds\ns_mov_b64 exec, -1' % sq(rX))
            for a in (1, 2):
                e('s_add_u32 m0, s69, %d' % (base + a * 4096))
                e('buffer_load_dwordx4 v%d, %s, s11 offen lds' % (10 + a, sq(rX)))
            e('s_cmp_ge_u32 s14, 2\ns_cbranch_scc1 %s' % sk)
            e('s_add_u32 m0, s69, %d' % (base + 3 * 4096))
            e('buffer_load_dwordx4 v13, %s, s11 offen lds' % sq(rX))
            e('%s:' % sk)
            for y in range(3):
                for hb in range(2):
                    e('s_add_u32 m0, s69, %d' % (base + XPART + y * 8192 + hb * 4096))
                    if y or hb:
                        e('s_add_u32 s13, s12, %d' % (y * 1280 + hb * 122880))
                        e('buffer_load_dwordx4 v14, %s, s13 offen lds' % sq(rW))
                    else:
                        e('buffer_load_dwordx4 v14, %s, s12 offen lds' % sq(rW))
            e('s_add_u32 s68, s68, 1\ns_cmp_eq_u32 s68, 10\ns_cselect_b32 s68, 0, s68')
        issue(0)
        e('s_branch L_loader2')
        self.loader_rest = lambda: self.loader2(issue)

    def loader2(self, issue):
        e = self.e
        e('L_loader2:')
        self.tag_load()
        self.srd(rWS, pWS, WSB)
        self.wo_setup(20)
        e('''s_mul_i32 s11, s6, 96
        s_lshl_b32 s12, s14, 6
        s_add_u32 s11, s11, s12
        s_sub_u32 s11, s11, 16
        v_add_u32 v26, s11, v0
        v_lshlrev_b32 v27, 3, v26
        v_add_u32 v27, %d, v27
        v_add_u32 v28, s12, v0''' % WS_STAT)
        self.att_setup(); self.p2_setup()
        e('''s_mul_i32 s74, s6, 10
        s_add_u32 s74, s74, s8
        s_lshl_b32 s74, s74, 2
        s_add_u32 s74, s74, s14
        s_mul_i32 s74, s74, 3072
        s_add_u32 s74, s74, %d
        v_mov_b32 v36, 0
        v_mov_b32 v37, 0
        v_mov_b32 v39, 0''' % WS_XCH)
        for c in range(1, DEPTH - 1):
            issue(c)
        self.tag_ready()
        e('v_xor_b32 v38, s10, 1')
        assert WOIMG + 12 * 5120 >= 3 * SLOT and WOIMG + 4 * 5120 <= 2 * SLOT
        WOA, WOB_, STB = self.opt.get('woa', 8), self.opt.get('wob', 9), self.opt.get('stb', 5)
        extra = {}
        for c in range(10):
            n = (9 if c < 9 else 0) + extra.get(c - 2, 0) + extra.get(c - 1, 0)
            if c == STB + 2:
                n -= 1
            e('s_waitcnt vmcnt(%d)' % n)
            if self.opt.get('lts') and c in (0, 1, 2): self.ts(4 + c)
            e('s_barrier')
            if c == 0: self.ts(2)
            if c + DEPTH - 1 < 10 and not self.opt.get('noload'):
                issue(c + DEPTH - 1)
            if c == 9: self.zero_fill()
            if c == self.opt.get('clm', 3):
                for k in range(3):
                    e('buffer_store_dwordx4 v[36:39], v254, %s, s74 offen offset:%d' % (sq(rWS), 1024 * k))
                extra[c] = extra.get(c, 0) + 3
            if c == self.opt.get('pre', 99):
                for k in range(3):
                    e('''s_mul_i32 s11, s14, 3
                    s_add_u32 s11, s11, %d
                    s_lshr_b32 s12, s11, 1
                    s_and_b32 s11, s11, 1
                    s_mul_i32 s13, s6, 6
                    s_add_u32 s12, s12, s13
                    s_min_u32 s12, s12, 127
                    s_mul_i32 s12, s12, 10
                    s_add_u32 s12, s12, s8
                    s_lshl_b32 s12, s12, 1
                    s_add_u32 s12, s12, s11
                    s_lshl_b32 s12, s12, 10
                    s_add_u32 s12, s12, %d
                    buffer_store_dwordx4 v[36:39], v254, %s, s12 offen sc1''' % (k, WS_O, sq(rWS)))
                e('''v_lshrrev_b32 v3, 4, v28
                s_mul_i32 s13, s6, 6
                v_add_u32 v4, s13, v3
                v_mul_u32_u24 v4, 2560, v4
                v_and_b32 v5, 15, v28
                v_lshl_add_u32 v4, v5, 4, v4
                v_mov_b32 v5, 0x7f000000
                v_cmp_gt_u32 vcc, 6, v3
                v_cndmask_b32 v4, v5, v4, vcc
                v_cmp_gt_u32 vcc, 0x50000, v4
                v_cndmask_b32 v4, v5, v4, vcc
                s_lshl_b32 s12, s8, 8
                s_add_u32 s12, s12, %d
                buffer_store_dwordx4 v[36:39], v4, %s, s12 offen sc1''' % (WS_CHK, sq(rWS)))
                extra[c] = extra.get(c, 0) + 4
            if c == STB:
                e('buffer_load_dwordx2 v[30:31], v27, %s, 0 offen sc1' % sq(rWS)); extra[c] = extra.get(c, 0) + 1
            if self.opt.get('nowo'):
                pass
            elif c == WOA:
                e('s_add_u32 s71, s14, 16'); self.wo_block(20, 's71'); extra[c] = extra.get(c, 0) + 5
            elif c == WOB_:
                e('s_add_u32 s71, s14, 12'); self.wo_block(20, 's71'); extra[c] = extra.get(c, 0) + 5
            if c == STB + 2:
                e('''s_mov_b32 s15, %d
                s_movk_i32 s75, 2048
                v_cmp_gt_u32 s[76:77], s75, v26
                L_tchk:
                v_cmp_ne_u32 vcc, s10, v31
                s_and_b64 vcc, vcc, s[76:77]
                s_cmp_eq_u64 vcc, 0
                s_cbranch_scc1 L_tok
                s_sub_u32 s15, s15, 1
                s_cmp_eq_u32 s15, 0
                s_cbranch_scc1 L_tok
                s_sleep 4
                buffer_load_dwordx2 v[30:31], v27, %s, 0 offen sc1
                s_waitcnt vmcnt(0)
                s_branch L_tchk
                L_tok:
                v_mov_b32 v32, 0x3f800000
                v_cndmask_b32 v30, v32, v30, s[76:77]
                v_and_b32 v32, 0xffff0000, v30
                v_rcp_f32 v32, v32
                v_lshlrev_b32 v30, 16, v30
                v_mul_f32 v33, -v30, v32
                v_lshlrev_b32 v29, 3, v28
                v_add_u32 v29, %d, v29
                v_cmp_le_u32 vcc, 112, v28
                v_cndmask_b32 v32, v32, 0, vcc
                v_cndmask_b32 v33, v33, 0, vcc
                v_cmp_ge_u32 vcc, 113, v28
                s_and_b64 exec, exec, vcc
                ds_write_b64 v29, v[32:33]
                s_mov_b64 exec, -1
                s_waitcnt lgkmcnt(0)''' % (SPIN, sq(rWS), TAB))
        self.ts(3)
        e('s_cmp_lt_u32 s14, 2\ns_cbranch_scc1 L_img2')
        e('s_mov_b32 s38, 2\ns_cmp_eq_u32 s14, 3\ns_cbranch_scc1 L_w7')
        if not self.opt.get('nowo'):
            e('s_mov_b32 s71, 0\nL_w6:')
            self.wo_block(20, 's71')
            e('s_add_u32 s71, s71, 1\ns_cmp_lt_u32 s71, 4\ns_cbranch_scc1 L_w6')
        e('''s_branch L_p2wo
        L_w7:
        s_mov_b32 s15, %d
        L_w7a:
        ds_read_b32 v3, v8 offset:8
        s_waitcnt lgkmcnt(0)
        v_readfirstlane_b32 s11, v3
        s_cmp_ge_u32 s11, 4
        s_cbranch_scc1 L_w7b
        s_sleep 1
        s_sub_u32 s15, s15, 1
        s_cmp_lg_u32 s15, 0
        s_cbranch_scc1 L_w7a
        L_w7b:''' % (SPIN * 4))
        if not self.opt.get('nowo'):
            e('s_mov_b32 s71, 4\nL_w7c:')
            self.wo_block(20, 's71')
            e('s_add_u32 s71, s71, 1\ns_cmp_lt_u32 s71, 12\ns_cbranch_scc1 L_w7c')
        e('s_branch L_p2wo')

    def zero_fill(self):
        e = self.e
        e('''v_lshrrev_b32 v3, 1, v28
        v_and_b32 v4, 1, v28
        v_mul_u32_u24 v3, %d, v3
        v_mul_u32_u24 v4, 160, v4
        v_add_u32 v3, v3, v4
        v_mov_b32 v4, 0
        v_mov_b32 v5, 0
        v_cmp_gt_u32 vcc, 224, v28
        s_and_b64 exec, exec, vcc''' % P)
        for z in range(4):
            e('''s_cmp_gt_u32 s7, %d
            s_cselect_b32 s11, %d, %d
            v_add_u32 v6, s11, v3
            ds_write_b64 v6, v[4:5]''' % (z, 8 * z, 8 * (16 + z)))
        e('''s_mov_b64 exec, -1
        v_mov_b32 v8, %d
        v_mov_b32 v3, 1
        s_waitcnt lgkmcnt(0)
        s_mov_b64 exec, 1
        ds_add_u32 v8, v3 offset:12
        s_mov_b64 exec, -1''' % (TAB + 896))

    def gemm1(self):
        e = self.e
        ACC, BA, BB, ST = 16, 100, 140, 180
        def acc(y, T): return ACC + (y * 7 + T) * 4
        e('''L_gemm:
        s_setprio 3
        s_cmp_lg_u32 s5, 3
        s_cbranch_scc1 L_noones
        v_mov_b32 v8, 0x3f803f80
        v_mov_b32 v9, v8
        v_mov_b32 v10, v8
        v_mov_b32 v11, v8
        v_and_b32 v2, 15, v0
        v_lshlrev_b32 v2, 4, v2
        v_lshrrev_b32 v3, 4, v0
        v_min_u32 v3, %d, v3
        v_mul_u32_u24 v3, %d, v3
        v_add_u32 v2, v2, v3
        ds_write_b128 v2, v[8:11]
        s_waitcnt lgkmcnt(0)
        L_noones:''' % (DEPTH - 1, SLOT))
        e('''v_and_b32 v1, 15, v0
        v_lshrrev_b32 v2, 4, v0
        v_lshrrev_b32 v3, 1, v1
        v_xor_b32 v3, v2, v3
        v_lshlrev_b32 v3, 4, v3
        v_lshl_add_u32 v8, v1, 7, v3
        v_xor_b32 v9, 64, v8
        v_lshrrev_b32 v3, 2, v1
        v_and_b32 v14, 3, v1
        v_lshrrev_b32 v15, 1, v3
        v_and_b32 v10, 1, v2
        v_lshl_or_b32 v15, v10, 1, v15
        v_xor_b32 v15, s5, v15
        v_lshl_add_u32 v3, v2, 3, v3
        v_lshlrev_b32 v3, 7, v3
        v_lshl_add_u32 v3, v15, 5, v3
        v_lshl_add_u32 v3, v14, 3, v3
        v_add_u32 v10, %d, v3
        v_add_u32 v11, 77824, v8
        v_add_u32 v12, 77824, v9
        v_add_u32 v13, 77824, v10
        v_lshlrev_b32 v14, 3, v1
        v_add_u32 v14, %d, v14
        s_lshl_b32 s11, s5, 2
        s_add_u32 s11, s11, s7
        v_add_u32 v3, s11, v2
        v_mul_u32_u24 v15, %d, v1
        v_lshl_add_u32 v15, v3, 3, v15
        v_mov_b32 v6, %d
        v_mov_b32 v7, 1
        s_mov_b32 s68, 1
        s_mov_b32 s69, 0''' % (XPART, TAB, P, TAB + 896))
        assert 2 * SLOT == 77824
        def reads(buf, t):
            ops = []
            for y in range(3):
                for hh in range(2):
                    ops.append('ds_read_b64_tr_b16 %s, v13 offset:%d' % (vr(buf + 28 + 4 * y + 2 * hh, 2), y * 8192 + (32 * t + 4 * hh) * 128))
            for T in range(7):
                ops.append('ds_read_b128 %s, v%d offset:%d' % (vr(buf + 4 * T, 4), 11 + t, T * 2048))
            return [] if self.opt.get('noread') else ops
        def mf(buf, y, T, first=False):
            return 'v_mfma_f32_16x16x32_bf16 %s, %s, %s, %s' % (vr(acc(y, T), 4), vr(buf + 28 + 4 * y, 4), vr(buf + 4 * T, 4), '0' if first else vr(acc(y, T), 4))
        def half(rbuf, t, mbuf, tail=(), first=False):
            R = reads(rbuf, t) + list(tail); M = [mf(mbuf, y, T, first) for T in range(7) for y in range(3)]
            for k in range(21):
                if k == 20: e('s_waitcnt lgkmcnt(0)')
                if not self.opt.get('nomfma'): e(M[k])
                if k < len(R): e(R[k])
            assert len(R) <= 20
        nxt = ['v_add_u32 v11, s69, v8\nv_add_u32 v12, s69, v9', 'v_add_u32 v13, s69, v10\ns_add_u32 s69, s69, %d' % SLOT,
               's_cmp_eq_u32 s69, %d\ns_cselect_b32 s69, 0, s69' % (SLOT * DEPTH)]
        self.ts(1)
        e('s_barrier')
        for x in reads(BA, 0): e(x)
        self.count_in(3)
        e('s_waitcnt lgkmcnt(0)')
        half(BB, 1, BA, nxt, True)
        e('L_kloop:\ns_barrier')
        half(BA, 0, BB)
        half(BB, 1, BA, nxt + ['s_add_u32 s68, s68, 1\ns_cmp_lt_u32 s68, 10'])
        e('s_cbranch_scc1 L_kloop\ns_mov_b64 exec, 1\nds_add_u32 v6, v7 offset:8\ns_mov_b64 exec, -1')
        CS = BA
        FM = self.opt.get('fixmode', 2)
        def fix(y):
            ops = ['v_mov_b32_dpp v%d, v%d row_newbcast:0 row_mask:0xf bank_mask:0xf' % (CS + 4 * y + r, acc(y, 0) + r) for r in range(4)]
            for T in range(7):
                if y == 0 and T == 0: continue
                a = acc(y, T); st = vr(ST + 2 * T, 2)
                if FM == 2 and y == 0 and T <= 2:
                    for r in range(4):
                        ops.append('v_mul_f32 v%d, v%d, v%d' % (a + r, a + r, ST + 2 * T))
                    for r in range(4):
                        ops.append('v_fmac_f32 v%d, v%d, v%d' % (a + r, CS + 4 * y + r, ST + 2 * T + 1))
                elif FM == 3 and y == 0 and T <= 3:
                    for h in range(2):
                        ops.append('v_pk_mul_f32 %s, %s, %s op_sel_hi:[1,0]' % (vr(a + 2 * h, 2), vr(a + 2 * h, 2), st))
                    for r in range(4):
                        ops.append('v_fmac_f32 v%d, v%d, v%d' % (a + r, CS + 4 * y + r, ST + 2 * T + 1))
                else:
                    for h in range(2):
                        ops.append('v_pk_mul_f32 %s, %s, %s op_sel_hi:[1,0]' % (vr(a + 2 * h, 2), vr(a + 2 * h, 2), st))
                    for h in range(2):
                        ops.append('v_pk_fma_f32 %s, %s, %s, %s op_sel:[0,1,0] op_sel_hi:[1,1,1]' % (vr(a + 2 * h, 2), vr(CS + 4 * y + 2 * h, 2), st, vr(a + 2 * h, 2)))
                ops.append('v_cvt_pk_bf16_f32 v%d, v%d, v%d' % (a, a, a + 1))
                ops.append('v_cvt_pk_bf16_f32 v%d, v%d, v%d' % (a + 1, a + 2, a + 3))
                ops.append('ds_write_b64 v15, %s offset:%d' % (vr(a, 2), T * 16 * P + y * 160))
            return ops
        for T in range(7):
            e(mf(BB, 0, T))
            e('ds_read_b64 %s, v14 offset:%d' % (vr(ST + 2 * T, 2), 128 * T))
        F0 = fix(0)
        for T in range(7):
            e(mf(BB, 1, T))
            if T == 2: e('s_waitcnt lgkmcnt(0)')
            if T >= 2 and FM: e(F0.pop(0)); e(F0.pop(0))
        for T in range(7):
            e(mf(BB, 2, T))
            if FM: e(F0.pop(0)); e(F0.pop(0))
        if FM: e('s_nop 7')
        self.ts(3)
        for x in F0 + fix(1) + fix(2): e(x)
        e('s_waitcnt vmcnt(0) lgkmcnt(0)')

    def attention(self):
        e = self.e
        e('L_img:')
        e('''s_mov_b64 exec, 1
        ds_add_u32 v6, v7 offset:12
        s_mov_b64 exec, -1
        L_img2:
        v_mov_b32 v8, %d
        s_mov_b32 s15, %d
        L_imw:
        ds_read_b32 v3, v8 offset:12
        s_waitcnt lgkmcnt(0)
        v_readfirstlane_b32 s11, v3
        s_cmp_ge_u32 s11, 8
        s_cbranch_scc1 L_imok
        IMSLEEP
        s_sub_u32 s15, s15, 1
        s_cmp_lg_u32 s15, 0
        s_cbranch_scc1 L_imw
        L_imok:
        s_setprio 3''' % (TAB + 896, SPIN * 8))
        if self.opt.get('lts'): self.opt['ts_off'] = 1
        self.ts(4)
        if self.opt.get('dump_img'):
            e("""s_mul_i32 s11, s6, 10
            s_add_u32 s11, s11, s8
            s_mul_i32 s11, s11, 0x10000
            s_add_u32 s11, s11, 0x1000000
            s_lshl_b32 s12, s5, 10
            v_lshlrev_b32 v2, 4, v0
            v_add_u32 v2, s12, v2
            s_mov_b32 s54, 0x10000000""")
            for j in range(10):
                e("""ds_read_b128 v[4:7], v2
                s_waitcnt lgkmcnt(0)
                buffer_store_dwordx4 v[4:7], v2, %s, s11 offen
                v_add_u32 v2, 6144, v2
                s_waitcnt vmcnt(0)""" % sq(rWS))
        Qr, Kr, Vr, Sr, Er, Xr, Pr, Rr = 196, 16, 48, 68, 100, 116, 124, 140
        CUR0, CUR1 = 0xf000ff00fff0ffff, 0xc000fc00ffc0fffc
        def qrd(sgs):
            e('s_mov_b32 exec_hi, 0')
            for sg in sgs: e('ds_read_b64 %s, v228 offset:%d' % (vr(Qr + 4 * sg, 2), 40 * sg))
            e('s_mov_b32 exec_hi, 0xffff')
            for sg in sgs: e('ds_read_b64 %s, v228 offset:%d' % (vr(Qr + 4 * sg + 2, 2), 40 * sg + 16))
            e('s_mov_b64 exec, -1')
        def krd(sg):
            for h, av in enumerate((228, 231)):
                for u in range(2):
                    e('ds_read_b64 %s, v%d offset:%d' % (vr(Kr + 8 * sg + 4 * h + 2 * u, 2), av, 160 + 40 * sg + 16 * u))
        qrd((0, 3)); krd(0); krd(3)
        e("""s_mov_b32 s64, 0xaaaaaaaa
        s_mov_b32 s65, 0xaaaaaaaa
        s_mov_b32 s66, 0x%x
        s_mov_b32 s67, 0x%x
        s_mov_b32 s68, 0x%x
        s_mov_b32 s69, 0x%x
        s_getreg_b32 s74, hwreg(HW_REG_XCC_ID, 0, 4)
        s_lshl_b32 s74, s74, 28
        s_xor_b32 s74, s74, s10
        s_mul_i32 s12, s6, 10
        s_add_u32 s12, s12, s8
        s_mul_i32 s12, s12, 12
        s_add_u32 s12, s12, s5
        s_lshl_b32 s12, s12, 10
        s_add_u32 s12, s12, %d
        s_mov_b32 s13, 0x7f000000
        s_sub_u32 s14, s12, 6144
        s_cmp_ge_u32 s7, 1
        s_cselect_b32 s70, s12, s13
        s_cselect_b32 s72, s14, s13
        s_cselect_b32 s76, s74, 0
        s_add_u32 s14, s12, 6144
        s_add_u32 s12, s12, 12288
        s_cmp_le_u32 s7, 3
        s_cselect_b32 s71, s14, s13
        s_cselect_b32 s73, s12, s13
        s_cselect_b32 s77, s74, 0
        v_mov_b32 v%d, s74
        v_mov_b32 v%d, s74""" % (CUR0 & 0xffffffff, CUR0 >> 32, CUR1 & 0xffffffff, CUR1 >> 32, WS_XCH, Er + 2, Er + 14))
        def smf(sg):
            for h in range(2):
                e('v_mfma_f32_16x16x32_bf16 %s, %s, %s, 0' % (vr(Sr + 8 * sg + 4 * h, 4), vr(Kr + 8 * sg + 4 * h, 4), vr(Qr + 4 * sg, 4)))
        def sel(sg):
            c = Sr + 8 * sg; p = c + 4
            e('v_cndmask_b32 v%d, v%d, v%d, s[64:65]' % (c, c, c + 1)); e('v_cndmask_b32 v%d, v%d, v%d, s[64:65]' % (c + 2, c + 2, c + 3))
            e('v_cndmask_b32 v%d, v%d, v%d, s[64:65]' % (p, p, p + 1)); e('v_cndmask_b32 v%d, v%d, v%d, s[64:65]' % (p + 2, p + 2, p + 3))
            e('v_cndmask_b32 v%d, v%d, v%d, s[66:67]' % (Er + 4 * sg, p, c)); e('v_cndmask_b32 v%d, v%d, v%d, s[68:69]' % (Er + 4 * sg + 1, p + 2, c + 2))
        vrd = []
        for j in range(5):
            vrd.append('ds_read_b64_tr_b16 %s, v229 offset:%d' % (vr(Vr + 4 * j, 2), 16 * P + 320 + 32 * j))
            vrd.append('ds_read_b64_tr_b16 %s, v229 offset:%d' % (vr(Vr + 4 * j + 2, 2), 320 + 32 * j))
        e('s_waitcnt lgkmcnt(4)'); smf(0)
        e('s_waitcnt lgkmcnt(0)'); smf(3)
        qrd((1, 2)); krd(1)
        sel(0)
        e('buffer_store_dwordx4 %s, v254, %s, s70 offen' % (vr(Er, 4), sq(rWS)))
        sel(3)
        e('buffer_store_dwordx4 %s, v254, %s, s71 offen' % (vr(Er + 12, 4), sq(rWS)))
        self.ts(5)
        krd(2)
        e('s_waitcnt lgkmcnt(4)'); smf(1)
        e('s_waitcnt lgkmcnt(0)'); smf(2)
        for x in vrd: e(x)
        sel(1); sel(2)
        e('v_mov_b32 v10, 0x3e64f92e\nv_mov_b32 v12, 0x3fb8aa3b')
        def rounds(sgs):
            for sg in sgs: e('v_cvt_pk_bf16_f32 v%d, v%d, v%d' % (Er + 4 * sg + 3, Er + 4 * sg, Er + 4 * sg + 1))
            for sg in sgs: e('v_lshlrev_b32 v%d, 16, v%d\nv_and_b32 v%d, 0xffff0000, v%d' % (Er + 4 * sg, Er + 4 * sg + 3, Er + 4 * sg + 1, Er + 4 * sg + 3))
            for sg in sgs: e('v_pk_mul_f32 %s, %s, v[10:11] op_sel_hi:[1,0]' % (vr(Er + 4 * sg, 2), vr(Er + 4 * sg, 2)))
            for sg in sgs: e('v_cvt_pk_bf16_f32 v%d, v%d, v%d' % (Er + 4 * sg + 3, Er + 4 * sg, Er + 4 * sg + 1))
            for sg in sgs: e('v_lshlrev_b32 v%d, 16, v%d\nv_and_b32 v%d, 0xffff0000, v%d' % (Er + 4 * sg, Er + 4 * sg + 3, Er + 4 * sg + 1, Er + 4 * sg + 3))
        xl = ['buffer_load_dwordx3 %s, v254, %s, s%d offen sc1' % (vr(Xr + 4 * k, 3), sq(rWS), 72 + k) for k in range(2)]
        if self.opt.get('xw', 1) == 0:
            for x in xl: e(x)
        rounds((1, 2))
        if self.opt.get('xw', 1) == 1:
            for x in xl: e(x)
        e('s_waitcnt vmcnt(0)')
        for k in range(2):
            e("""v_cmp_ne_u32 vcc, s%d, v%d
            s_cmp_lg_u64 vcc, 0
            s_cbranch_scc1 L_xretry%d
            L_xok%d:""" % (76 + k, Xr + 4 * k + 2, k, k))
        e('v_pk_add_f32 %s, %s, %s' % (vr(Er, 2), vr(Er, 2), vr(Xr, 2)))
        e('v_pk_add_f32 %s, %s, %s' % (vr(Er + 12, 2), vr(Er + 12, 2), vr(Xr + 4, 2)))
        self.ts(6)
        self.p2_loads()
        rounds((0, 3))
        e("""s_or_b32 s11, s6, s5
        s_cmp_lg_u32 s11, 0
        s_cbranch_scc1 L_nomask
        v_mov_b32 v3, 0xce6e6b28""")
        for sg in range(4):
            e('v_cndmask_b32 v%d, v3, v%d, s[66:67]\nv_cndmask_b32 v%d, v3, v%d, s[68:69]' % (Er + 4 * sg, Er + 4 * sg, Er + 4 * sg + 1, Er + 4 * sg + 1))
        e('L_nomask:')
        A, B_, C, D_ = Rr, Rr + 2, Rr + 4, Rr + 6
        def allred(op, mid=None):
            for sg in range(4):
                e('%s v%d, v%d, v%d' % (op, Rr + 2 * sg, Er + 4 * sg, Er + 4 * sg + 1))
            e('v_permlane32_swap_b32 v%d, v%d\nv_permlane32_swap_b32 v%d, v%d' % (A, C, B_, D_))
            e('%s v%d, v%d, v%d\n%s v%d, v%d, v%d' % (op, A, A, C, op, B_, B_, D_))
            e('v_permlane16_swap_b32 v%d, v%d' % (A, B_))
            e('%s v%d, v%d, v%d' % (op, A, A, B_))
            if mid: e(mid % (A, A))
            e('v_mov_b32 v%d, v%d\nv_permlane16_swap_b32 v%d, v%d' % (B_, A, A, B_))
            e('v_mov_b32 v%d, v%d\nv_mov_b32 v%d, v%d' % (C, A, D_, B_))
            e('v_permlane32_swap_b32 v%d, v%d\nv_permlane32_swap_b32 v%d, v%d' % (A, C, B_, D_))
        allred('v_max_f32')
        for sg in range(4):
            e('v_pk_add_f32 %s, %s, %s op_sel_hi:[1,0] neg_lo:[0,1] neg_hi:[0,1]' % (vr(Er + 4 * sg, 2), vr(Er + 4 * sg, 2), vr(Rr + 2 * sg, 2)))
        for sg in range(4):
            e('v_pk_mul_f32 %s, %s, v[12:13] op_sel_hi:[1,0]' % (vr(Er + 4 * sg, 2), vr(Er + 4 * sg, 2)))
        for sg in range(4):
            e('v_exp_f32 v%d, v%d\nv_exp_f32 v%d, v%d' % (Er + 4 * sg, Er + 4 * sg, Er + 4 * sg + 1, Er + 4 * sg + 1))
        e('s_waitcnt lgkmcnt(0)\ns_mov_b64 exec, 1\nv_mov_b32 v3, 1\nds_add_u32 v8, v3 offset:4\ns_mov_b64 exec, -1')
        allred('v_add_f32', 'v_rcp_f32 v%d, v%d')
        for sg in range(4):
            e('v_pk_mul_f32 %s, %s, %s op_sel_hi:[1,0]' % (vr(Er + 4 * sg, 2), vr(Er + 4 * sg, 2), vr(Rr + 2 * sg, 2)))
        def pv(j, sg, k):
            e('v_mfma_f32_16x16x32_bf16 %s, %s, %s, 0' % (vr(Sr + 4 * k, 4), vr(Vr + 4 * j, 4), vr(Pr + 4 * sg, 4)))
        for sg in range(4):
            x0, x1 = Er + 4 * sg + 2, Er + 4 * sg + 3
            e('v_cvt_pk_bf16_f32 v%d, v%d, v%d\nv_cvt_pk_bf16_f32 v%d, v%d, v%d' % (x0, Er + 4 * sg, Er + 4 * sg, x1, Er + 4 * sg + 1, Er + 4 * sg + 1))
            for r in range(4):
                e('v_and_b32 v%d, v%d, v%d' % (Pr + 4 * sg + r, 212 + r, (x0, x1)[r & 1]))
            if sg: pv(sg - 1, sg - 1, 2 * sg - 2); pv(sg, sg - 1, 2 * sg - 1)
        pv(3, 3, 6); pv(4, 3, 7)
        Or = Kr
        def cv(j, k):
            e('v_cvt_pk_bf16_f32 v%d, v%d, v%d\nv_cvt_pk_bf16_f32 v%d, v%d, v%d' % (Or + 2 * j, Sr + 4 * k, Sr + 4 * k + 1, Or + 2 * j + 1, Sr + 4 * k + 2, Sr + 4 * k + 3))
        def wr(j): e('ds_write_b64 v230, %s offset:%d' % (vr(Or + 2 * j, 2), 32 * j))
        cv(0, 0); wr(0)
        cv(1, 2); cv(2, 4)
        e('s_mov_b64 exec, 0xffff'); cv(1, 1)
        e('s_mov_b32 exec_lo, -1'); cv(2, 3)
        e('s_mov_b64 exec, -1'); wr(1); wr(2)
        cv(3, 6); cv(4, 7); wr(4)
        e('s_mov_b32 exec_hi, 0xffff'); cv(3, 5)
        e('s_mov_b64 exec, -1'); wr(3)
        e("""s_mul_i32 s12, s6, 6
        s_add_u32 s12, s12, s5
        s_mul_i32 s13, s12, 20
        s_lshl_b32 s11, s8, 1
        s_add_u32 s13, s13, s11
        s_lshl_b32 s13, s13, 10
        s_add_u32 s13, s13, %d
        s_waitcnt lgkmcnt(0)
        ds_read2_b64 v[220:223], v233 offset0:0 offset1:1
        ds_read2_b64 v[224:227], v233 offset0:8 offset1:9
        s_mov_b32 s38, 3
        s_cmp_ge_u32 s12, 128
        s_cbranch_scc1 L_opub
        s_mul_i32 s12, s12, 10
        s_add_u32 s12, s12, s8
        s_lshl_b32 s14, s12, 8
        s_add_u32 s14, s14, %d
        s_lshl_b32 s12, s12, 7
        s_add_u32 s12, s12, %d
        v_lshlrev_b32 v4, 2, v0
        v_mov_b32 v5, s10
        s_waitcnt lgkmcnt(1)
        buffer_store_dwordx4 v[220:223], v254, %s, s13 offen sc1
        v_add3_u32 v3, v220, v221, v222
        s_waitcnt lgkmcnt(0)
        buffer_store_dwordx4 v[224:227], v254, %s, s13 offen offset:1024 sc1
        v_add3_u32 v3, v3, v223, v224
        v_add3_u32 v3, v3, v225, v226
        v_add3_u32 v3, v3, v227, s10
        buffer_store_dword v3, v4, %s, s14 offen sc1
        s_mov_b64 exec, 1
        buffer_store_dword v5, v4, %s, s12 offen sc1
        L_opub:
        s_mov_b64 exec, -1""" % (WS_O, WS_CHK, WS_FLAG, sq(rWS), sq(rWS), sq(rWS), sq(rWS)))
        self.tail.append(lambda: self.xretry(Er, Xr))

    def xretry(self, Er, Xr):
        e = self.e
        for k in range(2):
            own, got = Er + 12 * k, Xr + 4 * k
            e("""L_xretry%d:
            s_mov_b32 s15, 0
            L_xr%d:
            s_mov_b64 exec, vcc
            s_add_u32 s15, s15, 1
            s_cmp_ge_u32 s15, %d
            s_cbranch_scc1 L_xe%d
            s_cmp_lg_u32 s15, 48
            s_cbranch_scc1 L_xs%d
            s_add_u32 s12, s%d, %d
            v_mov_b32 v%d, s10
            buffer_store_dwordx3 %s, v254, %s, s12 offen sc1
            L_xs%d:
            s_cmp_gt_u32 s15, 48
            s_cselect_b32 s11, s15, 0
            s_bitcmp1_b32 s11, 0
            s_cselect_b32 s75, s10, s74
            s_cselect_b32 s12, %d, 0
            s_add_u32 s12, s12, s%d
            buffer_load_dwordx3 %s, v254, %s, s12 offen sc1
            s_waitcnt vmcnt(0)
            v_cmp_ne_u32 vcc, s75, v%d
            s_cmp_lg_u64 vcc, 0
            s_cbranch_scc1 L_xr%d
            L_xe%d:
            s_mov_b64 exec, -1
            s_branch L_xok%d""" % (k, k, SPIN, k, k, 70 + k, WS_XCB - WS_XCH, own + 2, vr(own, 3), sq(rWS), k, WS_XCB - WS_XCH, 72 + k,
                                   vr(got, 3), sq(rWS), got + 2, k, k, k))

    def phase2(self):
        e = self.e
        NPRE = 6
        WF, OF, AC, XF, XN = 16, 136, 176, 196, 208
        UPD = TAB + 1024
        e('L_phase2:\ns_setprio 0')
        self.ts(7)
        e("""v_mov_b32 v8, %d
        s_mov_b32 s15, %d
        L_wochk:
        ds_read_b32 v7, v8 offset:4
        s_waitcnt lgkmcnt(0)
        v_readfirstlane_b32 s11, v7
        s_and_b32 s11, s11, 0xff
        s_cmp_ge_u32 s11, 8
        s_cbranch_scc1 L_wook
        s_sleep 1
        s_sub_u32 s15, s15, 1
        s_cmp_lg_u32 s15, 0
        s_cbranch_scc1 L_wochk
        L_wook:""" % (TAB + 896, SPIN * 4))
        def wrd(ks, slot):
            ops = []
            for t in range(5):
                for hh in range(2):
                    ops.append('ds_read_b64_tr_b16 %s, v%d offset:%d' % (vr(WF + 20 * slot + 4 * t + 2 * hh, 2), 244 + 2 * (ks // 5) + hh, (ks % 5) * 5120 + 32 * t))
            return ops
        NA = self.opt.get('na', 4)
        for ks in range(NA):
            for x in wrd(ks, ks): e(x)
        e('''s_cmp_eq_u32 s38, 3
        s_cbranch_scc0 L_noack
        s_waitcnt vmcnt(0)
        s_mov_b64 exec, 1
        v_mov_b32 v6, 0x100
        ds_add_u32 v8, v6 offset:4
        s_mov_b64 exec, -1
        s_mov_b32 s38, 2
        L_noack:''')
        for ks in range(NA, NPRE):
            for x in wrd(ks, ks): e(x)
        if self.opt.get('pts') in (1, 2): self.ts(3)
        e("""s_mov_b32 s15, %d
        L_p2chk:
        v_cmp_ne_u32 vcc, s10, v237
        s_cmp_eq_u64 vcc, 0
        s_cbranch_scc1 L_p2ok
        s_sub_u32 s15, s15, 1
        s_cmp_eq_u32 s15, 0
        s_cbranch_scc1 L_p2ok
        s_sleep 8
        buffer_load_dwordx2 v[236:237], v235, %s, 0 offen sc1
        s_waitcnt vmcnt(0)
        s_branch L_p2chk
        L_p2ok:
        v_and_b32 v3, 0xffff0000, v236
        v_rcp_f32 v10, v3
        v_lshlrev_b32 v236, 16, v236""" % (SPIN, sq(rWS)))
        for d in range(6):
            e('v_lshlrev_b32 v%d, 16, v%d\nv_and_b32 v%d, 0xffff0000, v%d' % (XF + 2 * d, 238 + d, XF + 2 * d + 1, 238 + d))
        for d in range(6):
            e('v_pk_add_f32 %s, %s, v[236:237] op_sel_hi:[1,0] neg_lo:[0,1] neg_hi:[0,1]' % (vr(XN + 2 * d, 2), vr(XF + 2 * d, 2)))
        def rnd(base, n):
            for d in range(n):
                e('v_cvt_pk_bf16_f32 v%d, v%d, v%d' % (248 + d, base + 2 * d, base + 2 * d + 1))
            for d in range(n):
                e('v_lshlrev_b32 v%d, 16, v%d\nv_and_b32 v%d, 0xffff0000, v%d' % (base + 2 * d, 248 + d, base + 2 * d + 1, 248 + d))
        rnd(XN, 6)
        for d in range(6):
            e('v_pk_mul_f32 %s, %s, v[10:11] op_sel_hi:[1,0]' % (vr(XN + 2 * d, 2), vr(XN + 2 * d, 2)))
        rnd(XN, 6)
        CK = 220
        e("""s_mul_i32 s68, s60, 10
        s_mul_i32 s11, s61, 5
        s_add_u32 s68, s68, s11
        s_lshl_b32 s12, s68, 7
        s_add_u32 s12, s12, %d
        v_lshlrev_b32 v9, 2, v0
        s_and_b32 s11, s5, 3
        s_mul_i32 s11, s11, %d
        s_add_u32 s11, s11, 160
        v_lshrrev_b32 v3, 4, v0
        v_mul_u32_u24 v3, %d, v3
        v_add3_u32 v4, v3, v254, s11
        s_lshr_b32 s11, s4, 2
        s_mul_i32 s11, s11, %d""" % (WS_FLAG, 20 * P, P - 256, self.opt.get('orot', 1)))
        for j in range(5):
            e("""s_cmp_ge_u32 s11, 5
            s_cselect_b32 s13, 5, 0
            s_sub_u32 s11, s11, s13
            s_add_u32 s13, s68, s11
            s_lshl_b32 s%d, s13, 11
            s_add_u32 s%d, s%d, %d
            s_lshl_b32 s%d, s13, 8
            s_add_u32 s%d, s%d, %d
            s_add_u32 s11, s11, 1""" % (63 + j, 63 + j, 63 + j, WS_O, 73 + j, 73 + j, 73 + j, WS_CHK))
        e("""s_mov_b32 s15, %d
        s_mov_b32 s72, 0
        s_branch L_owait
        L_ook:""" % SPIN)
        self.ts(8)
        for j in range(5):
            e('L_old%d:' % j)
            for h in range(2):
                e('buffer_load_dwordx4 %s, v254, %s, s%d offen offset:%d sc1' % (vr(OF + 8 * j + 4 * h, 4), sq(rWS), 63 + j, 1024 * h))
            e('buffer_load_dword v%d, v9, %s, s%d offen sc1' % (CK + j, sq(rWS), 73 + j))
        e('s_cmp_lg_u32 s72, 0\ns_cbranch_scc1 L_odisp\ns_waitcnt lgkmcnt(0)')
        def val(j):
            o = OF + 8 * j
            return ['s_waitcnt vmcnt(%d)' % (3 * (4 - j)),
                    'v_add3_u32 v3, v%d, v%d, v%d' % (o, o + 1, o + 2), 'v_add3_u32 v5, v%d, v%d, v%d' % (o + 3, o + 4, o + 5),
                    'v_add3_u32 v3, v3, v%d, v%d' % (o + 6, o + 7), 'v_add3_u32 v3, v3, v5, s10',
                    'v_cmp_ne_u32 vcc, v3, v%d' % (CK + j)]
        for j in range(5):
            e('L_oval%d:' % j)
            for x in val(j): e(x)
            e('s_mov_b32 s72, %d\ns_cmp_lg_u64 vcc, 0\ns_cbranch_scc1 L_oretry\nL_ogo%d:' % (j + 1, j))
            if self.opt.get('pts') == 3 and j in (0, 2, 4): self.ts(1 + j // 2)
            for ks in (2 * j, 2 * j + 1):
                slot = ks if ks < NPRE else ks - NPRE
                if ks >= NPRE:
                    e('s_waitcnt lgkmcnt(%d)' % min(15, 10 * (9 - ks)))
                for t in range(5):
                    c = '0' if ks == 0 else vr(AC + 4 * t, 4)
                    e('v_mfma_f32_16x16x32_bf16 %s, %s, %s, %s' % (vr(AC + 4 * t, 4), vr(WF + 20 * slot + 4 * t, 4), vr(OF + 4 * ks, 4), c))
                if ks + NPRE < 10:
                    for x in wrd(ks + NPRE, ks): e(x)
        def otail():
            e("""L_oretry:
            s_waitcnt vmcnt(0)
            s_sub_u32 s15, s15, 1
            s_cmp_eq_u32 s15, 0
            s_cbranch_scc1 L_ogive
            s_sleep %d""" % self.opt.get('osl', 2))
            for j in range(5):
                e('s_cmp_eq_u32 s72, %d\ns_cbranch_scc1 L_old%d' % (j + 1, j))
            e('L_odisp:')
            for j in range(4):
                e('s_cmp_eq_u32 s72, %d\ns_cbranch_scc1 L_oval%d' % (j + 1, j))
            e('s_branch L_oval4\nL_ogive:\ns_mov_b32 s15, 1')
            for j in range(4):
                e('s_cmp_eq_u32 s72, %d\ns_cbranch_scc1 L_ogo%d' % (j + 1, j))
            e('s_branch L_ogo4')
            e("""L_owait:
            s_cmp_eq_u32 s38, 2
            s_cbranch_scc0 L_ohint
            L_ow2:
            ds_read_b32 v3, v8 offset:4
            s_waitcnt lgkmcnt(0)
            v_readfirstlane_b32 s11, v3
            s_cmp_ge_u32 s11, 0x600
            s_cbranch_scc1 L_ow3
            s_sleep 1
            s_sub_u32 s15, s15, 1
            s_cmp_lg_u32 s15, 0
            s_cbranch_scc1 L_ow2
            L_ow3:
            s_mov_b32 s15, %d
            s_branch L_ook
            L_ohint:
            v_lshlrev_b32 v3, 7, v0
            s_mov_b64 exec, 31
            L_of:
            buffer_load_dword v5, v3, %s, s12 offen sc1
            s_waitcnt vmcnt(0)
            v_cmp_ne_u32 vcc, s10, v5
            s_cmp_eq_u64 vcc, 0
            s_cbranch_scc1 L_of2
            s_mov_b64 exec, vcc
            s_sleep 4
            s_sub_u32 s15, s15, 1
            s_cmp_lg_u32 s15, 0
            s_cbranch_scc1 L_of
            L_of2:
            s_mov_b64 exec, -1
            s_mov_b32 s15, %d
            s_branch L_ook""" % (SPIN, sq(rWS), SPIN))
        self.tail.append(otail)
        if self.opt.get('pts') == 1: self.ts(1)
        e("""v_mov_b32 v8, %d
        s_cmp_eq_u32 s61, 0
        s_cbranch_scc0 L_red1""" % UPD)
        for t in (3, 4):
            e('ds_write_b128 v4, %s offset:%d' % (vr(AC + 4 * t, 4), 4 * P * t))
        e('s_waitcnt lgkmcnt(0)\ns_barrier')
        for t in range(3):
            e('ds_read_b128 %s, v4 offset:%d' % (vr(OF + 4 * t, 4), 4 * P * t))
        e('s_branch L_red2\nL_red1:')
        for t in range(3):
            e('ds_write_b128 v4, %s offset:%d' % (vr(AC + 4 * t, 4), 4 * P * t))
        for r in range(8):
            e('v_mov_b32 v%d, v%d' % (OF + 16 + r, AC + 12 + r))
        e('s_waitcnt lgkmcnt(0)\ns_barrier')
        for t in (3, 4):
            e('ds_read_b128 %s, v4 offset:%d' % (vr(OF + 4 * (t - 3), 4), 4 * P * t))
        for r in range(8):
            e('v_mov_b32 v%d, v%d' % (AC + r, OF + 16 + r))
        e('L_red2:')
        if self.opt.get('pts') == 2: self.ts(1)
        e("""ds_read2_b32 v[6:7], v8 offset0:0 offset1:1
        s_waitcnt lgkmcnt(0)
        v_readfirstlane_b32 s76, v6
        v_readfirstlane_b32 s77, v7""")
        for d in range(6):
            e('v_pk_add_f32 %s, %s, %s' % (vr(AC + 2 * d, 2), vr(AC + 2 * d, 2), vr(OF + 2 * d, 2)))
        e("""s_lshr_b32 s11, s76, 4
        s_cmp_eq_u32 s11, s60
        s_cbranch_scc1 L_exrow0
        L_exb0:
        s_lshr_b32 s11, s77, 4
        s_cmp_eq_u32 s11, s60
        s_cbranch_scc1 L_exrow1
        L_exb1:""")
        rnd(AC, 6)
        for d in range(6):
            e('v_pk_add_f32 %s, %s, %s' % (vr(AC + 2 * d, 2), vr(AC + 2 * d, 2), vr(XF + 2 * d, 2)))
        rnd(AC, 6)
        for d in range(6):
            e('v_pk_add_f32 %s, %s, %s' % (vr(AC + 2 * d, 2), vr(AC + 2 * d, 2), vr(XN + 2 * d, 2)))
            e('v_cvt_pk_bf16_f32 v%d, v%d, v%d' % (248 + d, AC + 2 * d, AC + 2 * d + 1))
            if d == 1: e('buffer_store_dwordx2 v[248:249], v234, %s, 0 offen' % sq(rOUT))
            if d == 3:
                e('buffer_store_dwordx2 v[250:251], v234, %s, 0 offen offset:32' % sq(rOUT))
                e('s_cmp_lg_u32 s61, 0\ns_cbranch_scc1 L_fin')
        e('buffer_store_dwordx2 v[252:253], v234, %s, 0 offen offset:64' % sq(rOUT))
        e('L_fin:')
        if self.opt.get('ts'):
            if self.opt.get('pts') in (1, 2): self.ts(2)
            if self.opt.get('rcnt'): e('s_waitcnt lgkmcnt(0)\ns_sub_u32 s11, %d, s15\ns_add_u32 s84, s80, s11' % SPIN)
            e('s_waitcnt vmcnt(0)')
            self.ts(9)
            e('s_waitcnt lgkmcnt(0)\nv_mov_b32 v15, 0')
            for k in range(10):
                e('v_mov_b32 v%d, s%d' % (16 + k, 80 + 2 * k))
            e("""s_lshl_b32 s11, s2, 3
            s_add_u32 s11, s11, s5
            s_lshl_b32 s11, s11, 6
            s_add_u32 s11, s11, %d
            s_mov_b64 exec, 1
            buffer_store_dwordx4 v[16:19], v15, %s, s11 offen
            buffer_store_dwordx4 v[20:23], v15, %s, s11 offen offset:16
            buffer_store_dwordx2 v[24:25], v15, %s, s11 offen offset:32""" % (WS_TS, sq(rWS), sq(rWS), sq(rWS)))
        e('s_endpgm')
        for k in range(2):
            e("""L_exrow%d:
            v_lshrrev_b32 v3, 4, v0
            s_mul_i32 s11, s61, 192
            s_add_u32 s11, s11, %d
            v_lshl_add_u32 v3, v3, 4, s11""" % (k, UPD + 16 + 1536 * k))
            for t in range(3):
                e('ds_read_b128 %s, v3 offset:%d' % (vr(OF + 4 * t, 4), 64 * t))
            e("""v_and_b32 v3, 15, v0
            s_and_b32 s11, s%d, 15
            v_cmp_eq_u32 vcc, s11, v3
            s_waitcnt lgkmcnt(0)""" % (76 + k))
            for d in range(6):
                e('v_pk_add_f32 %s, %s, %s' % (vr(OF + 2 * d, 2), vr(OF + 2 * d, 2), vr(XN + 2 * d, 2)))
            rnd(OF, 6)
            for r in range(12):
                e('v_cndmask_b32 v%d, v%d, v%d, vcc' % (XN + r, XN + r, OF + r))
            e('s_branch L_exb%d' % k)

    def p2wo(self):
        e = self.e
        UPD = TAB + 1024
        e('L_p2wo:')
        self.p2_loads()
        e("""v_mov_b32 v8, %d
        v_mov_b32 v3, 1
        s_waitcnt vmcnt(0)
        s_mov_b64 exec, 1
        ds_add_u32 v8, v3 offset:4
        s_mov_b64 exec, -1
        s_lshl_b32 s11, s2, 3
        s_add_u32 s11, s11, s5
        s_cmpk_lg_u32 s11, 1927
        s_cbranch_scc1 L_noep
        v_lshlrev_b32 v4, 9, v0
        v_add_u32 v4, 0x2e0000, v4
        s_mov_b32 s15, 200000
        L_ep:
        buffer_load_dword v16, v4, s[52:55], 0 offen sc1
        buffer_load_dword v17, v4, s[52:55], 0 offen offset:128 sc1
        buffer_load_dword v18, v4, s[52:55], 0 offen offset:256 sc1
        buffer_load_dword v19, v4, s[52:55], 0 offen offset:384 sc1
        s_waitcnt vmcnt(0)
        v_xor_b32 v16, s10, v16
        v_xor_b32 v17, s10, v17
        v_xor_b32 v18, s10, v18
        v_xor_b32 v19, s10, v19
        v_or3_b32 v16, v16, v17, v18
        v_or_b32 v16, v16, v19
        v_cmp_ne_u32 vcc, 0, v16
        s_cmp_eq_u64 vcc, 0
        s_cbranch_scc1 L_ep2
        s_sleep 8
        s_sub_u32 s15, s15, 1
        s_cmp_lg_u32 s15, 0
        s_cbranch_scc1 L_ep
        L_ep2:
        v_mov_b32 v4, 0
        v_mov_b32 v5, s10
        s_mov_b64 exec, 1
        global_store_dword v4, v5, s[36:37] sc1
        s_mov_b64 exec, -1
        L_noep:
        s_cmp_lg_u32 s5, 6
        s_cbranch_scc1 L_phase2
        v_mov_b32 v4, 0
        s_mov_b32 s15, %d
        L_sel:
        buffer_load_dwordx4 v[16:19], v4, %s, 0 offen offset:%d sc1
        s_waitcnt vmcnt(0)
        v_readfirstlane_b32 s11, v17
        v_readfirstlane_b32 s12, v19
        v_readfirstlane_b32 s76, v16
        v_readfirstlane_b32 s79, v18
        s_cmp_eq_u32 s11, s12
        s_cselect_b32 s11, s11, 0
        s_cselect_b32 s12, s10, 1
        s_mov_b32 s78, 0
        s_cmp_eq_u32 s11, s12
        s_cbranch_scc1 L_selok
        s_sleep 8
        s_sub_u32 s15, s15, 1
        s_cmp_lg_u32 s15, 0
        s_cbranch_scc1 L_sel
        L_selok:
        s_and_b32 s77, s76, 0xffff
        s_sub_u32 s77, 2047, s77
        s_lshl_b32 s11, s78, 2
        s_add_u32 s11, s11, %d
        v_mov_b32 v3, s11
        v_mov_b32 v4, s77
        ds_write_b32 v3, v4
        s_lshr_b32 s11, s77, 6
        s_lshr_b32 s12, s60, 2
        s_cmp_lg_u32 s11, s12
        s_cbranch_scc1 L_selnext
        v_mul_u32_u24 v3, 13, v0
        v_lshrrev_b32 v3, 8, v3
        v_mul_u32_u24 v4, 20, v3
        v_sub_u32 v4, v0, v4
        v_mul_u32_u24 v5, 40960, v3
        v_lshl_add_u32 v5, v4, 5, v5
        v_lshrrev_b32 v4, 2, v4
        v_lshl_add_u32 v5, v4, 7, v5
        s_lshr_b32 s14, s4, 2
        s_mul_i32 s14, s14, 1280
        s_lshl_b32 s13, s78, 4
        s_add_u32 s14, s14, s13
        s_add_u32 s14, s14, %d
        s_lshr_b32 s11, s76, 16
        s_bitcmp1_b32 s11, 15
        s_mov_b32 s13, 0xffff
        s_cmov_b32 s13, 0x8000
        s_xor_b32 s11, s11, s13
        s_lshl_b32 s11, s11, 16
        v_mov_b32 v6, 0xbfb8aa3b
        v_mul_f32 v6, s11, v6
        v_exp_f32 v6, v6
        v_add_f32 v6, 1.0, v6
        v_rcp_f32 v6, v6
        v_cvt_pk_bf16_f32 v6, v6, v6
        v_and_b32 v6, 0xffff0000, v6
        s_mul_i32 s11, s78, 1536
        s_add_u32 s11, s11, %d
        v_add_u32 v7, s11, v254
        s_mov_b32 s15, %d
        s_mov_b32 exec_hi, 0xfffffff
        L_yf:
        s_mov_b32 s12, s14""" % (TAB + 896, SPIN, sq(rWS), WS_SEL, UPD, WS_Y, UPD + 16, SPIN))
        assert all((x * 13) >> 8 == x // 20 for x in range(60))
        for j in range(4):
            for h in range(2):
                e('buffer_load_dwordx4 %s, v5, %s, s12 offen offset:%d sc1' % (vr(32 + 8 * j + 4 * h, 4), sq(rWS), 128 * h))
            if j < 3: e('s_add_u32 s12, s12, 10240')
        e('s_waitcnt vmcnt(0)\nv_mov_b32 v3, 0')
        for j in range(4):
            e('v_xor_b32 v4, s10, v%d\nv_xor_b32 v9, s10, v%d\nv_or3_b32 v3, v3, v4, v9' % (32 + 8 * j + 2, 32 + 8 * j + 6))
        e("""v_cmp_ne_u32 vcc, 0, v3
        s_cmp_eq_u64 vcc, 0
        s_cbranch_scc1 L_yok
        s_mov_b64 exec, vcc
        s_sleep 4
        s_sub_u32 s15, s15, 1
        s_cmp_lg_u32 s15, 0
        s_cbranch_scc1 L_yf
        L_yok:
        s_mov_b32 exec_lo, -1
        s_mov_b32 exec_hi, 0xfffffff""")
        for h in range(2):
            e('v_pk_add_f32 %s, %s, %s' % (vr(16 + 2 * h, 2), vr(32 + 4 * h, 2), vr(40 + 4 * h, 2)))
        for j in (2, 3):
            for h in range(2):
                e('v_pk_add_f32 %s, %s, %s' % (vr(16 + 2 * h, 2), vr(16 + 2 * h, 2), vr(32 + 8 * j + 4 * h, 2)))
        e("""ds_write_b128 v7, v[16:19] offset:320
        s_waitcnt lgkmcnt(0)
        s_mov_b64 exec, 0xfffff
        ds_read_b128 v[20:23], v7 offset:640
        ds_read_b128 v[24:27], v7 offset:960
        s_waitcnt lgkmcnt(0)""")
        for j in (1, 2):
            for h in range(2):
                e('v_pk_add_f32 %s, %s, %s' % (vr(16 + 2 * h, 2), vr(16 + 2 * h, 2), vr(16 + 4 * j + 2 * h, 2)))
        def rnd2():
            e("""v_cvt_pk_bf16_f32 v20, v16, v17
            v_cvt_pk_bf16_f32 v21, v18, v19
            v_lshlrev_b32 v16, 16, v20
            v_and_b32 v17, 0xffff0000, v20
            v_lshlrev_b32 v18, 16, v21
            v_and_b32 v19, 0xffff0000, v21""")
        rnd2()
        for r in range(4): e('v_mul_f32 v%d, v%d, v6' % (16 + r, 16 + r))
        rnd2()
        e("""ds_write_b128 v7, v[16:19]
        s_waitcnt lgkmcnt(0)
        s_mov_b64 exec, -1
        L_selnext:
        s_mov_b32 s76, s79
        s_add_u32 s78, s78, 1
        s_cmp_lt_u32 s78, 2
        s_cbranch_scc1 L_selok
        s_branch L_phase2""")

    def expert(self):
        e = self.e
        BUF = 32768
        ETS = self.opt.get('ets', 0)
        e("""L_aux:
        s_cmp_ge_u32 s79, 4
        s_cbranch_scc1 L_idle""")
        e("""s_mul_i32 s68, s78, 12
        s_add_u32 s68, s68, s79
        s_lshl_b32 s11, s77, 1
        s_lshl_b32 s11, s11, s76
        s_add_u32 s68, s68, s11
        s_lshl_b32 s11, s76, 2
        s_add_u32 s68, s68, s11
        s_and_b32 s14, s5, 1
        s_lshr_b32 s69, s5, 1
        v_lshrrev_b32 v2, 3, v0
        v_and_b32 v3, 7, v0
        v_bfe_u32 v4, v0, 4, 1
        v_lshl_or_b32 v4, s14, 1, v4
        v_lshlrev_b32 v4, 1, v4
        v_xor_b32 v4, v3, v4
        s_and_b32 s12, s68, 1
        s_mul_i32 s12, s12, 320
        s_lshl_b32 s11, s14, 3
        s_add_u32 s11, s11, s12
        v_add_u32 v2, s11, v2
        v_mul_u32_u24 v2, 3072, v2
        v_lshl_add_u32 v2, v4, 4, v2
        s_and_b32 s11, s68, 30
        s_and_b32 s12, s69, 1
        s_add_u32 s11, s11, s12
        s_lshl_b32 s11, s11, 7
        v_add_u32 v10, s11, v2
        s_lshl_b32 s74, s69, 13
        s_lshl_b32 s11, s14, 10
        s_add_u32 s75, s74, s11
        s_waitcnt lgkmcnt(0)
        s_cmp_lt_u32 s5, 4
        s_cselect_b32 s44, s26, s28
        s_cselect_b32 s45, s27, s29
        s_mov_b32 s46, %d
        s_mov_b32 s47, 0x20000""" % GB)
        nt = ' nt' if self.opt.get('nt', 1) else ''
        def issue(s):
            base = (s % 4) * BUF
            for a in range(4):
                e('s_add_u32 m0, s75, %d\ns_mov_b32 s12, %d' % (base + a * 2048, (64 * s + 16 * a) * 3072))
                e('buffer_load_dwordx4 v10, %s, s12 offen%s lds' % (sq(rW), nt))
        if ETS == 1: self.ts(1)
        issue(0)
        e('s_branch L_expert2')
        self.expert_rest = lambda: self.expert2(issue)

    def expert2(self, issue):
        e = self.e
        WG_, XS = 32, 112
        BUF = 32768
        MX = TAB + 4096
        ETS = self.opt.get('ets', 0)
        e('L_expert2:')
        self.tag_load()
        self.srd(rX, pX, XB); self.srd(rWS, pWS, WSB)
        self.p2_setup()
        self.wo_setup(11)
        e("""v_and_b32 v1, 15, v0
        v_lshrrev_b32 v2, 4, v0
        v_lshrrev_b32 v3, 2, v1
        v_and_b32 v4, 3, v1
        v_lshrrev_b32 v5, 1, v3
        v_and_b32 v6, 1, v2
        v_lshl_or_b32 v5, v6, 1, v5
        s_lshl_b32 s11, s14, 1
        v_xor_b32 v5, s11, v5
        v_lshl_add_u32 v7, v2, 3, v3
        v_lshlrev_b32 v8, 7, v7
        v_lshl_add_u32 v8, v5, 5, v8
        v_lshl_add_u32 v8, v4, 3, v8
        v_add_u32 v16, s74, v8
        s_lshl_b32 s11, s5, 6
        v_add_u32 v21, s11, v0
        v_lshlrev_b32 v17, 4, v21
        v_add_u32 v17, %d, v17
        v_and_b32 v5, 1, v1
        v_mul_u32_u24 v19, 656, v5
        v_lshl_add_u32 v19, v2, 4, v19
        v_add_u32 v19, %d, v19
        v_lshlrev_b32 v20, 5, v2
        v_lshl_add_u32 v20, v1, 4, v20
        s_lshl_b32 s72, s68, 1
        s_lshr_b32 s11, s5, 2
        s_add_u32 s72, s72, s11
        s_lshl_b32 s72, s72, 11
        s_and_b32 s11, s5, 3
        s_lshl_b32 s11, s11, 8
        s_add_u32 s72, s72, s11
        s_add_u32 s72, s72, %d
        v_mov_b32 v8, %d
        v_mov_b32 v9, 0
        ds_write_b32 v8, v9 offset:4""" % (WS_KEY, MX, WS_H, TAB + 896))
        issue(1); issue(2); issue(3)
        self.tag_ready()
        def consume(s, n):
            base = (s % 4) * BUF
            e('s_waitcnt vmcnt(%d)\ns_barrier' % n)
            if ETS == 1 and s in (0, 2, 4): self.ts({0: 4, 2: 5, 4: 6}[s])
            e('v_add_u32 v8, %d, v16\nv_xor_b32 v9, 32, v8' % base)
            for t in range(2):
                for tl in range(2):
                    for hh in range(2):
                        e('ds_read_b64_tr_b16 %s, v%d offset:%d' % (vr(WG_ + 40 * tl + 4 * (2 * s + t) + 2 * hh, 2), 8 + tl, (32 * t + 4 * hh) * 128))
        B = 120
        v = lambda k: 'v%d' % (B + k)
        def sweep():
            e('s_mov_b32 s12, 8192')
            e('buffer_load_dwordx4 %s, v17, %s, 0 offen sc1\nbuffer_load_dwordx4 %s, v17, %s, s12 offen sc1' % (vr(B + 2, 4), sq(rWS), vr(B + 6, 4), sq(rWS)))
        SW = self.opt.get('sw', 0)
        consume(0, 12)
        e('s_waitcnt lgkmcnt(0)\ns_barrier')
        if SW == 0: sweep()
        issue(4)
        consume(1, 12 + 2 * (SW == 0))
        if SW == 1: sweep()
        consume(2, 8 + 2 * (SW <= 1))
        if SW == 2: sweep()
        consume(3, 6)
        if SW: consume(4, 2)
        MK = TAB
        e("""s_mov_b32 s15, %d
        s_waitcnt vmcnt(%d)
        L_sweep:
        v_xor_b32 v5, s10, %s
        v_xor_b32 v6, s10, %s
        v_xor_b32 v7, s10, %s
        v_xor_b32 v8, s10, %s
        v_or3_b32 v5, v5, v6, v7
        v_or_b32 v5, v5, v8
        v_cmp_ne_u32 vcc, 0, v5
        s_cmp_eq_u64 vcc, 0
        s_cbranch_scc1 L_swok
        s_mov_b64 exec, vcc
        s_sub_u32 s15, s15, 1
        s_cmp_eq_u32 s15, 0
        s_cbranch_scc1 L_swok
        s_sleep 4""" % (SPIN, 0 if SW else 4, v(3), v(5), v(7), v(9)))
        sweep()
        e('s_waitcnt vmcnt(0)\ns_branch L_sweep\nL_swok:\ns_mov_b64 exec, -1')
        if ETS == 2: self.ts(1)
        e("""v_max_u32 v5, %s, %s
        v_min_u32 v6, %s, %s
        v_max_u32 v7, %s, %s
        v_min_u32 v8, %s, %s
        v_max_u32 v3, v5, v7
        v_min_u32 v5, v5, v7
        v_max3_u32 v4, v5, v6, v8""" % (v(2), v(4), v(2), v(4), v(6), v(8), v(6), v(8)))
        def merge16():
            for n in (8, 4, 2, 1):
                d = 'row_ror:%d row_mask:0xf bank_mask:0xf' % n
                e("""v_min_u32_dpp v5, v3, v3 %s
                v_max_u32_dpp v4, v4, v4 %s
                v_max_u32_dpp v3, v3, v3 %s
                v_max_u32 v4, v4, v5""" % (d, d, d))
        merge16()
        e("""s_lshl_b32 s11, s5, 5
        s_add_u32 s11, s11, %d
        v_lshl_add_u32 v7, v2, 3, s11
        v_mov_b32 v8, v3
        v_mov_b32 v9, v4
        ds_write_b64 v7, v[8:9]
        v_lshlrev_b32 v7, 4, v1
        v_add_u32 v7, %d, v7
        s_waitcnt lgkmcnt(0)
        s_barrier
        s_cmp_ge_u32 s5, 3
        s_cbranch_scc1 L_noxn
        ds_read_b128 %s, v7
        s_waitcnt lgkmcnt(0)
        v_max_u32 v3, %s, %s
        v_min_u32 v5, %s, %s
        v_max3_u32 v4, v5, %s, %s""" % (MK, MK, vr(B + 2, 4), v(2), v(4), v(2), v(4), v(3), v(5)))
        merge16()
        if ETS == 2: self.ts(4)
        e("""v_readfirstlane_b32 s76, v3
        v_readfirstlane_b32 s77, v4
        s_cmp_lg_u32 s5, 2
        s_cbranch_scc1 L_rx
        s_cmp_lg_u32 s68, 0
        s_cbranch_scc1 L_noxn
        v_mov_b32 v4, s76
        v_mov_b32 v5, s10
        v_mov_b32 v6, s77
        v_mov_b32 v7, s10
        v_mov_b32 v3, 0
        s_mov_b64 exec, 1
        buffer_store_dwordx4 v[4:7], v3, %s, 0 offen offset:%d sc1
        s_mov_b64 exec, -1
        s_branch L_noxn
        L_rx:
        s_cmp_eq_u32 s5, 0
        s_cselect_b32 s11, s76, s77
        s_and_b32 s11, s11, 0xffff
        s_sub_u32 s11, 2047, s11
        s_lshl_b32 s13, s11, 3
        s_add_u32 s13, s13, %d
        s_mul_i32 s11, s11, 1280
        s_and_b32 s12, s68, 1
        s_mul_i32 s12, s12, 640
        s_add_u32 s11, s11, s12
        s_mul_i32 s12, s5, 656
        s_add_u32 s12, s12, %d
        v_add_u32 v9, s12, v254
        v_mov_b32 v7, 0
        s_mov_b32 exec_hi, 0xff
        s_mov_b32 s15, %d
        buffer_load_dwordx4 %s, v254, %s, s11 offen
        L_rst:
        buffer_load_dwordx2 %s, v7, %s, s13 offen sc1
        s_waitcnt vmcnt(0)
        v_cmp_ne_u32 vcc, s10, %s
        s_cmp_eq_u64 vcc, 0
        s_cbranch_scc1 L_rstok
        s_sub_u32 s15, s15, 1
        s_cmp_lg_u32 s15, 0
        s_cbranch_scc1 L_rst
        L_rstok:
        v_and_b32 v3, 0xffff0000, %s
        v_rcp_f32 v3, v3
        v_lshlrev_b32 v4, 16, %s""" % (sq(rWS), WS_SEL, WS_STAT, MX, SPIN, vr(B + 2, 4), sq(rX), vr(B + 6, 2), sq(rWS), v(7), v(6), v(6)))
        F = B + 8
        def unp():
            for d in range(4):
                e('v_lshlrev_b32 v%d, 16, v%d\nv_and_b32 v%d, 0xffff0000, v%d' % (F + 2 * d, B + 2 + d, F + 2 * d + 1, B + 2 + d))
        def pk():
            for d in range(4): e('v_cvt_pk_bf16_f32 v%d, v%d, v%d' % (B + 2 + d, F + 2 * d, F + 2 * d + 1))
        unp()
        for r in range(8): e('v_sub_f32 v%d, v%d, v4' % (F + r, F + r))
        pk(); unp()
        for r in range(8): e('v_mul_f32 v%d, v%d, v3' % (F + r, F + r))
        pk()
        e('ds_write_b128 v9, %s\ns_mov_b64 exec, -1\nL_noxn:\ns_waitcnt lgkmcnt(0)' % vr(B + 2, 4))
        if SW:
            e('s_barrier')
        else:
            consume(4, 0)
            e('s_waitcnt lgkmcnt(0)')
        if ETS == 2: self.ts(5)
        for ks in range(10):
            e('ds_read_b128 %s, v19 offset:%d' % (vr(XS + 4 * ks, 4), 64 * ks))
        R = 160
        for k in range(4):
            e('v_mov_b32 v%d, s10\nv_mov_b32 v%d, 0' % (R + 8 + 4 * k + 2, R + 8 + 4 * k + 3))
        for ks in range(10):
            e('s_waitcnt lgkmcnt(%d)' % (9 - ks))
            for tl in range(2):
                e('v_mfma_f32_16x16x32_bf16 %s, %s, %s, %s' % (vr(R + 4 * tl, 4), vr(WG_ + 40 * tl + 4 * ks, 4), vr(XS + 4 * ks, 4), '0' if ks == 0 else vr(R + 4 * tl, 4)))
        e('v_cmp_gt_u32 vcc, 2, v1\ns_and_b64 exec, exec, vcc')
        for tl in range(2):
            for h in range(2):
                d = R + 8 + 4 * (2 * tl + h)
                e('v_mov_b32 v%d, v%d\nv_mov_b32 v%d, v%d' % (d, R + 4 * tl + 2 * h, d + 1, R + 4 * tl + 2 * h + 1))
                e('buffer_store_dwordx4 %s, v20, %s, s72 offen offset:%d sc1' % (vr(d, 4), sq(rWS), 1024 * h + 128 * tl))
        e('s_mov_b64 exec, -1')
        self.ts(2)
        e('s_barrier')
        self.count_in(0)
        e('L_woall:')
        self.wo_block(11, 's5')
        e('s_add_u32 s71, s5, 8'); self.wo_block(11, 's71')
        e('s_cmp_lt_u32 s5, 4\ns_cbranch_scc1 L_p2wo\ns_add_u32 s71, s5, 12')
        self.wo_block(11, 's71')
        e('s_branch L_p2wo')

    def down(self):
        e = self.e
        WD, YA = 32, 112
        BUF = 40960
        MH = TAB + 384
        nt = ' nt' if self.opt.get('nt', 1) else ''
        e("""L_idle:
        s_lshl_b32 s68, s78, 1
        s_add_u32 s68, s68, s77
        s_mul_i32 s68, s68, 3
        s_add_u32 s68, s68, s79
        s_sub_u32 s68, s68, 4
        s_mul_i32 s72, s5, 5120
        s_mul_i32 s73, s68, 163840
        s_add_u32 s73, s73, s72
        s_bfe_u32 s11, s5, 0x10001
        s_lshl_b32 s11, s11, 2""")
        for a in range(5):
            e("""v_add_u32 v2, %d, v0
            v_mul_u32_u24 v3, 820, v2
            v_lshrrev_b32 v3, 16, v3
            v_mul_u32_u24 v4, 80, v3
            v_sub_u32 v4, v2, v4
            v_or_b32 v5, s11, v3
            v_lshlrev_b32 v5, 1, v5
            v_xor_b32 v4, v4, v5
            v_mul_u32_u24 v3, 1280, v3
            v_lshl_add_u32 v%d, v4, 4, v3""" % (64 * a, 26 + a))
        def issue(s):
            base = (s % 3) * BUF
            for a in range(5):
                e('s_add_u32 m0, s72, %d\ns_add_u32 s12, s73, %d' % (base + a * 1024, s * 40960))
                e('buffer_load_dwordx4 v%d, %s, s12 offen%s lds' % (26 + a, sq(rD), nt))
        e('s_waitcnt lgkmcnt(0)')
        self.srd(rD, pD, GB)
        issue(0)
        e('s_branch L_down2')
        self.down_rest = lambda: self.down2(issue)

    def down2(self, issue):
        e = self.e
        WD, YA = 32, 112
        BUF = 40960
        MH = TAB + 384
        e('L_down2:')
        self.tag_load()
        self.srd(rX, pX, XB); self.srd(rWS, pWS, WSB)
        self.p2_setup()
        self.wo_setup(11)
        e("""v_and_b32 v1, 15, v0
        v_lshrrev_b32 v2, 4, v0
        v_lshrrev_b32 v3, 2, v1
        v_and_b32 v4, 3, v1
        v_and_b32 v6, 1, v2
        v_lshl_add_u32 v7, v2, 3, v3
        v_lshl_or_b32 v5, v6, 2, v3
        v_mul_u32_u24 v7, 1280, v7
        v_lshl_add_u32 v7, v4, 3, v7
        s_mul_i32 s11, s5, 5""")
        for j in range(5):
            e("""s_add_u32 s12, s11, %d
            v_xor_b32 v8, s12, v5
            v_lshl_add_u32 v%d, v8, 5, v7""" % (j, 18 + j))
        e("""v_mov_b32 v8, %d
        v_mov_b32 v9, 0
        ds_write_b32 v8, v9 offset:4""" % (TAB + 896))
        issue(1); issue(2)
        self.tag_ready()
        def consume(s, n):
            base = (s % 3) * BUF
            e('s_waitcnt vmcnt(%d)\ns_barrier' % n)
            for j in range(5):
                e('v_add_u32 v8, %d, v%d' % (base, 18 + j))
                for hh in range(2):
                    e('ds_read_b64_tr_b16 %s, v8 offset:%d' % (vr(WD + 20 * s + 4 * j + 2 * hh, 2), 5120 * hh))
        consume(0, 10)
        e('s_waitcnt lgkmcnt(0)\ns_barrier')
        issue(3)
        consume(1, 10)
        consume(2, 5)
        e('s_waitcnt lgkmcnt(0)\ns_barrier')
        e('s_cmp_eq_u32 s5, 0\ns_cbranch_scc1 L_dn0\ns_sub_u32 s71, s5, 1')
        self.wo_block(11, 's71')
        e('s_waitcnt vmcnt(5)\ns_branch L_dn0b\nL_dn0:\ns_waitcnt vmcnt(0)\nL_dn0b:')
        consume(3, 63)
        self.count_in(7)
        e('s_cmp_eq_u32 s5, 0\ns_cbranch_scc1 L_dn1\ns_add_u32 s71, s5, 6')
        self.wo_block(11, 's71')
        e('s_cmp_eq_u32 s5, 7\ns_cbranch_scc1 L_dn2\ns_add_u32 s71, s5, 13')
        self.wo_block(11, 's71')
        e('s_branch L_dn2\nL_dn1:\ns_setprio 3')
        self.ts(2)
        HB = 132
        e("""s_lshl_b32 s12, s68, 13
        s_add_u32 s12, s12, %d
        s_add_u32 s13, s12, 4096
        s_mov_b32 s15, %d
        HINTSKIP
        s_mov_b64 exec, 1
        L_hp0:
        buffer_load_dwordx4 %s, v254, %s, s12 offen sc1
        buffer_load_dwordx4 %s, v254, %s, s13 offen sc1
        s_waitcnt vmcnt(0)
        v_xor_b32 v4, s10, v%d
        v_xor_b32 v5, s10, v%d
        v_or_b32 v3, v4, v5
        v_cmp_ne_u32 vcc, 0, v3
        s_cmp_eq_u64 vcc, 0
        s_cbranch_scc1 L_hp1
        s_sleep 2
        s_sub_u32 s15, s15, 1
        s_cmp_lg_u32 s15, 0
        s_cbranch_scc1 L_hp0
        L_hp1:
        s_mov_b64 exec, -1
        s_mov_b32 s15, %d
        L_hp:""" % (WS_H, SPIN, vr(HB, 4), sq(rWS), vr(HB + 4, 4), sq(rWS), HB + 2, HB + 6, SPIN))
        for k in range(8):
            e('buffer_load_dwordx4 %s, v254, %s, s%d offen offset:%d sc1' % (vr(HB + 4 * k, 4), sq(rWS), 12 + k // 4, 1024 * (k % 4)))
        e('s_waitcnt vmcnt(0)\nv_mov_b32 v3, 0')
        for k in range(0, 8, 2):
            e('v_xor_b32 v4, s10, v%d\nv_xor_b32 v5, s10, v%d\nv_or3_b32 v3, v3, v4, v5' % (HB + 4 * k + 2, HB + 4 * k + 6))
        e("""v_cmp_ne_u32 vcc, 0, v3
        s_cmp_eq_u64 vcc, 0
        s_cbranch_scc1 L_hok
        s_mov_b64 exec, vcc
        s_sleep 2
        s_sub_u32 s15, s15, 1
        s_cmp_lg_u32 s15, 0
        s_cbranch_scc1 L_hp
        L_hok:
        s_mov_b64 exec, -1""")
        if self.opt.get('ets') == 2: self.ts(6)
        for k in range(4):
            e('v_pk_add_f32 %s, %s, %s' % (vr(HB + 4 * k, 2), vr(HB + 4 * k, 2), vr(HB + 16 + 4 * k, 2)))
        for k in range(4):
            e('v_cvt_pk_bf16_f32 v%d, v%d, v%d' % (4 + k, HB + 4 * k, HB + 4 * k + 1))
        for k in range(4):
            e('v_lshlrev_b32 v%d, 16, v%d\nv_and_b32 v%d, 0xffff0000, v%d' % (HB + 2 * k, 4 + k, HB + 2 * k + 1, 4 + k))
        F = HB + 8
        for r in range(4): e('v_mul_f32 v%d, 0xbfb8aa3b, v%d' % (F + r, HB + r))
        for r in range(4): e('v_exp_f32 v%d, v%d' % (F + r, F + r))
        for r in range(4): e('v_add_f32 v%d, 1.0, v%d' % (F + r, F + r))
        for r in range(4): e('v_rcp_f32 v%d, v%d' % (F + r, F + r))
        for r in range(4): e('v_mul_f32 v%d, v%d, v%d' % (HB + r, HB + r, F + r))
        for k in range(2):
            e('v_cvt_pk_bf16_f32 v%d, v%d, v%d' % (4 + k, HB + 2 * k, HB + 2 * k + 1))
        for k in range(2):
            e('v_lshlrev_b32 v%d, 16, v%d\nv_and_b32 v%d, 0xffff0000, v%d' % (HB + 2 * k, 4 + k, HB + 2 * k + 1, 4 + k))
        for r in range(4): e('v_mul_f32 v%d, v%d, v%d' % (HB + r, HB + r, HB + 4 + r))
        e("""v_cvt_pk_bf16_f32 v24, v%d, v%d
        v_cvt_pk_bf16_f32 v25, v%d, v%d
        v_and_b32 v3, 1, v0
        v_lshrrev_b32 v4, 1, v0
        v_lshlrev_b32 v3, 8, v3
        v_lshl_add_u32 v3, v4, 3, v3
        v_add_u32 v3, %d, v3
        ds_write_b64 v3, v[24:25]
        L_dn2:
        v_and_b32 v5, 1, v1
        v_lshlrev_b32 v6, 8, v5
        v_lshl_add_u32 v6, v2, 4, v6
        v_add_u32 v6, %d, v6
        v_lshlrev_b32 v7, 5, v2
        v_lshl_add_u32 v7, v1, 4, v7
        s_mul_i32 s11, s68, 10240
        s_mul_i32 s12, s5, 1280
        s_add_u32 s11, s11, s12
        s_add_u32 s11, s11, %d""" % (HB, HB + 1, HB + 2, HB + 3, MH, MH, WS_Y))
        YG = 168
        for k in range(10):
            e('v_mov_b32 v%d, s10\nv_mov_b32 v%d, 0' % (YG + 4 * k + 2, YG + 4 * k + 3))
        e('s_waitcnt lgkmcnt(0)\ns_barrier')
        for ks in range(4):
            e('ds_read_b128 %s, v6 offset:%d' % (vr(16 + 4 * ks, 4), 64 * ks))
        for ks in range(4):
            e('s_waitcnt lgkmcnt(%d)' % (3 - ks))
            for j in range(5):
                e('v_mfma_f32_16x16x32_bf16 %s, %s, %s, %s' % (vr(YA + 4 * j, 4), vr(WD + 20 * ks + 4 * j, 4), vr(16 + 4 * ks, 4), '0' if ks == 0 else vr(YA + 4 * j, 4)))
        e('v_cmp_gt_u32 vcc, 2, v1\ns_and_b64 exec, exec, vcc')
        for j in range(5):
            for h in range(2):
                d = YG + 4 * (2 * j + h)
                e('v_mov_b32 v%d, v%d\nv_mov_b32 v%d, v%d' % (d, YA + 4 * j + 2 * h, d + 1, YA + 4 * j + 2 * h + 1))
                e('buffer_store_dwordx4 %s, v7, %s, s11 offen offset:%d sc1' % (vr(d, 4), sq(rWS), 256 * j + 128 * h))
        e('s_mov_b64 exec, -1')
        self.ts(3)

    def build(self):
        self.tail = []
        self.prologue()
        self.loader()
        self.expert()
        self.down()
        self.loader_rest()
        self.expert_rest()
        self.down_rest()
        self.p2wo()
        self.w23()
        self.stats()
        self.gemm1()
        self.attention()
        self.phase2()
        for f in self.tail: f()
        self.e('L_end:\ns_endpgm')
        return self.L

HEAD = open('cdna_kernels/%s.s.ref' % NAME).read().split('; Override launch')[0]

def generate(opt):
    g = G(opt)
    L = g.build()
    L = [x.replace('HINTSKIP', 's_branch L_hp' if opt.get('nohint') else 's_nop 0') for x in L]
    L = [x.replace('IMSLEEP', 's_sleep %d' % opt.get('ims', 1) if opt.get('ims', 1) else 's_nop 0') for x in L]
    L = [x.replace('OMODE', str(opt.get('omode', 2))) for x in L]
    L, added = hz.fix(L)
    k = NAME + '_kernel'
    s = HEAD + '; @launch grid=(256,1,1) block=(512,1,1) lds=%d\n' % LDS_BYTES
    s += '.amdgcn_target "amdgcn-amd-amdhsa--gfx950"\n.text\n.globl %s\n.p2align 8\n.type %s,@function\n%s:\n' % (k, k, k)
    s += '\n'.join(L) + '\n'
    s += """.section .rodata,"a"
.p2align 6
.amdhsa_kernel %s
  .amdhsa_next_free_vgpr 256
  .amdhsa_next_free_sgpr 102
  .amdhsa_accum_offset 256
  .amdhsa_group_segment_fixed_size 0
  .amdhsa_kernarg_size 88
  .amdhsa_user_sgpr_count 2
  .amdhsa_user_sgpr_kernarg_segment_ptr 1
  .amdhsa_system_sgpr_workgroup_id_x 1
  .amdhsa_float_denorm_mode_32 3
.end_amdhsa_kernel
""" % k
    import subprocess, re, os, tempfile
    d = tempfile.mkdtemp()
    open(d + '/a.s', 'w').write(s.replace('CODE_LAST', '0x1000'))
    subprocess.run(['clang', '-x', 'assembler', '-target', 'amdgcn-amd-amdhsa', '-mcpu=gfx950', '-c', d + '/a.s', '-o', d + '/a.o'], check=True)
    h = subprocess.run(['llvm-objdump', '-h', d + '/a.o'], capture_output=True, text=True).stdout
    size = int(re.search(r'\.text\s+([0-9a-f]+)', h).group(1), 16)
    generate.size = size
    sy = subprocess.run(['llvm-objdump', '-t', d + '/a.o'], capture_output=True, text=True).stdout
    pc = int(re.search(r'^([0-9a-f]+) .* L_pc$', sy, re.M).group(1), 16)
    return s.replace('CODE_LAST', hex((size - pc - 4) & ~3))

if __name__ == '__main__':
    opt = {}
    out = 'cdna_kernels/%s.s' % NAME
    for a in sys.argv[1:]:
        if a.startswith('-o'):
            out = a[2:]
        else:
            kx, vx = a.split('=')
            opt[kx] = int(vx)
    open(out, 'w').write(generate(opt))
    print('wrote', out, 'code bytes', generate.size)
```

```python
import sys
sys.path.insert(0, 'dev')
import hz

NAME = 'parallel_sum__sliding_local_dilated__moe_arch_mod__prompt'
XB, WB, WOB, GB = 2621440, 2457600, 819200, 1966080
WSB = 0xb00000
WS_EPOCH, WS_SEL, WS_YFLAG, WS_STAT, WS_KEY, WS_FLAG = 0x0, 0x100, 0x9000, 0x1000, 0x5000, 0x2b0000
WS_XCH, WS_O, WS_Y, WS_XCB = 0x10000, 0x300000, 0x600000, 0x800000
WS_TS = 0x7c0000
WS_CHK = 0x580000
WS_PRES = 0x2e0000
WS_H = 0x5d0000
WS_XN = 0xe000
SLOT, XPART, DEPTH = 38912, 14336, 3
P = 496
WOIMG = 55552
TAB = 157952
LDS_BYTES = 163840
SPIN = 200000

sXCD, sSLOT, sWAVE, sI, sLL, sL, sROLE, sTAG = 's3', 's4', 's5', 's6', 's7', 's8', 's9', 's10'
pX, pW, pWO, pWR, pG, pU, pD, pOUT, pDBG, pWS = 16, 18, 20, 24, 26, 28, 30, 32, 34, 36
rX, rW, rWO, rWS, rOUT, rU, rD = 40, 44, 48, 52, 56, 60, 64

def sp(n): return 's[%d:%d]' % (n, n + 1)
def sq(n): return 's[%d:%d]' % (n, n + 3)
def vr(n, k=1): return 'v%d' % n if k == 1 else 'v[%d:%d]' % (n, n + k - 1)

class G:
    def __init__(self, opt):
        self.L = []; self.opt = opt; self.nl = 0; self.nts = 0
    def e(self, s):
        for ln in s.strip('\n').split('\n'):
            ln = ln.strip()
            if not ln: continue
            self.L.append(ln if ln.endswith(':') else '    ' + ln)
    def lab(self, base):
        self.nl += 1
        return 'L_%s_%d' % (base, self.nl)
    def srd(self, r, p, nbytes):
        self.e('s_mov_b32 s%d, s%d\ns_mov_b32 s%d, s%d\ns_mov_b32 s%d, %d\ns_mov_b32 s%d, 0x20000' % (r, p, r + 1, p + 1, r + 2, nbytes, r + 3))
    def ts(self, k):
        if self.opt.get('ts') and not (self.opt.get('ts_off') and k in (4, 5, 6)):
            self.e('%s s[%d:%d]' % ('s_memtime' if self.opt.get('cyc') else 's_memrealtime', 80 + 2 * k, 81 + 2 * k))
    def allreduce16(self, v, op='v_add_f32'):
        for n in (8, 4, 2, 1):
            self.e('%s_dpp v%d, v%d, v%d row_ror:%d row_mask:0xf bank_mask:0xf' % (op, v, v, v, n))
    def tag_load(self):
        self.e('s_load_dword s10, s[36:37], %d' % WS_EPOCH)
    def count_in(self, wave, va=4):
        lab = self.lab('cnt')
        self.e('''s_cmp_lg_u32 s5, %d
        s_cbranch_scc1 %s
        s_lshl_b32 s11, s2, 7
        s_add_u32 s11, s11, %d
        v_mov_b32 v%d, s11
        s_getreg_b32 s11, hwreg(HW_REG_XCC_ID, 0, 4)
        s_lshl_b32 s11, s11, 28
        s_xor_b32 s11, s11, s10
        v_mov_b32 v%d, s11
        s_mov_b64 exec, 1
        buffer_store_dword v%d, v%d, %s, 0 offen sc1
        s_mov_b64 exec, -1
        %s:''' % (wave, lab, WS_PRES, va, va + 1, va + 1, va, sq(rWS), lab))
    def tag_ready(self):
        self.e('s_waitcnt lgkmcnt(0)\ns_add_u32 s10, s10, 1')

    def prologue(self):
        e = self.e
        self.ts(0)
        e("""s_load_dwordx16 s[16:31], s[0:1], 0
        s_load_dwordx4 s[32:35], s[0:1], 64
        s_load_dwordx2 s[36:37], s[0:1], 80
        s_cmp_ge_u32 s2, 256
        s_cbranch_scc1 L_end
        v_lshrrev_b32 v1, 6, v0
        v_and_b32 v0, 63, v0
        s_lshr_b32 s4, s2, 3
        v_readfirstlane_b32 s5, v1
        s_and_b32 s3, s2, 7""")
        e("""s_cmp_lg_u32 s5, 3
        s_cbranch_scc1 L_nopf
        s_getpc_b64 s[12:13]
        L_pc:
        s_and_b32 s14, s4, %d
        s_lshl_b32 s14, s14, 13
        v_lshl_add_u32 v2, v0, 7, s14
        v_min_u32 v2, CODE_LAST, v2
        global_load_dword v255, v2, s[12:13]
        L_nopf:""" % (self.opt.get('pfblocks', 4) - 1))
        if self.opt.get('ts'):
            for k in range(1, 10): e('s_mov_b32 s%d, 0' % (80 + 2 * k))
        e("""s_bfe_u32 s76, s2, 0x10001
        s_and_b32 s77, s2, 1
        s_bfe_u32 s78, s2, 0x10002
        s_mul_i32 s11, s4, 52
        s_lshr_b32 s11, s11, 8
        s_mul_i32 s12, s11, 5
        s_sub_u32 s7, s4, s12
        s_mul_i32 s12, s78, 11
        s_add_u32 s6, s11, s12
        s_mul_i32 s12, s76, 6
        s_add_u32 s6, s6, s12
        s_mul_i32 s12, s77, 5
        s_add_u32 s8, s7, s12
        s_mul_i32 s12, s76, 5
        s_sub_u32 s12, 30, s12
        s_sub_u32 s79, s4, s12
        s_cmp_ge_u32 s4, s12
        s_cbranch_scc1 L_aux
        s_cmp_ge_u32 s5, 4
        s_cbranch_scc1 L_loader
        s_mul_i32 s12, s5, 10
        s_add_u32 s12, s12, s8
        s_cmp_ge_u32 s12, 24
        s_cbranch_scc1 L_w23
        s_mul_i32 s11, s6, 96
        s_lshl_b32 s12, s12, 2
        s_add_u32 s11, s11, s12""")
        e("""L_stats:
        s_setprio 3
        v_lshrrev_b32 v2, 4, v0
        v_add_u32 v2, s11, v2
        v_and_b32 v3, 15, v0
        v_lshlrev_b32 v4, 4, v3
        v_mul_u32_u24 v5, 1280, v2
        v_add_u32 v5, v5, v4
        s_waitcnt lgkmcnt(0)""")
        for j in range(5):
            e('global_load_dwordx4 %s, v4, %s offset:%d' % (vr(40 + 4 * j, 4), sp(pWR), 256 * j))
        self.srd(rX, pX, XB)
        for j in range(5):
            e('buffer_load_dwordx4 %s, v5, %s, 0 offen offset:%d' % (vr(20 + 4 * j, 4), sq(rX), 256 * j))
        e('s_branch L_stats2')

    def att_setup(self):
        self.e("""v_and_b32 v100, 15, v0
        v_lshrrev_b32 v101, 4, v0
        s_lshl_b32 s11, s5, 4
        v_add_u32 v102, s11, v100
        v_mul_u32_u24 v102, %d, v102
        v_lshlrev_b32 v103, 3, v101
        v_mov_b32 v104, 0x08100800
        v_lshrrev_b32 v103, v103, v104
        v_and_b32 v103, 0xff, v103
        v_add_u32 v231, v102, v103
        v_add_u32 v228, %d, v231
        v_add_u32 v102, %d, v102
        v_lshl_add_u32 v230, v101, 3, v102
        v_lshl_add_u32 v233, v101, 4, v102
        s_lshl_b32 s12, s7, 3
        v_add_u32 v233, s12, v233
        v_lshrrev_b32 v102, 2, v0
        v_add_u32 v102, s11, v102
        v_mul_u32_u24 v102, %d, v102
        v_and_b32 v103, 3, v0
        v_lshl_add_u32 v229, v103, 3, v102
        v_and_b32 v102, 1, v0
        v_lshl_add_u32 v103, v101, 2, v102
        v_lshlrev_b32 v102, 4, v102
        v_mov_b32 v104, 0xffff
        v_lshlrev_b32 v104, v102, v104
        v_cmp_le_u32 vcc, v103, v100
        v_cndmask_b32 v212, 0, v104, vcc
        v_xor_b32 v214, v212, v104
        v_add_u32 v103, 2, v103
        v_cmp_le_u32 vcc, v103, v100
        v_cndmask_b32 v213, 0, v104, vcc
        v_xor_b32 v215, v213, v104""" % (P, 16 * P, 16 * P, P))
        for r in range(16):
            self.e('v_mov_b32 v%d, 0' % (196 + r))

    def att_scalars(self):
        CUR0, CUR1 = 0xf000ff00fff0ffff, 0xc000fc00ffc0fffc
        txt = ("""s_mov_b32 s64, 0xaaaaaaaa
        s_mov_b32 s65, 0xaaaaaaaa
        s_mov_b32 s66, 0x%x
        s_mov_b32 s67, 0x%x
        s_mov_b32 s68, 0x%x
        s_mov_b32 s69, 0x%x
        s_getreg_b32 s74, hwreg(HW_REG_XCC_ID, 0, 4)
        s_lshl_b32 s74, s74, 28
        s_xor_b32 s74, s74, s10
        s_mul_i32 s12, s6, 10
        s_add_u32 s12, s12, s8
        s_mul_i32 s12, s12, 12
        s_add_u32 s12, s12, s5
        s_lshl_b32 s12, s12, 10
        s_add_u32 s12, s12, %d
        s_mov_b32 s13, 0x7f000000
        s_sub_u32 s14, s12, 6144
        s_cmp_ge_u32 s7, 1
        s_cselect_b32 s70, s12, s13
        s_cselect_b32 s72, s14, s13
        s_cselect_b32 s76, s74, 0
        s_add_u32 s14, s12, 6144
        s_add_u32 s12, s12, 12288
        s_cmp_le_u32 s7, 3
        s_cselect_b32 s71, s14, s13
        s_cselect_b32 s73, s12, s13
        s_cselect_b32 s77, s74, 0""" % (CUR0 & 0xffffffff, CUR0 >> 32, CUR1 & 0xffffffff, CUR1 >> 32, WS_XCH))
        return [x.strip() for x in txt.split('\n')]


    def p2_setup(self):
        self.e("""s_lshl_b32 s60, s3, 2
        s_and_b32 s11, s4, 3
        s_add_u32 s60, s60, s11
        s_lshl_b32 s60, s60, 2
        s_and_b32 s12, s5, 3
        s_add_u32 s60, s60, s12
        s_lshr_b32 s61, s5, 2
        s_lshr_b32 s62, s4, 2
        s_mul_i32 s62, s62, 80
        s_mul_i32 s12, s61, 48
        s_add_u32 s62, s62, s12
        s_mov_b32 s38, 0
        v_and_b32 v100, 15, v0
        v_lshrrev_b32 v101, 4, v0
        s_lshl_b32 s12, s60, 4
        v_add_u32 v102, s12, v100
        v_lshlrev_b32 v235, 3, v102
        v_add_u32 v235, %d, v235
        v_mul_u32_u24 v102, 1280, v102
        v_lshl_add_u32 v102, v101, 3, v102
        s_lshl_b32 s12, s62, 1
        v_add_u32 v234, s12, v102
        v_lshlrev_b32 v254, 4, v0
        v_lshrrev_b32 v102, 2, v100
        v_and_b32 v103, 3, v100
        v_and_b32 v104, 1, v101
        v_lshl_add_u32 v102, v101, 3, v102
        v_lshl_add_u32 v105, v104, 2, v102
        v_xor_b32 v104, 1, v104
        v_lshl_add_u32 v102, v104, 2, v102
        v_mul_u32_u24 v105, 160, v105
        v_mul_u32_u24 v102, 160, v102
        v_lshl_add_u32 v105, v103, 3, v105
        v_lshl_add_u32 v102, v103, 3, v102
        s_lshl_b32 s12, s61, 1
        s_sub_u32 s12, s12, s11
        s_and_b32 s13, s12, 3
        s_mul_i32 s13, s13, 25600
        s_add_u32 s13, s13, %d
        v_add_u32 v244, s13, v105
        v_add_u32 v245, s13, v102
        s_add_u32 s12, s12, 1
        s_and_b32 s13, s12, 3
        s_mul_i32 s13, s13, 25600
        s_add_u32 s13, s13, %d
        v_add_u32 v246, s13, v105
        v_add_u32 v247, s13, v102""" % (WS_STAT, WOIMG, WOIMG))
        self.srd(rOUT, pOUT, XB)
        self.e('''s_mul_i32 s12, s60, 10
        s_mul_i32 s11, s61, 5
        s_add_u32 s12, s12, s11
        s_lshl_b32 s63, s12, 7
        s_add_u32 s63, s63, %d
        s_and_b32 s11, s5, 3
        s_mul_i32 s11, s11, %d
        s_add_u32 s11, s11, 160
        v_mul_u32_u24 v101, %d, v101
        v_add3_u32 v232, v101, v254, s11
        s_lshr_b32 s11, s4, 2
        s_mul_i32 s11, s11, %d''' % (WS_FLAG, 20 * P, P - 256, self.opt.get('orot', 1)))
        for j in range(5):
            self.e('''s_cmp_ge_u32 s11, 5
            s_cselect_b32 s13, 5, 0
            s_sub_u32 s11, s11, s13
            s_add_u32 s13, s12, s11
            s_lshl_b32 s%d, s13, 11
            s_add_u32 s%d, s%d, %d
            s_lshl_b32 s%d, s13, 8
            s_add_u32 s%d, s%d, %d
            s_add_u32 s11, s11, 1''' % (22 + j, 22 + j, 22 + j, WS_O, 27 + j, 27 + j, 27 + j, WS_CHK))

    def p2_loads(self, ret=False):
        ops = ['buffer_load_dwordx2 v[236:237], v235, %s, 0 offen sc1' % sq(rWS)]
        ops += ['buffer_load_dwordx2 %s, v234, %s, 0 offen offset:%d' % (vr(238 + 2 * k, 2), sq(rX), 32 * k) for k in range(3)]
        if ret: return ops
        for x in ops: self.e(x)

    def w23(self):
        e = self.e
        e('L_w23:\ns_waitcnt lgkmcnt(0)')
        self.tag_load()
        self.srd(rX, pX, XB); self.srd(rWS, pWS, WSB)
        self.att_setup(); self.p2_setup()
        self.tag_ready()
        e('s_branch L_gemm')

    def stats(self):
        e = self.e
        X, Wr, F = 20, 40, 60
        e('L_stats2:')
        self.tag_load()
        self.srd(rWS, pWS, WSB)
        self.att_setup(); self.p2_setup()
        e('v_mov_b32 v9, 0x3f803f80\nv_mov_b32 v10, 0\nv_mov_b32 v11, 0\nv_mov_b32 v12, 0\nv_mov_b32 v13, 0')
        e('s_waitcnt vmcnt(0)')
        if self.opt.get('sts') == 1: self.ts(2)
        for d in range(20):
            e('v_dot2c_f32_bf16 v%d, v%d, v9' % (10 + (d & 3), X + d))
        for d in range(10):
            e('v_lshlrev_b32 v%d, 16, v%d\nv_and_b32 v%d, 0xffff0000, v%d' % (F + 2 * d, X + d, F + 2 * d + 1, X + d))
        e('v_add_f32 v10, v10, v11\nv_add_f32 v12, v12, v13\nv_add_f32 v6, v10, v12')
        for k, n in enumerate((8, 4, 2, 1)):
            for d in (10 + 2 * k, 11 + 2 * k):
                e('v_lshlrev_b32 v%d, 16, v%d\nv_and_b32 v%d, 0xffff0000, v%d' % (F + 2 * d, X + d, F + 2 * d + 1, X + d))
            e('v_add_f32_dpp v6, v6, v6 row_ror:%d row_mask:0xf bank_mask:0xf' % n)
        for d in (18, 19):
            e('v_lshlrev_b32 v%d, 16, v%d\nv_and_b32 v%d, 0xffff0000, v%d' % (F + 2 * d, X + d, F + 2 * d + 1, X + d))
        e("""v_mul_f32 v7, 0x3acccccd, v6
        v_cvt_pk_bf16_f32 v8, v7, v7
        v_lshlrev_b32 v6, 16, v8
        v_mov_b32 v10, 0
        v_mov_b32 v11, 0
        v_mov_b32 v12, 0
        v_mov_b32 v13, 0""")
        for r in range(40):
            e('v_sub_f32 v%d, v%d, v6' % (F + r, F + r))
        for r in range(40):
            e('v_fmac_f32 v%d, v%d, v%d' % (10 + (r & 3), F + r, F + r))
        e('v_sub_f32 v7, v7, v6\nv_add_f32 v10, v10, v11\nv_add_f32 v12, v12, v13\nv_add_f32 v14, v10, v12')
        e('v_mov_b32 v10, 0\nv_mov_b32 v11, 0')
        for k, n in enumerate((8, 4, 2, 1)):
            for d in range(5 * k, 5 * k + 5):
                e('v_cvt_pk_bf16_f32 v%d, v%d, v%d' % (X + d, F + 2 * d, F + 2 * d + 1))
            e('v_add_f32_dpp v14, v14, v14 row_ror:%d row_mask:0xf bank_mask:0xf' % n)
        e('s_waitcnt vmcnt(0)')
        for d in range(20):
            e('v_dot2c_f32_bf16 v%d, v%d, v%d' % (10 + (d & 1), X + d, Wr + d))
        e("""v_mul_f32 v14, 0x3acccccd, v14
        v_fma_f32 v14, -v7, v7, v14
        v_max_f32 v14, 0, v14
        v_cvt_pk_bf16_f32 v14, v14, v14
        v_add_f32 v10, v10, v11
        v_and_b32 v14, 0xffff0000, v14
        v_add_f32 v14, 0x3727c5ac, v14
        v_add_f32_dpp v10, v10, v10 row_ror:8 row_mask:0xf bank_mask:0xf
        v_cvt_pk_bf16_f32 v14, v14, v14
        v_and_b32 v14, 0xffff0000, v14
        v_add_f32_dpp v10, v10, v10 row_ror:4 row_mask:0xf bank_mask:0xf
        v_sqrt_f32 v14, v14
        v_and_b32 v8, 0xffff, v8
        v_add_f32_dpp v10, v10, v10 row_ror:2 row_mask:0xf bank_mask:0xf
        v_cvt_pk_bf16_f32 v14, v14, v14
        v_and_b32 v14, 0xffff0000, v14
        v_add_f32_dpp v10, v10, v10 row_ror:1 row_mask:0xf bank_mask:0xf
        v_rcp_f32 v12, v14
        v_or_b32 v16, v8, v14
        v_mul_f32 v10, v10, v12""")
        e("""v_cvt_pk_bf16_f32 v10, v10, v10
        v_bfe_i32 v11, v10, 15, 1
        v_or_b32 v11, 0x8000, v11
        v_xor_b32 v10, v10, v11
        v_lshlrev_b32 v10, 16, v10
        v_sub_u32 v11, 2047, v2
        v_or_b32 v18, v10, v11
        v_cmp_eq_u32 vcc, 0, v3
        v_cndmask_b32 v16, v18, v16, vcc
        v_lshlrev_b32 v5, 14, v3
        v_lshl_add_u32 v5, v2, 3, v5
        s_movk_i32 s14, 2048
        v_cmp_gt_u32 vcc, 2, v3
        v_cmp_gt_u32 s[12:13], s14, v2
        s_and_b64 s[70:71], vcc, s[12:13]""")
        if self.opt.get('sts') == 2: self.ts(2)
        self.tag_ready()
        if self.opt.get('sts') == 3: self.ts(2)
        e("""v_mov_b32 v17, s10
        s_mov_b32 s11, %d
        s_mov_b64 exec, s[70:71]
        s_cbranch_execz L_stend
        buffer_store_dwordx2 v[16:17], v5, %s, s11 offen sc1
        L_stend:
        s_mov_b64 exec, -1""" % (WS_STAT, sq(rWS)))
        assert WS_KEY - WS_STAT == 1 << 14

    def wo_setup(self, vb):
        e = self.e
        self.srd(rWO, pWO, WOB)
        e('''s_lshr_b32 s11, s4, 2
        s_mul_i32 s11, s11, 160
        s_and_b32 s70, s4, 3
        s_mul_i32 s70, s70, 5
        s_lshr_b32 s39, s4, 2
        s_mul_i32 s39, s39, ROTON
        s_cmp_ge_u32 s39, 10
        s_cselect_b32 s12, 10, 0
        s_sub_u32 s39, s39, s12'''.replace('ROTON', str(2 * self.opt.get('orot', 1))))
        for j in range(5):
            e('''v_add_u32 v2, %d, v0
            v_mul_u32_u24 v3, 6554, v2
            v_lshrrev_b32 v3, 16, v3
            v_mul_u32_u24 v4, 10, v3
            v_sub_u32 v4, v2, v4
            v_bfe_u32 v5, v3, 3, 1
            v_lshlrev_b32 v5, 2, v5
            v_xor_b32 v3, v3, v5
            v_mul_u32_u24 v3, 1280, v3
            v_lshl_add_u32 v3, v4, 4, v3
            v_add_u32 v%d, s11, v3''' % (64 * j, vb + j))
    def wo_block(self, vb, spos):
        e = self.e
        e('''s_add_u32 s12, %s, s70
        s_cmp_ge_u32 s12, 20
        s_cselect_b32 s13, 20, 0
        s_sub_u32 s12, s12, s13
        s_cmp_ge_u32 s12, 10
        s_cselect_b32 s13, 20, 10
        s_add_u32 s12, s12, s39
        s_cmp_ge_u32 s12, s13
        s_cselect_b32 s13, 10, 0
        s_sub_u32 s12, s12, s13
        s_mul_i32 s12, s12, 40960
        s_mul_i32 s13, %s, 5120
        s_add_u32 s13, s13, %d''' % (spos, spos, WOIMG))
        for j in range(5):
            e('s_add_u32 m0, s13, %d' % (1024 * j))
            e('buffer_load_dwordx4 v%d, %s, s12 offen lds' % (vb + j, sq(rWO)))

    def loader(self):
        e = self.e
        e('L_loader:')
        RA, RB, RM, RS = (self.opt.get(k, d) for k, d in (('ra', 1), ('rb', 1), ('rm', 4), ('rs', 3)))
        assert all((x * (65536 // RM + 1)) >> 16 == x // RM for x in range(200)) and (RM - 1) * RS < 10
        e('''s_sub_u32 s14, s5, 4
        s_and_b32 s15, s14, 1
        v_lshrrev_b32 v2, 3, v0
        v_and_b32 v3, 7, v0
        v_lshrrev_b32 v4, 4, v0
        s_lshl_b32 s11, s15, 2
        v_add_u32 v5, s11, v4
        v_xor_b32 v5, v3, v5
        s_mul_i32 s11, s6, 96
        s_lshl_b32 s12, s14, 3
        s_add_u32 s11, s11, s12
        s_sub_u32 s11, s11, 16
        s_mul_i32 s11, s11, 1280
        v_mul_u32_u24 v6, 1280, v2
        v_lshl_add_u32 v6, v5, 4, v6
        v_add_u32 v10, s11, v6
        v_add_u32 v11, 40960, v10
        v_add_u32 v12, 0x14000, v10
        v_add_u32 v13, 0x1e000, v10
        v_and_b32 v4, 1, v4
        v_lshl_or_b32 v4, s15, 1, v4
        v_lshlrev_b32 v4, 1, v4
        v_xor_b32 v4, v3, v4
        v_add_u32 v2, s12, v2
        v_mul_u32_u24 v2, 3840, v2
        v_lshl_add_u32 v2, v4, 4, v2
        s_lshl_b32 s11, s8, 7
        v_add_u32 v14, s11, v2
        s_mul_i32 s68, s7, %d
        s_mul_i32 s11, s6, %d
        s_add_u32 s68, s68, s11
        s_mul_i32 s11, s68, %d
        s_lshr_b32 s11, s11, 16
        s_mul_i32 s11, s11, %d
        s_sub_u32 s68, s68, s11
        s_mul_i32 s68, s68, %d
        s_lshl_b32 s69, s14, 10
        s_cmp_eq_u32 s14, 0
        s_cselect_b32 s72, 0xffff0000, -1
        s_mov_b32 s73, -1
        s_waitcnt lgkmcnt(0)''' % (RA, RB, 65536 // RM + 1, RM, RS))
        self.srd(rX, pX, XB); self.srd(rW, pW, WB)
        self.ts(1)
        def issue(c):
            base = ((c + 2) % DEPTH) * SLOT
            sk = self.lab('xs')
            e('s_lshl_b32 s11, s68, 7\ns_mul_i32 s12, s68, 245760')
            e('s_add_u32 m0, s69, %d\ns_mov_b64 exec, s[72:73]' % base)
            e('buffer_load_dwordx4 v10, %s, s11 offen lds\ns_mov_b64 exec, -1' % sq(rX))
            for a in (1, 2):
                e('s_add_u32 m0, s69, %d' % (base + a * 4096))
                e('buffer_load_dwordx4 v%d, %s, s11 offen lds' % (10 + a, sq(rX)))
            e('s_cmp_ge_u32 s14, 2\ns_cbranch_scc1 %s' % sk)
            e('s_add_u32 m0, s69, %d' % (base + 3 * 4096))
            e('buffer_load_dwordx4 v13, %s, s11 offen lds' % sq(rX))
            e('%s:' % sk)
            for y in range(3):
                for hb in range(2):
                    e('s_add_u32 m0, s69, %d' % (base + XPART + y * 8192 + hb * 4096))
                    if y or hb:
                        e('s_add_u32 s13, s12, %d' % (y * 1280 + hb * 122880))
                        e('buffer_load_dwordx4 v14, %s, s13 offen lds' % sq(rW))
                    else:
                        e('buffer_load_dwordx4 v14, %s, s12 offen lds' % sq(rW))
            e('s_add_u32 s68, s68, 1\ns_cmp_eq_u32 s68, 10\ns_cselect_b32 s68, 0, s68')
        issue(0)
        e('s_branch L_loader2')
        self.loader_rest = lambda: self.loader2(issue)

    def loader2(self, issue):
        e = self.e
        e('L_loader2:')
        self.tag_load()
        self.srd(rWS, pWS, WSB)
        self.wo_setup(20)
        e('''s_mul_i32 s11, s6, 96
        s_lshl_b32 s12, s14, 6
        s_add_u32 s11, s11, s12
        s_sub_u32 s11, s11, 16
        v_add_u32 v26, s11, v0
        v_lshlrev_b32 v27, 3, v26
        v_add_u32 v27, %d, v27
        v_add_u32 v28, s12, v0''' % WS_STAT)
        self.att_setup(); self.p2_setup()
        e('''s_mul_i32 s74, s6, 10
        s_add_u32 s74, s74, s8
        s_lshl_b32 s74, s74, 2
        s_add_u32 s74, s74, s14
        s_mul_i32 s74, s74, 3072
        s_add_u32 s74, s74, %d
        v_mov_b32 v36, 0
        v_mov_b32 v37, 0
        v_mov_b32 v39, 0''' % WS_XCH)
        for c in range(1, DEPTH - 1):
            issue(c)
        self.tag_ready()
        e('v_xor_b32 v38, s10, 1')
        assert WOIMG + 12 * 5120 >= 3 * SLOT and WOIMG + 4 * 5120 <= 2 * SLOT
        WOA, WOB_, STB = self.opt.get('woa', 8), self.opt.get('wob', 9), self.opt.get('stb', 5)
        extra = {}
        for c in range(10):
            n = (9 if c < 9 else 0) + extra.get(c - 2, 0) + extra.get(c - 1, 0)
            if c == STB + 2:
                n -= 2
            e('s_waitcnt vmcnt(%d)' % n)
            if self.opt.get('lts') and c in (0, 1, 2): self.ts(4 + c)
            e('s_barrier')
            if c == 0: self.ts(2)
            if c + DEPTH - 1 < 10 and not self.opt.get('noload'):
                issue(c + DEPTH - 1)
            if c == 9: self.zero_fill()
            if c == self.opt.get('clm', 3):
                for k in range(3):
                    e('buffer_store_dwordx4 v[36:39], v254, %s, s74 offen offset:%d' % (sq(rWS), 1024 * k))
                extra[c] = extra.get(c, 0) + 3
            if c == self.opt.get('pre', 99):
                for k in range(3):
                    e('''s_mul_i32 s11, s14, 3
                    s_add_u32 s11, s11, %d
                    s_lshr_b32 s12, s11, 1
                    s_and_b32 s11, s11, 1
                    s_mul_i32 s13, s6, 6
                    s_add_u32 s12, s12, s13
                    s_min_u32 s12, s12, 127
                    s_mul_i32 s12, s12, 10
                    s_add_u32 s12, s12, s8
                    s_lshl_b32 s12, s12, 1
                    s_add_u32 s12, s12, s11
                    s_lshl_b32 s12, s12, 10
                    s_add_u32 s12, s12, %d
                    buffer_store_dwordx4 v[36:39], v254, %s, s12 offen sc1''' % (k, WS_O, sq(rWS)))
                e('''v_lshrrev_b32 v3, 4, v28
                s_mul_i32 s13, s6, 6
                v_add_u32 v4, s13, v3
                v_mul_u32_u24 v4, 2560, v4
                v_and_b32 v5, 15, v28
                v_lshl_add_u32 v4, v5, 4, v4
                v_mov_b32 v5, 0x7f000000
                v_cmp_gt_u32 vcc, 6, v3
                v_cndmask_b32 v4, v5, v4, vcc
                v_cmp_gt_u32 vcc, 0x50000, v4
                v_cndmask_b32 v4, v5, v4, vcc
                s_lshl_b32 s12, s8, 8
                s_add_u32 s12, s12, %d
                buffer_store_dwordx4 v[36:39], v4, %s, s12 offen sc1''' % (WS_CHK, sq(rWS)))
                extra[c] = extra.get(c, 0) + 4
            if c == STB:
                e('''v_and_b32 v34, 31, v0
                v_lshlrev_b32 v34, 10, v34
                s_lshl_b32 s11, s3, 7
                s_add_u32 s11, s11, %d
                buffer_load_dword v35, v34, %s, s11 offen sc1''' % (WS_PRES, sq(rWS)))
                e('buffer_load_dwordx2 v[30:31], v27, %s, 0 offen sc1' % sq(rWS)); extra[c] = extra.get(c, 0) + 2
            if self.opt.get('nowo'):
                pass
            elif c == WOA:
                e('s_add_u32 s71, s14, 16'); self.wo_block(20, 's71'); extra[c] = extra.get(c, 0) + 5
            elif c == WOB_:
                e('s_add_u32 s71, s14, 12'); self.wo_block(20, 's71'); extra[c] = extra.get(c, 0) + 5
            if c == STB + 2:
                e('''s_mov_b32 s15, %d
                s_movk_i32 s75, 2048
                v_cmp_gt_u32 s[76:77], s75, v26
                L_tchk:
                v_cmp_ne_u32 vcc, s10, v31
                s_and_b64 vcc, vcc, s[76:77]
                s_cmp_eq_u64 vcc, 0
                s_cbranch_scc1 L_tok
                s_sub_u32 s15, s15, 1
                s_cmp_eq_u32 s15, 0
                s_cbranch_scc1 L_tok
                s_sleep 4
                buffer_load_dwordx2 v[30:31], v27, %s, 0 offen sc1
                s_waitcnt vmcnt(0)
                s_branch L_tchk
                L_tok:
                v_mov_b32 v32, 0x3f800000
                v_cndmask_b32 v30, v32, v30, s[76:77]
                v_and_b32 v32, 0xffff0000, v30
                v_rcp_f32 v32, v32
                v_lshlrev_b32 v30, 16, v30
                v_mul_f32 v33, -v30, v32
                v_lshlrev_b32 v29, 3, v28
                v_add_u32 v29, %d, v29
                v_cmp_le_u32 vcc, 112, v28
                v_cndmask_b32 v32, v32, 0, vcc
                v_cndmask_b32 v33, v33, 0, vcc
                s_getreg_b32 s11, hwreg(HW_REG_XCC_ID, 0, 4)
                s_lshl_b32 s11, s11, 28
                s_xor_b32 s11, s11, s10
                v_cmp_ne_u32 vcc, s11, v35
                s_cmp_eq_u64 vcc, 0
                s_cselect_b32 s9, COLOC, 0
                v_mov_b32 v30, s9
                v_cmp_eq_u32 vcc, 114, v28
                v_cndmask_b32 v32, v32, v30, vcc
                v_cmp_ge_u32 vcc, 114, v28
                s_and_b64 exec, exec, vcc
                ds_write_b64 v29, v[32:33]
                s_mov_b64 exec, -1
                s_waitcnt lgkmcnt(0)''' % (SPIN, sq(rWS), TAB))
        self.ts(3)
        e('s_cmp_ge_u32 s14, 2\ns_cbranch_scc1 L_w67')
        self.p2_loads()
        for x in self.att_scalars(): e(x)
        e('s_branch L_img2\nL_w67:')
        e('s_mov_b32 s38, 2\ns_cmp_eq_u32 s14, 3\ns_cbranch_scc1 L_w7')
        if not self.opt.get('nowo'):
            e('s_mov_b32 s71, 0\nL_w6:')
            self.wo_block(20, 's71')
            if self.opt.get('thr', 63) < 63: e('s_waitcnt vmcnt(%d)' % self.opt.get('thr', 63))
            e('s_add_u32 s71, s71, 1\ns_cmp_lt_u32 s71, 4\ns_cbranch_scc1 L_w6')
        e('''s_branch L_p2wo
        L_w7:
        s_mov_b32 s15, %d
        L_w7a:
        ds_read_b32 v3, v8 offset:8
        s_waitcnt lgkmcnt(0)
        v_readfirstlane_b32 s11, v3
        s_cmp_ge_u32 s11, 4
        s_cbranch_scc1 L_w7b
        s_sleep 1
        s_sub_u32 s15, s15, 1
        s_cmp_lg_u32 s15, 0
        s_cbranch_scc1 L_w7a
        L_w7b:''' % (SPIN * 4))
        if not self.opt.get('nowo'):
            e('s_mov_b32 s71, 4\nL_w7c:')
            self.wo_block(20, 's71')
            if self.opt.get('thr', 63) < 63: e('s_waitcnt vmcnt(%d)' % self.opt.get('thr', 63))
            e('s_add_u32 s71, s71, 1\ns_cmp_lt_u32 s71, 12\ns_cbranch_scc1 L_w7c')
        e('s_branch L_p2wo')

    def zero_fill(self):
        e = self.e
        e('''v_lshrrev_b32 v3, 1, v28
        v_and_b32 v4, 1, v28
        v_mul_u32_u24 v3, %d, v3
        v_mul_u32_u24 v4, 160, v4
        v_add_u32 v3, v3, v4
        v_mov_b32 v4, 0
        v_mov_b32 v5, 0
        v_cmp_gt_u32 vcc, 224, v28
        s_and_b64 exec, exec, vcc''' % P)
        for z in range(4):
            e('''s_cmp_gt_u32 s7, %d
            s_cselect_b32 s11, %d, %d
            v_add_u32 v6, s11, v3
            ds_write_b64 v6, v[4:5]''' % (z, 8 * z, 8 * (16 + z)))
        e('''s_mov_b64 exec, -1
        v_mov_b32 v8, %d
        v_mov_b32 v3, 1
        s_waitcnt lgkmcnt(0)
        s_mov_b64 exec, 1
        ds_add_u32 v8, v3 offset:12
        s_mov_b64 exec, -1''' % (TAB + 896))

    def gemm1(self):
        e = self.e
        ACC, BA, BB, ST = 16, 100, 140, 180
        def acc(y, T): return ACC + (y * 7 + T) * 4
        e('''L_gemm:
        s_setprio 3
        s_cmp_lg_u32 s5, 3
        s_cbranch_scc1 L_noones
        v_mov_b32 v8, 0x3f803f80
        v_mov_b32 v9, v8
        v_mov_b32 v10, v8
        v_mov_b32 v11, v8
        v_and_b32 v2, 15, v0
        v_lshlrev_b32 v2, 4, v2
        v_lshrrev_b32 v3, 4, v0
        v_min_u32 v3, %d, v3
        v_mul_u32_u24 v3, %d, v3
        v_add_u32 v2, v2, v3
        ds_write_b128 v2, v[8:11]
        s_waitcnt lgkmcnt(0)
        L_noones:''' % (DEPTH - 1, SLOT))
        e('''v_and_b32 v1, 15, v0
        v_lshrrev_b32 v2, 4, v0
        v_lshrrev_b32 v3, 1, v1
        v_xor_b32 v3, v2, v3
        v_lshlrev_b32 v3, 4, v3
        v_lshl_add_u32 v8, v1, 7, v3
        v_xor_b32 v9, 64, v8
        v_lshrrev_b32 v3, 2, v1
        v_and_b32 v14, 3, v1
        v_lshrrev_b32 v15, 1, v3
        v_and_b32 v10, 1, v2
        v_lshl_or_b32 v15, v10, 1, v15
        v_xor_b32 v15, s5, v15
        v_lshl_add_u32 v3, v2, 3, v3
        v_lshlrev_b32 v3, 7, v3
        v_lshl_add_u32 v3, v15, 5, v3
        v_lshl_add_u32 v3, v14, 3, v3
        v_add_u32 v10, %d, v3
        v_add_u32 v11, 77824, v8
        v_add_u32 v12, 77824, v9
        v_add_u32 v13, 77824, v10
        v_lshlrev_b32 v14, 3, v1
        v_add_u32 v14, %d, v14
        s_lshl_b32 s11, s5, 2
        s_add_u32 s11, s11, s7
        v_add_u32 v3, s11, v2
        v_mul_u32_u24 v15, %d, v1
        v_lshl_add_u32 v15, v3, 3, v15
        v_mov_b32 v6, %d
        v_mov_b32 v7, 1
        s_mov_b32 s78, 1
        s_mov_b32 s79, 0''' % (XPART, TAB, P, TAB + 896))
        assert 2 * SLOT == 77824
        def reads(buf, t):
            ops = []
            for y in range(3):
                for hh in range(2):
                    ops.append('ds_read_b64_tr_b16 %s, v13 offset:%d' % (vr(buf + 28 + 4 * y + 2 * hh, 2), y * 8192 + (32 * t + 4 * hh) * 128))
            for T in range(7):
                ops.append('ds_read_b128 %s, v%d offset:%d' % (vr(buf + 4 * T, 4), 11 + t, T * 2048))
            return [] if self.opt.get('noread') else ops
        def mf(buf, y, T, first=False):
            return 'v_mfma_f32_16x16x32_bf16 %s, %s, %s, %s' % (vr(acc(y, T), 4), vr(buf + 28 + 4 * y, 4), vr(buf + 4 * T, 4), '0' if first else vr(acc(y, T), 4))
        def half(rbuf, t, mbuf, tail=(), first=False):
            R = reads(rbuf, t) + list(tail); M = [mf(mbuf, y, T, first) for T in range(7) for y in range(3)]
            for k in range(21):
                if k == 20: e('s_waitcnt lgkmcnt(0)')
                if not self.opt.get('nomfma'): e(M[k])
                if k < len(R): e(R[k])
            assert len(R) <= 20
        nxt = ['v_add_u32 v11, s79, v8\nv_add_u32 v12, s79, v9', 'v_add_u32 v13, s79, v10\ns_add_u32 s79, s79, %d' % SLOT,
               's_cmp_eq_u32 s79, %d\ns_cselect_b32 s79, 0, s79' % (SLOT * DEPTH)]
        self.ts(1)
        e('s_barrier')
        for x in reads(BA, 0): e(x)
        self.count_in(3)
        if self.opt.get('pre2'):
            e('v_mov_b32 v216, 0\nv_mov_b32 v217, 0\nv_xor_b32 v218, s10, 1\nv_mov_b32 v219, 0')
            for k in range(3):
                e('''s_mul_i32 s11, s5, 3
                s_add_u32 s11, s11, %d
                s_lshr_b32 s12, s11, 1
                s_and_b32 s11, s11, 1
                s_mul_i32 s13, s6, 6
                s_add_u32 s12, s12, s13
                s_min_u32 s12, s12, 127
                s_mul_i32 s12, s12, 10
                s_add_u32 s12, s12, s8
                s_lshl_b32 s12, s12, 1
                s_add_u32 s12, s12, s11
                s_lshl_b32 s12, s12, 10
                s_add_u32 s12, s12, %d
                buffer_store_dwordx4 v[216:219], v254, %s, s12 offen sc1''' % (k, WS_O, sq(rWS)))
        e('s_waitcnt lgkmcnt(0)')
        half(BB, 1, BA, nxt, True)
        e('L_kloop:\ns_barrier')
        half(BA, 0, BB, ['s_add_u32 s78, s78, 1\ns_cmp_ge_u32 s78, 10'])
        e('s_cbranch_scc1 L_ktail')
        half(BB, 1, BA, nxt)
        e('s_branch L_kloop\nL_ktail:')
        CS = (BA + 28, BA + 32, BB + 28)
        def fixt(y, T, pk):
            a = acc(y, T); st = vr(ST + 2 * T, 2); ops = []
            for h in range(2):
                ops.append('v_pk_mul_f32 %s, %s, %s op_sel_hi:[1,0]' % (vr(a + 2 * h, 2), vr(a + 2 * h, 2), st))
            if pk:
                for h in range(2):
                    ops.append('v_pk_fma_f32 %s, %s, %s, %s op_sel:[0,1,0] op_sel_hi:[1,1,1]' % (vr(a + 2 * h, 2), vr(CS[y] + 2 * h, 2), st, vr(a + 2 * h, 2)))
            else:
                for r in range(4):
                    ops.append('v_fmac_f32 v%d, v%d, v%d' % (a + r, CS[y] + r, ST + 2 * T + 1))
            ops.append('v_cvt_pk_bf16_f32 v%d, v%d, v%d' % (a, a, a + 1))
            ops.append('v_cvt_pk_bf16_f32 v%d, v%d, v%d' % (a + 1, a + 2, a + 3))
            ops.append('ds_write_b64 v15, %s offset:%d' % (vr(a, 2), T * 16 * P + y * 160))
            return ops
        def csum(y):
            return ['v_mov_b32_dpp v%d, v%d row_newbcast:0 row_mask:0xf bank_mask:0xf' % (CS[y] + r, acc(y, 0) + r) for r in range(4)]
        self.fixv = lambda: csum(2) + [x for T in range(7) for x in fixt(2, T, True)]
        R = reads(BB, 1)
        R = R[:2] + R[6:] + R[2:6] + ['ds_read_b64 %s, v14 offset:%d' % (vr(ST + 2 * T, 2), 128 * T) for T in range(7)]
        M = [mf(bf, y, T) for bf, y in ((BA, 0), (BA, 1), (BB, 0), (BB, 1), (BA, 2), (BB, 2)) for T in range(7)]
        units = [('c', 0, 0)] + [('t', 0, T) for T in range(1, 7)] + [('c', 1, 0)] + [('t', 1, T) for T in range(7)]
        SC = self.att_scalars(); assert len(SC) <= 28
        PL = self.p2_loads(True)
        q = []; FILL = self.opt.get('fill', 3)
        for k in range(42):
            if k == 14: e('s_waitcnt lgkmcnt(11)')
            if k == 17:
                e('s_waitcnt lgkmcnt(0)\ns_mov_b64 exec, 1\nds_add_u32 v6, v7 offset:8\ns_mov_b64 exec, -1')
            e(M[k])
            if k < 10:
                e(R[2 * k]); e(R[2 * k + 1])
            if 10 <= k < 14: e(PL[k - 10])
            if k < 14:
                for _ in range(2):
                    if SC: e(SC.pop(0))
            if k >= 18:
                for _ in range(FILL):
                    if not q and units:
                        u = units.pop(0)
                        q = csum(u[1]) if u[0] == 'c' else fixt(u[1], u[2], False)
                    if q: e(q.pop(0))
        self.ts(3)
        for x in q: e(x)
        first = True
        for u in units:
            for x in (csum(u[1]) if u[0] == 'c' else fixt(u[1], u[2], not first)): e(x)
            first = False
        e('s_waitcnt lgkmcnt(0)')

    def attention(self):
        e = self.e
        e('L_img:')
        e('''s_mov_b64 exec, 1
        ds_add_u32 v6, v7 offset:12
        s_mov_b64 exec, -1
        L_img2:
        v_mov_b32 v8, %d
        s_mov_b32 s15, %d
        L_imw:
        ds_read_b32 v3, v8 offset:12
        s_waitcnt lgkmcnt(0)
        v_readfirstlane_b32 s11, v3
        s_cmp_ge_u32 s11, 8
        s_cbranch_scc1 L_imok
        IMSLEEP
        s_sub_u32 s15, s15, 1
        s_cmp_lg_u32 s15, 0
        s_cbranch_scc1 L_imw
        L_imok:
        s_setprio 3''' % (TAB + 896, SPIN * 8))
        if self.opt.get('lts'): self.opt['ts_off'] = 1
        self.ts(4)
        if self.opt.get('dump_img'):
            e("""s_mul_i32 s11, s6, 10
            s_add_u32 s11, s11, s8
            s_mul_i32 s11, s11, 0x10000
            s_add_u32 s11, s11, 0x1000000
            s_lshl_b32 s12, s5, 10
            v_lshlrev_b32 v2, 4, v0
            v_add_u32 v2, s12, v2
            s_mov_b32 s54, 0x10000000""")
            for j in range(10):
                e("""ds_read_b128 v[100:103], v2
                s_waitcnt lgkmcnt(0)
                buffer_store_dwordx4 v[100:103], v2, %s, s11 offen
                v_add_u32 v2, 6144, v2
                s_waitcnt vmcnt(0)""" % sq(rWS))
        Qr, Kr, Vr, Sr, Er, Xr, Pr, Rr = 196, 16, 48, 100, 132, 148, 72, 88
        def qrd(sgs):
            e('s_mov_b32 exec_hi, 0')
            for sg in sgs: e('ds_read_b64 %s, v228 offset:%d' % (vr(Qr + 4 * sg, 2), 40 * sg))
            e('s_mov_b32 exec_hi, 0xffff')
            for sg in sgs: e('ds_read_b64 %s, v228 offset:%d' % (vr(Qr + 4 * sg + 2, 2), 40 * sg + 16))
            e('s_mov_b64 exec, -1')
        def krd(sg):
            for h, av in enumerate((228, 231)):
                for u in range(2):
                    e('ds_read_b64 %s, v%d offset:%d' % (vr(Kr + 8 * sg + 4 * h + 2 * u, 2), av, 160 + 40 * sg + 16 * u))
        qrd((0, 3)); krd(0); krd(3)
        e('v_mov_b32 v%d, s74\nv_mov_b32 v%d, s74' % (Er + 2, Er + 14))
        def smf(sg):
            for h in range(2):
                e('v_mfma_f32_16x16x32_bf16 %s, %s, %s, 0' % (vr(Sr + 8 * sg + 4 * h, 4), vr(Kr + 8 * sg + 4 * h, 4), vr(Qr + 4 * sg, 4)))
        def sel(sg):
            c = Sr + 8 * sg; p = c + 4
            e('v_cndmask_b32 v%d, v%d, v%d, s[64:65]' % (c, c, c + 1)); e('v_cndmask_b32 v%d, v%d, v%d, s[64:65]' % (c + 2, c + 2, c + 3))
            e('v_cndmask_b32 v%d, v%d, v%d, s[64:65]' % (p, p, p + 1)); e('v_cndmask_b32 v%d, v%d, v%d, s[64:65]' % (p + 2, p + 2, p + 3))
            e('v_cndmask_b32 v%d, v%d, v%d, s[66:67]' % (Er + 4 * sg, p, c)); e('v_cndmask_b32 v%d, v%d, v%d, s[68:69]' % (Er + 4 * sg + 1, p + 2, c + 2))
        vrd = []
        for j in range(5):
            vrd.append('ds_read_b64_tr_b16 %s, v229 offset:%d' % (vr(Vr + 4 * j, 2), 16 * P + 320 + 32 * j))
            vrd.append('ds_read_b64_tr_b16 %s, v229 offset:%d' % (vr(Vr + 4 * j + 2, 2), 320 + 32 * j))
        e('s_waitcnt lgkmcnt(4)'); smf(0)
        e('s_waitcnt lgkmcnt(0)'); smf(3)
        qrd((1, 2)); krd(1)
        sel(0)
        e('buffer_store_dwordx4 %s, v254, %s, s70 offen' % (vr(Er, 4), sq(rWS)))
        sel(3)
        e('buffer_store_dwordx4 %s, v254, %s, s71 offen' % (vr(Er + 12, 4), sq(rWS)))
        self.ts(5)
        krd(2)
        e('s_waitcnt lgkmcnt(4)'); smf(1)
        e('s_waitcnt lgkmcnt(0)'); smf(2)
        sel(1); sel(2)
        xl = ['buffer_load_dwordx3 %s, v254, %s, s%d offen sc1' % (vr(Xr + 4 * k, 3), sq(rWS), 72 + k) for k in range(2)]
        XW = self.opt.get('xw', 5)
        e('v_mov_b32 v12, 0x3ea52b5c')
        e('s_cmp_ge_u32 s5, 4\ns_cbranch_scc1 L_nov')
        FV = self.fixv()
        for n, x in enumerate(FV):
            if n == 4 + 7 * XW:
                for y in xl: e(y)
            e(x)
        e('s_waitcnt lgkmcnt(0)\ns_mov_b64 exec, 1\nds_add_u32 v6, v7\ns_mov_b64 exec, -1\ns_branch L_nov2\nL_nov:')
        for y in xl: e(y)
        e('L_nov2:')
        if self.opt.get('ats'): self.ts(1)
        e('''ds_read_b32 v4, v8 offset:16
        L_vw:
        ds_read_b32 v3, v8
        s_waitcnt lgkmcnt(0)
        v_readfirstlane_b32 s11, v3
        s_cmp_ge_u32 s11, 4
        s_cbranch_scc1 L_vok
        s_sub_u32 s15, s15, 1
        s_cmp_lg_u32 s15, 0
        s_cbranch_scc1 L_vw
        L_vok:
        v_readfirstlane_b32 s9, v4''')
        if self.opt.get('ats'): self.ts(2)
        for x in vrd: e(x)
        e('s_waitcnt vmcnt(0)')
        if self.opt.get('ats') == 1: self.ts(3)
        for k in range(2):
            e("""v_cmp_ne_u32 vcc, s%d, v%d
            s_cmp_lg_u64 vcc, 0
            s_cbranch_scc1 L_xretry%d
            L_xok%d:""" % (76 + k, Xr + 4 * k + 2, k, k))
        e('v_pk_add_f32 %s, %s, %s' % (vr(Er, 2), vr(Er, 2), vr(Xr, 2)))
        e('v_pk_add_f32 %s, %s, %s' % (vr(Er + 12, 2), vr(Er + 12, 2), vr(Xr + 4, 2)))
        self.ts(6)
        e("""s_or_b32 s11, s6, s5
        s_cmp_lg_u32 s11, 0
        s_cbranch_scc1 L_nomask
        v_mov_b32 v3, 0xce6e6b28""")
        for sg in range(4):
            e('v_cndmask_b32 v%d, v3, v%d, s[66:67]\nv_cndmask_b32 v%d, v3, v%d, s[68:69]' % (Er + 4 * sg, Er + 4 * sg, Er + 4 * sg + 1, Er + 4 * sg + 1))
        e('L_nomask:')
        A, B_, C, D_ = Rr, Rr + 2, Rr + 4, Rr + 6
        def allred(op, mid=None):
            for sg in range(4):
                e('%s v%d, v%d, v%d' % (op, Rr + 2 * sg, Er + 4 * sg, Er + 4 * sg + 1))
            e('v_permlane32_swap_b32 v%d, v%d\nv_permlane32_swap_b32 v%d, v%d' % (A, C, B_, D_))
            e('%s v%d, v%d, v%d\n%s v%d, v%d, v%d' % (op, A, A, C, op, B_, B_, D_))
            e('v_permlane16_swap_b32 v%d, v%d' % (A, B_))
            e('%s v%d, v%d, v%d' % (op, A, A, B_))
            if mid: e(mid % (A, A))
            e('v_mov_b32 v%d, v%d\nv_permlane16_swap_b32 v%d, v%d' % (B_, A, A, B_))
            e('v_mov_b32 v%d, v%d\nv_mov_b32 v%d, v%d' % (C, A, D_, B_))
            e('v_permlane32_swap_b32 v%d, v%d\nv_permlane32_swap_b32 v%d, v%d' % (A, C, B_, D_))
        allred('v_max_f32', 'v_mul_f32 v%d, v12, v%d')
        for sg in range(4):
            e('v_pk_fma_f32 %s, %s, v[12:13], %s op_sel_hi:[1,0,0] neg_lo:[0,0,1] neg_hi:[0,0,1]' % (vr(Er + 4 * sg, 2), vr(Er + 4 * sg, 2), vr(Rr + 2 * sg, 2)))
        for sg in range(4):
            e('v_exp_f32 v%d, v%d\nv_exp_f32 v%d, v%d' % (Er + 4 * sg, Er + 4 * sg, Er + 4 * sg + 1, Er + 4 * sg + 1))
        e('s_waitcnt lgkmcnt(0)\ns_mov_b64 exec, 1\nv_mov_b32 v3, 1\nds_add_u32 v8, v3 offset:4\ns_mov_b64 exec, -1')
        allred('v_add_f32', 'v_rcp_f32 v%d, v%d')
        for sg in range(4):
            e('v_pk_mul_f32 %s, %s, %s op_sel_hi:[1,0]' % (vr(Er + 4 * sg, 2), vr(Er + 4 * sg, 2), vr(Rr + 2 * sg, 2)))
        def pv(j, sg, k):
            e('v_mfma_f32_16x16x32_bf16 %s, %s, %s, 0' % (vr(Sr + 4 * k, 4), vr(Vr + 4 * j, 4), vr(Pr + 4 * sg, 4)))
        for sg in range(4):
            x0, x1 = Er + 4 * sg + 2, Er + 4 * sg + 3
            e('v_cvt_pk_bf16_f32 v%d, v%d, v%d\nv_cvt_pk_bf16_f32 v%d, v%d, v%d' % (x0, Er + 4 * sg, Er + 4 * sg, x1, Er + 4 * sg + 1, Er + 4 * sg + 1))
            for r in range(4):
                e('v_and_b32 v%d, v%d, v%d' % (Pr + 4 * sg + r, 212 + r, (x0, x1)[r & 1]))
            if sg: pv(sg - 1, sg - 1, 2 * sg - 2); pv(sg, sg - 1, 2 * sg - 1)
        pv(3, 3, 6); pv(4, 3, 7)
        if self.opt.get('ats') == 2: self.ts(3)
        Or = Kr
        def cv(j, k):
            e('v_cvt_pk_bf16_f32 v%d, v%d, v%d\nv_cvt_pk_bf16_f32 v%d, v%d, v%d' % (Or + 2 * j, Sr + 4 * k, Sr + 4 * k + 1, Or + 2 * j + 1, Sr + 4 * k + 2, Sr + 4 * k + 3))
        def wr(j): e('ds_write_b64 v230, %s offset:%d' % (vr(Or + 2 * j, 2), 32 * j))
        cv(0, 0); wr(0)
        cv(1, 2); cv(2, 4)
        e('s_mov_b64 exec, 0xffff'); cv(1, 1)
        e('s_mov_b32 exec_lo, -1'); cv(2, 3)
        e('s_mov_b64 exec, -1'); wr(1); wr(2)
        cv(3, 6); cv(4, 7); wr(4)
        e('s_mov_b32 exec_hi, 0xffff'); cv(3, 5)
        e('s_mov_b64 exec, -1'); wr(3)
        e("""s_mul_i32 s12, s6, 6
        s_add_u32 s12, s12, s5
        s_mul_i32 s13, s12, 20
        s_lshl_b32 s11, s8, 1
        s_add_u32 s13, s13, s11
        s_lshl_b32 s13, s13, 10
        s_add_u32 s13, s13, %d
        s_waitcnt lgkmcnt(0)
        ds_read2_b64 v[220:223], v233 offset0:0 offset1:1
        ds_read2_b64 v[224:227], v233 offset0:8 offset1:9
        s_mov_b32 s38, 3
        s_cmp_ge_u32 s12, 128
        s_cbranch_scc1 L_opub
        s_lshr_b32 s11, s12, 4
        s_mul_i32 s12, s12, 10
        s_add_u32 s12, s12, s8
        s_lshl_b32 s14, s12, 8
        s_add_u32 s14, s14, %d
        s_lshl_b32 s12, s12, 7
        s_add_u32 s12, s12, %d
        v_lshlrev_b32 v4, 2, v0
        v_mov_b32 v5, s10
        s_cmp_eq_u32 s11, s3
        s_cselect_b32 s11, s9, 0
        s_cmp_lg_u32 s11, 0
        s_cbranch_scc1 L_oloc
        s_waitcnt lgkmcnt(1)
        buffer_store_dwordx4 v[220:223], v254, s[52:55], s13 offen sc1
        v_add3_u32 v3, v220, v221, v222
        s_waitcnt lgkmcnt(0)
        buffer_store_dwordx4 v[224:227], v254, s[52:55], s13 offen offset:1024 sc1
        v_add3_u32 v3, v3, v223, v224
        v_add3_u32 v3, v3, v225, v226
        v_add3_u32 v3, v3, v227, s10
        buffer_store_dword v3, v4, s[52:55], s14 offen sc1
        s_mov_b64 exec, 1
        buffer_store_dword v5, v4, s[52:55], s12 offen sc1
        s_branch L_opub
        L_oloc:
        s_waitcnt lgkmcnt(1)
        buffer_store_dwordx4 v[220:223], v254, s[52:55], s13 offen
        v_add3_u32 v3, v220, v221, v222
        s_waitcnt lgkmcnt(0)
        buffer_store_dwordx4 v[224:227], v254, s[52:55], s13 offen offset:1024
        v_add3_u32 v3, v3, v223, v224
        v_add3_u32 v3, v3, v225, v226
        v_add3_u32 v3, v3, v227, s10
        buffer_store_dword v3, v4, s[52:55], s14 offen
        s_mov_b64 exec, 1
        buffer_store_dword v5, v4, s[52:55], s12 offen
        L_opub:
        s_mov_b64 exec, -1""" % (WS_O, WS_CHK, WS_FLAG))
        self.tail.append(lambda: self.xretry(Er, Xr))

    def xretry(self, Er, Xr):
        e = self.e
        for k in range(2):
            own, got = Er + 12 * k, Xr + 4 * k
            e("""L_xretry%d:
            s_mov_b32 s15, 0
            L_xr%d:
            s_mov_b64 exec, vcc
            s_add_u32 s15, s15, 1
            s_cmp_ge_u32 s15, %d
            s_cbranch_scc1 L_xe%d
            s_cmp_lg_u32 s15, 48
            s_cbranch_scc1 L_xs%d
            s_add_u32 s12, s%d, %d
            v_mov_b32 v%d, s10
            buffer_store_dwordx3 %s, v254, %s, s12 offen sc1
            L_xs%d:
            s_cmp_gt_u32 s15, 48
            s_cselect_b32 s11, s15, 0
            s_bitcmp1_b32 s11, 0
            s_cselect_b32 s75, s10, s74
            s_cselect_b32 s12, %d, 0
            s_add_u32 s12, s12, s%d
            buffer_load_dwordx3 %s, v254, %s, s12 offen sc1
            s_waitcnt vmcnt(0)
            v_cmp_ne_u32 vcc, s75, v%d
            s_cmp_lg_u64 vcc, 0
            s_cbranch_scc1 L_xr%d
            L_xe%d:
            s_mov_b64 exec, -1
            s_branch L_xok%d""" % (k, k, SPIN, k, k, 70 + k, WS_XCB - WS_XCH, own + 2, vr(own, 3), sq(rWS), k, WS_XCB - WS_XCH, 72 + k,
                                   vr(got, 3), sq(rWS), got + 2, k, k, k))

    def phase2(self):
        e = self.e
        NPRE = 6
        WF, OF, AC, XF, XN = 16, 136, 176, 196, 208
        UPD = TAB + 1024
        e('L_phase2:\ns_setprio 0')
        self.ts(7)
        def wrd(ks, slot):
            ops = []
            for t in range(5):
                for hh in range(2):
                    ops.append('ds_read_b64_tr_b16 %s, v%d offset:%d' % (vr(WF + 20 * slot + 4 * t + 2 * hh, 2), 244 + 2 * (ks // 5) + hh, (ks % 5) * 5120 + 32 * t))
            return ops
        e("""v_mov_b32 v8, %d
        v_lshlrev_b32 v9, 2, v0
        s_mov_b32 s15, %d
        L_p2chk:
        v_cmp_ne_u32 vcc, s10, v237
        s_cmp_eq_u64 vcc, 0
        s_cbranch_scc1 L_p2ok
        s_sub_u32 s15, s15, 1
        s_cmp_eq_u32 s15, 0
        s_cbranch_scc1 L_p2ok
        s_sleep 8
        buffer_load_dwordx2 v[236:237], v235, %s, 0 offen sc1
        s_waitcnt vmcnt(0)
        s_branch L_p2chk
        L_p2ok:
        v_and_b32 v7, 0xffff0000, v236
        v_rcp_f32 v10, v7
        v_lshlrev_b32 v236, 16, v236""" % (TAB + 896, SPIN, sq(rWS)))
        for d in range(6):
            e('v_lshlrev_b32 v%d, 16, v%d\nv_and_b32 v%d, 0xffff0000, v%d' % (XF + 2 * d, 238 + d, XF + 2 * d + 1, 238 + d))
        for d in range(6):
            e('v_pk_add_f32 %s, %s, v[236:237] op_sel_hi:[1,0] neg_lo:[0,1] neg_hi:[0,1]' % (vr(XN + 2 * d, 2), vr(XF + 2 * d, 2)))
        def rnd(base, n):
            for d in range(n):
                e('v_cvt_pk_bf16_f32 v%d, v%d, v%d' % (248 + d, base + 2 * d, base + 2 * d + 1))
            for d in range(n):
                e('v_lshlrev_b32 v%d, 16, v%d\nv_and_b32 v%d, 0xffff0000, v%d' % (base + 2 * d, 248 + d, base + 2 * d + 1, 248 + d))
        rnd(XN, 6)
        e('ds_read_b32 v7, v8 offset:4')
        for d in range(6):
            e('v_pk_mul_f32 %s, %s, v[10:11] op_sel_hi:[1,0]' % (vr(XN + 2 * d, 2), vr(XN + 2 * d, 2)))
        rnd(XN, 6)
        for d in range(6):
            e('v_pk_add_f32 %s, %s, %s' % (vr(XN + 2 * d, 2), vr(XN + 2 * d, 2), vr(XF + 2 * d, 2)))
        CK = 220
        e("""s_waitcnt lgkmcnt(0)
        v_readfirstlane_b32 s11, v7
        s_mov_b32 s72, 0
        s_mov_b32 s73, 1
        s_and_b32 s11, s11, 0xff
        s_cmp_lt_u32 s11, 8
        s_cselect_b32 s11, s38, 0
        s_cmp_eq_u32 s11, 3
        s_cbranch_scc1 L_wskip
        s_mov_b32 s73, 0
        L_wrd:
        s_mov_b32 s15, %d
        L_wochk:
        ds_read_b32 v7, v8 offset:4
        s_waitcnt lgkmcnt(0)
        v_readfirstlane_b32 s11, v7
        s_and_b32 s11, s11, 0xff
        s_cmp_ge_u32 s11, 8
        s_cbranch_scc1 L_wook
        s_sleep 1
        s_sub_u32 s15, s15, 1
        s_cmp_lg_u32 s15, 0
        s_cbranch_scc1 L_wochk
        L_wook:""" % (SPIN * 4))
        for ks in range(NPRE):
            for x in wrd(ks, ks): e(x)
        e("""s_mov_b32 s15, %d
        s_cmp_lg_u32 s73, 0
        s_cbranch_scc1 L_wdone
        L_wskip:""" % SPIN)
        if self.opt.get('pts') in (1, 2): self.ts(3)
        e("""s_cmp_eq_u32 s38, 3
        s_cbranch_scc0 L_noack
        s_waitcnt vmcnt(0)
        s_mov_b64 exec, 1
        v_mov_b32 v6, 0x100
        ds_add_u32 v8, v6 offset:4
        s_mov_b64 exec, -1
        L_noack:
        s_mov_b32 s15, %d
        s_cmp_eq_u32 s38, 0
        s_cbranch_scc1 L_ohint
        L_ow2:
        ds_read_b32 v3, v8 offset:4
        s_waitcnt lgkmcnt(0)
        v_readfirstlane_b32 s11, v3
        s_cmpk_ge_u32 s11, 0x600
        s_cbranch_scc1 L_ook
        s_sleep 1
        s_sub_u32 s15, s15, 1
        s_cmp_lg_u32 s15, 0
        s_cbranch_scc1 L_ow2
        L_ook:
        s_mov_b32 s15, %d""" % (SPIN * 4, SPIN))
        self.ts(8)
        for j in range(5):
            e('L_old%d:' % j)
            for h in range(2):
                e('buffer_load_dwordx4 %s, v254, %s, s%d offen offset:%d sc1' % (vr(OF + 8 * j + 4 * h, 4), sq(rWS), 22 + j, 1024 * h))
            e('buffer_load_dword v%d, v9, %s, s%d offen sc1' % (CK + j, sq(rWS), 27 + j))
        e('s_cmp_lg_u32 s72, 0\ns_cbranch_scc1 L_odisp\ns_cmp_lg_u32 s73, 0\ns_cbranch_scc1 L_wrd\nL_wdone:\ns_waitcnt lgkmcnt(0)')
        def val(j):
            o = OF + 8 * j
            return ['s_waitcnt vmcnt(%d)' % (3 * (4 - j)),
                    'v_add3_u32 v3, v%d, v%d, v%d' % (o, o + 1, o + 2), 'v_add3_u32 v5, v%d, v%d, v%d' % (o + 3, o + 4, o + 5),
                    'v_add3_u32 v3, v3, v%d, v%d' % (o + 6, o + 7), 'v_add3_u32 v3, v3, v5, s10',
                    'v_cmp_ne_u32 vcc, v3, v%d' % (CK + j)]
        for j in range(5):
            e('L_oval%d:' % j)
            for x in val(j): e(x)
            e('s_mov_b32 s72, %d\ns_cmp_lg_u64 vcc, 0\ns_cbranch_scc1 L_oretry\nL_ogo%d:' % (j + 1, j))
            if self.opt.get('pts') == 3 and j in (0, 2, 4): self.ts(1 + j // 2)
            for ks in (2 * j, 2 * j + 1):
                slot = ks if ks < NPRE else ks - NPRE
                if ks >= NPRE:
                    e('s_waitcnt lgkmcnt(%d)' % min(15, 10 * (9 - ks)))
                for t in range(5):
                    c = '0' if ks == 0 else vr(AC + 4 * t, 4)
                    e('v_mfma_f32_16x16x32_bf16 %s, %s, %s, %s' % (vr(AC + 4 * t, 4), vr(WF + 20 * slot + 4 * t, 4), vr(OF + 4 * ks, 4), c))
                if ks + NPRE < 10:
                    for x in wrd(ks + NPRE, ks): e(x)
        def otail():
            e("""L_oretry:
            s_waitcnt vmcnt(0)
            s_sub_u32 s15, s15, 1
            s_cmp_eq_u32 s15, 0
            s_cbranch_scc1 L_ogive
            s_sleep %d""" % self.opt.get('osl', 2))
            for j in range(5):
                e('s_cmp_eq_u32 s72, %d\ns_cbranch_scc1 L_old%d' % (j + 1, j))
            e('L_odisp:')
            for j in range(4):
                e('s_cmp_eq_u32 s72, %d\ns_cbranch_scc1 L_oval%d' % (j + 1, j))
            e('s_branch L_oval4\nL_ogive:\ns_mov_b32 s15, 1')
            for j in range(4):
                e('s_cmp_eq_u32 s72, %d\ns_cbranch_scc1 L_ogo%d' % (j + 1, j))
            e('s_branch L_ogo4')
            e("""L_ohint:
            v_lshlrev_b32 v3, 7, v0
            s_mov_b64 exec, 31
            L_of:
            buffer_load_dword v5, v3, %s, s63 offen sc1
            s_waitcnt vmcnt(0)
            v_cmp_ne_u32 vcc, s10, v5
            s_cmp_eq_u64 vcc, 0
            s_cbranch_scc1 L_of2
            s_mov_b64 exec, vcc
            s_sleep 4
            s_sub_u32 s15, s15, 1
            s_cmp_lg_u32 s15, 0
            s_cbranch_scc1 L_of
            L_of2:
            s_mov_b64 exec, -1
            s_branch L_ook""" % sq(rWS))
        self.tail.append(otail)
        if self.opt.get('pts') == 1: self.ts(1)
        e("""v_mov_b32 v8, %d
        s_cmp_eq_u32 s61, 0
        s_cbranch_scc0 L_red1""" % UPD)
        for t in (3, 4):
            e('ds_write_b128 v232, %s offset:%d' % (vr(AC + 4 * t, 4), 4 * P * t))
        for d in range(6):
            e('v_pk_add_f32 %s, %s, %s' % (vr(XN + 2 * d, 2), vr(XN + 2 * d, 2), vr(AC + 2 * d, 2)))
        e('s_waitcnt lgkmcnt(0)\ns_barrier\nds_read2_b32 v[6:7], v8 offset0:0 offset1:1')
        for t in range(3):
            e('ds_read_b128 %s, v232 offset:%d' % (vr(AC + 4 * t, 4), 4 * P * t))
        e('s_waitcnt lgkmcnt(3)\ns_branch L_red2\nL_red1:')
        for t in range(3):
            e('ds_write_b128 v232, %s offset:%d' % (vr(AC + 4 * t, 4), 4 * P * t))
        for d in range(4):
            e('v_pk_add_f32 %s, %s, %s' % (vr(XN + 2 * d, 2), vr(XN + 2 * d, 2), vr(AC + 12 + 2 * d, 2)))
        e('s_waitcnt lgkmcnt(0)\ns_barrier\nds_read2_b32 v[6:7], v8 offset0:0 offset1:1')
        for t in (3, 4):
            e('ds_read_b128 %s, v232 offset:%d' % (vr(AC + 4 * (t - 3), 4), 4 * P * t))
        e('s_waitcnt lgkmcnt(2)\nL_red2:')
        if self.opt.get('pts') == 2: self.ts(1)
        e("""v_readfirstlane_b32 s76, v6
        v_readfirstlane_b32 s77, v7
        s_lshr_b32 s11, s76, 4
        s_cmp_eq_u32 s11, s60
        s_cbranch_scc1 L_exrow0
        L_exb0:
        s_lshr_b32 s11, s77, 4
        s_cmp_eq_u32 s11, s60
        s_cbranch_scc1 L_exrow1
        L_exb1:
        s_waitcnt lgkmcnt(0)""")
        for d in range(6):
            e('v_pk_add_f32 %s, %s, %s' % (vr(AC + 2 * d, 2), vr(AC + 2 * d, 2), vr(XN + 2 * d, 2)))
            e('v_cvt_pk_bf16_f32 v%d, v%d, v%d' % (248 + d, AC + 2 * d, AC + 2 * d + 1))
            if d == 1: e('buffer_store_dwordx2 v[248:249], v234, %s, 0 offen' % sq(rOUT))
            if d == 3:
                e('buffer_store_dwordx2 v[250:251], v234, %s, 0 offen offset:32' % sq(rOUT))
                e('s_cmp_lg_u32 s61, 0\ns_cbranch_scc1 L_fin')
        e('buffer_store_dwordx2 v[252:253], v234, %s, 0 offen offset:64' % sq(rOUT))
        e('L_fin:')
        if self.opt.get('ts'):
            if self.opt.get('pts') in (1, 2): self.ts(2)
            if self.opt.get('rcnt'): e('s_waitcnt lgkmcnt(0)\ns_sub_u32 s11, %d, s15\ns_add_u32 s84, s80, s11' % SPIN)
            e('s_waitcnt vmcnt(0)')
            self.ts(9)
            e('s_waitcnt lgkmcnt(0)\nv_mov_b32 v15, 0')
            for k in range(10):
                e('v_mov_b32 v%d, s%d' % (16 + k, 80 + 2 * k))
            e("""s_lshl_b32 s11, s2, 3
            s_add_u32 s11, s11, s5
            s_lshl_b32 s11, s11, 6
            s_add_u32 s11, s11, %d
            s_mov_b64 exec, 1
            buffer_store_dwordx4 v[16:19], v15, %s, s11 offen
            buffer_store_dwordx4 v[20:23], v15, %s, s11 offen offset:16
            buffer_store_dwordx2 v[24:25], v15, %s, s11 offen offset:32""" % (WS_TS, sq(rWS), sq(rWS), sq(rWS)))
        e('s_endpgm')
        for k in range(2):
            e("""L_exrow%d:
            v_lshrrev_b32 v3, 4, v0
            s_mul_i32 s11, s61, 192
            s_add_u32 s11, s11, %d
            v_lshl_add_u32 v3, v3, 4, s11""" % (k, UPD + 16 + 1536 * k))
            for t in range(3):
                e('ds_read_b128 %s, v3 offset:%d' % (vr(OF + 4 * t, 4), 64 * t))
            e("""v_and_b32 v3, 15, v0
            s_and_b32 s11, s%d, 15
            v_cmp_eq_u32 vcc, s11, v3
            s_waitcnt lgkmcnt(0)""" % (76 + k))
            for d in range(6):
                e('v_pk_add_f32 %s, %s, %s' % (vr(OF + 2 * d, 2), vr(OF + 2 * d, 2), vr(XN + 2 * d, 2)))
            for r in range(12):
                e('v_cndmask_b32 v%d, v%d, v%d, vcc' % (XN + r, XN + r, OF + r))
            e('s_branch L_exb%d' % k)

    def p2wo(self):
        e = self.e
        UPD = TAB + 1024
        e('L_p2wo:')
        self.p2_loads()
        e("""v_mov_b32 v8, %d
        v_mov_b32 v3, 1
        s_waitcnt vmcnt(0)
        s_mov_b64 exec, 1
        ds_add_u32 v8, v3 offset:4
        s_mov_b64 exec, -1
        s_lshl_b32 s11, s2, 3
        s_add_u32 s11, s11, s5
        s_cmpk_lg_u32 s11, 1927
        s_cbranch_scc1 L_noep
        v_lshlrev_b32 v4, 9, v0
        v_add_u32 v4, 0x2e0000, v4
        s_mov_b32 s15, 200000
        L_ep:
        buffer_load_dword v16, v4, s[52:55], 0 offen sc1
        buffer_load_dword v17, v4, s[52:55], 0 offen offset:128 sc1
        buffer_load_dword v18, v4, s[52:55], 0 offen offset:256 sc1
        buffer_load_dword v19, v4, s[52:55], 0 offen offset:384 sc1
        s_waitcnt vmcnt(0)
        v_xor_b32 v16, s10, v16
        v_xor_b32 v17, s10, v17
        v_xor_b32 v18, s10, v18
        v_xor_b32 v19, s10, v19
        v_or3_b32 v16, v16, v17, v18
        v_or_b32 v16, v16, v19
        v_lshlrev_b32 v16, 4, v16
        v_cmp_ne_u32 vcc, 0, v16
        s_cmp_eq_u64 vcc, 0
        s_cbranch_scc1 L_ep2
        s_sleep 8
        s_sub_u32 s15, s15, 1
        s_cmp_lg_u32 s15, 0
        s_cbranch_scc1 L_ep
        L_ep2:
        v_mov_b32 v4, 0
        v_mov_b32 v5, s10
        s_mov_b64 exec, 1
        global_store_dword v4, v5, s[36:37] sc1
        s_mov_b64 exec, -1
        L_noep:
        s_cmp_lg_u32 s5, 6
        s_cbranch_scc1 L_phase2
        v_mov_b32 v4, 0
        s_mov_b32 s15, %d
        L_sel:
        buffer_load_dwordx4 v[16:19], v4, %s, 0 offen offset:%d sc1
        s_waitcnt vmcnt(0)
        v_readfirstlane_b32 s11, v17
        v_readfirstlane_b32 s12, v19
        v_readfirstlane_b32 s76, v16
        v_readfirstlane_b32 s79, v18
        s_cmp_eq_u32 s11, s12
        s_cselect_b32 s11, s11, 0
        s_cselect_b32 s12, s10, 1
        s_mov_b32 s78, 0
        s_cmp_eq_u32 s11, s12
        s_cbranch_scc1 L_selok
        s_sleep 8
        s_sub_u32 s15, s15, 1
        s_cmp_lg_u32 s15, 0
        s_cbranch_scc1 L_sel
        L_selok:
        s_and_b32 s77, s76, 0xffff
        s_sub_u32 s77, 2047, s77
        s_lshl_b32 s11, s78, 2
        s_add_u32 s11, s11, %d
        v_mov_b32 v3, s11
        v_mov_b32 v4, s77
        ds_write_b32 v3, v4
        s_lshr_b32 s11, s77, 6
        s_lshr_b32 s12, s60, 2
        s_cmp_lg_u32 s11, s12
        s_cbranch_scc1 L_selnext
        v_mul_u32_u24 v3, 13, v0
        v_lshrrev_b32 v3, 8, v3
        v_mul_u32_u24 v4, 20, v3
        v_sub_u32 v4, v0, v4
        v_mul_u32_u24 v5, 40960, v3
        v_lshl_add_u32 v5, v4, 5, v5
        v_lshrrev_b32 v4, 2, v4
        v_lshl_add_u32 v5, v4, 7, v5
        s_lshr_b32 s14, s4, 2
        s_mul_i32 s14, s14, 1280
        s_lshl_b32 s13, s78, 4
        s_add_u32 s14, s14, s13
        s_add_u32 s14, s14, %d
        s_lshr_b32 s11, s76, 16
        s_bitcmp1_b32 s11, 15
        s_mov_b32 s13, 0xffff
        s_cmov_b32 s13, 0x8000
        s_xor_b32 s11, s11, s13
        s_lshl_b32 s11, s11, 16
        v_mov_b32 v6, 0xbfb8aa3b
        v_mul_f32 v6, s11, v6
        v_exp_f32 v6, v6
        v_add_f32 v6, 1.0, v6
        v_rcp_f32 v6, v6
        v_cvt_pk_bf16_f32 v6, v6, v6
        v_and_b32 v6, 0xffff0000, v6
        s_mul_i32 s11, s78, 1536
        s_add_u32 s11, s11, %d
        v_add_u32 v7, s11, v254
        s_mov_b32 s15, %d
        s_mov_b32 exec_hi, 0xfffffff
        L_yf:
        s_mov_b32 s12, s14""" % (TAB + 896, SPIN, sq(rWS), WS_SEL, UPD, WS_Y, UPD + 16, SPIN))
        assert all((x * 13) >> 8 == x // 20 for x in range(60))
        for j in range(4):
            for h in range(2):
                e('buffer_load_dwordx4 %s, v5, %s, s12 offen offset:%d sc1' % (vr(32 + 8 * j + 4 * h, 4), sq(rWS), 128 * h))
            if j < 3: e('s_add_u32 s12, s12, 10240')
        e('s_waitcnt vmcnt(0)\nv_mov_b32 v3, 0')
        for j in range(4):
            e('v_xor_b32 v4, s10, v%d\nv_xor_b32 v9, s10, v%d\nv_or3_b32 v3, v3, v4, v9' % (32 + 8 * j + 2, 32 + 8 * j + 6))
        e("""v_cmp_ne_u32 vcc, 0, v3
        s_cmp_eq_u64 vcc, 0
        s_cbranch_scc1 L_yok
        s_mov_b64 exec, vcc
        s_sleep 4
        s_sub_u32 s15, s15, 1
        s_cmp_lg_u32 s15, 0
        s_cbranch_scc1 L_yf
        L_yok:
        s_mov_b32 exec_lo, -1
        s_mov_b32 exec_hi, 0xfffffff""")
        for h in range(2):
            e('v_pk_add_f32 %s, %s, %s' % (vr(16 + 2 * h, 2), vr(32 + 4 * h, 2), vr(40 + 4 * h, 2)))
        for j in (2, 3):
            for h in range(2):
                e('v_pk_add_f32 %s, %s, %s' % (vr(16 + 2 * h, 2), vr(16 + 2 * h, 2), vr(32 + 8 * j + 4 * h, 2)))
        e("""ds_write_b128 v7, v[16:19] offset:320
        s_waitcnt lgkmcnt(0)
        s_mov_b64 exec, 0xfffff
        ds_read_b128 v[20:23], v7 offset:640
        ds_read_b128 v[24:27], v7 offset:960
        s_waitcnt lgkmcnt(0)""")
        for j in (1, 2):
            for h in range(2):
                e('v_pk_add_f32 %s, %s, %s' % (vr(16 + 2 * h, 2), vr(16 + 2 * h, 2), vr(16 + 4 * j + 2 * h, 2)))
        def rnd2():
            e("""v_cvt_pk_bf16_f32 v20, v16, v17
            v_cvt_pk_bf16_f32 v21, v18, v19
            v_lshlrev_b32 v16, 16, v20
            v_and_b32 v17, 0xffff0000, v20
            v_lshlrev_b32 v18, 16, v21
            v_and_b32 v19, 0xffff0000, v21""")
        rnd2()
        for r in range(4): e('v_mul_f32 v%d, v%d, v6' % (16 + r, 16 + r))
        rnd2()
        e("""ds_write_b128 v7, v[16:19]
        s_waitcnt lgkmcnt(0)
        s_mov_b64 exec, -1
        L_selnext:
        s_mov_b32 s76, s79
        s_add_u32 s78, s78, 1
        s_cmp_lt_u32 s78, 2
        s_cbranch_scc1 L_selok
        s_branch L_phase2""")

    def expert(self):
        e = self.e
        BUF = 32768
        ETS = self.opt.get('ets', 0)
        e("""L_aux:
        s_cmp_ge_u32 s79, 4
        s_cbranch_scc1 L_idle""")
        e("""s_mul_i32 s68, s78, 12
        s_add_u32 s68, s68, s79
        s_lshl_b32 s11, s77, 1
        s_lshl_b32 s11, s11, s76
        s_add_u32 s68, s68, s11
        s_lshl_b32 s11, s76, 2
        s_add_u32 s68, s68, s11
        s_and_b32 s14, s5, 1
        s_lshr_b32 s69, s5, 1
        v_lshrrev_b32 v2, 3, v0
        v_and_b32 v3, 7, v0
        v_bfe_u32 v4, v0, 4, 1
        v_lshl_or_b32 v4, s14, 1, v4
        v_lshlrev_b32 v4, 1, v4
        v_xor_b32 v4, v3, v4
        s_and_b32 s12, s68, 1
        s_mul_i32 s12, s12, 320
        s_lshl_b32 s11, s14, 3
        s_add_u32 s11, s11, s12
        v_add_u32 v2, s11, v2
        v_mul_u32_u24 v2, 3072, v2
        v_lshl_add_u32 v2, v4, 4, v2
        s_and_b32 s11, s68, 30
        s_and_b32 s12, s69, 1
        s_add_u32 s11, s11, s12
        s_lshl_b32 s11, s11, 7
        v_add_u32 v10, s11, v2
        s_lshl_b32 s74, s69, 13
        s_lshl_b32 s11, s14, 10
        s_add_u32 s75, s74, s11
        s_waitcnt lgkmcnt(0)
        s_cmp_lt_u32 s5, 4
        s_cselect_b32 s44, s26, s28
        s_cselect_b32 s45, s27, s29
        s_mov_b32 s46, %d
        s_mov_b32 s47, 0x20000""" % GB)
        nt = ' nt' if self.opt.get('nt', 1) else ''
        def issue(s):
            base = (s % 4) * BUF
            for a in range(4):
                e('s_add_u32 m0, s75, %d\ns_mov_b32 s12, %d' % (base + a * 2048, (64 * s + 16 * a) * 3072))
                e('buffer_load_dwordx4 v10, %s, s12 offen%s lds' % (sq(rW), nt))
        if ETS == 1: self.ts(1)
        issue(0)
        e('s_branch L_expert2')
        self.expert_rest = lambda: self.expert2(issue)

    def expert2(self, issue):
        e = self.e
        WG_, XS = 32, 112
        BUF = 32768
        MX = TAB + 4096
        ETS = self.opt.get('ets', 0)
        e('L_expert2:')
        self.tag_load()
        self.srd(rX, pX, XB); self.srd(rWS, pWS, WSB)
        self.p2_setup()
        self.wo_setup(11)
        e("""v_and_b32 v1, 15, v0
        v_lshrrev_b32 v2, 4, v0
        v_lshrrev_b32 v3, 2, v1
        v_and_b32 v4, 3, v1
        v_lshrrev_b32 v5, 1, v3
        v_and_b32 v6, 1, v2
        v_lshl_or_b32 v5, v6, 1, v5
        s_lshl_b32 s11, s14, 1
        v_xor_b32 v5, s11, v5
        v_lshl_add_u32 v7, v2, 3, v3
        v_lshlrev_b32 v8, 7, v7
        v_lshl_add_u32 v8, v5, 5, v8
        v_lshl_add_u32 v8, v4, 3, v8
        v_add_u32 v16, s74, v8
        s_lshl_b32 s11, s5, 6
        v_add_u32 v21, s11, v0
        v_lshlrev_b32 v17, 4, v21
        v_add_u32 v17, %d, v17
        v_and_b32 v5, 1, v1
        v_mul_u32_u24 v19, 656, v5
        v_lshl_add_u32 v19, v2, 4, v19
        v_add_u32 v19, %d, v19
        v_lshlrev_b32 v20, 5, v2
        v_lshl_add_u32 v20, v1, 4, v20
        s_lshl_b32 s72, s68, 1
        s_lshr_b32 s11, s5, 2
        s_add_u32 s72, s72, s11
        s_lshl_b32 s72, s72, 11
        s_and_b32 s11, s5, 3
        s_lshl_b32 s11, s11, 8
        s_add_u32 s72, s72, s11
        s_add_u32 s72, s72, %d
        v_mov_b32 v8, %d
        v_mov_b32 v9, 0
        ds_write_b32 v8, v9 offset:4""" % (WS_KEY, MX, WS_H, TAB + 896))
        issue(1); issue(2); issue(3)
        self.tag_ready()
        def consume(s, n):
            base = (s % 4) * BUF
            e('s_waitcnt vmcnt(%d)\ns_barrier' % n)
            if ETS == 1 and s in (0, 2, 4): self.ts({0: 4, 2: 5, 4: 6}[s])
            e('v_add_u32 v8, %d, v16\nv_xor_b32 v9, 32, v8' % base)
            for t in range(2):
                for tl in range(2):
                    for hh in range(2):
                        e('ds_read_b64_tr_b16 %s, v%d offset:%d' % (vr(WG_ + 40 * tl + 4 * (2 * s + t) + 2 * hh, 2), 8 + tl, (32 * t + 4 * hh) * 128))
        B = 120
        v = lambda k: 'v%d' % (B + k)
        def sweep():
            e('s_mov_b32 s12, 8192')
            e('buffer_load_dwordx4 %s, v17, %s, 0 offen sc1\nbuffer_load_dwordx4 %s, v17, %s, s12 offen sc1' % (vr(B + 2, 4), sq(rWS), vr(B + 6, 4), sq(rWS)))
        SW = self.opt.get('sw', 0)
        consume(0, 12)
        e('s_waitcnt lgkmcnt(0)\ns_barrier')
        self.count_in(7)
        if SW == 0: sweep()
        issue(4)
        consume(1, 12 + 2 * (SW == 0))
        if SW == 1: sweep()
        consume(2, 8 + 2 * (SW <= 1))
        if SW == 2: sweep()
        consume(3, 6)
        if SW: consume(4, 2)
        MK = TAB
        e("""s_mov_b32 s15, %d
        s_waitcnt vmcnt(%d)
        L_sweep:
        v_xor_b32 v5, s10, %s
        v_xor_b32 v6, s10, %s
        v_xor_b32 v7, s10, %s
        v_xor_b32 v8, s10, %s
        v_or3_b32 v5, v5, v6, v7
        v_or_b32 v5, v5, v8
        v_cmp_ne_u32 vcc, 0, v5
        s_cmp_eq_u64 vcc, 0
        s_cbranch_scc1 L_swok
        s_mov_b64 exec, vcc
        s_sub_u32 s15, s15, 1
        s_cmp_eq_u32 s15, 0
        s_cbranch_scc1 L_swok
        s_sleep 4""" % (SPIN, 0 if SW else 4, v(3), v(5), v(7), v(9)))
        sweep()
        e('s_waitcnt vmcnt(0)\ns_branch L_sweep\nL_swok:\ns_mov_b64 exec, -1')
        if ETS == 2: self.ts(1)
        e("""v_max_u32 v5, %s, %s
        v_min_u32 v6, %s, %s
        v_max_u32 v7, %s, %s
        v_min_u32 v8, %s, %s
        v_max_u32 v3, v5, v7
        v_min_u32 v5, v5, v7
        v_max3_u32 v4, v5, v6, v8""" % (v(2), v(4), v(2), v(4), v(6), v(8), v(6), v(8)))
        def merge16():
            for n in (8, 4, 2, 1):
                d = 'row_ror:%d row_mask:0xf bank_mask:0xf' % n
                e("""v_min_u32_dpp v5, v3, v3 %s
                v_max_u32_dpp v4, v4, v4 %s
                v_max_u32_dpp v3, v3, v3 %s
                v_max_u32 v4, v4, v5""" % (d, d, d))
        merge16()
        e("""s_lshl_b32 s11, s5, 5
        s_add_u32 s11, s11, %d
        v_lshl_add_u32 v7, v2, 3, s11
        v_mov_b32 v8, v3
        v_mov_b32 v9, v4
        ds_write_b64 v7, v[8:9]
        v_lshlrev_b32 v7, 4, v1
        v_add_u32 v7, %d, v7
        s_waitcnt lgkmcnt(0)
        s_barrier
        s_cmp_ge_u32 s5, 3
        s_cbranch_scc1 L_noxn
        ds_read_b128 %s, v7
        s_waitcnt lgkmcnt(0)
        v_max_u32 v3, %s, %s
        v_min_u32 v5, %s, %s
        v_max3_u32 v4, v5, %s, %s""" % (MK, MK, vr(B + 2, 4), v(2), v(4), v(2), v(4), v(3), v(5)))
        merge16()
        if ETS == 2: self.ts(4)
        e("""v_readfirstlane_b32 s76, v3
        v_readfirstlane_b32 s77, v4
        s_cmp_lg_u32 s5, 2
        s_cbranch_scc1 L_rx
        s_cmp_lg_u32 s68, 0
        s_cbranch_scc1 L_noxn
        v_mov_b32 v4, s76
        v_mov_b32 v5, s10
        v_mov_b32 v6, s77
        v_mov_b32 v7, s10
        v_mov_b32 v3, 0
        s_mov_b64 exec, 1
        buffer_store_dwordx4 v[4:7], v3, %s, 0 offen offset:%d sc1
        s_mov_b64 exec, -1
        s_branch L_noxn
        L_rx:
        s_cmp_eq_u32 s5, 0
        s_cselect_b32 s11, s76, s77
        s_and_b32 s11, s11, 0xffff
        s_sub_u32 s11, 2047, s11
        s_lshl_b32 s13, s11, 3
        s_add_u32 s13, s13, %d
        s_mul_i32 s11, s11, 1280
        s_and_b32 s12, s68, 1
        s_mul_i32 s12, s12, 640
        s_add_u32 s11, s11, s12
        s_mul_i32 s12, s5, 656
        s_add_u32 s12, s12, %d
        v_add_u32 v9, s12, v254
        v_mov_b32 v7, 0
        s_mov_b32 exec_hi, 0xff
        s_mov_b32 s15, %d
        buffer_load_dwordx4 %s, v254, %s, s11 offen
        L_rst:
        buffer_load_dwordx2 %s, v7, %s, s13 offen sc1
        s_waitcnt vmcnt(0)
        v_cmp_ne_u32 vcc, s10, %s
        s_cmp_eq_u64 vcc, 0
        s_cbranch_scc1 L_rstok
        s_sub_u32 s15, s15, 1
        s_cmp_lg_u32 s15, 0
        s_cbranch_scc1 L_rst
        L_rstok:
        v_and_b32 v3, 0xffff0000, %s
        v_rcp_f32 v3, v3
        v_lshlrev_b32 v4, 16, %s""" % (sq(rWS), WS_SEL, WS_STAT, MX, SPIN, vr(B + 2, 4), sq(rX), vr(B + 6, 2), sq(rWS), v(7), v(6), v(6)))
        F = B + 8
        def unp():
            for d in range(4):
                e('v_lshlrev_b32 v%d, 16, v%d\nv_and_b32 v%d, 0xffff0000, v%d' % (F + 2 * d, B + 2 + d, F + 2 * d + 1, B + 2 + d))
        def pk():
            for d in range(4): e('v_cvt_pk_bf16_f32 v%d, v%d, v%d' % (B + 2 + d, F + 2 * d, F + 2 * d + 1))
        unp()
        for r in range(8): e('v_sub_f32 v%d, v%d, v4' % (F + r, F + r))
        pk(); unp()
        for r in range(8): e('v_mul_f32 v%d, v%d, v3' % (F + r, F + r))
        pk()
        e('ds_write_b128 v9, %s\ns_mov_b64 exec, -1\nL_noxn:\ns_waitcnt lgkmcnt(0)' % vr(B + 2, 4))
        if SW:
            e('s_barrier')
        else:
            consume(4, 0)
            e('s_waitcnt lgkmcnt(0)')
        if ETS == 2: self.ts(5)
        for ks in range(10):
            e('ds_read_b128 %s, v19 offset:%d' % (vr(XS + 4 * ks, 4), 64 * ks))
        R = 160
        for k in range(4):
            e('v_mov_b32 v%d, s10\nv_mov_b32 v%d, 0' % (R + 8 + 4 * k + 2, R + 8 + 4 * k + 3))
        for ks in range(10):
            e('s_waitcnt lgkmcnt(%d)' % (9 - ks))
            for tl in range(2):
                e('v_mfma_f32_16x16x32_bf16 %s, %s, %s, %s' % (vr(R + 4 * tl, 4), vr(WG_ + 40 * tl + 4 * ks, 4), vr(XS + 4 * ks, 4), '0' if ks == 0 else vr(R + 4 * tl, 4)))
        e('v_cmp_gt_u32 vcc, 2, v1\ns_and_b64 exec, exec, vcc')
        for tl in range(2):
            for h in range(2):
                d = R + 8 + 4 * (2 * tl + h)
                e('v_mov_b32 v%d, v%d\nv_mov_b32 v%d, v%d' % (d, R + 4 * tl + 2 * h, d + 1, R + 4 * tl + 2 * h + 1))
                e('buffer_store_dwordx4 %s, v20, %s, s72 offen offset:%d sc1' % (vr(d, 4), sq(rWS), 1024 * h + 128 * tl))
        e('s_mov_b64 exec, -1')
        self.ts(2)
        e('s_barrier')
        e('L_woall:')
        self.wo_block(11, 's5')
        e('s_add_u32 s71, s5, 8'); self.wo_block(11, 's71')
        e('s_cmp_lt_u32 s5, 4\ns_cbranch_scc1 L_p2wo\ns_add_u32 s71, s5, 12')
        self.wo_block(11, 's71')
        e('s_branch L_p2wo')

    def down(self):
        e = self.e
        WD, YA = 32, 112
        BUF = 40960
        MH = TAB + 384
        nt = ' nt' if self.opt.get('nt', 1) else ''
        e("""L_idle:
        s_lshl_b32 s68, s78, 1
        s_add_u32 s68, s68, s77
        s_mul_i32 s68, s68, 3
        s_add_u32 s68, s68, s79
        s_sub_u32 s68, s68, 4
        s_mul_i32 s72, s5, 5120
        s_mul_i32 s73, s68, 163840
        s_add_u32 s73, s73, s72
        s_bfe_u32 s11, s5, 0x10001
        s_lshl_b32 s11, s11, 2""")
        for a in range(5):
            e("""v_add_u32 v2, %d, v0
            v_mul_u32_u24 v3, 820, v2
            v_lshrrev_b32 v3, 16, v3
            v_mul_u32_u24 v4, 80, v3
            v_sub_u32 v4, v2, v4
            v_or_b32 v5, s11, v3
            v_lshlrev_b32 v5, 1, v5
            v_xor_b32 v4, v4, v5
            v_mul_u32_u24 v3, 1280, v3
            v_lshl_add_u32 v%d, v4, 4, v3""" % (64 * a, 26 + a))
        def issue(s):
            base = (s % 3) * BUF
            for a in range(5):
                e('s_add_u32 m0, s72, %d\ns_add_u32 s12, s73, %d' % (base + a * 1024, s * 40960))
                e('buffer_load_dwordx4 v%d, %s, s12 offen%s lds' % (26 + a, sq(rD), nt))
        e('s_waitcnt lgkmcnt(0)')
        self.srd(rD, pD, GB)
        issue(0)
        e('s_branch L_down2')
        self.down_rest = lambda: self.down2(issue)

    def down2(self, issue):
        e = self.e
        WD, YA = 32, 112
        BUF = 40960
        MH = TAB + 384
        e('L_down2:')
        self.tag_load()
        self.srd(rX, pX, XB); self.srd(rWS, pWS, WSB)
        self.p2_setup()
        self.wo_setup(11)
        e("""v_and_b32 v1, 15, v0
        v_lshrrev_b32 v2, 4, v0
        v_lshrrev_b32 v3, 2, v1
        v_and_b32 v4, 3, v1
        v_and_b32 v6, 1, v2
        v_lshl_add_u32 v7, v2, 3, v3
        v_lshl_or_b32 v5, v6, 2, v3
        v_mul_u32_u24 v7, 1280, v7
        v_lshl_add_u32 v7, v4, 3, v7
        s_mul_i32 s11, s5, 5""")
        for j in range(5):
            e("""s_add_u32 s12, s11, %d
            v_xor_b32 v8, s12, v5
            v_lshl_add_u32 v%d, v8, 5, v7""" % (j, 18 + j))
        e("""v_mov_b32 v8, %d
        v_mov_b32 v9, 0
        ds_write_b32 v8, v9 offset:4""" % (TAB + 896))
        issue(1); issue(2)
        self.tag_ready()
        def consume(s, n):
            base = (s % 3) * BUF
            e('s_waitcnt vmcnt(%d)\ns_barrier' % n)
            for j in range(5):
                e('v_add_u32 v8, %d, v%d' % (base, 18 + j))
                for hh in range(2):
                    e('ds_read_b64_tr_b16 %s, v8 offset:%d' % (vr(WD + 20 * s + 4 * j + 2 * hh, 2), 5120 * hh))
        consume(0, 10)
        e('s_waitcnt lgkmcnt(0)\ns_barrier')
        self.count_in(7)
        issue(3)
        consume(1, 10)
        consume(2, 5)
        e('s_waitcnt lgkmcnt(0)\ns_barrier')
        e('s_cmp_eq_u32 s5, 0\ns_cbranch_scc1 L_dn0\ns_sub_u32 s71, s5, 1')
        self.wo_block(11, 's71')
        e('s_waitcnt vmcnt(5)\ns_branch L_dn0b\nL_dn0:\ns_waitcnt vmcnt(0)\nL_dn0b:')
        consume(3, 63)
        e('s_cmp_eq_u32 s5, 0\ns_cbranch_scc1 L_dn1\ns_add_u32 s71, s5, 6')
        self.wo_block(11, 's71')
        e('s_cmp_eq_u32 s5, 7\ns_cbranch_scc1 L_dn2\ns_add_u32 s71, s5, 13')
        self.wo_block(11, 's71')
        e('s_branch L_dn2\nL_dn1:\ns_setprio 3')
        self.ts(2)
        HB = 132
        e("""s_lshl_b32 s12, s68, 13
        s_add_u32 s12, s12, %d
        s_add_u32 s13, s12, 4096
        s_mov_b32 s15, %d
        HINTSKIP
        s_mov_b64 exec, 1
        L_hp0:
        buffer_load_dwordx4 %s, v254, %s, s12 offen sc1
        buffer_load_dwordx4 %s, v254, %s, s13 offen sc1
        s_waitcnt vmcnt(0)
        v_xor_b32 v4, s10, v%d
        v_xor_b32 v5, s10, v%d
        v_or_b32 v3, v4, v5
        v_cmp_ne_u32 vcc, 0, v3
        s_cmp_eq_u64 vcc, 0
        s_cbranch_scc1 L_hp1
        s_sleep 2
        s_sub_u32 s15, s15, 1
        s_cmp_lg_u32 s15, 0
        s_cbranch_scc1 L_hp0
        L_hp1:
        s_mov_b64 exec, -1
        s_mov_b32 s15, %d
        L_hp:""" % (WS_H, SPIN, vr(HB, 4), sq(rWS), vr(HB + 4, 4), sq(rWS), HB + 2, HB + 6, SPIN))
        for k in range(8):
            e('buffer_load_dwordx4 %s, v254, %s, s%d offen offset:%d sc1' % (vr(HB + 4 * k, 4), sq(rWS), 12 + k // 4, 1024 * (k % 4)))
        e('s_waitcnt vmcnt(0)\nv_mov_b32 v3, 0')
        for k in range(0, 8, 2):
            e('v_xor_b32 v4, s10, v%d\nv_xor_b32 v5, s10, v%d\nv_or3_b32 v3, v3, v4, v5' % (HB + 4 * k + 2, HB + 4 * k + 6))
        e("""v_cmp_ne_u32 vcc, 0, v3
        s_cmp_eq_u64 vcc, 0
        s_cbranch_scc1 L_hok
        s_mov_b64 exec, vcc
        s_sleep 2
        s_sub_u32 s15, s15, 1
        s_cmp_lg_u32 s15, 0
        s_cbranch_scc1 L_hp
        L_hok:
        s_mov_b64 exec, -1""")
        if self.opt.get('ets') == 2: self.ts(6)
        for k in range(4):
            e('v_pk_add_f32 %s, %s, %s' % (vr(HB + 4 * k, 2), vr(HB + 4 * k, 2), vr(HB + 16 + 4 * k, 2)))
        for k in range(4):
            e('v_cvt_pk_bf16_f32 v%d, v%d, v%d' % (4 + k, HB + 4 * k, HB + 4 * k + 1))
        for k in range(4):
            e('v_lshlrev_b32 v%d, 16, v%d\nv_and_b32 v%d, 0xffff0000, v%d' % (HB + 2 * k, 4 + k, HB + 2 * k + 1, 4 + k))
        F = HB + 8
        for r in range(4): e('v_mul_f32 v%d, 0xbfb8aa3b, v%d' % (F + r, HB + r))
        for r in range(4): e('v_exp_f32 v%d, v%d' % (F + r, F + r))
        for r in range(4): e('v_add_f32 v%d, 1.0, v%d' % (F + r, F + r))
        for r in range(4): e('v_rcp_f32 v%d, v%d' % (F + r, F + r))
        for r in range(4): e('v_mul_f32 v%d, v%d, v%d' % (HB + r, HB + r, F + r))
        for k in range(2):
            e('v_cvt_pk_bf16_f32 v%d, v%d, v%d' % (4 + k, HB + 2 * k, HB + 2 * k + 1))
        for k in range(2):
            e('v_lshlrev_b32 v%d, 16, v%d\nv_and_b32 v%d, 0xffff0000, v%d' % (HB + 2 * k, 4 + k, HB + 2 * k + 1, 4 + k))
        for r in range(4): e('v_mul_f32 v%d, v%d, v%d' % (HB + r, HB + r, HB + 4 + r))
        e("""v_cvt_pk_bf16_f32 v24, v%d, v%d
        v_cvt_pk_bf16_f32 v25, v%d, v%d
        v_and_b32 v3, 1, v0
        v_lshrrev_b32 v4, 1, v0
        v_lshlrev_b32 v3, 8, v3
        v_lshl_add_u32 v3, v4, 3, v3
        v_add_u32 v3, %d, v3
        ds_write_b64 v3, v[24:25]
        L_dn2:
        v_and_b32 v5, 1, v1
        v_lshlrev_b32 v6, 8, v5
        v_lshl_add_u32 v6, v2, 4, v6
        v_add_u32 v6, %d, v6
        v_lshlrev_b32 v7, 5, v2
        v_lshl_add_u32 v7, v1, 4, v7
        s_mul_i32 s11, s68, 10240
        s_mul_i32 s12, s5, 1280
        s_add_u32 s11, s11, s12
        s_add_u32 s11, s11, %d""" % (HB, HB + 1, HB + 2, HB + 3, MH, MH, WS_Y))
        YG = 168
        for k in range(10):
            e('v_mov_b32 v%d, s10\nv_mov_b32 v%d, 0' % (YG + 4 * k + 2, YG + 4 * k + 3))
        e('s_waitcnt lgkmcnt(0)\ns_barrier')
        for ks in range(4):
            e('ds_read_b128 %s, v6 offset:%d' % (vr(16 + 4 * ks, 4), 64 * ks))
        for ks in range(4):
            e('s_waitcnt lgkmcnt(%d)' % (3 - ks))
            for j in range(5):
                e('v_mfma_f32_16x16x32_bf16 %s, %s, %s, %s' % (vr(YA + 4 * j, 4), vr(WD + 20 * ks + 4 * j, 4), vr(16 + 4 * ks, 4), '0' if ks == 0 else vr(YA + 4 * j, 4)))
        e('v_cmp_gt_u32 vcc, 2, v1\ns_and_b64 exec, exec, vcc')
        for j in range(5):
            for h in range(2):
                d = YG + 4 * (2 * j + h)
                e('v_mov_b32 v%d, v%d\nv_mov_b32 v%d, v%d' % (d, YA + 4 * j + 2 * h, d + 1, YA + 4 * j + 2 * h + 1))
                e('buffer_store_dwordx4 %s, v7, %s, s11 offen offset:%d sc1' % (vr(d, 4), sq(rWS), 256 * j + 128 * h))
        e('s_mov_b64 exec, -1')
        self.ts(3)

    def build(self):
        self.tail = []
        self.prologue()
        self.loader()
        self.expert()
        self.down()
        self.loader_rest()
        self.expert_rest()
        self.down_rest()
        self.p2wo()
        self.w23()
        self.stats()
        self.gemm1()
        self.attention()
        self.phase2()
        for f in self.tail: f()
        self.e('L_end:\ns_endpgm')
        return self.L

HEAD = open('cdna_kernels/%s.s.ref' % NAME).read().split('; Override launch')[0]

def generate(opt):
    g = G(opt)
    L = g.build()
    L = [x.replace('HINTSKIP', 's_branch L_hp' if opt.get('nohint') else 's_nop 0') for x in L]
    L = [x.replace('IMSLEEP', 's_sleep %d' % opt.get('ims', 1) if opt.get('ims', 1) else 's_nop 0') for x in L]
    L = [x.replace('COLOC', str(opt.get('coloc', 1))) for x in L]
    L = [x.replace('OMODE', str(opt.get('omode', 2))) for x in L]
    L, added = hz.fix(L)
    k = NAME + '_kernel'
    s = HEAD + '; @launch grid=(256,1,1) block=(512,1,1) lds=%d\n' % LDS_BYTES
    s += '.amdgcn_target "amdgcn-amd-amdhsa--gfx950"\n.text\n.globl %s\n.p2align 8\n.type %s,@function\n%s:\n' % (k, k, k)
    s += '\n'.join(L) + '\n'
    s += """.section .rodata,"a"
.p2align 6
.amdhsa_kernel %s
  .amdhsa_next_free_vgpr 256
  .amdhsa_next_free_sgpr 102
  .amdhsa_accum_offset 256
  .amdhsa_group_segment_fixed_size 0
  .amdhsa_kernarg_size 88
  .amdhsa_user_sgpr_count 2
  .amdhsa_user_sgpr_kernarg_segment_ptr 1
  .amdhsa_system_sgpr_workgroup_id_x 1
  .amdhsa_float_denorm_mode_32 3
.end_amdhsa_kernel
""" % k
    import subprocess, re, os, tempfile
    d = tempfile.mkdtemp()
    open(d + '/a.s', 'w').write(s.replace('CODE_LAST', '0x1000'))
    subprocess.run(['clang', '-x', 'assembler', '-target', 'amdgcn-amd-amdhsa', '-mcpu=gfx950', '-c', d + '/a.s', '-o', d + '/a.o'], check=True)
    h = subprocess.run(['llvm-objdump', '-h', d + '/a.o'], capture_output=True, text=True).stdout
    size = int(re.search(r'\.text\s+([0-9a-f]+)', h).group(1), 16)
    generate.size = size
    sy = subprocess.run(['llvm-objdump', '-t', d + '/a.o'], capture_output=True, text=True).stdout
    pc = int(re.search(r'^([0-9a-f]+) .* L_pc$', sy, re.M).group(1), 16)
    return s.replace('CODE_LAST', hex((size - pc - 4) & ~3))

if __name__ == '__main__':
    opt = {}
    out = 'cdna_kernels/%s.s' % NAME
    for a in sys.argv[1:]:
        if a.startswith('-o'):
            out = a[2:]
        else:
            kx, vx = a.split('=')
            opt[kx] = int(vx)
    open(out, 'w').write(generate(opt))
    print('wrote', out, 'code bytes', generate.size)
```

```python
import sys
sys.path.insert(0, 'dev')
import hz

NAME = 'parallel_sum__sliding_local_dilated__moe_arch_mod__prompt'
XB, WB, WOB, GB = 2621440, 2457600, 819200, 1966080
WSB = 0xb00000
WS_EPOCH, WS_SEL, WS_YFLAG, WS_STAT, WS_KEY, WS_FLAG = 0x0, 0x100, 0x9000, 0x1000, 0x5000, 0x2b0000
WS_XCH, WS_O, WS_Y, WS_XCB = 0x10000, 0x300000, 0x600000, 0x800000
WS_TS = 0x7c0000
WS_CHK = 0x580000
WS_PRES = 0x2e0000
WS_H = 0x5d0000
WS_XN = 0xe000
SLOT, XPART, DEPTH = 38912, 14336, 3
P = 496
WOIMG = 55552
TAB = 157952
LDS_BYTES = 163840
SPIN = 200000

sXCD, sSLOT, sWAVE, sI, sLL, sL, sROLE, sTAG = 's3', 's4', 's5', 's6', 's7', 's8', 's9', 's10'
pX, pW, pWO, pWR, pG, pU, pD, pOUT, pDBG, pWS = 16, 18, 20, 24, 26, 28, 30, 32, 34, 36
rX, rW, rWO, rWS, rOUT, rU, rD = 40, 44, 48, 52, 56, 60, 64

def sp(n): return 's[%d:%d]' % (n, n + 1)
def sq(n): return 's[%d:%d]' % (n, n + 3)
def vr(n, k=1): return 'v%d' % n if k == 1 else 'v[%d:%d]' % (n, n + k - 1)

class G:
    def __init__(self, opt):
        self.L = []; self.opt = opt; self.nl = 0; self.nts = 0
    def e(self, s):
        for ln in s.strip('\n').split('\n'):
            ln = ln.strip()
            if not ln: continue
            if ln == 'XNPREP':
                self.xn_prep(); continue
            self.L.append(ln if ln.endswith(':') else '    ' + ln)
    def lab(self, base):
        self.nl += 1
        return 'L_%s_%d' % (base, self.nl)
    def srd(self, r, p, nbytes):
        self.e('s_mov_b32 s%d, s%d\ns_mov_b32 s%d, s%d\ns_mov_b32 s%d, %d\ns_mov_b32 s%d, 0x20000' % (r, p, r + 1, p + 1, r + 2, nbytes, r + 3))
    def ts(self, k):
        if self.opt.get('ts') and not (self.opt.get('ts_off') and k in (4, 5, 6)):
            self.e('%s s[%d:%d]' % ('s_memtime' if self.opt.get('cyc') else 's_memrealtime', 80 + 2 * k, 81 + 2 * k))
    def allreduce16(self, v, op='v_add_f32'):
        for n in (8, 4, 2, 1):
            self.e('%s_dpp v%d, v%d, v%d row_ror:%d row_mask:0xf bank_mask:0xf' % (op, v, v, v, n))
    def tag_load(self):
        self.e('s_load_dword s10, s[36:37], %d' % WS_EPOCH)
    def count_in(self, wave, va=4):
        lab = self.lab('cnt')
        self.e('''s_cmp_lg_u32 s5, %d
        s_cbranch_scc1 %s
        s_lshl_b32 s11, s3, 5
        s_add_u32 s11, s11, s4
        s_lshl_b32 s11, s11, 2
        s_add_u32 s11, s11, %d
        v_mov_b32 v%d, s11
        s_getreg_b32 s11, hwreg(HW_REG_XCC_ID, 0, 4)
        s_lshl_b32 s11, s11, 28
        s_xor_b32 s11, s11, s10
        v_mov_b32 v%d, s11
        s_mov_b64 exec, 1
        buffer_store_dword v%d, v%d, %s, 0 offen sc1
        s_mov_b64 exec, -1
        %s:''' % (wave, lab, WS_PRES, va, va + 1, va + 1, va, sq(rWS), lab))
    def tag_ready(self):
        self.e('s_waitcnt lgkmcnt(0)\ns_add_u32 s10, s10, 1')

    def prologue(self):
        e = self.e
        self.ts(0)
        e("""s_load_dwordx16 s[16:31], s[0:1], 0
        s_load_dwordx4 s[32:35], s[0:1], 64
        s_load_dwordx2 s[36:37], s[0:1], 80
        s_cmp_ge_u32 s2, 256
        s_cbranch_scc1 L_end
        v_lshrrev_b32 v1, 6, v0
        v_and_b32 v0, 63, v0
        s_lshr_b32 s4, s2, 3
        v_readfirstlane_b32 s5, v1
        s_and_b32 s3, s2, 7""")
        e("""s_cmp_lg_u32 s5, 3
        s_cbranch_scc1 L_nopf
        s_getpc_b64 s[12:13]
        L_pc:
        s_and_b32 s14, s4, %d
        s_lshl_b32 s14, s14, 13
        v_lshl_add_u32 v2, v0, 7, s14
        v_min_u32 v2, CODE_LAST, v2
        global_load_dword v255, v2, s[12:13]
        L_nopf:""" % (self.opt.get('pfblocks', 4) - 1))
        if self.opt.get('ts'):
            for k in range(1, 10): e('s_mov_b32 s%d, 0' % (80 + 2 * k))
        e("""s_bfe_u32 s76, s2, 0x10001
        s_and_b32 s77, s2, 1
        s_bfe_u32 s78, s2, 0x10002
        s_mul_i32 s11, s4, 52
        s_lshr_b32 s11, s11, 8
        s_mul_i32 s12, s11, 5
        s_sub_u32 s7, s4, s12
        s_mul_i32 s12, s78, 11
        s_add_u32 s6, s11, s12
        s_mul_i32 s12, s76, 6
        s_add_u32 s6, s6, s12
        s_mul_i32 s12, s77, 5
        s_add_u32 s8, s7, s12
        s_mul_i32 s12, s76, 5
        s_sub_u32 s12, 30, s12
        s_sub_u32 s79, s4, s12
        s_cmp_ge_u32 s4, s12
        s_cbranch_scc1 L_aux
        s_cmp_ge_u32 s5, 4
        s_cbranch_scc1 L_loader
        s_mul_i32 s12, s5, 10
        s_add_u32 s12, s12, s8
        s_cmp_ge_u32 s12, 24
        s_cbranch_scc1 L_w23
        s_mul_i32 s11, s6, 96
        s_lshl_b32 s12, s12, 2
        s_add_u32 s11, s11, s12""")
        e("""L_stats:
        s_setprio 3
        v_lshrrev_b32 v2, 4, v0
        v_add_u32 v2, s11, v2
        v_and_b32 v3, 15, v0
        v_lshlrev_b32 v4, 4, v3
        v_mul_u32_u24 v5, 1280, v2
        v_add_u32 v5, v5, v4
        s_waitcnt lgkmcnt(0)""")
        for j in range(5):
            e('global_load_dwordx4 %s, v4, %s offset:%d' % (vr(40 + 4 * j, 4), sp(pWR), 256 * j))
        self.srd(rX, pX, XB)
        for j in range(5):
            e('buffer_load_dwordx4 %s, v5, %s, 0 offen offset:%d' % (vr(20 + 4 * j, 4), sq(rX), 256 * j))
        e('s_branch L_stats2')

    def att_setup(self):
        self.e("""v_and_b32 v100, 15, v0
        v_lshrrev_b32 v101, 4, v0
        s_lshl_b32 s11, s5, 4
        v_add_u32 v102, s11, v100
        v_mul_u32_u24 v102, %d, v102
        v_lshlrev_b32 v103, 3, v101
        v_mov_b32 v104, 0x08100800
        v_lshrrev_b32 v103, v103, v104
        v_and_b32 v103, 0xff, v103
        v_add_u32 v231, v102, v103
        v_add_u32 v228, %d, v231
        v_lshrrev_b32 v102, 2, v0
        v_add_u32 v102, s11, v102
        v_mul_u32_u24 v102, %d, v102
        v_and_b32 v103, 3, v0
        v_lshl_add_u32 v229, v103, 3, v102
        v_and_b32 v102, 1, v0
        v_lshl_add_u32 v103, v101, 2, v102
        v_lshlrev_b32 v102, 4, v102
        v_mov_b32 v104, 0xffff
        v_lshlrev_b32 v104, v102, v104
        v_cmp_le_u32 vcc, v103, v100
        v_cndmask_b32 v212, 0, v104, vcc
        v_xor_b32 v214, v212, v104
        v_add_u32 v103, 2, v103
        v_cmp_le_u32 vcc, v103, v100
        v_cndmask_b32 v213, 0, v104, vcc
        v_xor_b32 v215, v213, v104""" % (P, 16 * P, P))
        for r in range(16):
            self.e('v_mov_b32 v%d, 0' % (196 + r))

    def att_scalars(self):
        CUR0, CUR1 = 0xf000ff00fff0ffff, 0xc000fc00ffc0fffc
        txt = ("""s_mov_b32 s64, 0xaaaaaaaa
        s_mov_b32 s65, 0xaaaaaaaa
        s_mov_b32 s66, 0x%x
        s_mov_b32 s67, 0x%x
        s_mov_b32 s68, 0x%x
        s_mov_b32 s69, 0x%x
        s_getreg_b32 s74, hwreg(HW_REG_XCC_ID, 0, 4)
        s_lshl_b32 s74, s74, 28
        s_xor_b32 s74, s74, s10
        s_mul_i32 s12, s6, 10
        s_add_u32 s12, s12, s8
        s_mul_i32 s12, s12, 12
        s_add_u32 s12, s12, s5
        s_lshl_b32 s12, s12, 10
        s_add_u32 s12, s12, %d
        s_mov_b32 s13, 0x7f000000
        s_sub_u32 s14, s12, 6144
        s_cmp_ge_u32 s7, 1
        s_cselect_b32 s70, s12, s13
        s_cselect_b32 s72, s14, s13
        s_cselect_b32 s76, s74, 0
        s_add_u32 s14, s12, 6144
        s_add_u32 s12, s12, 12288
        s_cmp_le_u32 s7, 3
        s_cselect_b32 s71, s14, s13
        s_cselect_b32 s73, s12, s13
        s_cselect_b32 s77, s74, 0
        s_lshl_b32 s11, s7, 3
        s_lshl_b64 s[28:29], -1, s11
        s_lshl_b64 s[28:29], s[28:29], s11
        s_mul_i32 s12, s6, 6
        s_add_u32 s12, s12, s5
        s_lshr_b32 s11, s12, 4
        s_cmp_eq_u32 s11, s3
        s_cselect_b32 s31, 1, 0
        s_mul_i32 s14, s12, 10
        s_add_u32 s14, s14, s8
        s_lshl_b32 s25, s14, 11
        s_add_u32 s25, s25, %d
        s_lshl_b32 s26, s14, 8
        s_add_u32 s26, s26, %d
        s_lshl_b32 s30, s14, 7
        s_add_u32 s30, s30, %d
        s_cmpk_ge_u32 s12, 128
        s_cselect_b32 s25, s13, s25
        s_cselect_b32 s26, s13, s26
        s_cselect_b32 s30, s13, s30
        s_mov_b32 s38, 3""" % (CUR0 & 0xffffffff, CUR0 >> 32, CUR1 & 0xffffffff, CUR1 >> 32, WS_XCH, WS_O, WS_CHK, WS_FLAG))
        return [x.strip() for x in txt.split('\n')]


    def p2_setup(self):
        self.e("""s_lshl_b32 s60, s3, 2
        s_and_b32 s11, s4, 3
        s_add_u32 s60, s60, s11
        s_lshl_b32 s60, s60, 2
        s_and_b32 s12, s5, 3
        s_add_u32 s60, s60, s12
        s_lshr_b32 s61, s5, 2
        s_xor_b32 s61, s61, s3
        s_and_b32 s61, s61, 1
        s_lshr_b32 s62, s4, 2
        s_mul_i32 s62, s62, 80
        s_mul_i32 s12, s61, 48
        s_add_u32 s62, s62, s12
        s_mov_b32 s38, 0
        v_and_b32 v100, 15, v0
        v_lshrrev_b32 v101, 4, v0
        s_lshl_b32 s12, s60, 4
        v_add_u32 v102, s12, v100
        v_lshlrev_b32 v235, 3, v102
        v_add_u32 v235, %d, v235
        v_mul_u32_u24 v102, 1280, v102
        v_lshl_add_u32 v102, v101, 3, v102
        s_lshl_b32 s12, s62, 1
        v_add_u32 v234, s12, v102
        v_lshlrev_b32 v254, 4, v0
        v_and_b32 v102, 1, v101
        v_mul_u32_u24 v102, 24, v102
        v_add_u32 v233, v234, v102
        v_lshrrev_b32 v102, 2, v0
        v_and_b32 v103, 3, v0
        v_mul_u32_u24 v102, 160, v102
        v_lshl_add_u32 v102, v103, 3, v102
        s_xor_b32 s12, s61, s11
        s_and_b32 s12, s12, 1
        s_mul_i32 s12, s12, 51200
        s_add_u32 s12, s12, %d
        v_add_u32 v244, s12, v102
        v_add_u32 v103, 10240, v244
        v_cmp_gt_u32 vcc, 16, v0
        v_cndmask_b32 v245, v244, v103, vcc
        v_cmp_gt_u32 vcc, 32, v0
        v_cndmask_b32 v246, v244, v103, vcc
        v_cmp_gt_u32 vcc, 48, v0
        v_cndmask_b32 v247, v244, v103, vcc""" % (WS_STAT, WOIMG))
        self.srd(rOUT, pOUT, XB)
        self.e('''s_mul_i32 s12, s60, 10
        s_mul_i32 s11, s61, 5
        s_add_u32 s12, s12, s11
        s_lshl_b32 s63, s12, 7
        s_add_u32 s63, s63, %d
        s_and_b32 s11, s5, 3
        s_mul_i32 s11, s11, %d
        s_add_u32 s11, s11, 160
        v_mul_u32_u24 v101, %d, v101
        v_add3_u32 v232, v101, v254, s11
        s_lshl_b32 s22, s12, 11
        s_add_u32 s22, s22, %d
        s_add_u32 s23, s22, 4096
        s_add_u32 s24, s22, 8192
        s_lshl_b32 s27, s12, 8
        s_add_u32 s27, s27, %d''' % (WS_FLAG, 20 * P, P - 256, WS_O, WS_CHK))
        self.e('''s_cmp_ge_u32 s60, 36
        s_cselect_b32 s11, 1, 0
        s_cmpk_ge_u32 s60, 66
        s_addc_u32 s11, s11, 0
        s_cmpk_ge_u32 s60, 102
        s_addc_u32 s11, s11, 0
        s_lshl_b32 s11, s11, 1
        s_add_u32 s11, s11, s61
        s_cmp_eq_u32 s11, s3
        s_cselect_b32 s100, %d, 0''' % self.opt.get('lf', 1))

    def p2_loads(self, ret=False):
        ops = ['buffer_load_dwordx2 v[236:237], v235, %s, 0 offen sc1' % sq(rWS)]
        ops += ['buffer_load_dwordx2 %s, v234, %s, 0 offen offset:%d' % (vr(238 + 2 * k, 2), sq(rX), 32 * k) for k in range(3)]
        if ret: return ops
        for x in ops: self.e(x)

    def w23(self):
        e = self.e
        e('L_w23:\ns_waitcnt lgkmcnt(0)')
        self.tag_load()
        self.srd(rX, pX, XB); self.srd(rWS, pWS, WSB)
        self.att_setup(); self.p2_setup()
        self.tag_ready()
        e('s_branch L_gemm')

    def stats(self):
        e = self.e
        X, Wr, F = 20, 40, 60
        e('L_stats2:')
        self.tag_load()
        self.srd(rWS, pWS, WSB)
        self.att_setup(); self.p2_setup()
        e('v_mov_b32 v9, 0x3f803f80\nv_mov_b32 v10, 0\nv_mov_b32 v11, 0\nv_mov_b32 v12, 0\nv_mov_b32 v13, 0')
        e('s_waitcnt vmcnt(0)')
        if self.opt.get('sts') == 1: self.ts(2)
        for d in range(20):
            e('v_dot2c_f32_bf16 v%d, v%d, v9' % (10 + (d & 3), X + d))
        for d in range(10):
            e('v_lshlrev_b32 v%d, 16, v%d\nv_and_b32 v%d, 0xffff0000, v%d' % (F + 2 * d, X + d, F + 2 * d + 1, X + d))
        e('v_add_f32 v10, v10, v11\nv_add_f32 v12, v12, v13\nv_add_f32 v6, v10, v12')
        for k, n in enumerate((8, 4, 2, 1)):
            for d in (10 + 2 * k, 11 + 2 * k):
                e('v_lshlrev_b32 v%d, 16, v%d\nv_and_b32 v%d, 0xffff0000, v%d' % (F + 2 * d, X + d, F + 2 * d + 1, X + d))
            e('v_add_f32_dpp v6, v6, v6 row_ror:%d row_mask:0xf bank_mask:0xf' % n)
        for d in (18, 19):
            e('v_lshlrev_b32 v%d, 16, v%d\nv_and_b32 v%d, 0xffff0000, v%d' % (F + 2 * d, X + d, F + 2 * d + 1, X + d))
        e("""v_mul_f32 v7, 0x3acccccd, v6
        v_cvt_pk_bf16_f32 v8, v7, v7
        v_lshlrev_b32 v6, 16, v8
        v_mov_b32 v10, 0
        v_mov_b32 v11, 0
        v_mov_b32 v12, 0
        v_mov_b32 v13, 0""")
        for r in range(40):
            e('v_sub_f32 v%d, v%d, v6' % (F + r, F + r))
        for r in range(40):
            e('v_fmac_f32 v%d, v%d, v%d' % (10 + (r & 3), F + r, F + r))
        e('v_sub_f32 v7, v7, v6\nv_add_f32 v10, v10, v11\nv_add_f32 v12, v12, v13\nv_add_f32 v14, v10, v12')
        e('v_mov_b32 v10, 0\nv_mov_b32 v11, 0')
        for k, n in enumerate((8, 4, 2, 1)):
            for d in range(5 * k, 5 * k + 5):
                e('v_cvt_pk_bf16_f32 v%d, v%d, v%d' % (X + d, F + 2 * d, F + 2 * d + 1))
            e('v_add_f32_dpp v14, v14, v14 row_ror:%d row_mask:0xf bank_mask:0xf' % n)
        e('s_waitcnt vmcnt(0)')
        for d in range(20):
            e('v_dot2c_f32_bf16 v%d, v%d, v%d' % (10 + (d & 1), X + d, Wr + d))
        e("""v_mul_f32 v14, 0x3acccccd, v14
        v_fma_f32 v14, -v7, v7, v14
        v_max_f32 v14, 0, v14
        v_cvt_pk_bf16_f32 v14, v14, v14
        v_add_f32 v10, v10, v11
        v_and_b32 v14, 0xffff0000, v14
        v_add_f32 v14, 0x3727c5ac, v14
        v_add_f32_dpp v10, v10, v10 row_ror:8 row_mask:0xf bank_mask:0xf
        v_cvt_pk_bf16_f32 v14, v14, v14
        v_and_b32 v14, 0xffff0000, v14
        v_add_f32_dpp v10, v10, v10 row_ror:4 row_mask:0xf bank_mask:0xf
        v_sqrt_f32 v14, v14
        v_and_b32 v8, 0xffff, v8
        v_add_f32_dpp v10, v10, v10 row_ror:2 row_mask:0xf bank_mask:0xf
        v_cvt_pk_bf16_f32 v14, v14, v14
        v_and_b32 v14, 0xffff0000, v14
        v_add_f32_dpp v10, v10, v10 row_ror:1 row_mask:0xf bank_mask:0xf
        v_rcp_f32 v12, v14
        v_or_b32 v16, v8, v14
        v_mul_f32 v10, v10, v12""")
        e("""v_cvt_pk_bf16_f32 v10, v10, v10
        v_bfe_i32 v11, v10, 15, 1
        v_or_b32 v11, 0x8000, v11
        v_xor_b32 v10, v10, v11
        v_lshlrev_b32 v10, 16, v10
        v_sub_u32 v11, 2047, v2
        v_or_b32 v18, v10, v11
        v_cmp_eq_u32 vcc, 0, v3
        v_cndmask_b32 v16, v18, v16, vcc
        v_lshlrev_b32 v5, 14, v3
        v_lshl_add_u32 v5, v2, 3, v5
        s_movk_i32 s14, 2048
        v_cmp_gt_u32 vcc, 2, v3
        v_cmp_gt_u32 s[12:13], s14, v2
        s_and_b64 s[70:71], vcc, s[12:13]""")
        if self.opt.get('sts') == 2: self.ts(2)
        self.tag_ready()
        if self.opt.get('sts') == 3: self.ts(2)
        e("""v_mov_b32 v17, s10
        s_mov_b32 s11, %d
        s_mov_b64 exec, s[70:71]
        s_cbranch_execz L_stend
        buffer_store_dwordx2 v[16:17], v5, %s, s11 offen sc1
        L_stend:
        s_mov_b64 exec, -1""" % (WS_STAT, sq(rWS)))
        assert WS_KEY - WS_STAT == 1 << 14

    def wo_setup(self, vb):
        e = self.e
        self.srd(rWO, pWO, WOB)
        e('''s_lshr_b32 s11, s4, 2
        s_mul_i32 s11, s11, 160
        s_and_b32 s70, s4, 1
        s_mul_i32 s70, s70, 10''')
        for j in range(5):
            e('''v_add_u32 v2, %d, v0
            v_mul_u32_u24 v3, 6554, v2
            v_lshrrev_b32 v3, 16, v3
            v_mul_u32_u24 v4, 10, v3
            v_sub_u32 v4, v2, v4
            v_mul_u32_u24 v3, 1280, v3
            v_lshl_add_u32 v3, v4, 4, v3
            v_add_u32 v%d, s11, v3''' % (64 * j, vb + j))
    def wo_block(self, vb, spos):
        e = self.e
        e('''s_add_u32 s12, %s, s70
        s_cmp_ge_u32 s12, 20
        s_cselect_b32 s13, 20, 0
        s_sub_u32 s12, s12, s13
        s_mul_i32 s12, s12, 40960
        s_mul_i32 s13, %s, 5120
        s_add_u32 s13, s13, %d''' % (spos, spos, WOIMG))
        for j in range(5):
            e('s_add_u32 m0, s13, %d' % (1024 * j))
            e('buffer_load_dwordx4 v%d, %s, s12 offen lds' % (vb + j, sq(rWO)))

    def loader(self):
        e = self.e
        e('L_loader:')
        RA, RB, RM, RS = (self.opt.get(k, d) for k, d in (('ra', 1), ('rb', 1), ('rm', 4), ('rs', 3)))
        assert all((x * (65536 // RM + 1)) >> 16 == x // RM for x in range(200)) and (RM - 1) * RS < 10
        e('''s_sub_u32 s14, s5, 4
        s_and_b32 s15, s14, 1
        v_lshrrev_b32 v2, 3, v0
        v_and_b32 v3, 7, v0
        v_lshrrev_b32 v4, 4, v0
        s_lshl_b32 s11, s15, 2
        v_add_u32 v5, s11, v4
        v_xor_b32 v5, v3, v5
        s_mul_i32 s11, s6, 96
        s_lshl_b32 s12, s14, 3
        s_add_u32 s11, s11, s12
        s_sub_u32 s11, s11, 16
        s_mul_i32 s11, s11, 1280
        v_mul_u32_u24 v6, 1280, v2
        v_lshl_add_u32 v6, v5, 4, v6
        v_add_u32 v10, s11, v6
        v_add_u32 v11, 40960, v10
        v_add_u32 v12, 0x14000, v10
        v_add_u32 v13, 0x1e000, v10
        v_and_b32 v4, 1, v4
        v_lshl_or_b32 v4, s15, 1, v4
        v_lshlrev_b32 v4, 1, v4
        v_xor_b32 v4, v3, v4
        v_add_u32 v2, s12, v2
        v_mul_u32_u24 v2, 3840, v2
        v_lshl_add_u32 v2, v4, 4, v2
        s_lshl_b32 s11, s8, 7
        v_add_u32 v14, s11, v2
        s_mul_i32 s68, s7, %d
        s_mul_i32 s11, s6, %d
        s_add_u32 s68, s68, s11
        s_mul_i32 s11, s68, %d
        s_lshr_b32 s11, s11, 16
        s_mul_i32 s11, s11, %d
        s_sub_u32 s68, s68, s11
        s_mul_i32 s68, s68, %d
        s_lshl_b32 s69, s14, 10
        s_cmp_eq_u32 s14, 0
        s_cselect_b32 s72, 0xffff0000, -1
        s_mov_b32 s73, -1
        s_waitcnt lgkmcnt(0)''' % (RA, RB, 65536 // RM + 1, RM, RS))
        self.srd(rX, pX, XB); self.srd(rW, pW, WB)
        self.ts(1)
        def issue(c):
            base = ((c + 2) % DEPTH) * SLOT
            sk = self.lab('xs')
            e('s_lshl_b32 s11, s68, 7\ns_mul_i32 s12, s68, 245760')
            e('s_add_u32 m0, s69, %d\ns_mov_b64 exec, s[72:73]' % base)
            e('buffer_load_dwordx4 v10, %s, s11 offen lds\ns_mov_b64 exec, -1' % sq(rX))
            for a in (1, 2):
                e('s_add_u32 m0, s69, %d' % (base + a * 4096))
                e('buffer_load_dwordx4 v%d, %s, s11 offen lds' % (10 + a, sq(rX)))
            e('s_cmp_ge_u32 s14, 2\ns_cbranch_scc1 %s' % sk)
            e('s_add_u32 m0, s69, %d' % (base + 3 * 4096))
            e('buffer_load_dwordx4 v13, %s, s11 offen lds' % sq(rX))
            e('%s:' % sk)
            for y in range(3):
                for hb in range(2):
                    e('s_add_u32 m0, s69, %d' % (base + XPART + y * 8192 + hb * 4096))
                    if y or hb:
                        e('s_add_u32 s13, s12, %d' % (y * 1280 + hb * 122880))
                        e('buffer_load_dwordx4 v14, %s, s13 offen lds' % sq(rW))
                    else:
                        e('buffer_load_dwordx4 v14, %s, s12 offen lds' % sq(rW))
            e('s_add_u32 s68, s68, 1\ns_cmp_eq_u32 s68, 10\ns_cselect_b32 s68, 0, s68')
        issue(0)
        e('s_branch L_loader2')
        self.loader_rest = lambda: self.loader2(issue)

    def loader2(self, issue):
        e = self.e
        e('L_loader2:')
        self.tag_load()
        self.srd(rWS, pWS, WSB)
        self.wo_setup(20)
        e('''s_mul_i32 s11, s6, 96
        s_lshl_b32 s12, s14, 6
        s_add_u32 s11, s11, s12
        s_sub_u32 s11, s11, 16
        v_add_u32 v26, s11, v0
        v_lshlrev_b32 v27, 3, v26
        v_add_u32 v27, %d, v27
        v_add_u32 v28, s12, v0''' % WS_STAT)
        self.att_setup(); self.p2_setup()
        e('''s_mul_i32 s74, s6, 10
        s_add_u32 s74, s74, s8
        s_lshl_b32 s74, s74, 2
        s_add_u32 s74, s74, s14
        s_mul_i32 s74, s74, 3072
        s_add_u32 s74, s74, %d
        v_mov_b32 v36, 0
        v_mov_b32 v37, 0
        v_mov_b32 v39, 0''' % WS_XCH)
        for c in range(1, DEPTH - 1):
            issue(c)
        self.tag_ready()
        e('v_xor_b32 v38, s10, 1')
        assert WOIMG + 12 * 5120 >= 3 * SLOT and WOIMG + 4 * 5120 <= 2 * SLOT
        WOA, WOB_, STB = self.opt.get('woa', 7), self.opt.get('wob', 8), self.opt.get('stb', 5)
        extra = {}
        for c in range(10):
            n = (9 if c < 9 else 0) + extra.get(c - 2, 0) + extra.get(c - 1, 0)
            if c == STB + 2:
                n -= 2
            e('s_waitcnt vmcnt(%d)' % n)
            if self.opt.get('lts') and c in (0, 1, 2): self.ts(4 + c)
            e('s_barrier')
            if c == 0: self.ts(2)
            if c + DEPTH - 1 < 10 and not self.opt.get('noload'):
                issue(c + DEPTH - 1)
            if c == 9: self.zero_fill()
            if c == self.opt.get('clm', 3):
                for k in range(3):
                    e('buffer_store_dwordx4 v[36:39], v254, %s, s74 offen offset:%d' % (sq(rWS), 1024 * k))
                extra[c] = extra.get(c, 0) + 3
                for rep in range(self.opt.get('dirty', 0)):
                    e('s_add_u32 s11, s74, %d' % (WS_XCB - WS_XCH))
                    for k in range(3):
                        e('buffer_store_dwordx4 v[36:39], v254, %s, s11 offen offset:%d%s' % (sq(rWS), 1024 * k, ' sc1' if self.opt.get('dsc') else ''))
                    extra[c] += 3
            if c == self.opt.get('pre', 99):
                for k in range(3):
                    e('''s_mul_i32 s11, s14, 3
                    s_add_u32 s11, s11, %d
                    s_lshr_b32 s12, s11, 1
                    s_and_b32 s11, s11, 1
                    s_mul_i32 s13, s6, 6
                    s_add_u32 s12, s12, s13
                    s_min_u32 s12, s12, 127
                    s_mul_i32 s12, s12, 10
                    s_add_u32 s12, s12, s8
                    s_lshl_b32 s12, s12, 1
                    s_add_u32 s12, s12, s11
                    s_lshl_b32 s12, s12, 10
                    s_add_u32 s12, s12, %d
                    buffer_store_dwordx4 v[36:39], v254, %s, s12 offen sc1''' % (k, WS_O, sq(rWS)))
                e('''v_lshrrev_b32 v3, 4, v28
                s_mul_i32 s13, s6, 6
                v_add_u32 v4, s13, v3
                v_mul_u32_u24 v4, 2560, v4
                v_and_b32 v5, 15, v28
                v_lshl_add_u32 v4, v5, 4, v4
                v_mov_b32 v5, 0x7f000000
                v_cmp_gt_u32 vcc, 6, v3
                v_cndmask_b32 v4, v5, v4, vcc
                v_cmp_gt_u32 vcc, 0x50000, v4
                v_cndmask_b32 v4, v5, v4, vcc
                s_lshl_b32 s12, s8, 8
                s_add_u32 s12, s12, %d
                buffer_store_dwordx4 v[36:39], v4, %s, s12 offen sc1''' % (WS_CHK, sq(rWS)))
                extra[c] = extra.get(c, 0) + 4
            if c == STB:
                e('''v_and_b32 v34, 31, v0
                v_lshlrev_b32 v34, 2, v34
                s_lshl_b32 s11, s3, 7
                s_add_u32 s11, s11, %d
                buffer_load_dword v35, v34, %s, s11 offen sc1''' % (WS_PRES, sq(rWS)))
                e('buffer_load_dwordx2 v[30:31], v27, %s, 0 offen sc1' % sq(rWS)); extra[c] = extra.get(c, 0) + 2
            if self.opt.get('nowo'):
                pass
            elif c == WOA:
                e('s_and_b32 s71, s4, 2\ns_lshl_b32 s71, s71, 1\ns_add_u32 s71, s71, s14\ns_add_u32 s71, s71, 12'); self.wo_block(20, 's71'); extra[c] = extra.get(c, 0) + 5
            elif c == WOB_:
                e('s_and_b32 s71, s4, 2\ns_lshl_b32 s71, s71, 1\ns_sub_u32 s71, s14, s71\ns_add_u32 s71, s71, 16'); self.wo_block(20, 's71'); extra[c] = extra.get(c, 0) + 5
            if c == STB + 2:
                e('''s_mov_b32 s15, %d
                s_movk_i32 s75, 2048
                v_cmp_gt_u32 s[76:77], s75, v26
                L_tchk:
                v_cmp_ne_u32 vcc, s10, v31
                s_and_b64 vcc, vcc, s[76:77]
                s_cmp_eq_u64 vcc, 0
                s_cbranch_scc1 L_tok
                s_sub_u32 s15, s15, 1
                s_cmp_eq_u32 s15, 0
                s_cbranch_scc1 L_tok
                s_sleep 4
                buffer_load_dwordx2 v[30:31], v27, %s, 0 offen sc1
                s_waitcnt vmcnt(0)
                s_branch L_tchk
                L_tok:
                v_mov_b32 v32, 0x3f800000
                v_cndmask_b32 v30, v32, v30, s[76:77]
                v_and_b32 v32, 0xffff0000, v30
                v_rcp_f32 v32, v32
                v_lshlrev_b32 v30, 16, v30
                v_mul_f32 v33, -v30, v32
                v_lshlrev_b32 v29, 3, v28
                v_add_u32 v29, %d, v29
                v_cmp_le_u32 vcc, 112, v28
                v_cndmask_b32 v32, v32, 0, vcc
                v_cndmask_b32 v33, v33, 0, vcc
                s_getreg_b32 s11, hwreg(HW_REG_XCC_ID, 0, 4)
                s_lshl_b32 s11, s11, 28
                s_xor_b32 s11, s11, s10
                v_cmp_ne_u32 vcc, s11, v35
                s_cmp_eq_u64 vcc, 0
                s_cselect_b32 s9, COLOC, 0
                v_mov_b32 v30, s9
                v_cmp_eq_u32 vcc, 114, v28
                v_cndmask_b32 v32, v32, v30, vcc
                v_cmp_ge_u32 vcc, 114, v28
                s_and_b64 exec, exec, vcc
                ds_write_b64 v29, v[32:33]
                s_mov_b64 exec, -1
                s_waitcnt lgkmcnt(0)''' % (SPIN, sq(rWS), TAB))
        self.ts(3)
        e('s_cmp_ge_u32 s14, 2\ns_cbranch_scc1 L_w67')
        self.p2_loads()
        for x in self.att_scalars(): e(x)
        e('s_branch L_img2\nL_w67:')
        e('s_mov_b32 s38, 2\ns_cmp_eq_u32 s14, 3\ns_cbranch_scc1 L_w7')
        if not self.opt.get('nowo'):
            e('s_mov_b32 s71, 0\nL_w6:')
            self.wo_block(20, 's71')
            if self.opt.get('thr', 63) < 63: e('s_waitcnt vmcnt(%d)' % self.opt.get('thr', 63))
            e('s_add_u32 s71, s71, 1\ns_cmp_lt_u32 s71, 4\ns_cbranch_scc1 L_w6')
        e('''s_branch L_p2wo
        L_w7:
        s_mov_b32 s15, %d
        L_w7a:
        ds_read_b32 v3, v8 offset:8
        s_waitcnt lgkmcnt(0)
        v_readfirstlane_b32 s11, v3
        s_cmp_ge_u32 s11, 4
        s_cbranch_scc1 L_w7b
        s_sleep 1
        s_sub_u32 s15, s15, 1
        s_cmp_lg_u32 s15, 0
        s_cbranch_scc1 L_w7a
        L_w7b:''' % (SPIN * 4))
        if not self.opt.get('nowo'):
            e('s_mov_b32 s71, 4\nL_w7c:')
            self.wo_block(20, 's71')
            if self.opt.get('thr', 63) < 63: e('s_waitcnt vmcnt(%d)' % self.opt.get('thr', 63))
            e('s_add_u32 s71, s71, 1\ns_cmp_lt_u32 s71, 12\ns_cbranch_scc1 L_w7c')
        e('s_branch L_p2wo')

    def zero_fill(self):
        e = self.e
        e('''v_lshrrev_b32 v3, 1, v28
        v_and_b32 v4, 1, v28
        v_mul_u32_u24 v3, %d, v3
        v_mul_u32_u24 v4, 160, v4
        v_add_u32 v3, v3, v4
        v_mov_b32 v4, 0
        v_mov_b32 v5, 0
        v_cmp_gt_u32 vcc, 224, v28
        s_and_b64 exec, exec, vcc''' % P)
        for z in range(4):
            e('''s_cmp_gt_u32 s7, %d
            s_cselect_b32 s11, %d, %d
            v_add_u32 v6, s11, v3
            ds_write_b64 v6, v[4:5]''' % (z, 8 * z, 8 * (16 + z)))
        e('''s_mov_b64 exec, -1
        v_mov_b32 v8, %d
        v_mov_b32 v3, 1
        s_waitcnt lgkmcnt(0)
        s_mov_b64 exec, 1
        ds_add_u32 v8, v3 offset:12
        s_mov_b64 exec, -1''' % (TAB + 896))

    def gemm1(self):
        e = self.e
        ACC, BA, BB, ST = 16, 100, 140, 180
        def acc(y, T): return ACC + (y * 7 + T) * 4
        e('''L_gemm:
        s_setprio 3
        s_cmp_lg_u32 s5, 3
        s_cbranch_scc1 L_noones
        v_mov_b32 v8, 0x3f803f80
        v_mov_b32 v9, v8
        v_mov_b32 v10, v8
        v_mov_b32 v11, v8
        v_and_b32 v2, 15, v0
        v_lshlrev_b32 v2, 4, v2
        v_lshrrev_b32 v3, 4, v0
        v_min_u32 v3, %d, v3
        v_mul_u32_u24 v3, %d, v3
        v_add_u32 v2, v2, v3
        ds_write_b128 v2, v[8:11]
        s_waitcnt lgkmcnt(0)
        L_noones:''' % (DEPTH - 1, SLOT))
        e('''v_and_b32 v1, 15, v0
        v_lshrrev_b32 v2, 4, v0
        v_lshrrev_b32 v3, 1, v1
        v_xor_b32 v3, v2, v3
        v_lshlrev_b32 v3, 4, v3
        v_lshl_add_u32 v8, v1, 7, v3
        v_xor_b32 v9, 64, v8
        v_lshrrev_b32 v3, 2, v1
        v_and_b32 v14, 3, v1
        v_lshrrev_b32 v15, 1, v3
        v_and_b32 v10, 1, v2
        v_lshl_or_b32 v15, v10, 1, v15
        v_xor_b32 v15, s5, v15
        v_lshl_add_u32 v3, v2, 3, v3
        v_lshlrev_b32 v3, 7, v3
        v_lshl_add_u32 v3, v15, 5, v3
        v_lshl_add_u32 v3, v14, 3, v3
        v_add_u32 v10, %d, v3
        v_add_u32 v11, 77824, v8
        v_add_u32 v12, 77824, v9
        v_add_u32 v13, 77824, v10
        v_lshlrev_b32 v14, 3, v1
        v_add_u32 v14, %d, v14
        s_lshl_b32 s11, s5, 2
        s_add_u32 s11, s11, s7
        v_add_u32 v3, s11, v2
        v_mul_u32_u24 v15, %d, v1
        v_lshl_add_u32 v15, v3, 3, v15
        v_mov_b32 v6, %d
        v_mov_b32 v7, 1
        s_mov_b32 s78, 1
        s_mov_b32 s79, 0''' % (XPART, TAB, P, TAB + 896))
        assert 2 * SLOT == 77824
        def reads(buf, t):
            ops = []
            for y in range(3):
                for hh in range(2):
                    ops.append('ds_read_b64_tr_b16 %s, v13 offset:%d' % (vr(buf + 28 + 4 * y + 2 * hh, 2), y * 8192 + (32 * t + 4 * hh) * 128))
            for T in range(7):
                ops.append('ds_read_b128 %s, v%d offset:%d' % (vr(buf + 4 * T, 4), 11 + t, T * 2048))
            return [] if self.opt.get('noread') else ops
        def mf(buf, y, T, first=False):
            return 'v_mfma_f32_16x16x32_bf16 %s, %s, %s, %s' % (vr(acc(y, T), 4), vr(buf + 28 + 4 * y, 4), vr(buf + 4 * T, 4), '0' if first else vr(acc(y, T), 4))
        def half(rbuf, t, mbuf, tail=(), first=False):
            R = reads(rbuf, t) + list(tail); M = [mf(mbuf, y, T, first) for T in range(7) for y in range(3)]
            X = []
            if self.opt.get('csv'):
                M[0] = None
                if self.opt['csv'] == 1:
                    for r in range(4):
                        X += ['v_lshlrev_b32 v194, 16, v%d' % (mbuf + 28 + r), 'v_and_b32 v195, 0xffff0000, v%d' % (mbuf + 28 + r), 'v_add_f32 v16, v16, v194', 'v_add_f32 v17, v17, v195']
            for k in range(21):
                if k == 20: e('s_waitcnt lgkmcnt(0)')
                if not self.opt.get('nomfma') and M[k]: e(M[k])
                if k < len(R): e(R[k])
                if X and k >= 3: e(X.pop(0))
            assert len(R) <= 20
        nxt = ['v_add_u32 v11, s79, v8\nv_add_u32 v12, s79, v9', 'v_add_u32 v13, s79, v10\ns_add_u32 s79, s79, %d' % SLOT,
               's_cmp_eq_u32 s79, %d\ns_cselect_b32 s79, 0, s79' % (SLOT * DEPTH)]
        self.ts(1)
        e('s_barrier')
        for x in reads(BA, 0): e(x)
        self.count_in(3)
        if self.opt.get('pre2'):
            e('v_mov_b32 v216, 0\nv_mov_b32 v217, 0\nv_xor_b32 v218, s10, 1\nv_mov_b32 v219, 0')
            for k in range(3):
                e('''s_mul_i32 s11, s5, 3
                s_add_u32 s11, s11, %d
                s_lshr_b32 s12, s11, 1
                s_and_b32 s11, s11, 1
                s_mul_i32 s13, s6, 6
                s_add_u32 s12, s12, s13
                s_min_u32 s12, s12, 127
                s_mul_i32 s12, s12, 10
                s_add_u32 s12, s12, s8
                s_lshl_b32 s12, s12, 1
                s_add_u32 s12, s12, s11
                s_lshl_b32 s12, s12, 10
                s_add_u32 s12, s12, %d
                buffer_store_dwordx4 v[216:219], v254, %s, s12 offen sc1''' % (k, WS_O, sq(rWS)))
        e('s_waitcnt lgkmcnt(0)')
        half(BB, 1, BA, nxt, True)
        e('L_kloop:\ns_barrier')
        half(BA, 0, BB, ['s_add_u32 s78, s78, 1\ns_cmp_ge_u32 s78, 10'])
        e('s_cbranch_scc1 L_ktail')
        half(BB, 1, BA, nxt)
        e('s_branch L_kloop\nL_ktail:')
        CS = (BA + 28, BA + 32, BB + 28)
        def fixt(y, T, pk):
            a = acc(y, T); st = vr(ST + 2 * T, 2); ops = []
            for h in range(2):
                ops.append('v_pk_mul_f32 %s, %s, %s op_sel_hi:[1,0]' % (vr(a + 2 * h, 2), vr(a + 2 * h, 2), st))
            if pk:
                for h in range(2):
                    ops.append('v_pk_fma_f32 %s, %s, %s, %s op_sel:[0,1,0] op_sel_hi:[1,1,1]' % (vr(a + 2 * h, 2), vr(CS[y] + 2 * h, 2), st, vr(a + 2 * h, 2)))
            else:
                for r in range(4):
                    ops.append('v_fmac_f32 v%d, v%d, v%d' % (a + r, CS[y] + r, ST + 2 * T + 1))
            ops.append('v_cvt_pk_bf16_f32 v%d, v%d, v%d' % (a, a, a + 1))
            ops.append('v_cvt_pk_bf16_f32 v%d, v%d, v%d' % (a + 1, a + 2, a + 3))
            ops.append('ds_write_b64 v15, %s offset:%d' % (vr(a, 2), T * 16 * P + y * 160))
            return ops
        def csum(y):
            return ['v_mov_b32_dpp v%d, v%d row_newbcast:0 row_mask:0xf bank_mask:0xf' % (CS[y] + r, acc(y, 0) + r) for r in range(4)]
        self.fixv = lambda: csum(2) + [x for T in range(7) for x in fixt(2, T, True)]
        R = reads(BB, 1)
        R = R[:2] + R[6:] + R[2:6] + ['ds_read_b64 %s, v14 offset:%d' % (vr(ST + 2 * T, 2), 128 * T) for T in range(7)]
        M = [mf(bf, y, T) for bf, y in ((BA, 0), (BA, 1), (BB, 0), (BB, 1), (BA, 2), (BB, 2)) for T in range(7)]
        units = [('c', 0, 0)] + [('t', 0, T) for T in range(1, 7)] + [('c', 1, 0)] + [('t', 1, T) for T in range(7)]
        SC = self.att_scalars(); assert len(SC) <= 56
        PL = self.p2_loads(True)
        q = []; FILL = self.opt.get('fill', 3)
        for k in range(42):
            if k == 14: e('s_waitcnt lgkmcnt(11)')
            if k == 17:
                e('s_waitcnt lgkmcnt(0)\ns_mov_b64 exec, 1\nds_add_u32 v6, v7 offset:8\ns_mov_b64 exec, -1')
            e(M[k])
            if k < 10:
                e(R[2 * k]); e(R[2 * k + 1])
            if 10 <= k < 14: e(PL[k - 10])
            if k < 14:
                for _ in range(4):
                    if SC: e(SC.pop(0))
            if k >= 18:
                for _ in range(FILL):
                    if not q and units:
                        u = units.pop(0)
                        q = csum(u[1]) if u[0] == 'c' else fixt(u[1], u[2], False)
                    if q: e(q.pop(0))
        self.ts(3)
        for x in q: e(x)
        first = True
        for u in units:
            for x in (csum(u[1]) if u[0] == 'c' else fixt(u[1], u[2], not first)): e(x)
            first = False

    def attention(self):
        e = self.e
        e('L_img:')
        e('''s_mov_b64 exec, 1
        ds_add_u32 v6, v7 offset:12
        s_mov_b64 exec, -1
        L_img2:
        v_mov_b32 v8, %d
        s_mov_b32 s15, %d
        L_imw:
        ds_read_b32 v3, v8 offset:12
        s_waitcnt lgkmcnt(0)
        v_readfirstlane_b32 s11, v3
        s_cmp_ge_u32 s11, 8
        s_cbranch_scc1 L_imok
        IMSLEEP
        s_sub_u32 s15, s15, 1
        s_cmp_lg_u32 s15, 0
        s_cbranch_scc1 L_imw
        L_imok:
        s_setprio 3''' % (TAB + 896, SPIN * 8))
        if self.opt.get('lts'): self.opt['ts_off'] = 1
        self.ts(4)
        if self.opt.get('dump_img'):
            e("""s_mul_i32 s11, s6, 10
            s_add_u32 s11, s11, s8
            s_mul_i32 s11, s11, 0x10000
            s_add_u32 s11, s11, 0x1000000
            s_lshl_b32 s12, s5, 10
            v_lshlrev_b32 v2, 4, v0
            v_add_u32 v2, s12, v2
            s_mov_b32 s54, 0x10000000""")
            for j in range(10):
                e("""ds_read_b128 v[100:103], v2
                s_waitcnt lgkmcnt(0)
                buffer_store_dwordx4 v[100:103], v2, %s, s11 offen
                v_add_u32 v2, 6144, v2
                s_waitcnt vmcnt(0)""" % sq(rWS))
        Qr, Kr, Vr, Sr, Er, Xr, Pr, Rr = 196, 16, 48, 100, 132, 148, 72, 88
        def qrd(sgs):
            e('s_mov_b32 exec_hi, 0')
            for sg in sgs: e('ds_read_b64 %s, v228 offset:%d' % (vr(Qr + 4 * sg, 2), 40 * sg))
            e('s_mov_b32 exec_hi, 0xffff')
            for sg in sgs: e('ds_read_b64 %s, v228 offset:%d' % (vr(Qr + 4 * sg + 2, 2), 40 * sg + 16))
            e('s_mov_b64 exec, -1')
        def krd(sg):
            for h, av in enumerate((228, 231)):
                for u in range(2):
                    e('ds_read_b64 %s, v%d offset:%d' % (vr(Kr + 8 * sg + 4 * h + 2 * u, 2), av, 160 + 40 * sg + 16 * u))
        qrd((0, 3)); krd(0); krd(3)
        e('v_mov_b32 v%d, s74\nv_mov_b32 v%d, s74' % (Er + 2, Er + 14))
        def smf(sg):
            for h in range(2):
                e('v_mfma_f32_16x16x32_bf16 %s, %s, %s, 0' % (vr(Sr + 8 * sg + 4 * h, 4), vr(Kr + 8 * sg + 4 * h, 4), vr(Qr + 4 * sg, 4)))
        def sel(sg):
            c = Sr + 8 * sg; p = c + 4
            e('v_cndmask_b32 v%d, v%d, v%d, s[64:65]' % (c, c, c + 1)); e('v_cndmask_b32 v%d, v%d, v%d, s[64:65]' % (c + 2, c + 2, c + 3))
            e('v_cndmask_b32 v%d, v%d, v%d, s[64:65]' % (p, p, p + 1)); e('v_cndmask_b32 v%d, v%d, v%d, s[64:65]' % (p + 2, p + 2, p + 3))
            e('v_cndmask_b32 v%d, v%d, v%d, s[66:67]' % (Er + 4 * sg, p, c)); e('v_cndmask_b32 v%d, v%d, v%d, s[68:69]' % (Er + 4 * sg + 1, p + 2, c + 2))
        vrd = []
        for j in range(5):
            vrd.append('ds_read_b64_tr_b16 %s, v229 offset:%d' % (vr(Vr + 4 * j, 2), 16 * P + 320 + 32 * j))
            vrd.append('ds_read_b64_tr_b16 %s, v229 offset:%d' % (vr(Vr + 4 * j + 2, 2), 320 + 32 * j))
        e('s_waitcnt lgkmcnt(4)'); smf(0)
        e('s_waitcnt lgkmcnt(0)'); smf(3)
        qrd((1, 2)); krd(1)
        sel(0)
        e('buffer_store_dwordx4 %s, v254, %s, s70 offen' % (vr(Er, 4), sq(rWS)))
        sel(3)
        e('buffer_store_dwordx4 %s, v254, %s, s71 offen' % (vr(Er + 12, 4), sq(rWS)))
        self.ts(5)
        krd(2)
        e('s_waitcnt lgkmcnt(4)'); smf(1)
        e('s_waitcnt lgkmcnt(0)'); smf(2)
        sel(1); sel(2)
        xl = ['buffer_load_dwordx3 %s, v254, %s, s%d offen sc1' % (vr(Xr + 4 * k, 3), sq(rWS), 72 + k) for k in range(2)]
        XW = self.opt.get('xw', 1)
        e('v_mov_b32 v12, 0x3ea52b5c')
        e('s_cmp_ge_u32 s5, 4\ns_cbranch_scc1 L_nov')
        FV = self.fixv()
        for n, x in enumerate(FV):
            if n == 4 + 7 * XW:
                for y in xl: e(y)
            e(x)
        e('s_mov_b64 exec, 1\nds_add_u32 v6, v7\ns_mov_b64 exec, -1\ns_branch L_nov2\nL_nov:')
        for y in xl: e(y)
        e('L_nov2:\ns_waitcnt vmcnt(4)')
        self.xn_prep()
        if self.opt.get('ats'): self.ts(1)
        e('s_waitcnt vmcnt(0)')
        if self.opt.get('ats') == 1: self.ts(3)
        for k in range(2):
            e("""v_cmp_ne_u32 vcc, s%d, v%d
            s_cmp_lg_u64 vcc, 0
            s_cbranch_scc1 L_xretry%d
            L_xok%d:""" % (76 + k, Xr + 4 * k + 2, k, k))
        e('v_pk_add_f32 %s, %s, %s' % (vr(Er, 2), vr(Er, 2), vr(Xr, 2)))
        e('v_pk_add_f32 %s, %s, %s' % (vr(Er + 12, 2), vr(Er + 12, 2), vr(Xr + 4, 2)))
        self.ts(6)
        e("""s_or_b32 s11, s6, s5
        s_cmp_lg_u32 s11, 0
        s_cbranch_scc1 L_nomask
        v_mov_b32 v3, 0xce6e6b28""")
        for sg in range(4):
            e('v_cndmask_b32 v%d, v3, v%d, s[66:67]\nv_cndmask_b32 v%d, v3, v%d, s[68:69]' % (Er + 4 * sg, Er + 4 * sg, Er + 4 * sg + 1, Er + 4 * sg + 1))
        e('L_nomask:')
        A, B_, C, D_ = Rr, Rr + 2, Rr + 4, Rr + 6
        def allred(op, mid=None):
            for sg in range(4):
                e('%s v%d, v%d, v%d' % (op, Rr + 2 * sg, Er + 4 * sg, Er + 4 * sg + 1))
            e('v_permlane32_swap_b32 v%d, v%d\nv_permlane32_swap_b32 v%d, v%d' % (A, C, B_, D_))
            e('%s v%d, v%d, v%d\n%s v%d, v%d, v%d' % (op, A, A, C, op, B_, B_, D_))
            e('v_permlane16_swap_b32 v%d, v%d' % (A, B_))
            e('%s v%d, v%d, v%d' % (op, A, A, B_))
            if mid: e(mid % (A, A))
            e('v_mov_b32 v%d, v%d\nv_permlane16_swap_b32 v%d, v%d' % (B_, A, A, B_))
            e('v_mov_b32 v%d, v%d\nv_mov_b32 v%d, v%d' % (C, A, D_, B_))
            e('v_permlane32_swap_b32 v%d, v%d\nv_permlane32_swap_b32 v%d, v%d' % (A, C, B_, D_))
        e('ds_read_b32 v4, v8 offset:16\nds_read_b32 v3, v8')
        allred('v_max_f32', 'v_mul_f32 v%d, v12, v%d')
        e('''s_waitcnt lgkmcnt(0)
        v_readfirstlane_b32 s11, v3
        v_readfirstlane_b32 s9, v4
        s_cmp_lt_u32 s11, 4
        s_cbranch_scc1 L_vw
        L_vok:''')
        self.tail.append(lambda: e('''L_vw:
        s_mov_b32 s15, 800000
        L_vw2:
        ds_read_b32 v3, v8
        s_waitcnt lgkmcnt(0)
        v_readfirstlane_b32 s11, v3
        s_cmp_ge_u32 s11, 4
        s_cbranch_scc1 L_vok
        s_sub_u32 s15, s15, 1
        s_cmp_lg_u32 s15, 0
        s_cbranch_scc1 L_vw2
        s_branch L_vok'''))
        if self.opt.get('ats'): self.ts(2)
        for x in vrd: e(x)
        for sg in range(4):
            e('v_pk_fma_f32 %s, %s, v[12:13], %s op_sel_hi:[1,0,0] neg_lo:[0,0,1] neg_hi:[0,0,1]' % (vr(Er + 4 * sg, 2), vr(Er + 4 * sg, 2), vr(Rr + 2 * sg, 2)))
        for sg in range(4):
            e('v_exp_f32 v%d, v%d\nv_exp_f32 v%d, v%d' % (Er + 4 * sg, Er + 4 * sg, Er + 4 * sg + 1, Er + 4 * sg + 1))
        allred('v_add_f32', 'v_rcp_f32 v%d, v%d')
        e('s_waitcnt lgkmcnt(0)\ns_mov_b64 exec, 1\nv_mov_b32 v3, 1\nds_add_u32 v8, v3 offset:4\ns_mov_b64 exec, -1')
        for sg in range(4):
            e('v_pk_mul_f32 %s, %s, %s op_sel_hi:[1,0]' % (vr(Er + 4 * sg, 2), vr(Er + 4 * sg, 2), vr(Rr + 2 * sg, 2)))
        def pv(j, sg, k):
            e('v_mfma_f32_16x16x32_bf16 %s, %s, %s, 0' % (vr(Sr + 4 * k, 4), vr(Vr + 4 * j, 4), vr(Pr + 4 * sg, 4)))
        for sg in range(4):
            x0, x1 = Er + 4 * sg + 2, Er + 4 * sg + 3
            e('v_cvt_pk_bf16_f32 v%d, v%d, v%d\nv_cvt_pk_bf16_f32 v%d, v%d, v%d' % (x0, Er + 4 * sg, Er + 4 * sg, x1, Er + 4 * sg + 1, Er + 4 * sg + 1))
            for r in range(4):
                e('v_and_b32 v%d, v%d, v%d' % (Pr + 4 * sg + r, 212 + r, (x0, x1)[r & 1]))
            if sg: pv(sg - 1, sg - 1, 2 * sg - 2); pv(sg, sg - 1, 2 * sg - 1)
        pv(3, 3, 6); pv(4, 3, 7)
        if self.opt.get('ats') == 2: self.ts(3)
        Or = 220
        def cv(j, k):
            e('v_cvt_pk_bf16_f32 v%d, v%d, v%d\nv_cvt_pk_bf16_f32 v%d, v%d, v%d' % (Or + 2 * j, Sr + 4 * k, Sr + 4 * k + 1, Or + 2 * j + 1, Sr + 4 * k + 2, Sr + 4 * k + 3))
        e('v_lshlrev_b32 v4, 2, v0\nv_mov_b32 v5, s10\nv_mov_b32 v6, 0x10000')
        cv(0, 0); cv(1, 2); cv(2, 4)
        e('s_mov_b64 exec, 0xffff'); cv(1, 1)
        e('s_mov_b32 exec_lo, -1'); cv(2, 3)
        e('s_mov_b64 exec, -1'); cv(3, 6)
        e('s_mov_b32 exec_hi, 0xffff'); cv(3, 5)
        e('s_not_b64 exec, s[28:29]'); cv(0, 7)
        e('s_mov_b64 exec, -1')
        e("""s_and_b32 s11, s31, s9
        s_cbranch_scc1 L_oloc
        buffer_store_dwordx4 v[220:223], v254, s[52:55], s25 offen sc1
        v_add3_u32 v3, v220, v221, v222
        buffer_store_dwordx4 v[224:227], v254, s[52:55], s25 offen offset:1024 sc1
        v_add3_u32 v3, v3, v223, v224
        v_add3_u32 v3, v3, v225, v226
        v_add3_u32 v3, v3, v227, s10
        buffer_store_dword v3, v4, s[52:55], s26 offen sc1
        s_mov_b64 exec, 1
        buffer_store_dword v5, v4, s[52:55], s30 offen sc1
        s_branch L_opub
        L_oloc:
        buffer_store_dwordx4 v[220:223], v254, s[52:55], s25 offen
        v_add3_u32 v3, v220, v221, v222
        buffer_store_dwordx4 v[224:227], v254, s[52:55], s25 offen offset:1024
        v_add3_u32 v3, v3, v223, v224
        v_add3_u32 v3, v3, v225, v226
        v_add3_u32 v3, v3, v227, s10
        buffer_store_dword v3, v4, s[52:55], s26 offen
        s_mov_b64 exec, 1
        buffer_store_dword v5, v4, s[52:55], s30 offen
        L_opub:
        ds_add_u32 v8, v6 offset:4
        s_mov_b64 exec, -1""")
        self.tail.append(lambda: self.xretry(Er, Xr))

    def xretry(self, Er, Xr):
        e = self.e
        for k in range(2):
            own, got = Er + 12 * k, Xr + 4 * k
            e("""L_xretry%d:
            s_mov_b32 s15, 0
            L_xr%d:
            s_mov_b64 exec, vcc
            s_add_u32 s15, s15, 1
            s_cmp_ge_u32 s15, %d
            s_cbranch_scc1 L_xe%d
            s_cmp_lg_u32 s15, 48
            s_cbranch_scc1 L_xs%d
            s_add_u32 s12, s%d, %d
            v_mov_b32 v%d, s10
            buffer_store_dwordx3 %s, v254, %s, s12 offen sc1
            L_xs%d:
            s_cmp_gt_u32 s15, 48
            s_cselect_b32 s11, s15, 0
            s_bitcmp1_b32 s11, 0
            s_cselect_b32 s75, s10, s74
            s_cselect_b32 s12, %d, 0
            s_add_u32 s12, s12, s%d
            buffer_load_dwordx3 %s, v254, %s, s12 offen sc1
            s_waitcnt vmcnt(0)
            v_cmp_ne_u32 vcc, s75, v%d
            s_cmp_lg_u64 vcc, 0
            s_cbranch_scc1 L_xr%d
            L_xe%d:
            s_mov_b64 exec, -1
            s_branch L_xok%d""" % (k, k, SPIN, k, k, 70 + k, WS_XCB - WS_XCH, own + 2, vr(own, 3), sq(rWS), k, WS_XCB - WS_XCH, 72 + k,
                                   vr(got, 3), sq(rWS), got + 2, k, k, k))

    def xn_prep(self):
        e = self.e
        XF, XN, T = 16, 196, 28
        a, b = self.lab('pc'), self.lab('pk')
        e("""s_mov_b32 s15, %d
        %s:
        v_cmp_ne_u32 vcc, s10, v237
        s_cmp_eq_u64 vcc, 0
        s_cbranch_scc1 %s
        s_sub_u32 s15, s15, 1
        s_cmp_eq_u32 s15, 0
        s_cbranch_scc1 %s
        s_sleep 8
        buffer_load_dwordx2 v[236:237], v235, %s, 0 offen sc1
        s_waitcnt vmcnt(0)
        s_branch %s
        %s:
        v_and_b32 v34, 0xffff0000, v236
        v_rcp_f32 v34, v34
        v_lshlrev_b32 v236, 16, v236""" % (SPIN, a, b, b, sq(rWS), a, b))
        def rnd():
            for d in range(6): e('v_cvt_pk_bf16_f32 v%d, v%d, v%d' % (T + d, XN + 2 * d, XN + 2 * d + 1))
            for d in range(6): e('v_lshlrev_b32 v%d, 16, v%d\nv_and_b32 v%d, 0xffff0000, v%d' % (XN + 2 * d, T + d, XN + 2 * d + 1, T + d))
        for d in range(6):
            e('v_lshlrev_b32 v%d, 16, v%d\nv_and_b32 v%d, 0xffff0000, v%d' % (XF + 2 * d, 238 + d, XF + 2 * d + 1, 238 + d))
        for d in range(6):
            e('v_pk_add_f32 %s, %s, v[236:237] op_sel_hi:[1,0] neg_lo:[0,1] neg_hi:[0,1]' % (vr(XN + 2 * d, 2), vr(XF + 2 * d, 2)))
        rnd()
        for d in range(6):
            e('v_pk_mul_f32 %s, %s, v[34:35] op_sel_hi:[1,0]' % (vr(XN + 2 * d, 2), vr(XN + 2 * d, 2)))
        rnd()
        for d in range(6):
            e('v_pk_add_f32 %s, %s, %s' % (vr(XN + 2 * d, 2), vr(XN + 2 * d, 2), vr(XF + 2 * d, 2)))

    def phase2(self):
        e = self.e
        NPRE = 8
        WF, XN = 16, 196
        OFL = [176 + 4 * k for k in range(5)] + [208 + 4 * k for k in range(5)]
        ACL = [228, 236, 240, 248, 12]
        CKL = [1, 2, 4, 10, 11]
        OF = 176
        UPD = TAB + 1024
        e('L_phase2:\ns_setprio 0')
        self.ts(7)
        def wrd(ks, slot):
            ops = []
            for t in range(5):
                for hh in range(2):
                    ll, jq = ks // 2, 2 * (ks % 2) + hh
                    av, rows = 244, 64 * ll + 16 * jq - 4 * ll
                    if jq == 0 and ll == 4: rows += 64
                    elif jq == 0: av = 244 + ll
                    ops.append('ds_read_b64_tr_b16 %s, v%d offset:%d' % (vr(WF + 20 * slot + 4 * t + 2 * hh, 2), av, rows * 160 + 32 * t))
            return ops
        e('v_mov_b32 v8, %d\nv_lshlrev_b32 v9, 2, v0\nds_read_b32 v7, v8 offset:4' % (TAB + 896))
        e("""s_waitcnt lgkmcnt(0)
        v_readfirstlane_b32 s11, v7
        s_mov_b32 s72, 0
        s_mov_b32 s73, 1
        s_and_b32 s11, s11, 0xff
        s_cmp_lt_u32 s11, 8
        s_cselect_b32 s11, s38, 0
        s_cmp_eq_u32 s11, 3
        s_cbranch_scc1 L_wskip
        s_mov_b32 s73, 0
        L_wrd:
        s_mov_b32 s15, %d
        L_wochk:
        ds_read_b32 v7, v8 offset:4
        s_waitcnt lgkmcnt(0)
        v_readfirstlane_b32 s11, v7
        s_and_b32 s11, s11, 0xff
        s_cmp_ge_u32 s11, 8
        s_cbranch_scc1 L_wook
        s_sleep 1
        s_sub_u32 s15, s15, 1
        s_cmp_lg_u32 s15, 0
        s_cbranch_scc1 L_wochk
        L_wook:""" % (SPIN * 4))
        for ks in range(NPRE):
            for x in wrd(ks, ks): e(x)
        e("""s_mov_b32 s15, %d
        s_cmp_lg_u32 s73, 0
        s_cbranch_scc1 L_wdone
        L_wskip:""" % SPIN)
        if self.opt.get('pts') in (1, 2): self.ts(3)
        e("""s_mov_b32 s15, %d
        s_cmp_eq_u32 s38, 0
        s_cbranch_scc1 L_ohint
        s_and_b32 s101, s100, s9
        s_mov_b32 s13, 0x80008
        s_cselect_b32 s13, 0x80010, s13
        s_cselect_b32 s14, LTH, RTH
        s_cbranch_scc1 L_ow2
        s_cmp_eq_u32 s38, 3
        s_cbranch_scc0 L_ow2
        s_waitcnt vmcnt(0)
        s_mov_b64 exec, 1
        v_mov_b32 v6, 0x100
        ds_add_u32 v8, v6 offset:4
        s_mov_b64 exec, -1
        s_mov_b32 s38, 2
        L_ow2:
        ds_read_b32 v3, v8 offset:4
        s_waitcnt lgkmcnt(0)
        v_readfirstlane_b32 s11, v3
        s_bfe_u32 s11, s11, s13
        s_cmp_ge_u32 s11, s14
        s_cbranch_scc1 L_ook
        s_sleep 1
        s_sub_u32 s15, s15, 1
        s_cmp_lg_u32 s15, 0
        s_cbranch_scc1 L_ow2
        L_ook:
        s_mov_b32 s15, %d""" % (SPIN * 4, SPIN))
        self.ts(8)
        if self.opt.get('wb'):
            e('''s_lshl_b32 s11, s4, 3
            s_add_u32 s11, s11, s5
            s_cmpk_lg_u32 s11, %d
            s_cbranch_scc1 L_nowb
            buffer_wbl2 sc1
            L_nowb:''' % (31 * 8 + 5))
        for j in range(5):
            e('L_old%d:' % j)
            for h in range(2):
                e('buffer_load_dwordx4 %s, v254, %s, s%d offen offset:%d sc1' % (vr(OFL[2 * j + h], 4), sq(rWS), 22 + j // 2, 2048 * (j % 2) + 1024 * h))
            e('buffer_load_dword v%d, v9, %s, s27 offen offset:%d sc1' % (CKL[j], sq(rWS), 256 * j))
        e('''s_cmp_eq_u32 s38, 3
        s_cbranch_scc0 L_noack
        s_waitcnt vmcnt(15)
        s_mov_b64 exec, 1
        v_mov_b32 v6, 0x100
        ds_add_u32 v8, v6 offset:4
        s_mov_b64 exec, -1
        s_mov_b32 s38, 2
        L_noack:''')
        e('s_cmp_lg_u32 s72, 0\ns_cbranch_scc1 L_odisp\ns_cmp_lg_u32 s73, 0\ns_cbranch_scc1 L_wrd\nL_wdone:\ns_waitcnt lgkmcnt(0)')
        def val(j):
            o, p = OFL[2 * j], OFL[2 * j + 1]
            return ['v_add3_u32 v3, v%d, v%d, v%d' % (o, o + 1, o + 2), 'v_add3_u32 v5, v%d, v%d, v%d' % (o + 3, p, p + 1),
                    'v_add3_u32 v3, v3, v%d, v%d' % (p + 2, p + 3), 'v_add3_u32 v3, v3, v5, s10',
                    'v_cmp_ne_u32 vcc, v3, v%d' % CKL[j]]
        def chk(j): e('s_mov_b32 s72, %d\ns_cmp_lg_u64 vcc, 0\ns_cbranch_scc1 L_oretry' % (j + 1))
        def mm(ks, fill=()):
            slot = ks if ks < NPRE else ks - NPRE
            if ks >= NPRE: e('s_waitcnt lgkmcnt(%d)' % min(15, 10 * (9 - ks)))
            for t in range(5):
                c = '0' if ks == 0 else vr(ACL[t], 4)
                e('v_mfma_f32_16x16x32_bf16 %s, %s, %s, %s' % (vr(ACL[t], 4), vr(WF + 20 * slot + 4 * t, 4), vr(OFL[ks], 4), c))
                for x in fill[t::5]: e(x)
        e('s_waitcnt vmcnt(12)')
        for x in val(0): e(x)
        chk(0); e('L_ogo0:')
        for j in range(5):
            if self.opt.get('pts') == 3 and j in (0, 2, 4): self.ts(1 + j // 2)
            mm(2 * j, wrd(9, 1) if j == 1 else ())
            if j < 4:
                e('s_waitcnt vmcnt(%d)' % (3 * (3 - j)))
                mm(2 * j + 1, val(j + 1) + (wrd(8, 0) if j == 0 else []))
                chk(j + 1); e('L_ogo%d:' % (j + 1))
            else:
                mm(9)
        def ovals():
            for j in range(5):
                e('L_oval%d:\ns_waitcnt vmcnt(%d)' % (j, 3 * (4 - j)))
                for x in val(j): e(x)
                chk(j); e('s_branch L_ogo%d' % j)
        self.tail.append(ovals)
        def otail():
            e("""L_oretry:
            s_waitcnt vmcnt(0)
            s_sub_u32 s15, s15, 1
            s_cmp_eq_u32 s15, 0
            s_cbranch_scc1 L_ogive
            s_sleep %d""" % self.opt.get('osl', 2))
            for j in range(5):
                e('s_cmp_eq_u32 s72, %d\ns_cbranch_scc1 L_old%d' % (j + 1, j))
            e('L_odisp:')
            for j in range(4):
                e('s_cmp_eq_u32 s72, %d\ns_cbranch_scc1 L_oval%d' % (j + 1, j))
            e('s_branch L_oval4\nL_ogive:\ns_mov_b32 s15, 1')
            for j in range(4):
                e('s_cmp_eq_u32 s72, %d\ns_cbranch_scc1 L_ogo%d' % (j + 1, j))
            e('s_branch L_ogo4')
            e("""L_ohint:
            v_lshlrev_b32 v3, 7, v0
            s_mov_b64 exec, 31
            L_of:
            buffer_load_dword v5, v3, %s, s63 offen sc1
            s_waitcnt vmcnt(0)
            v_cmp_ne_u32 vcc, s10, v5
            s_cmp_eq_u64 vcc, 0
            s_cbranch_scc1 L_of2
            s_mov_b64 exec, vcc
            s_sleep 4
            s_sub_u32 s15, s15, 1
            s_cmp_lg_u32 s15, 0
            s_cbranch_scc1 L_of
            L_of2:
            s_mov_b64 exec, -1
            s_branch L_ook""" % sq(rWS))
        self.tail.append(otail)
        if self.opt.get('pts') == 1: self.ts(1)
        e("""v_mov_b32 v8, %d
        s_cmp_eq_u32 s61, 0
        s_cbranch_scc0 L_red1""" % UPD)
        pr = lambda t0, d: vr(ACL[t0 + d // 2] + 2 * (d % 2), 2)
        for t in (3, 4):
            e('ds_write_b128 v232, %s offset:%d' % (vr(ACL[t], 4), 4 * P * t))
        for d in range(6):
            e('v_pk_add_f32 %s, %s, %s' % (vr(XN + 2 * d, 2), vr(XN + 2 * d, 2), pr(0, d)))
        e('s_waitcnt lgkmcnt(0)\ns_barrier\nds_read2_b32 v[6:7], v8 offset0:0 offset1:1')
        for t in range(3):
            e('ds_read_b128 %s, v232 offset:%d' % (vr(16 + 4 * t, 4), 4 * P * t))
        e('s_waitcnt lgkmcnt(3)\ns_branch L_red2\nL_red1:')
        for t in range(3):
            e('ds_write_b128 v232, %s offset:%d' % (vr(ACL[t], 4), 4 * P * t))
        for d in range(4):
            e('v_pk_add_f32 %s, %s, %s' % (vr(XN + 2 * d, 2), vr(XN + 2 * d, 2), pr(3, d)))
        e('s_waitcnt lgkmcnt(0)\ns_barrier\nds_read2_b32 v[6:7], v8 offset0:0 offset1:1')
        for t in (3, 4):
            e('ds_read_b128 %s, v232 offset:%d' % (vr(16 + 4 * (t - 3), 4), 4 * P * t))
        e('s_waitcnt lgkmcnt(2)\nL_red2:')
        if self.opt.get('pts') == 2: self.ts(1)
        e("""v_readfirstlane_b32 s76, v6
        v_readfirstlane_b32 s77, v7
        s_lshr_b32 s11, s76, 4
        s_cmp_eq_u32 s11, s60
        s_cbranch_scc1 L_exrow0
        L_exb0:
        s_lshr_b32 s11, s77, 4
        s_cmp_eq_u32 s11, s60
        s_cbranch_scc1 L_exrow1
        L_exb1:
        s_waitcnt lgkmcnt(0)""")
        for d in range(6):
            e('v_pk_add_f32 %s, %s, %s' % (vr(16 + 2 * d, 2), vr(16 + 2 * d, 2), vr(XN + 2 * d, 2)))
            e('v_cvt_pk_bf16_f32 v%d, v%d, v%d' % (32 + d, 16 + 2 * d, 17 + 2 * d))
            if d == 3:
                e('v_permlane16_swap_b32 v32, v34\nv_permlane16_swap_b32 v33, v35')
                e('buffer_store_dwordx4 v[32:35], v233, %s, 0 offen OUTF' % sq(rOUT))
                e('s_cmp_lg_u32 s61, 0\ns_cbranch_scc1 L_fin')
        e('buffer_store_dwordx2 v[36:37], v234, %s, 0 offen offset:64 OUTF' % sq(rOUT))
        e('L_fin:')
        if self.opt.get('ts'):
            if self.opt.get('pts') in (1, 2): self.ts(2)
            if self.opt.get('rcnt'): e('s_waitcnt lgkmcnt(0)\ns_sub_u32 s11, %d, s15\ns_add_u32 s84, s80, s11' % SPIN)
            e('s_waitcnt vmcnt(0)')
            self.ts(9)
            e('s_waitcnt lgkmcnt(0)\nv_mov_b32 v15, 0')
            for k in range(10):
                e('v_mov_b32 v%d, s%d' % (16 + k, 80 + 2 * k))
            e("""s_lshl_b32 s11, s2, 3
            s_add_u32 s11, s11, s5
            s_lshl_b32 s11, s11, 6
            s_add_u32 s11, s11, %d
            s_mov_b64 exec, 1
            buffer_store_dwordx4 v[16:19], v15, %s, s11 offen
            buffer_store_dwordx4 v[20:23], v15, %s, s11 offen offset:16
            buffer_store_dwordx2 v[24:25], v15, %s, s11 offen offset:32""" % (WS_TS, sq(rWS), sq(rWS), sq(rWS)))
        e('s_endpgm')
        for k in range(2):
            e("""L_exrow%d:
            v_lshrrev_b32 v3, 4, v0
            s_mul_i32 s11, s61, 192
            s_add_u32 s11, s11, %d
            v_lshl_add_u32 v3, v3, 4, s11""" % (k, UPD + 16 + 1536 * k))
            for t in range(3):
                e('ds_read_b128 %s, v3 offset:%d' % (vr(OF + 4 * t, 4), 64 * t))
            e("""v_and_b32 v3, 15, v0
            s_and_b32 s11, s%d, 15
            v_cmp_eq_u32 vcc, s11, v3
            s_waitcnt lgkmcnt(0)""" % (76 + k))
            for d in range(6):
                e('v_pk_add_f32 %s, %s, %s' % (vr(OF + 2 * d, 2), vr(OF + 2 * d, 2), vr(XN + 2 * d, 2)))
            for r in range(12):
                e('v_cndmask_b32 v%d, v%d, v%d, vcc' % (XN + r, XN + r, OF + r))
            e('s_branch L_exb%d' % k)

    def p2wo(self):
        e = self.e
        UPD = TAB + 1024
        e('L_p2wo:')
        self.p2_loads()
        e("""v_mov_b32 v8, %d
        v_mov_b32 v3, 1
        s_waitcnt vmcnt(0)
        s_mov_b64 exec, 1
        ds_add_u32 v8, v3 offset:4
        s_mov_b64 exec, -1
        XNPREP
        s_lshl_b32 s11, s2, 3
        s_add_u32 s11, s11, s5
        s_cmpk_lg_u32 s11, 1927
        s_cbranch_scc1 L_noep
        v_add_u32 v4, 0x2e0000, v254
        s_mov_b32 s15, 200000
        L_ep:
        buffer_load_dwordx4 v[16:19], v4, s[52:55], 0 offen sc1
        s_waitcnt vmcnt(0)
        v_xor_b32 v16, s10, v16
        v_xor_b32 v17, s10, v17
        v_xor_b32 v18, s10, v18
        v_xor_b32 v19, s10, v19
        v_or3_b32 v16, v16, v17, v18
        v_or_b32 v16, v16, v19
        v_lshlrev_b32 v16, 4, v16
        v_cmp_ne_u32 vcc, 0, v16
        s_cmp_eq_u64 vcc, 0
        s_cbranch_scc1 L_ep2
        s_sleep 8
        s_sub_u32 s15, s15, 1
        s_cmp_lg_u32 s15, 0
        s_cbranch_scc1 L_ep
        L_ep2:
        v_mov_b32 v4, 0
        v_mov_b32 v5, s10
        s_mov_b64 exec, 1
        global_store_dword v4, v5, s[36:37] sc1
        s_mov_b64 exec, -1
        L_noep:
        s_cmp_lg_u32 s5, 6
        s_cbranch_scc1 L_phase2
        v_mov_b32 v4, 0
        s_mov_b32 s15, %d
        L_sel:
        buffer_load_dwordx4 v[16:19], v4, %s, 0 offen offset:%d sc1
        s_waitcnt vmcnt(0)
        v_readfirstlane_b32 s11, v17
        v_readfirstlane_b32 s12, v19
        v_readfirstlane_b32 s76, v16
        v_readfirstlane_b32 s79, v18
        s_cmp_eq_u32 s11, s12
        s_cselect_b32 s11, s11, 0
        s_cselect_b32 s12, s10, 1
        s_mov_b32 s78, 0
        s_cmp_eq_u32 s11, s12
        s_cbranch_scc1 L_selok
        s_sleep 8
        s_sub_u32 s15, s15, 1
        s_cmp_lg_u32 s15, 0
        s_cbranch_scc1 L_sel
        L_selok:
        s_and_b32 s77, s76, 0xffff
        s_sub_u32 s77, 2047, s77
        s_lshl_b32 s11, s78, 2
        s_add_u32 s11, s11, %d
        v_mov_b32 v3, s11
        v_mov_b32 v4, s77
        ds_write_b32 v3, v4
        s_lshr_b32 s11, s77, 6
        s_lshr_b32 s12, s60, 2
        s_cmp_lg_u32 s11, s12
        s_cbranch_scc1 L_selnext
        v_mul_u32_u24 v3, 13, v0
        v_lshrrev_b32 v3, 8, v3
        v_mul_u32_u24 v4, 20, v3
        v_sub_u32 v4, v0, v4
        v_mul_u32_u24 v5, 40960, v3
        v_lshl_add_u32 v5, v4, 5, v5
        v_lshrrev_b32 v4, 2, v4
        v_lshl_add_u32 v5, v4, 7, v5
        s_lshr_b32 s14, s4, 2
        s_mul_i32 s14, s14, 1280
        s_lshl_b32 s13, s78, 4
        s_add_u32 s14, s14, s13
        s_add_u32 s14, s14, %d
        s_lshr_b32 s11, s76, 16
        s_bitcmp1_b32 s11, 15
        s_mov_b32 s13, 0xffff
        s_cmov_b32 s13, 0x8000
        s_xor_b32 s11, s11, s13
        s_lshl_b32 s11, s11, 16
        v_mov_b32 v6, 0xbfb8aa3b
        v_mul_f32 v6, s11, v6
        v_exp_f32 v6, v6
        v_add_f32 v6, 1.0, v6
        v_rcp_f32 v6, v6
        v_cvt_pk_bf16_f32 v6, v6, v6
        v_and_b32 v6, 0xffff0000, v6
        s_mul_i32 s11, s78, 1536
        s_add_u32 s11, s11, %d
        v_add_u32 v7, s11, v254
        s_mov_b32 s15, %d
        s_mov_b32 exec_hi, 0xfffffff
        L_yf:
        s_mov_b32 s12, s14""" % (TAB + 896, SPIN, sq(rWS), WS_SEL, UPD, WS_Y, UPD + 16, SPIN))
        assert all((x * 13) >> 8 == x // 20 for x in range(60))
        for j in range(4):
            for h in range(2):
                e('buffer_load_dwordx4 %s, v5, %s, s12 offen offset:%d sc1' % (vr(32 + 8 * j + 4 * h, 4), sq(rWS), 128 * h))
            if j < 3: e('s_add_u32 s12, s12, 10240')
        e('s_waitcnt vmcnt(0)\nv_mov_b32 v3, 0')
        for j in range(4):
            e('v_xor_b32 v4, s10, v%d\nv_xor_b32 v9, s10, v%d\nv_or3_b32 v3, v3, v4, v9' % (32 + 8 * j + 2, 32 + 8 * j + 6))
        e("""v_cmp_ne_u32 vcc, 0, v3
        s_cmp_eq_u64 vcc, 0
        s_cbranch_scc1 L_yok
        s_mov_b64 exec, vcc
        s_sleep 4
        s_sub_u32 s15, s15, 1
        s_cmp_lg_u32 s15, 0
        s_cbranch_scc1 L_yf
        L_yok:
        s_mov_b32 exec_lo, -1
        s_mov_b32 exec_hi, 0xfffffff""")
        for h in range(2):
            e('v_pk_add_f32 %s, %s, %s' % (vr(16 + 2 * h, 2), vr(32 + 4 * h, 2), vr(40 + 4 * h, 2)))
        for j in (2, 3):
            for h in range(2):
                e('v_pk_add_f32 %s, %s, %s' % (vr(16 + 2 * h, 2), vr(16 + 2 * h, 2), vr(32 + 8 * j + 4 * h, 2)))
        e("""ds_write_b128 v7, v[16:19] offset:320
        s_waitcnt lgkmcnt(0)
        s_mov_b64 exec, 0xfffff
        ds_read_b128 v[20:23], v7 offset:640
        ds_read_b128 v[24:27], v7 offset:960
        s_waitcnt lgkmcnt(0)""")
        for j in (1, 2):
            for h in range(2):
                e('v_pk_add_f32 %s, %s, %s' % (vr(16 + 2 * h, 2), vr(16 + 2 * h, 2), vr(16 + 4 * j + 2 * h, 2)))
        def rnd2():
            e("""v_cvt_pk_bf16_f32 v20, v16, v17
            v_cvt_pk_bf16_f32 v21, v18, v19
            v_lshlrev_b32 v16, 16, v20
            v_and_b32 v17, 0xffff0000, v20
            v_lshlrev_b32 v18, 16, v21
            v_and_b32 v19, 0xffff0000, v21""")
        rnd2()
        for r in range(4): e('v_mul_f32 v%d, v%d, v6' % (16 + r, 16 + r))
        rnd2()
        e("""ds_write_b128 v7, v[16:19]
        s_waitcnt lgkmcnt(0)
        s_mov_b64 exec, -1
        L_selnext:
        s_mov_b32 s76, s79
        s_add_u32 s78, s78, 1
        s_cmp_lt_u32 s78, 2
        s_cbranch_scc1 L_selok
        s_branch L_phase2""")

    def expert(self):
        e = self.e
        BUF = 32768
        ETS = self.opt.get('ets', 0)
        e("""L_aux:
        s_cmp_ge_u32 s79, 4
        s_cbranch_scc1 L_idle""")
        e("""s_mul_i32 s68, s78, 12
        s_add_u32 s68, s68, s79
        s_lshl_b32 s11, s77, 1
        s_lshl_b32 s11, s11, s76
        s_add_u32 s68, s68, s11
        s_lshl_b32 s11, s76, 2
        s_add_u32 s68, s68, s11
        s_and_b32 s14, s5, 1
        s_lshr_b32 s69, s5, 1
        v_lshrrev_b32 v2, 3, v0
        v_and_b32 v3, 7, v0
        v_bfe_u32 v4, v0, 4, 1
        v_lshl_or_b32 v4, s14, 1, v4
        v_lshlrev_b32 v4, 1, v4
        v_xor_b32 v4, v3, v4
        s_and_b32 s12, s68, 1
        s_mul_i32 s12, s12, 320
        s_lshl_b32 s11, s14, 3
        s_add_u32 s11, s11, s12
        v_add_u32 v2, s11, v2
        v_mul_u32_u24 v2, 3072, v2
        v_lshl_add_u32 v2, v4, 4, v2
        s_and_b32 s11, s68, 30
        s_and_b32 s12, s69, 1
        s_add_u32 s11, s11, s12
        s_lshl_b32 s11, s11, 7
        v_add_u32 v10, s11, v2
        s_lshl_b32 s74, s69, 13
        s_lshl_b32 s11, s14, 10
        s_add_u32 s75, s74, s11
        s_waitcnt lgkmcnt(0)
        s_cmp_lt_u32 s5, 4
        s_cselect_b32 s44, s26, s28
        s_cselect_b32 s45, s27, s29
        s_mov_b32 s46, %d
        s_mov_b32 s47, 0x20000""" % GB)
        nt = ' nt' if self.opt.get('nt', 1) else ''
        def issue(s):
            base = (s % 4) * BUF
            for a in range(4):
                e('s_add_u32 m0, s75, %d\ns_mov_b32 s12, %d' % (base + a * 2048, (64 * s + 16 * a) * 3072))
                e('buffer_load_dwordx4 v10, %s, s12 offen%s lds' % (sq(rW), nt))
        if ETS == 1: self.ts(1)
        issue(0)
        e('s_branch L_expert2')
        self.expert_rest = lambda: self.expert2(issue)

    def expert2(self, issue):
        e = self.e
        WG_, XS = 32, 112
        BUF = 32768
        MX = TAB + 4096
        ETS = self.opt.get('ets', 0)
        e('L_expert2:')
        self.tag_load()
        self.srd(rX, pX, XB); self.srd(rWS, pWS, WSB)
        self.p2_setup()
        self.wo_setup(11)
        e("""v_and_b32 v1, 15, v0
        v_lshrrev_b32 v2, 4, v0
        v_lshrrev_b32 v3, 2, v1
        v_and_b32 v4, 3, v1
        v_lshrrev_b32 v5, 1, v3
        v_and_b32 v6, 1, v2
        v_lshl_or_b32 v5, v6, 1, v5
        s_lshl_b32 s11, s14, 1
        v_xor_b32 v5, s11, v5
        v_lshl_add_u32 v7, v2, 3, v3
        v_lshlrev_b32 v8, 7, v7
        v_lshl_add_u32 v8, v5, 5, v8
        v_lshl_add_u32 v8, v4, 3, v8
        v_add_u32 v16, s74, v8
        s_lshl_b32 s11, s5, 6
        v_add_u32 v21, s11, v0
        v_lshlrev_b32 v17, 4, v21
        v_add_u32 v17, %d, v17
        v_and_b32 v5, 1, v1
        v_mul_u32_u24 v19, 656, v5
        v_lshl_add_u32 v19, v2, 4, v19
        v_add_u32 v19, %d, v19
        v_lshlrev_b32 v20, 5, v2
        v_lshl_add_u32 v20, v1, 4, v20
        s_lshl_b32 s72, s68, 1
        s_lshr_b32 s11, s5, 2
        s_add_u32 s72, s72, s11
        s_lshl_b32 s72, s72, 11
        s_and_b32 s11, s5, 3
        s_lshl_b32 s11, s11, 8
        s_add_u32 s72, s72, s11
        s_add_u32 s72, s72, %d
        v_mov_b32 v8, %d
        v_mov_b32 v9, 0
        ds_write_b32 v8, v9 offset:4""" % (WS_KEY, MX, WS_H, TAB + 896))
        issue(1); issue(2); issue(3)
        self.tag_ready()
        def consume(s, n):
            base = (s % 4) * BUF
            e('s_waitcnt vmcnt(%d)\ns_barrier' % n)
            if ETS == 1 and s in (0, 2, 4): self.ts({0: 4, 2: 5, 4: 6}[s])
            e('v_add_u32 v8, %d, v16\nv_xor_b32 v9, 32, v8' % base)
            for t in range(2):
                for tl in range(2):
                    for hh in range(2):
                        e('ds_read_b64_tr_b16 %s, v%d offset:%d' % (vr(WG_ + 40 * tl + 4 * (2 * s + t) + 2 * hh, 2), 8 + tl, (32 * t + 4 * hh) * 128))
        B = 120
        v = lambda k: 'v%d' % (B + k)
        def sweep():
            e('s_mov_b32 s12, 8192')
            e('buffer_load_dwordx4 %s, v17, %s, 0 offen sc1\nbuffer_load_dwordx4 %s, v17, %s, s12 offen sc1' % (vr(B + 2, 4), sq(rWS), vr(B + 6, 4), sq(rWS)))
        SW = self.opt.get('sw', 0)
        consume(0, 12)
        e('s_waitcnt lgkmcnt(0)\ns_barrier')
        self.count_in(7)
        if SW == 0: sweep()
        issue(4)
        consume(1, 12 + 2 * (SW == 0))
        if SW == 1: sweep()
        consume(2, 8 + 2 * (SW <= 1))
        if SW == 2: sweep()
        consume(3, 6)
        if SW: consume(4, 2)
        MK = TAB
        e("""s_mov_b32 s15, %d
        s_waitcnt vmcnt(%d)
        L_sweep:
        v_xor_b32 v5, s10, %s
        v_xor_b32 v6, s10, %s
        v_xor_b32 v7, s10, %s
        v_xor_b32 v8, s10, %s
        v_or3_b32 v5, v5, v6, v7
        v_or_b32 v5, v5, v8
        v_cmp_ne_u32 vcc, 0, v5
        s_cmp_eq_u64 vcc, 0
        s_cbranch_scc1 L_swok
        s_mov_b64 exec, vcc
        s_sub_u32 s15, s15, 1
        s_cmp_eq_u32 s15, 0
        s_cbranch_scc1 L_swok
        s_sleep 4""" % (SPIN, 0 if SW else 4, v(3), v(5), v(7), v(9)))
        sweep()
        e('s_waitcnt vmcnt(0)\ns_branch L_sweep\nL_swok:\ns_mov_b64 exec, -1')
        if ETS == 2: self.ts(1)
        e("""v_max_u32 v5, %s, %s
        v_min_u32 v6, %s, %s
        v_max_u32 v7, %s, %s
        v_min_u32 v8, %s, %s
        v_max_u32 v3, v5, v7
        v_min_u32 v5, v5, v7
        v_max3_u32 v4, v5, v6, v8""" % (v(2), v(4), v(2), v(4), v(6), v(8), v(6), v(8)))
        def merge16():
            for n in (8, 4, 2, 1):
                d = 'row_ror:%d row_mask:0xf bank_mask:0xf' % n
                e("""v_min_u32_dpp v5, v3, v3 %s
                v_max_u32_dpp v4, v4, v4 %s
                v_max_u32_dpp v3, v3, v3 %s
                v_max_u32 v4, v4, v5""" % (d, d, d))
        merge16()
        e("""s_lshl_b32 s11, s5, 5
        s_add_u32 s11, s11, %d
        v_lshl_add_u32 v7, v2, 3, s11
        v_mov_b32 v8, v3
        v_mov_b32 v9, v4
        ds_write_b64 v7, v[8:9]
        v_lshlrev_b32 v7, 4, v1
        v_add_u32 v7, %d, v7
        s_waitcnt lgkmcnt(0)
        s_barrier
        s_cmp_ge_u32 s5, 3
        s_cbranch_scc1 L_noxn
        ds_read_b128 %s, v7
        s_waitcnt lgkmcnt(0)
        v_max_u32 v3, %s, %s
        v_min_u32 v5, %s, %s
        v_max3_u32 v4, v5, %s, %s""" % (MK, MK, vr(B + 2, 4), v(2), v(4), v(2), v(4), v(3), v(5)))
        merge16()
        if ETS == 2: self.ts(4)
        e("""v_readfirstlane_b32 s76, v3
        v_readfirstlane_b32 s77, v4
        s_cmp_lg_u32 s5, 2
        s_cbranch_scc1 L_rx
        s_cmp_lg_u32 s68, 0
        s_cbranch_scc1 L_noxn
        v_mov_b32 v4, s76
        v_mov_b32 v5, s10
        v_mov_b32 v6, s77
        v_mov_b32 v7, s10
        v_mov_b32 v3, 0
        s_mov_b64 exec, 1
        buffer_store_dwordx4 v[4:7], v3, %s, 0 offen offset:%d sc1
        s_mov_b64 exec, -1
        s_branch L_noxn
        L_rx:
        s_cmp_eq_u32 s5, 0
        s_cselect_b32 s11, s76, s77
        s_and_b32 s11, s11, 0xffff
        s_sub_u32 s11, 2047, s11
        s_lshl_b32 s13, s11, 3
        s_add_u32 s13, s13, %d
        s_mul_i32 s11, s11, 1280
        s_and_b32 s12, s68, 1
        s_mul_i32 s12, s12, 640
        s_add_u32 s11, s11, s12
        s_mul_i32 s12, s5, 656
        s_add_u32 s12, s12, %d
        v_add_u32 v9, s12, v254
        v_mov_b32 v7, 0
        s_mov_b32 exec_hi, 0xff
        s_mov_b32 s15, %d
        buffer_load_dwordx4 %s, v254, %s, s11 offen
        L_rst:
        buffer_load_dwordx2 %s, v7, %s, s13 offen sc1
        s_waitcnt vmcnt(0)
        v_cmp_ne_u32 vcc, s10, %s
        s_cmp_eq_u64 vcc, 0
        s_cbranch_scc1 L_rstok
        s_sub_u32 s15, s15, 1
        s_cmp_lg_u32 s15, 0
        s_cbranch_scc1 L_rst
        L_rstok:
        v_and_b32 v3, 0xffff0000, %s
        v_rcp_f32 v3, v3
        v_lshlrev_b32 v4, 16, %s""" % (sq(rWS), WS_SEL, WS_STAT, MX, SPIN, vr(B + 2, 4), sq(rX), vr(B + 6, 2), sq(rWS), v(7), v(6), v(6)))
        F = B + 8
        def unp():
            for d in range(4):
                e('v_lshlrev_b32 v%d, 16, v%d\nv_and_b32 v%d, 0xffff0000, v%d' % (F + 2 * d, B + 2 + d, F + 2 * d + 1, B + 2 + d))
        def pk():
            for d in range(4): e('v_cvt_pk_bf16_f32 v%d, v%d, v%d' % (B + 2 + d, F + 2 * d, F + 2 * d + 1))
        unp()
        for r in range(8): e('v_sub_f32 v%d, v%d, v4' % (F + r, F + r))
        pk(); unp()
        for r in range(8): e('v_mul_f32 v%d, v%d, v3' % (F + r, F + r))
        pk()
        e('ds_write_b128 v9, %s\ns_mov_b64 exec, -1\nL_noxn:\ns_waitcnt lgkmcnt(0)' % vr(B + 2, 4))
        if SW:
            e('s_barrier')
        else:
            consume(4, 0)
            e('s_waitcnt lgkmcnt(0)')
        if ETS == 2: self.ts(5)
        for ks in range(10):
            e('ds_read_b128 %s, v19 offset:%d' % (vr(XS + 4 * ks, 4), 64 * ks))
        R = 160
        for k in range(4):
            e('v_mov_b32 v%d, s10\nv_mov_b32 v%d, 0' % (R + 8 + 4 * k + 2, R + 8 + 4 * k + 3))
        for ks in range(10):
            e('s_waitcnt lgkmcnt(%d)' % (9 - ks))
            for tl in range(2):
                e('v_mfma_f32_16x16x32_bf16 %s, %s, %s, %s' % (vr(R + 4 * tl, 4), vr(WG_ + 40 * tl + 4 * ks, 4), vr(XS + 4 * ks, 4), '0' if ks == 0 else vr(R + 4 * tl, 4)))
        e('v_cmp_gt_u32 vcc, 2, v1\ns_and_b64 exec, exec, vcc')
        for tl in range(2):
            for h in range(2):
                d = R + 8 + 4 * (2 * tl + h)
                e('v_mov_b32 v%d, v%d\nv_mov_b32 v%d, v%d' % (d, R + 4 * tl + 2 * h, d + 1, R + 4 * tl + 2 * h + 1))
                e('buffer_store_dwordx4 %s, v20, %s, s72 offen offset:%d sc1' % (vr(d, 4), sq(rWS), 1024 * h + 128 * tl))
        e('s_mov_b64 exec, -1')
        self.ts(2)
        e('s_barrier')
        e('L_woall:')
        self.wo_block(11, 's5')
        e('s_add_u32 s71, s5, 8'); self.wo_block(11, 's71')
        e('s_cmp_lt_u32 s5, 4\ns_cbranch_scc1 L_p2wo\ns_add_u32 s71, s5, 12')
        self.wo_block(11, 's71')
        e('s_branch L_p2wo')

    def down(self):
        e = self.e
        WD, YA = 32, 112
        BUF = 40960
        MH = TAB + 384
        nt = ' nt' if self.opt.get('nt', 1) else ''
        e("""L_idle:
        s_lshl_b32 s68, s78, 1
        s_add_u32 s68, s68, s77
        s_mul_i32 s68, s68, 3
        s_add_u32 s68, s68, s79
        s_sub_u32 s68, s68, 4
        s_mul_i32 s72, s5, 5120
        s_mul_i32 s73, s68, 163840
        s_add_u32 s73, s73, s72
        s_bfe_u32 s11, s5, 0x10001
        s_lshl_b32 s11, s11, 2""")
        for a in range(5):
            e("""v_add_u32 v2, %d, v0
            v_mul_u32_u24 v3, 820, v2
            v_lshrrev_b32 v3, 16, v3
            v_mul_u32_u24 v4, 80, v3
            v_sub_u32 v4, v2, v4
            v_or_b32 v5, s11, v3
            v_lshlrev_b32 v5, 1, v5
            v_xor_b32 v4, v4, v5
            v_mul_u32_u24 v3, 1280, v3
            v_lshl_add_u32 v%d, v4, 4, v3""" % (64 * a, 26 + a))
        def issue(s):
            base = (s % 3) * BUF
            for a in range(5):
                e('s_add_u32 m0, s72, %d\ns_add_u32 s12, s73, %d' % (base + a * 1024, s * 40960))
                e('buffer_load_dwordx4 v%d, %s, s12 offen%s lds' % (26 + a, sq(rD), nt))
        e('s_waitcnt lgkmcnt(0)')
        self.srd(rD, pD, GB)
        issue(0)
        e('s_branch L_down2')
        self.down_rest = lambda: self.down2(issue)

    def down2(self, issue):
        e = self.e
        WD, YA = 32, 112
        BUF = 40960
        MH = TAB + 384
        e('L_down2:')
        self.tag_load()
        self.srd(rX, pX, XB); self.srd(rWS, pWS, WSB)
        self.p2_setup()
        self.wo_setup(11)
        e("""v_and_b32 v1, 15, v0
        v_lshrrev_b32 v2, 4, v0
        v_lshrrev_b32 v3, 2, v1
        v_and_b32 v4, 3, v1
        v_and_b32 v6, 1, v2
        v_lshl_add_u32 v7, v2, 3, v3
        v_lshl_or_b32 v5, v6, 2, v3
        v_mul_u32_u24 v7, 1280, v7
        v_lshl_add_u32 v7, v4, 3, v7
        s_mul_i32 s11, s5, 5""")
        for j in range(5):
            e("""s_add_u32 s12, s11, %d
            v_xor_b32 v8, s12, v5
            v_lshl_add_u32 v%d, v8, 5, v7""" % (j, 18 + j))
        e("""v_mov_b32 v8, %d
        v_mov_b32 v9, 0
        ds_write_b32 v8, v9 offset:4""" % (TAB + 896))
        issue(1); issue(2)
        self.tag_ready()
        def consume(s, n):
            base = (s % 3) * BUF
            e('s_waitcnt vmcnt(%d)\ns_barrier' % n)
            for j in range(5):
                e('v_add_u32 v8, %d, v%d' % (base, 18 + j))
                for hh in range(2):
                    e('ds_read_b64_tr_b16 %s, v8 offset:%d' % (vr(WD + 20 * s + 4 * j + 2 * hh, 2), 5120 * hh))
        consume(0, 10)
        e('s_waitcnt lgkmcnt(0)\ns_barrier')
        self.count_in(7)
        issue(3)
        consume(1, 10)
        consume(2, 5)
        e('s_waitcnt lgkmcnt(0)\ns_barrier')
        e('s_cmp_eq_u32 s5, 0\ns_cbranch_scc1 L_dn0\ns_sub_u32 s71, s5, 1')
        self.wo_block(11, 's71')
        e('s_waitcnt vmcnt(5)\ns_branch L_dn0b\nL_dn0:\ns_waitcnt vmcnt(0)\nL_dn0b:')
        consume(3, 63)
        e('s_cmp_eq_u32 s5, 0\ns_cbranch_scc1 L_dn1\ns_add_u32 s71, s5, 6')
        self.wo_block(11, 's71')
        e('s_cmp_eq_u32 s5, 7\ns_cbranch_scc1 L_dn2\ns_add_u32 s71, s5, 13')
        self.wo_block(11, 's71')
        e('s_branch L_dn2\nL_dn1:\ns_setprio 3')
        self.ts(2)
        HB = 132
        e("""s_lshl_b32 s12, s68, 13
        s_add_u32 s12, s12, %d
        s_add_u32 s13, s12, 4096
        s_mov_b32 s15, %d
        HINTSKIP
        s_mov_b64 exec, 1
        L_hp0:
        buffer_load_dwordx4 %s, v254, %s, s12 offen sc1
        buffer_load_dwordx4 %s, v254, %s, s13 offen sc1
        s_waitcnt vmcnt(0)
        v_xor_b32 v4, s10, v%d
        v_xor_b32 v5, s10, v%d
        v_or_b32 v3, v4, v5
        v_cmp_ne_u32 vcc, 0, v3
        s_cmp_eq_u64 vcc, 0
        s_cbranch_scc1 L_hp1
        s_sleep 2
        s_sub_u32 s15, s15, 1
        s_cmp_lg_u32 s15, 0
        s_cbranch_scc1 L_hp0
        L_hp1:
        s_mov_b64 exec, -1
        s_mov_b32 s15, %d
        L_hp:""" % (WS_H, SPIN, vr(HB, 4), sq(rWS), vr(HB + 4, 4), sq(rWS), HB + 2, HB + 6, SPIN))
        for k in range(8):
            e('buffer_load_dwordx4 %s, v254, %s, s%d offen offset:%d sc1' % (vr(HB + 4 * k, 4), sq(rWS), 12 + k // 4, 1024 * (k % 4)))
        e('s_waitcnt vmcnt(0)\nv_mov_b32 v3, 0')
        for k in range(0, 8, 2):
            e('v_xor_b32 v4, s10, v%d\nv_xor_b32 v5, s10, v%d\nv_or3_b32 v3, v3, v4, v5' % (HB + 4 * k + 2, HB + 4 * k + 6))
        e("""v_cmp_ne_u32 vcc, 0, v3
        s_cmp_eq_u64 vcc, 0
        s_cbranch_scc1 L_hok
        s_mov_b64 exec, vcc
        s_sleep 2
        s_sub_u32 s15, s15, 1
        s_cmp_lg_u32 s15, 0
        s_cbranch_scc1 L_hp
        L_hok:
        s_mov_b64 exec, -1""")
        if self.opt.get('ets') == 2: self.ts(6)
        for k in range(4):
            e('v_pk_add_f32 %s, %s, %s' % (vr(HB + 4 * k, 2), vr(HB + 4 * k, 2), vr(HB + 16 + 4 * k, 2)))
        for k in range(4):
            e('v_cvt_pk_bf16_f32 v%d, v%d, v%d' % (4 + k, HB + 4 * k, HB + 4 * k + 1))
        for k in range(4):
            e('v_lshlrev_b32 v%d, 16, v%d\nv_and_b32 v%d, 0xffff0000, v%d' % (HB + 2 * k, 4 + k, HB + 2 * k + 1, 4 + k))
        F = HB + 8
        for r in range(4): e('v_mul_f32 v%d, 0xbfb8aa3b, v%d' % (F + r, HB + r))
        for r in range(4): e('v_exp_f32 v%d, v%d' % (F + r, F + r))
        for r in range(4): e('v_add_f32 v%d, 1.0, v%d' % (F + r, F + r))
        for r in range(4): e('v_rcp_f32 v%d, v%d' % (F + r, F + r))
        for r in range(4): e('v_mul_f32 v%d, v%d, v%d' % (HB + r, HB + r, F + r))
        for k in range(2):
            e('v_cvt_pk_bf16_f32 v%d, v%d, v%d' % (4 + k, HB + 2 * k, HB + 2 * k + 1))
        for k in range(2):
            e('v_lshlrev_b32 v%d, 16, v%d\nv_and_b32 v%d, 0xffff0000, v%d' % (HB + 2 * k, 4 + k, HB + 2 * k + 1, 4 + k))
        for r in range(4): e('v_mul_f32 v%d, v%d, v%d' % (HB + r, HB + r, HB + 4 + r))
        e("""v_cvt_pk_bf16_f32 v24, v%d, v%d
        v_cvt_pk_bf16_f32 v25, v%d, v%d
        v_and_b32 v3, 1, v0
        v_lshrrev_b32 v4, 1, v0
        v_lshlrev_b32 v3, 8, v3
        v_lshl_add_u32 v3, v4, 3, v3
        v_add_u32 v3, %d, v3
        ds_write_b64 v3, v[24:25]
        L_dn2:
        v_and_b32 v5, 1, v1
        v_lshlrev_b32 v6, 8, v5
        v_lshl_add_u32 v6, v2, 4, v6
        v_add_u32 v6, %d, v6
        v_lshlrev_b32 v7, 5, v2
        v_lshl_add_u32 v7, v1, 4, v7
        s_mul_i32 s11, s68, 10240
        s_mul_i32 s12, s5, 1280
        s_add_u32 s11, s11, s12
        s_add_u32 s11, s11, %d""" % (HB, HB + 1, HB + 2, HB + 3, MH, MH, WS_Y))
        YG = 168
        for k in range(10):
            e('v_mov_b32 v%d, s10\nv_mov_b32 v%d, 0' % (YG + 4 * k + 2, YG + 4 * k + 3))
        e('s_waitcnt lgkmcnt(0)\ns_barrier')
        for ks in range(4):
            e('ds_read_b128 %s, v6 offset:%d' % (vr(16 + 4 * ks, 4), 64 * ks))
        for ks in range(4):
            e('s_waitcnt lgkmcnt(%d)' % (3 - ks))
            for j in range(5):
                e('v_mfma_f32_16x16x32_bf16 %s, %s, %s, %s' % (vr(YA + 4 * j, 4), vr(WD + 20 * ks + 4 * j, 4), vr(16 + 4 * ks, 4), '0' if ks == 0 else vr(YA + 4 * j, 4)))
        e('v_cmp_gt_u32 vcc, 2, v1\ns_and_b64 exec, exec, vcc')
        for j in range(5):
            for h in range(2):
                d = YG + 4 * (2 * j + h)
                e('v_mov_b32 v%d, v%d\nv_mov_b32 v%d, v%d' % (d, YA + 4 * j + 2 * h, d + 1, YA + 4 * j + 2 * h + 1))
                e('buffer_store_dwordx4 %s, v7, %s, s11 offen offset:%d sc1' % (vr(d, 4), sq(rWS), 256 * j + 128 * h))
        e('s_mov_b64 exec, -1')
        self.ts(3)

    def build(self):
        self.tail = []
        self.prologue()
        self.loader()
        self.expert()
        self.down()
        self.loader_rest()
        self.expert_rest()
        self.down_rest()
        self.p2wo()
        self.w23()
        self.stats()
        self.gemm1()
        self.attention()
        self.phase2()
        for f in self.tail: f()
        self.e('L_end:\ns_endpgm')
        return self.L

HEAD = open('cdna_kernels/%s.s.ref' % NAME).read().split('; Override launch')[0]

def generate(opt):
    g = G(opt)
    L = g.build()
    L = [x.replace('HINTSKIP', 's_branch L_hp' if opt.get('nohint') else 's_nop 0') for x in L]
    L = [x.replace('IMSLEEP', 's_sleep %d' % opt.get('ims', 1) if opt.get('ims', 1) else 's_nop 0') for x in L]
    L = [x.replace('COLOC', str(opt.get('coloc', 1))) for x in L]
    L = [x.replace(' OUTF', ('', ' nt', ' sc1', ' sc0 sc1')[opt.get('outf', 0)]) for x in L]
    L = [x.replace('OMODE', str(opt.get('omode', 2))) for x in L]
    if opt.get('noxch'): L = [x for x in L if not (any('v254, s[52:55], s7%d offen' % k in x for k in range(4)) or 's_cbranch_scc1 L_xretry' in x)]
    if opt.get('noval'): L = [x for x in L if 's_cbranch_scc1 L_oretry' not in x]; L = [x.replace('s_cmp_ge_u32 s11, 6', 's_cmp_ge_u32 s11, 0') for x in L]
    if opt.get('nopub'): L = [x for x in L if not ('s25 offen' in x or 's26 offen' in x)]
    if opt.get('noold'): L = [x for x in L if not (('s22 offen' in x or 's23 offen' in x or 's24 offen' in x or 's27 offen' in x) and 'load' in x)]
    if opt.get('nost'): L = [x for x in L if 's[56:59]' not in x]
    L = [x.replace('LTH', str(opt.get('lth', 6))).replace('RTH', str(opt.get('rth', 6))) for x in L]
    L, added = hz.fix(L)
    k = NAME + '_kernel'
    s = HEAD + '; @launch grid=(256,1,1) block=(512,1,1) lds=%d\n' % LDS_BYTES
    s += '.amdgcn_target "amdgcn-amd-amdhsa--gfx950"\n.text\n.globl %s\n.p2align 8\n.type %s,@function\n%s:\n' % (k, k, k)
    s += '\n'.join(L) + '\n'
    s += """.section .rodata,"a"
.p2align 6
.amdhsa_kernel %s
  .amdhsa_next_free_vgpr 256
  .amdhsa_next_free_sgpr 102
  .amdhsa_accum_offset 256
  .amdhsa_group_segment_fixed_size 0
  .amdhsa_kernarg_size 88
  .amdhsa_user_sgpr_count 2
  .amdhsa_user_sgpr_kernarg_segment_ptr 1
  .amdhsa_system_sgpr_workgroup_id_x 1
  .amdhsa_float_denorm_mode_32 3
.end_amdhsa_kernel
""" % k
    import subprocess, re, os, tempfile
    d = tempfile.mkdtemp()
    open(d + '/a.s', 'w').write(s.replace('CODE_LAST', '0x1000'))
    subprocess.run(['clang', '-x', 'assembler', '-target', 'amdgcn-amd-amdhsa', '-mcpu=gfx950', '-c', d + '/a.s', '-o', d + '/a.o'], check=True)
    h = subprocess.run(['llvm-objdump', '-h', d + '/a.o'], capture_output=True, text=True).stdout
    size = int(re.search(r'\.text\s+([0-9a-f]+)', h).group(1), 16)
    generate.size = size
    sy = subprocess.run(['llvm-objdump', '-t', d + '/a.o'], capture_output=True, text=True).stdout
    pc = int(re.search(r'^([0-9a-f]+) .* L_pc$', sy, re.M).group(1), 16)
    return s.replace('CODE_LAST', hex((size - pc - 4) & ~3))

if __name__ == '__main__':
    opt = {}
    out = 'cdna_kernels/%s.s' % NAME
    for a in sys.argv[1:]:
        if a.startswith('-o'):
            out = a[2:]
        else:
            kx, vx = a.split('=')
            opt[kx] = int(vx)
    open(out, 'w').write(generate(opt))
    print('wrote', out, 'code bytes', generate.size)
```

```python
import sys
sys.path.insert(0, 'dev')
import hz

NAME = 'parallel_sum__sliding_local_dilated__moe_arch_mod__prompt'
XB, WB, WOB, GB = 2621440, 2457600, 819200, 1966080
WSB = 0xb00000
WS_EPOCH, WS_SEL, WS_YFLAG, WS_STAT, WS_KEY, WS_FLAG = 0x0, 0x100, 0x9000, 0x1000, 0x5000, 0x2b0000
WS_XCH, WS_O, WS_Y, WS_XCB = 0x10000, 0x300000, 0x600000, 0x800000
WS_TS = 0x7c0000
WS_CHK = 0x580000
WS_PRES = 0x2e0000
WS_H = 0x5d0000
WS_XN = 0xe000
SLOT, XPART, DEPTH = 38912, 14336, 3
P = 496
WOIMG = 55552
TAB = 157952
LDS_BYTES = 163840
SPIN = 200000

sXCD, sSLOT, sWAVE, sI, sLL, sL, sROLE, sTAG = 's3', 's4', 's5', 's6', 's7', 's8', 's9', 's10'
pX, pW, pWO, pWR, pG, pU, pD, pOUT, pDBG, pWS = 16, 18, 20, 24, 26, 28, 30, 32, 34, 36
rX, rW, rWO, rWS, rOUT, rU, rD = 40, 44, 48, 52, 56, 60, 64

def sp(n): return 's[%d:%d]' % (n, n + 1)
def sq(n): return 's[%d:%d]' % (n, n + 3)
def vr(n, k=1): return 'v%d' % n if k == 1 else 'v[%d:%d]' % (n, n + k - 1)

class G:
    def __init__(self, opt):
        self.L = []; self.opt = opt; self.nl = 0; self.nts = 0
        self.D = opt.get('depth', 4); self.S0 = (2 - 9) % self.D
    def e(self, s):
        for ln in s.strip('\n').split('\n'):
            ln = ln.strip()
            if not ln: continue
            if ln == 'XNPREP':
                self.xn_prep(); continue
            self.L.append(ln if ln.endswith(':') else '    ' + ln)
    def lab(self, base):
        self.nl += 1
        return 'L_%s_%d' % (base, self.nl)
    def srd(self, r, p, nbytes):
        self.e('s_mov_b32 s%d, s%d\ns_mov_b32 s%d, s%d\ns_mov_b32 s%d, %d\ns_mov_b32 s%d, 0x20000' % (r, p, r + 1, p + 1, r + 2, nbytes, r + 3))
    def ts(self, k, force=False):
        if self.opt.get('lt2') and not force and k not in (0, 9): return
        if self.opt.get('ts') and not (self.opt.get('ts_off') and k in (4, 5, 6)):
            self.e('%s s[%d:%d]' % ('s_memtime' if self.opt.get('cyc') else 's_memrealtime', 80 + 2 * k, 81 + 2 * k))
    def allreduce16(self, v, op='v_add_f32'):
        for n in (8, 4, 2, 1):
            self.e('%s_dpp v%d, v%d, v%d row_ror:%d row_mask:0xf bank_mask:0xf' % (op, v, v, v, n))
    def tag_load(self):
        self.e('s_load_dword s10, s[36:37], %d' % WS_EPOCH)
    def count_in(self, wave, va=4):
        lab = self.lab('cnt')
        self.e('''s_cmp_lg_u32 s5, %d
        s_cbranch_scc1 %s
        s_lshl_b32 s11, s3, 5
        s_add_u32 s11, s11, s4
        s_lshl_b32 s11, s11, 2
        s_add_u32 s11, s11, %d
        v_mov_b32 v%d, s11
        s_getreg_b32 s11, hwreg(HW_REG_XCC_ID, 0, 4)
        s_lshl_b32 s11, s11, 28
        s_xor_b32 s11, s11, s10
        v_mov_b32 v%d, s11
        s_mov_b64 exec, 1
        buffer_store_dword v%d, v%d, %s, 0 offen sc1
        s_mov_b64 exec, -1
        %s:''' % (wave, lab, WS_PRES, va, va + 1, va + 1, va, sq(rWS), lab))
    def tag_ready(self):
        self.e('s_waitcnt lgkmcnt(0)\ns_add_u32 s10, s10, 1')

    def prologue(self):
        e = self.e
        self.ts(0)
        e("""s_load_dwordx16 s[16:31], s[0:1], 0
        s_load_dwordx4 s[32:35], s[0:1], 64
        s_load_dwordx2 s[36:37], s[0:1], 80
        s_cmp_ge_u32 s2, 256
        s_cbranch_scc1 L_end
        v_lshrrev_b32 v1, 6, v0
        v_and_b32 v0, 63, v0
        s_lshr_b32 s4, s2, 3
        v_readfirstlane_b32 s5, v1
        s_and_b32 s3, s2, 7""")
        e("""s_cmp_lg_u32 s5, 3
        s_cbranch_scc1 L_nopf
        s_getpc_b64 s[12:13]
        L_pc:
        s_and_b32 s14, s4, %d
        s_lshl_b32 s14, s14, 13
        v_lshl_add_u32 v2, v0, 7, s14
        v_min_u32 v2, CODE_LAST, v2
        global_load_dword v255, v2, s[12:13]
        L_nopf:""" % (self.opt.get('pfblocks', 4) - 1))
        if self.opt.get('ts'):
            for k in range(1, 10): e('s_mov_b32 s%d, 0' % (80 + 2 * k))
        e("""s_bfe_u32 s76, s2, 0x10001
        s_and_b32 s77, s2, 1
        s_bfe_u32 s78, s2, 0x10002
        s_mul_i32 s11, s4, 52
        s_lshr_b32 s11, s11, 8
        s_mul_i32 s12, s11, 5
        s_sub_u32 s7, s4, s12
        s_mul_i32 s12, s78, 11
        s_add_u32 s6, s11, s12
        s_mul_i32 s12, s76, 6
        s_add_u32 s6, s6, s12
        s_mul_i32 s12, s77, 5
        s_add_u32 s8, s7, s12
        s_mul_i32 s12, s76, 5
        s_sub_u32 s12, 30, s12
        s_sub_u32 s79, s4, s12
        s_cmp_ge_u32 s4, s12
        s_cbranch_scc1 L_aux
        s_cmp_ge_u32 s5, 4
        s_cbranch_scc1 L_loader
        s_mul_i32 s12, s5, 10
        s_add_u32 s12, s12, s8
        s_cmp_ge_u32 s12, 24
        s_cbranch_scc1 L_w23
        s_mul_i32 s11, s6, 96
        s_lshl_b32 s12, s12, 2
        s_add_u32 s11, s11, s12""")
        e("""L_stats:
        s_setprio 3
        v_lshrrev_b32 v2, 4, v0
        v_add_u32 v2, s11, v2
        v_and_b32 v3, 15, v0
        v_lshlrev_b32 v4, 4, v3
        v_mul_u32_u24 v5, 1280, v2
        v_add_u32 v5, v5, v4
        s_waitcnt lgkmcnt(0)""")
        for j in range(5):
            e('global_load_dwordx4 %s, v4, %s offset:%d' % (vr(40 + 4 * j, 4), sp(pWR), 256 * j))
        self.srd(rX, pX, XB)
        for j in range(5):
            e('buffer_load_dwordx4 %s, v5, %s, 0 offen offset:%d' % (vr(20 + 4 * j, 4), sq(rX), 256 * j))
        e('s_branch L_stats2')

    def att_setup(self):
        self.e("""v_and_b32 v100, 15, v0
        v_lshrrev_b32 v101, 4, v0
        s_lshl_b32 s11, s5, 4
        v_add_u32 v102, s11, v100
        v_mul_u32_u24 v102, %d, v102
        v_lshlrev_b32 v103, 3, v101
        v_mov_b32 v104, 0x08100800
        v_lshrrev_b32 v103, v103, v104
        v_and_b32 v103, 0xff, v103
        v_add_u32 v231, v102, v103
        v_add_u32 v228, %d, v231
        v_lshrrev_b32 v102, 2, v0
        v_add_u32 v102, s11, v102
        v_mul_u32_u24 v102, %d, v102
        v_and_b32 v103, 3, v0
        v_lshl_add_u32 v229, v103, 3, v102
        v_and_b32 v102, 1, v0
        v_lshl_add_u32 v103, v101, 2, v102
        v_lshlrev_b32 v102, 4, v102
        v_mov_b32 v104, 0xffff
        v_lshlrev_b32 v104, v102, v104
        v_cmp_le_u32 vcc, v103, v100
        v_cndmask_b32 v212, 0, v104, vcc
        v_xor_b32 v214, v212, v104
        v_add_u32 v103, 2, v103
        v_cmp_le_u32 vcc, v103, v100
        v_cndmask_b32 v213, 0, v104, vcc
        v_xor_b32 v215, v213, v104""" % (P, 16 * P, P))
        for r in range(16):
            self.e('v_mov_b32 v%d, 0' % (196 + r))

    def att_scalars(self):
        CUR0, CUR1 = 0xf000ff00fff0ffff, 0xc000fc00ffc0fffc
        txt = ("""s_mov_b32 s64, 0xaaaaaaaa
        s_mov_b32 s65, 0xaaaaaaaa
        s_mov_b32 s66, 0x%x
        s_mov_b32 s67, 0x%x
        s_mov_b32 s68, 0x%x
        s_mov_b32 s69, 0x%x
        s_getreg_b32 s74, hwreg(HW_REG_XCC_ID, 0, 4)
        s_lshl_b32 s74, s74, 28
        s_xor_b32 s74, s74, s10
        s_mul_i32 s12, s6, 10
        s_add_u32 s12, s12, s8
        s_mul_i32 s12, s12, 12
        s_add_u32 s12, s12, s5
        s_lshl_b32 s12, s12, 10
        s_add_u32 s12, s12, %d
        s_mov_b32 s13, 0x7f000000
        s_sub_u32 s14, s12, 6144
        s_cmp_ge_u32 s7, 1
        s_cselect_b32 s70, s12, s13
        s_cselect_b32 s72, s14, s13
        s_cselect_b32 s76, s74, 0
        s_add_u32 s14, s12, 6144
        s_add_u32 s12, s12, 12288
        s_cmp_le_u32 s7, 3
        s_cselect_b32 s71, s14, s13
        s_cselect_b32 s73, s12, s13
        s_cselect_b32 s77, s74, 0
        s_lshl_b32 s11, s7, 3
        s_lshl_b64 s[28:29], -1, s11
        s_lshl_b64 s[28:29], s[28:29], s11
        s_mul_i32 s12, s6, 6
        s_add_u32 s12, s12, s5
        s_lshr_b32 s11, s12, 4
        s_cmp_eq_u32 s11, s3
        s_cselect_b32 s31, 1, 0
        s_mul_i32 s14, s12, 10
        s_add_u32 s14, s14, s8
        s_lshl_b32 s25, s14, 11
        s_add_u32 s25, s25, %d
        s_lshl_b32 s26, s14, 8
        s_add_u32 s26, s26, %d
        s_lshl_b32 s30, s14, 7
        s_add_u32 s30, s30, %d
        s_cmpk_ge_u32 s12, 128
        s_cselect_b32 s25, s13, s25
        s_cselect_b32 s26, s13, s26
        s_cselect_b32 s30, s13, s30
        s_mov_b32 s38, 3""" % (CUR0 & 0xffffffff, CUR0 >> 32, CUR1 & 0xffffffff, CUR1 >> 32, WS_XCH, WS_O, WS_CHK, WS_FLAG))
        return [x.strip() for x in txt.split('\n')]


    def p2_setup(self):
        self.e("""s_lshl_b32 s60, s3, 2
        s_and_b32 s11, s4, 3
        s_add_u32 s60, s60, s11
        s_lshl_b32 s60, s60, 2
        s_and_b32 s12, s5, 3
        s_add_u32 s60, s60, s12
        s_lshr_b32 s61, s5, 2
        s_xor_b32 s61, s61, s3
        s_and_b32 s61, s61, 1
        s_lshr_b32 s62, s4, 2
        s_mul_i32 s62, s62, 80
        s_mul_i32 s12, s61, 48
        s_add_u32 s62, s62, s12
        s_mov_b32 s38, 0
        v_and_b32 v100, 15, v0
        v_lshrrev_b32 v101, 4, v0
        s_lshl_b32 s12, s60, 4
        v_add_u32 v102, s12, v100
        v_lshlrev_b32 v235, 3, v102
        v_add_u32 v235, %d, v235
        v_mul_u32_u24 v102, 1280, v102
        v_lshl_add_u32 v102, v101, 3, v102
        s_lshl_b32 s12, s62, 1
        v_add_u32 v234, s12, v102
        v_lshlrev_b32 v254, 4, v0
        v_and_b32 v102, 1, v101
        v_mul_u32_u24 v102, 24, v102
        v_add_u32 v233, v234, v102
        v_lshrrev_b32 v102, 2, v0
        v_and_b32 v103, 3, v0
        v_mul_u32_u24 v102, 160, v102
        v_lshl_add_u32 v102, v103, 3, v102
        s_xor_b32 s12, s61, s11
        s_and_b32 s12, s12, 1
        s_mul_i32 s12, s12, 51200
        s_add_u32 s12, s12, %d
        v_add_u32 v244, s12, v102
        v_add_u32 v103, 10240, v244
        v_cmp_gt_u32 vcc, 16, v0
        v_cndmask_b32 v245, v244, v103, vcc
        v_cmp_gt_u32 vcc, 32, v0
        v_cndmask_b32 v246, v244, v103, vcc
        v_cmp_gt_u32 vcc, 48, v0
        v_cndmask_b32 v247, v244, v103, vcc""" % (WS_STAT, WOIMG))
        self.srd(rOUT, pOUT, XB)
        self.e('''s_mul_i32 s12, s60, 10
        s_mul_i32 s11, s61, 5
        s_add_u32 s12, s12, s11
        s_lshl_b32 s63, s12, 7
        s_add_u32 s63, s63, %d
        s_and_b32 s11, s5, 3
        s_mul_i32 s11, s11, %d
        s_add_u32 s11, s11, 160
        v_mul_u32_u24 v101, %d, v101
        v_add3_u32 v232, v101, v254, s11
        s_lshl_b32 s22, s12, 11
        s_add_u32 s22, s22, %d
        s_add_u32 s23, s22, 4096
        s_add_u32 s24, s22, 8192
        s_lshl_b32 s27, s12, 8
        s_add_u32 s27, s27, %d''' % (WS_FLAG, 20 * P, P - 256, WS_O, WS_CHK))
        self.e('''s_cmp_ge_u32 s60, 36
        s_cselect_b32 s11, 1, 0
        s_cmpk_ge_u32 s60, 66
        s_addc_u32 s11, s11, 0
        s_cmpk_ge_u32 s60, 102
        s_addc_u32 s11, s11, 0
        s_lshl_b32 s11, s11, 1
        s_add_u32 s11, s11, s61
        s_cmp_eq_u32 s11, s3
        s_cselect_b32 s100, %d, 0''' % self.opt.get('lf', 1))

    def p2_loads(self, ret=False):
        ops = ['buffer_load_dwordx2 v[236:237], v235, %s, 0 offen sc1' % sq(rWS)]
        ops += ['buffer_load_dwordx2 %s, v234, %s, 0 offen offset:%d' % (vr(238 + 2 * k, 2), sq(rX), 32 * k) for k in range(3)]
        if ret: return ops
        for x in ops: self.e(x)

    def w23(self):
        e = self.e
        e('L_w23:\ns_waitcnt lgkmcnt(0)')
        self.tag_load()
        self.srd(rX, pX, XB); self.srd(rWS, pWS, WSB)
        self.att_setup(); self.p2_setup()
        self.tag_ready()
        e('s_branch L_gemm')

    def stats(self):
        e = self.e
        X, Wr, F = 20, 40, 60
        e('L_stats2:')
        self.tag_load()
        self.srd(rWS, pWS, WSB)
        self.att_setup(); self.p2_setup()
        e('v_mov_b32 v9, 0x3f803f80\nv_mov_b32 v10, 0\nv_mov_b32 v11, 0\nv_mov_b32 v12, 0\nv_mov_b32 v13, 0')
        e('s_waitcnt vmcnt(0)')
        if self.opt.get('sts') == 1: self.ts(2)
        for d in range(20):
            e('v_dot2c_f32_bf16 v%d, v%d, v9' % (10 + (d & 3), X + d))
        for d in range(10):
            e('v_lshlrev_b32 v%d, 16, v%d\nv_and_b32 v%d, 0xffff0000, v%d' % (F + 2 * d, X + d, F + 2 * d + 1, X + d))
        e('v_add_f32 v10, v10, v11\nv_add_f32 v12, v12, v13\nv_add_f32 v6, v10, v12')
        for k, n in enumerate((8, 4, 2, 1)):
            for d in (10 + 2 * k, 11 + 2 * k):
                e('v_lshlrev_b32 v%d, 16, v%d\nv_and_b32 v%d, 0xffff0000, v%d' % (F + 2 * d, X + d, F + 2 * d + 1, X + d))
            e('v_add_f32_dpp v6, v6, v6 row_ror:%d row_mask:0xf bank_mask:0xf' % n)
        for d in (18, 19):
            e('v_lshlrev_b32 v%d, 16, v%d\nv_and_b32 v%d, 0xffff0000, v%d' % (F + 2 * d, X + d, F + 2 * d + 1, X + d))
        e("""v_mul_f32 v7, 0x3acccccd, v6
        v_cvt_pk_bf16_f32 v8, v7, v7
        v_lshlrev_b32 v6, 16, v8
        v_mov_b32 v10, 0
        v_mov_b32 v11, 0
        v_mov_b32 v12, 0
        v_mov_b32 v13, 0""")
        for r in range(40):
            e('v_sub_f32 v%d, v%d, v6' % (F + r, F + r))
        for r in range(40):
            e('v_fmac_f32 v%d, v%d, v%d' % (10 + (r & 3), F + r, F + r))
        e('v_sub_f32 v7, v7, v6\nv_add_f32 v10, v10, v11\nv_add_f32 v12, v12, v13\nv_add_f32 v14, v10, v12')
        e('v_mov_b32 v10, 0\nv_mov_b32 v11, 0')
        for k, n in enumerate((8, 4, 2, 1)):
            for d in range(5 * k, 5 * k + 5):
                e('v_cvt_pk_bf16_f32 v%d, v%d, v%d' % (X + d, F + 2 * d, F + 2 * d + 1))
            e('v_add_f32_dpp v14, v14, v14 row_ror:%d row_mask:0xf bank_mask:0xf' % n)
        e('s_waitcnt vmcnt(0)')
        for d in range(20):
            e('v_dot2c_f32_bf16 v%d, v%d, v%d' % (10 + (d & 1), X + d, Wr + d))
        e("""v_mul_f32 v14, 0x3acccccd, v14
        v_fma_f32 v14, -v7, v7, v14
        v_max_f32 v14, 0, v14
        v_cvt_pk_bf16_f32 v14, v14, v14
        v_add_f32 v10, v10, v11
        v_and_b32 v14, 0xffff0000, v14
        v_add_f32 v14, 0x3727c5ac, v14
        v_add_f32_dpp v10, v10, v10 row_ror:8 row_mask:0xf bank_mask:0xf
        v_cvt_pk_bf16_f32 v14, v14, v14
        v_and_b32 v14, 0xffff0000, v14
        v_add_f32_dpp v10, v10, v10 row_ror:4 row_mask:0xf bank_mask:0xf
        v_sqrt_f32 v14, v14
        v_and_b32 v8, 0xffff, v8
        v_add_f32_dpp v10, v10, v10 row_ror:2 row_mask:0xf bank_mask:0xf
        v_cvt_pk_bf16_f32 v14, v14, v14
        v_and_b32 v14, 0xffff0000, v14
        v_add_f32_dpp v10, v10, v10 row_ror:1 row_mask:0xf bank_mask:0xf
        v_rcp_f32 v12, v14
        v_or_b32 v16, v8, v14
        v_mul_f32 v10, v10, v12""")
        e("""v_cvt_pk_bf16_f32 v10, v10, v10
        v_bfe_i32 v11, v10, 15, 1
        v_or_b32 v11, 0x8000, v11
        v_xor_b32 v10, v10, v11
        v_lshlrev_b32 v10, 16, v10
        v_sub_u32 v11, 2047, v2
        v_or_b32 v18, v10, v11
        v_cmp_eq_u32 vcc, 0, v3
        v_cndmask_b32 v16, v18, v16, vcc
        v_lshlrev_b32 v5, 14, v3
        v_lshl_add_u32 v5, v2, 3, v5
        s_movk_i32 s14, 2048
        v_cmp_gt_u32 vcc, 2, v3
        v_cmp_gt_u32 s[12:13], s14, v2
        s_and_b64 s[70:71], vcc, s[12:13]""")
        if self.opt.get('sts') == 2: self.ts(2)
        self.tag_ready()
        if self.opt.get('sts') == 3: self.ts(2)
        e("""v_mov_b32 v17, s10
        s_mov_b32 s11, %d
        s_mov_b64 exec, s[70:71]
        s_cbranch_execz L_stend
        buffer_store_dwordx2 v[16:17], v5, %s, s11 offen sc1
        L_stend:
        s_mov_b64 exec, -1""" % (WS_STAT, sq(rWS)))
        assert WS_KEY - WS_STAT == 1 << 14

    def wo_setup(self, vb):
        e = self.e
        self.srd(rWO, pWO, WOB)
        e('''s_lshr_b32 s11, s4, 2
        s_mul_i32 s11, s11, 160
        s_and_b32 s70, s4, 1
        s_mul_i32 s70, s70, 10''')
        for j in range(5):
            e('''v_add_u32 v2, %d, v0
            v_mul_u32_u24 v3, 6554, v2
            v_lshrrev_b32 v3, 16, v3
            v_mul_u32_u24 v4, 10, v3
            v_sub_u32 v4, v2, v4
            v_mul_u32_u24 v3, 1280, v3
            v_lshl_add_u32 v3, v4, 4, v3
            v_add_u32 v%d, s11, v3''' % (64 * j, vb + j))
    def wo_block(self, vb, spos):
        e = self.e
        e('''s_add_u32 s12, %s, s70
        s_cmp_ge_u32 s12, 20
        s_cselect_b32 s13, 20, 0
        s_sub_u32 s12, s12, s13
        s_mul_i32 s12, s12, 40960
        s_mul_i32 s13, %s, 5120
        s_add_u32 s13, s13, %d''' % (spos, spos, WOIMG))
        for j in range(5):
            e('s_add_u32 m0, s13, %d' % (1024 * j))
            e('buffer_load_dwordx4 v%d, %s, s12 offen lds' % (vb + j, sq(rWO)))

    def loader(self):
        e = self.e
        e('L_loader:')
        RA, RB, RM, RS = (self.opt.get(k, d) for k, d in (('ra', 1), ('rb', 1), ('rm', 4), ('rs', 3)))
        assert all((x * (65536 // RM + 1)) >> 16 == x // RM for x in range(200)) and (RM - 1) * RS < 10
        e('''s_sub_u32 s14, s5, 4
        s_and_b32 s15, s14, 1
        v_lshrrev_b32 v2, 3, v0
        v_and_b32 v3, 7, v0
        v_lshrrev_b32 v4, 4, v0
        s_lshl_b32 s11, s15, 2
        v_add_u32 v5, s11, v4
        v_xor_b32 v5, v3, v5
        s_mul_i32 s11, s6, 96
        s_lshl_b32 s12, s14, 3
        s_add_u32 s11, s11, s12
        s_sub_u32 s11, s11, 16
        s_mul_i32 s11, s11, 1280
        v_mul_u32_u24 v6, 1280, v2
        v_lshl_add_u32 v6, v5, 4, v6
        v_add_u32 v10, s11, v6
        v_add_u32 v11, 40960, v10
        v_add_u32 v12, 0x14000, v10
        v_add_u32 v13, 0x1e000, v10
        v_and_b32 v4, 1, v4
        v_lshl_or_b32 v4, s15, 1, v4
        v_lshlrev_b32 v4, 1, v4
        v_xor_b32 v4, v3, v4
        v_add_u32 v2, s12, v2
        v_mul_u32_u24 v2, 3840, v2
        v_lshl_add_u32 v2, v4, 4, v2
        s_lshl_b32 s11, s8, 7
        v_add_u32 v14, s11, v2
        s_mul_i32 s68, s7, %d
        s_mul_i32 s11, s6, %d
        s_add_u32 s68, s68, s11
        s_mul_i32 s11, s68, %d
        s_lshr_b32 s11, s11, 16
        s_mul_i32 s11, s11, %d
        s_sub_u32 s68, s68, s11
        s_mul_i32 s68, s68, %d
        s_lshl_b32 s69, s14, 10
        s_cmp_eq_u32 s14, 0
        s_cselect_b32 s72, 0xffff0000, -1
        s_mov_b32 s73, -1
        s_waitcnt lgkmcnt(0)''' % (RA, RB, 65536 // RM + 1, RM, RS))
        self.srd(rX, pX, XB); self.srd(rW, pW, WB)
        self.ts(1)
        def issue(c, parts=(0, 1, 2)):
            base = ((c + self.S0) % self.D) * SLOT
            if 0 in parts:
                sk = self.lab('xs')
                e('s_lshl_b32 s11, s68, 7\ns_mul_i32 s39, s68, 245760')
                e('s_add_u32 m0, s69, %d\ns_mov_b64 exec, s[72:73]' % base)
                e('buffer_load_dwordx4 v10, %s, s11 offen lds\ns_mov_b64 exec, -1' % sq(rX))
                for a in (1, 2):
                    e('s_add_u32 m0, s69, %d' % (base + a * 4096))
                    e('buffer_load_dwordx4 v%d, %s, s11 offen lds' % (10 + a, sq(rX)))
                e('s_cmp_ge_u32 s14, 2\ns_cbranch_scc1 %s' % sk)
                e('s_add_u32 m0, s69, %d' % (base + 3 * 4096))
                e('buffer_load_dwordx4 v13, %s, s11 offen lds' % sq(rX))
                e('%s:' % sk)
                e('s_add_u32 s68, s68, 1\ns_cmp_eq_u32 s68, 10\ns_cselect_b32 s68, 0, s68')
            for hb in range(2):
                if hb + 1 in parts:
                    for y in range(3):
                        e('s_add_u32 m0, s69, %d\ns_add_u32 s13, s39, %d' % (base + XPART + y * 8192 + hb * 4096, y * 1280 + hb * 122880))
                        e('buffer_load_dwordx4 v14, %s, s13 offen lds' % sq(rW))
        issue(0)
        e('s_branch L_loader2')
        self.loader_rest = lambda: self.loader2(issue)

    def loader2(self, issue):
        e = self.e
        e('L_loader2:')
        self.tag_load()
        self.srd(rWS, pWS, WSB)
        self.wo_setup(20)
        e('''s_mul_i32 s11, s6, 96
        s_lshl_b32 s12, s14, 6
        s_add_u32 s11, s11, s12
        s_sub_u32 s11, s11, 16
        v_add_u32 v26, s11, v0
        v_lshlrev_b32 v27, 3, v26
        v_add_u32 v27, %d, v27
        v_add_u32 v28, s12, v0''' % WS_STAT)
        self.att_setup(); self.p2_setup()
        e('''s_mul_i32 s74, s6, 10
        s_add_u32 s74, s74, s8
        s_lshl_b32 s74, s74, 2
        s_add_u32 s74, s74, s14
        s_mul_i32 s74, s74, 3072
        s_add_u32 s74, s74, %d
        v_mov_b32 v36, 0
        v_mov_b32 v37, 0
        v_mov_b32 v39, 0''' % WS_XCH)
        INI = self.opt.get('ini', 6)
        issue(1, tuple(range(INI - 3)))
        self.tag_ready()
        e('v_xor_b32 v38, s10, 1')
        assert WOIMG + 12 * 5120 >= 3 * SLOT and WOIMG + 4 * 5120 <= 2 * SLOT
        WOA, WOB_, STB = self.opt.get('woa', 7), self.opt.get('wob', 8), self.opt.get('stb', 5)
        assert self.D == 3 or (min(WOA, WOB_) >= 7 and 4 * SLOT <= TAB and STB + self.D - 1 <= 8)
        TBL = STB + self.opt.get('tbl', self.D - 1); seq = [('c', k) for k in range(INI)]; nxt = INI
        extra = {}
        for c in range(10):
            if c: seq.append(('x', extra.get(c - 1, 0)))
            need = [('c', 3 * c + 2)] + ([('t', 2)] if c == TBL else [])
            n = min(sum(3 if k == 'c' else v for k, v in seq[seq.index(nd) + 1:]) for nd in need)
            e('s_waitcnt vmcnt(%d)' % n)
            if self.opt.get('lts') and c in (0, 1, 2): self.ts(4 + c)
            e('s_barrier')
            if c == 0: self.ts(2)
            if self.opt.get('lt2') and 0 <= c - self.opt['lt2'] + 1 < 8: self.ts(c - self.opt['lt2'] + 2, True)
            ahead = min(3, max(0, (c - self.opt.get('deep', 4) + 1) * self.opt.get('ramp', 1))) if self.D == 4 else 0
            if c < self.opt.get('lag', 0): ahead -= 6 - INI
            while nxt < 30 and nxt < 3 * (c + 3) + ahead:
                issue(nxt // 3, (nxt % 3,)); seq.append(('c', nxt)); nxt += 1
            if c == 9: self.zero_fill()
            if c == self.opt.get('clm', 3):
                for k in range(3):
                    e('buffer_store_dwordx4 v[36:39], v254, %s, s74 offen offset:%d' % (sq(rWS), 1024 * k))
                extra[c] = extra.get(c, 0) + 3
                for rep in range(self.opt.get('dirty', 0)):
                    e('s_add_u32 s11, s74, %d' % (WS_XCB - WS_XCH))
                    for k in range(3):
                        e('buffer_store_dwordx4 v[36:39], v254, %s, s11 offen offset:%d%s' % (sq(rWS), 1024 * k, ' sc1' if self.opt.get('dsc') else ''))
                    extra[c] += 3
            if c == self.opt.get('pre', 99):
                for k in range(3):
                    e('''s_mul_i32 s11, s14, 3
                    s_add_u32 s11, s11, %d
                    s_lshr_b32 s12, s11, 1
                    s_and_b32 s11, s11, 1
                    s_mul_i32 s13, s6, 6
                    s_add_u32 s12, s12, s13
                    s_min_u32 s12, s12, 127
                    s_mul_i32 s12, s12, 10
                    s_add_u32 s12, s12, s8
                    s_lshl_b32 s12, s12, 1
                    s_add_u32 s12, s12, s11
                    s_lshl_b32 s12, s12, 10
                    s_add_u32 s12, s12, %d
                    buffer_store_dwordx4 v[36:39], v254, %s, s12 offen sc1''' % (k, WS_O, sq(rWS)))
                e('''v_lshrrev_b32 v3, 4, v28
                s_mul_i32 s13, s6, 6
                v_add_u32 v4, s13, v3
                v_mul_u32_u24 v4, 2560, v4
                v_and_b32 v5, 15, v28
                v_lshl_add_u32 v4, v5, 4, v4
                v_mov_b32 v5, 0x7f000000
                v_cmp_gt_u32 vcc, 6, v3
                v_cndmask_b32 v4, v5, v4, vcc
                v_cmp_gt_u32 vcc, 0x50000, v4
                v_cndmask_b32 v4, v5, v4, vcc
                s_lshl_b32 s12, s8, 8
                s_add_u32 s12, s12, %d
                buffer_store_dwordx4 v[36:39], v4, %s, s12 offen sc1''' % (WS_CHK, sq(rWS)))
                extra[c] = extra.get(c, 0) + 4
            if c == STB:
                e('''v_and_b32 v34, 31, v0
                v_lshlrev_b32 v34, 2, v34
                s_lshl_b32 s11, s3, 7
                s_add_u32 s11, s11, %d
                buffer_load_dword v35, v34, %s, s11 offen sc1''' % (WS_PRES, sq(rWS)))
                e('buffer_load_dwordx2 v[30:31], v27, %s, 0 offen sc1' % sq(rWS)); assert c not in extra; seq.append(('t', 2))
            if self.opt.get('nowo'):
                pass
            elif c == WOA:
                e('s_and_b32 s71, s4, 2\ns_lshl_b32 s71, s71, 1\ns_add_u32 s71, s71, s14\ns_add_u32 s71, s71, 12'); self.wo_block(20, 's71'); extra[c] = extra.get(c, 0) + 5
            elif c == WOB_:
                e('s_and_b32 s71, s4, 2\ns_lshl_b32 s71, s71, 1\ns_sub_u32 s71, s14, s71\ns_add_u32 s71, s71, 16'); self.wo_block(20, 's71'); extra[c] = extra.get(c, 0) + 5
            if c == TBL:
                e('''s_mov_b32 s15, %d
                s_movk_i32 s75, 2048
                v_cmp_gt_u32 s[76:77], s75, v26
                L_tchk:
                v_cmp_ne_u32 vcc, s10, v31
                s_and_b64 vcc, vcc, s[76:77]
                s_cmp_eq_u64 vcc, 0
                s_cbranch_scc1 L_tok
                s_sub_u32 s15, s15, 1
                s_cmp_eq_u32 s15, 0
                s_cbranch_scc1 L_tok
                s_sleep 4
                buffer_load_dwordx2 v[30:31], v27, %s, 0 offen sc1
                s_waitcnt vmcnt(0)
                s_branch L_tchk
                L_tok:
                v_mov_b32 v32, 0x3f800000
                v_cndmask_b32 v30, v32, v30, s[76:77]
                v_and_b32 v32, 0xffff0000, v30
                v_rcp_f32 v32, v32
                v_lshlrev_b32 v30, 16, v30
                v_mul_f32 v33, -v30, v32
                v_lshlrev_b32 v29, 3, v28
                v_add_u32 v29, %d, v29
                v_cmp_le_u32 vcc, 112, v28
                v_cndmask_b32 v32, v32, 0, vcc
                v_cndmask_b32 v33, v33, 0, vcc
                s_getreg_b32 s11, hwreg(HW_REG_XCC_ID, 0, 4)
                s_lshl_b32 s11, s11, 28
                s_xor_b32 s11, s11, s10
                v_cmp_ne_u32 vcc, s11, v35
                s_cmp_eq_u64 vcc, 0
                s_cselect_b32 s9, COLOC, 0
                v_mov_b32 v30, s9
                v_cmp_eq_u32 vcc, 114, v28
                v_cndmask_b32 v32, v32, v30, vcc
                v_cmp_ge_u32 vcc, 114, v28
                s_and_b64 exec, exec, vcc
                ds_write_b64 v29, v[32:33]
                s_mov_b64 exec, -1
                s_waitcnt lgkmcnt(0)''' % (SPIN, sq(rWS), TAB))
        self.ts(3)
        e('s_cmp_ge_u32 s14, 2\ns_cbranch_scc1 L_w67')
        self.p2_loads()
        for x in self.att_scalars(): e(x)
        e('s_branch L_img2\nL_w67:')
        e('s_mov_b32 s38, 2\ns_cmp_eq_u32 s14, 3\ns_cbranch_scc1 L_w7')
        if not self.opt.get('nowo'):
            e('s_mov_b32 s71, 0\nL_w6:')
            self.wo_block(20, 's71')
            if self.opt.get('thr', 63) < 63: e('s_waitcnt vmcnt(%d)' % self.opt.get('thr', 63))
            e('s_add_u32 s71, s71, 1\ns_cmp_lt_u32 s71, 4\ns_cbranch_scc1 L_w6')
        e('''s_branch L_p2wo
        L_w7:
        s_mov_b32 s15, %d
        L_w7a:
        ds_read_b32 v3, v8 offset:8
        s_waitcnt lgkmcnt(0)
        v_readfirstlane_b32 s11, v3
        s_cmp_ge_u32 s11, 4
        s_cbranch_scc1 L_w7b
        s_sleep 1
        s_sub_u32 s15, s15, 1
        s_cmp_lg_u32 s15, 0
        s_cbranch_scc1 L_w7a
        L_w7b:''' % (SPIN * 4))
        if not self.opt.get('nowo'):
            e('s_mov_b32 s71, 4\nL_w7c:')
            self.wo_block(20, 's71')
            if self.opt.get('thr', 63) < 63: e('s_waitcnt vmcnt(%d)' % self.opt.get('thr', 63))
            e('s_add_u32 s71, s71, 1\ns_cmp_lt_u32 s71, 12\ns_cbranch_scc1 L_w7c')
        e('s_branch L_p2wo')

    def zero_fill(self):
        e = self.e
        e('''v_lshrrev_b32 v3, 1, v28
        v_and_b32 v4, 1, v28
        v_mul_u32_u24 v3, %d, v3
        v_mul_u32_u24 v4, 160, v4
        v_add_u32 v3, v3, v4
        v_mov_b32 v4, 0
        v_mov_b32 v5, 0
        v_cmp_gt_u32 vcc, 224, v28
        s_and_b64 exec, exec, vcc''' % P)
        for z in range(4):
            e('''s_cmp_gt_u32 s7, %d
            s_cselect_b32 s11, %d, %d
            v_add_u32 v6, s11, v3
            ds_write_b64 v6, v[4:5]''' % (z, 8 * z, 8 * (16 + z)))
        e('''s_mov_b64 exec, -1
        v_mov_b32 v8, %d
        v_mov_b32 v3, 1
        s_waitcnt lgkmcnt(0)
        s_mov_b64 exec, 1
        ds_add_u32 v8, v3 offset:12
        s_mov_b64 exec, -1''' % (TAB + 896))

    def gemm1(self):
        e = self.e
        ACC, BA, BB, ST = 16, 100, 140, 180
        def acc(y, T): return ACC + (y * 7 + T) * 4
        e('''L_gemm:
        s_setprio 3
        s_cmp_lg_u32 s5, 3
        s_cbranch_scc1 L_noones
        v_mov_b32 v8, 0x3f803f80
        v_mov_b32 v9, v8
        v_mov_b32 v10, v8
        v_mov_b32 v11, v8
        v_and_b32 v2, 15, v0
        v_lshlrev_b32 v2, 4, v2
        v_lshrrev_b32 v3, 4, v0
        v_min_u32 v3, %d, v3
        v_mul_u32_u24 v3, %d, v3
        v_add_u32 v2, v2, v3
        ds_write_b128 v2, v[8:11]
        s_waitcnt lgkmcnt(0)
        L_noones:''' % (self.D - 1, SLOT))
        e('''v_and_b32 v1, 15, v0
        v_lshrrev_b32 v2, 4, v0
        v_lshrrev_b32 v3, 1, v1
        v_xor_b32 v3, v2, v3
        v_lshlrev_b32 v3, 4, v3
        v_lshl_add_u32 v8, v1, 7, v3
        v_xor_b32 v9, 64, v8
        v_lshrrev_b32 v3, 2, v1
        v_and_b32 v14, 3, v1
        v_lshrrev_b32 v15, 1, v3
        v_and_b32 v10, 1, v2
        v_lshl_or_b32 v15, v10, 1, v15
        v_xor_b32 v15, s5, v15
        v_lshl_add_u32 v3, v2, 3, v3
        v_lshlrev_b32 v3, 7, v3
        v_lshl_add_u32 v3, v15, 5, v3
        v_lshl_add_u32 v3, v14, 3, v3
        v_add_u32 v10, %d, v3
        v_add_u32 v11, SL0, v8
        v_add_u32 v12, SL0, v9
        v_add_u32 v13, SL0, v10
        v_lshlrev_b32 v14, 3, v1
        v_add_u32 v14, %d, v14
        s_lshl_b32 s11, s5, 2
        s_add_u32 s11, s11, s7
        v_add_u32 v3, s11, v2
        v_mul_u32_u24 v15, %d, v1
        v_lshl_add_u32 v15, v3, 3, v15
        v_mov_b32 v6, %d
        v_mov_b32 v7, 1
        s_mov_b32 s78, 1
        s_mov_b32 s79, SL1'''.replace('SL0', str(self.S0 * SLOT)).replace('SL1', str((self.S0 + 1) % self.D * SLOT)) % (XPART, TAB, P, TAB + 896))
        assert 2 * SLOT == 77824
        def reads(buf, t):
            ops = []
            for y in range(3):
                for hh in range(2):
                    ops.append('ds_read_b64_tr_b16 %s, v13 offset:%d' % (vr(buf + 28 + 4 * y + 2 * hh, 2), y * 8192 + (32 * t + 4 * hh) * 128))
            for T in range(7):
                ops.append('ds_read_b128 %s, v%d offset:%d' % (vr(buf + 4 * T, 4), 11 + t, T * 2048))
            return [] if self.opt.get('noread') else ops
        def mf(buf, y, T, first=False):
            return 'v_mfma_f32_16x16x32_bf16 %s, %s, %s, %s' % (vr(acc(y, T), 4), vr(buf + 28 + 4 * y, 4), vr(buf + 4 * T, 4), '0' if first else vr(acc(y, T), 4))
        def half(rbuf, t, mbuf, tail=(), first=False):
            R = reads(rbuf, t) + list(tail); M = [mf(mbuf, y, T, first) for T in range(7) for y in range(3)]
            X = []
            if self.opt.get('csv'):
                M[0] = None
                if self.opt['csv'] == 1:
                    for r in range(4):
                        X += ['v_lshlrev_b32 v194, 16, v%d' % (mbuf + 28 + r), 'v_and_b32 v195, 0xffff0000, v%d' % (mbuf + 28 + r), 'v_add_f32 v16, v16, v194', 'v_add_f32 v17, v17, v195']
            for k in range(21):
                if k == 20: e('s_waitcnt lgkmcnt(0)')
                if not self.opt.get('nomfma') and M[k]: e(M[k])
                if k < len(R): e(R[k])
                if X and k >= 3: e(X.pop(0))
            assert len(R) <= 20
        nxt = ['v_add_u32 v11, s79, v8\nv_add_u32 v12, s79, v9', 'v_add_u32 v13, s79, v10\ns_add_u32 s79, s79, %d' % SLOT,
               's_cmp_eq_u32 s79, %d\ns_cselect_b32 s79, 0, s79' % (SLOT * self.D)]
        if self.opt.get('clm', 3) == -1:
            e('''s_mul_i32 s11, s6, 10
            s_add_u32 s11, s11, s8
            s_lshl_b32 s11, s11, 2
            s_add_u32 s11, s11, s5
            s_mul_i32 s11, s11, 3072
            s_add_u32 s11, s11, %d
            v_mov_b32 v216, 0
            v_mov_b32 v217, 0
            v_xor_b32 v218, s10, 1
            v_mov_b32 v219, 0''' % WS_XCH)
            for k in range(3):
                e('buffer_store_dwordx4 v[216:219], v254, %s, s11 offen offset:%d' % (sq(rWS), 1024 * k))
        self.ts(1)
        e('s_barrier')
        for x in reads(BA, 0): e(x)
        self.count_in(3)
        if self.opt.get('pre2'):
            e('v_mov_b32 v216, 0\nv_mov_b32 v217, 0\nv_xor_b32 v218, s10, 1\nv_mov_b32 v219, 0')
            for k in range(3):
                e('''s_mul_i32 s11, s5, 3
                s_add_u32 s11, s11, %d
                s_lshr_b32 s12, s11, 1
                s_and_b32 s11, s11, 1
                s_mul_i32 s13, s6, 6
                s_add_u32 s12, s12, s13
                s_min_u32 s12, s12, 127
                s_mul_i32 s12, s12, 10
                s_add_u32 s12, s12, s8
                s_lshl_b32 s12, s12, 1
                s_add_u32 s12, s12, s11
                s_lshl_b32 s12, s12, 10
                s_add_u32 s12, s12, %d
                buffer_store_dwordx4 v[216:219], v254, %s, s12 offen sc1''' % (k, WS_O, sq(rWS)))
        e('s_waitcnt lgkmcnt(0)')
        half(BB, 1, BA, nxt, True)
        e('L_kloop:\ns_barrier')
        half(BA, 0, BB, ['s_add_u32 s78, s78, 1\ns_cmp_ge_u32 s78, 10'])
        e('s_cbranch_scc1 L_ktail')
        half(BB, 1, BA, nxt)
        e('s_branch L_kloop\nL_ktail:')
        CS = (BA + 28, BA + 32, BB + 28)
        def fixt(y, T, pk):
            a = acc(y, T); st = vr(ST + 2 * T, 2); ops = []
            for h in range(2):
                ops.append('v_pk_mul_f32 %s, %s, %s op_sel_hi:[1,0]' % (vr(a + 2 * h, 2), vr(a + 2 * h, 2), st))
            if pk:
                for h in range(2):
                    ops.append('v_pk_fma_f32 %s, %s, %s, %s op_sel:[0,1,0] op_sel_hi:[1,1,1]' % (vr(a + 2 * h, 2), vr(CS[y] + 2 * h, 2), st, vr(a + 2 * h, 2)))
            else:
                for r in range(4):
                    ops.append('v_fmac_f32 v%d, v%d, v%d' % (a + r, CS[y] + r, ST + 2 * T + 1))
            ops.append('v_cvt_pk_bf16_f32 v%d, v%d, v%d' % (a, a, a + 1))
            ops.append('v_cvt_pk_bf16_f32 v%d, v%d, v%d' % (a + 1, a + 2, a + 3))
            ops.append('ds_write_b64 v15, %s offset:%d' % (vr(a, 2), T * 16 * P + y * 160))
            return ops
        def csum(y):
            return ['v_mov_b32_dpp v%d, v%d row_newbcast:0 row_mask:0xf bank_mask:0xf' % (CS[y] + r, acc(y, 0) + r) for r in range(4)]
        self.fixv = lambda: csum(2) + [x for T in range(7) for x in fixt(2, T, True)]
        R = reads(BB, 1)
        R = R[:2] + R[6:] + R[2:6] + ['ds_read_b64 %s, v14 offset:%d' % (vr(ST + 2 * T, 2), 128 * T) for T in range(7)]
        M = [mf(bf, y, T) for bf, y in ((BA, 0), (BA, 1), (BB, 0), (BB, 1), (BA, 2), (BB, 2)) for T in range(7)]
        units = [('c', 0, 0)] + [('t', 0, T) for T in range(1, 7)] + [('c', 1, 0)] + [('t', 1, T) for T in range(7)]
        SC = self.att_scalars(); assert len(SC) <= 56
        PL = self.p2_loads(True)
        q = []; FILL = self.opt.get('fill', 3)
        for k in range(42):
            if k == 14: e('s_waitcnt lgkmcnt(11)')
            if k == 17:
                e('s_waitcnt lgkmcnt(0)\ns_mov_b64 exec, 1\nds_add_u32 v6, v7 offset:8\ns_mov_b64 exec, -1')
            e(M[k])
            if k < 10:
                e(R[2 * k]); e(R[2 * k + 1])
            if 10 <= k < 14: e(PL[k - 10])
            if k < 14:
                for _ in range(4):
                    if SC: e(SC.pop(0))
            if k >= 18:
                for _ in range(FILL):
                    if not q and units:
                        u = units.pop(0)
                        q = csum(u[1]) if u[0] == 'c' else fixt(u[1], u[2], False)
                    if q: e(q.pop(0))
        self.ts(3)
        for x in q: e(x)
        first = True
        for u in units:
            for x in (csum(u[1]) if u[0] == 'c' else fixt(u[1], u[2], not first)): e(x)
            first = False

    def attention(self):
        e = self.e
        e('L_img:')
        e('''s_mov_b64 exec, 1
        ds_add_u32 v6, v7 offset:12
        s_mov_b64 exec, -1
        L_img2:
        v_mov_b32 v8, %d
        s_mov_b32 s15, %d
        L_imw:
        ds_read_b32 v3, v8 offset:12
        s_waitcnt lgkmcnt(0)
        v_readfirstlane_b32 s11, v3
        s_cmp_ge_u32 s11, 8
        s_cbranch_scc1 L_imok
        IMSLEEP
        s_sub_u32 s15, s15, 1
        s_cmp_lg_u32 s15, 0
        s_cbranch_scc1 L_imw
        L_imok:
        s_setprio 3''' % (TAB + 896, SPIN * 8))
        if self.opt.get('lts'): self.opt['ts_off'] = 1
        self.ts(4)
        if self.opt.get('dump_img'):
            e("""s_mul_i32 s11, s6, 10
            s_add_u32 s11, s11, s8
            s_mul_i32 s11, s11, 0x10000
            s_add_u32 s11, s11, 0x1000000
            s_lshl_b32 s12, s5, 10
            v_lshlrev_b32 v2, 4, v0
            v_add_u32 v2, s12, v2
            s_mov_b32 s54, 0x10000000""")
            for j in range(10):
                e("""ds_read_b128 v[100:103], v2
                s_waitcnt lgkmcnt(0)
                buffer_store_dwordx4 v[100:103], v2, %s, s11 offen
                v_add_u32 v2, 6144, v2
                s_waitcnt vmcnt(0)""" % sq(rWS))
        Qr, Kr, Vr, Sr, Er, Xr, Pr, Rr = 196, 16, 48, 100, 132, 148, 72, 88
        def qrd(sgs):
            e('s_mov_b32 exec_hi, 0')
            for sg in sgs: e('ds_read_b64 %s, v228 offset:%d' % (vr(Qr + 4 * sg, 2), 40 * sg))
            e('s_mov_b32 exec_hi, 0xffff')
            for sg in sgs: e('ds_read_b64 %s, v228 offset:%d' % (vr(Qr + 4 * sg + 2, 2), 40 * sg + 16))
            e('s_mov_b64 exec, -1')
        def krd(sg):
            for h, av in enumerate((228, 231)):
                for u in range(2):
                    e('ds_read_b64 %s, v%d offset:%d' % (vr(Kr + 8 * sg + 4 * h + 2 * u, 2), av, 160 + 40 * sg + 16 * u))
        qrd((0, 3)); krd(0); krd(3)
        e('v_mov_b32 v%d, s74\nv_mov_b32 v%d, s74' % (Er + 2, Er + 14))
        def smf(sg):
            for h in range(2):
                e('v_mfma_f32_16x16x32_bf16 %s, %s, %s, 0' % (vr(Sr + 8 * sg + 4 * h, 4), vr(Kr + 8 * sg + 4 * h, 4), vr(Qr + 4 * sg, 4)))
        def sel(sg):
            c = Sr + 8 * sg; p = c + 4
            e('v_cndmask_b32 v%d, v%d, v%d, s[64:65]' % (c, c, c + 1)); e('v_cndmask_b32 v%d, v%d, v%d, s[64:65]' % (c + 2, c + 2, c + 3))
            e('v_cndmask_b32 v%d, v%d, v%d, s[64:65]' % (p, p, p + 1)); e('v_cndmask_b32 v%d, v%d, v%d, s[64:65]' % (p + 2, p + 2, p + 3))
            e('v_cndmask_b32 v%d, v%d, v%d, s[66:67]' % (Er + 4 * sg, p, c)); e('v_cndmask_b32 v%d, v%d, v%d, s[68:69]' % (Er + 4 * sg + 1, p + 2, c + 2))
        vrd = []
        for j in range(5):
            vrd.append('ds_read_b64_tr_b16 %s, v229 offset:%d' % (vr(Vr + 4 * j, 2), 16 * P + 320 + 32 * j))
            vrd.append('ds_read_b64_tr_b16 %s, v229 offset:%d' % (vr(Vr + 4 * j + 2, 2), 320 + 32 * j))
        e('s_waitcnt lgkmcnt(4)'); smf(0)
        e('s_waitcnt lgkmcnt(0)'); smf(3)
        qrd((1, 2)); krd(1)
        sel(0)
        e('buffer_store_dwordx4 %s, v254, %s, s70 offen' % (vr(Er, 4), sq(rWS)))
        sel(3)
        e('buffer_store_dwordx4 %s, v254, %s, s71 offen' % (vr(Er + 12, 4), sq(rWS)))
        self.ts(5)
        krd(2)
        e('s_waitcnt lgkmcnt(4)'); smf(1)
        e('s_waitcnt lgkmcnt(0)'); smf(2)
        sel(1); sel(2)
        xl = ['buffer_load_dwordx3 %s, v254, %s, s%d offen sc1' % (vr(Xr + 4 * k, 3), sq(rWS), 72 + k) for k in range(2)]
        XW = self.opt.get('xw', 1)
        e('v_mov_b32 v12, 0x3ea52b5c')
        e('s_cmp_ge_u32 s5, 4\ns_cbranch_scc1 L_nov')
        FV = self.fixv()
        for n, x in enumerate(FV):
            if n == 4 + 7 * XW:
                for y in xl: e(y)
            e(x)
        e('s_mov_b64 exec, 1\nds_add_u32 v6, v7\ns_mov_b64 exec, -1\ns_branch L_nov2\nL_nov:')
        for y in xl: e(y)
        e('L_nov2:\ns_waitcnt vmcnt(4)')
        self.xn_prep()
        if self.opt.get('ats'): self.ts(1)
        e('s_waitcnt vmcnt(0)')
        if self.opt.get('ats') == 1: self.ts(3)
        for k in range(2):
            e("""v_cmp_ne_u32 vcc, s%d, v%d
            s_cmp_lg_u64 vcc, 0
            s_cbranch_scc1 L_xretry%d
            L_xok%d:""" % (76 + k, Xr + 4 * k + 2, k, k))
        e('v_pk_add_f32 %s, %s, %s' % (vr(Er, 2), vr(Er, 2), vr(Xr, 2)))
        e('v_pk_add_f32 %s, %s, %s' % (vr(Er + 12, 2), vr(Er + 12, 2), vr(Xr + 4, 2)))
        self.ts(6)
        e("""s_or_b32 s11, s6, s5
        s_cmp_lg_u32 s11, 0
        s_cbranch_scc1 L_nomask
        v_mov_b32 v3, 0xce6e6b28""")
        for sg in range(4):
            e('v_cndmask_b32 v%d, v3, v%d, s[66:67]\nv_cndmask_b32 v%d, v3, v%d, s[68:69]' % (Er + 4 * sg, Er + 4 * sg, Er + 4 * sg + 1, Er + 4 * sg + 1))
        e('L_nomask:')
        A, B_, C, D_ = Rr, Rr + 2, Rr + 4, Rr + 6
        def allred(op, mid=None):
            for sg in range(4):
                e('%s v%d, v%d, v%d' % (op, Rr + 2 * sg, Er + 4 * sg, Er + 4 * sg + 1))
            e('v_permlane32_swap_b32 v%d, v%d\nv_permlane32_swap_b32 v%d, v%d' % (A, C, B_, D_))
            e('%s v%d, v%d, v%d\n%s v%d, v%d, v%d' % (op, A, A, C, op, B_, B_, D_))
            e('v_permlane16_swap_b32 v%d, v%d' % (A, B_))
            e('%s v%d, v%d, v%d' % (op, A, A, B_))
            if mid: e(mid % (A, A))
            e('v_mov_b32 v%d, v%d\nv_permlane16_swap_b32 v%d, v%d' % (B_, A, A, B_))
            e('v_mov_b32 v%d, v%d\nv_mov_b32 v%d, v%d' % (C, A, D_, B_))
            e('v_permlane32_swap_b32 v%d, v%d\nv_permlane32_swap_b32 v%d, v%d' % (A, C, B_, D_))
        e('ds_read_b32 v4, v8 offset:16\nds_read_b32 v3, v8')
        allred('v_max_f32', 'v_mul_f32 v%d, v12, v%d')
        e('''s_waitcnt lgkmcnt(0)
        v_readfirstlane_b32 s11, v3
        v_readfirstlane_b32 s9, v4
        s_cmp_lt_u32 s11, 4
        s_cbranch_scc1 L_vw
        L_vok:''')
        self.tail.append(lambda: e('''L_vw:
        s_mov_b32 s15, 800000
        L_vw2:
        ds_read_b32 v3, v8
        s_waitcnt lgkmcnt(0)
        v_readfirstlane_b32 s11, v3
        s_cmp_ge_u32 s11, 4
        s_cbranch_scc1 L_vok
        s_sub_u32 s15, s15, 1
        s_cmp_lg_u32 s15, 0
        s_cbranch_scc1 L_vw2
        s_branch L_vok'''))
        if self.opt.get('ats'): self.ts(2)
        for x in vrd: e(x)
        for sg in range(4):
            e('v_pk_fma_f32 %s, %s, v[12:13], %s op_sel_hi:[1,0,0] neg_lo:[0,0,1] neg_hi:[0,0,1]' % (vr(Er + 4 * sg, 2), vr(Er + 4 * sg, 2), vr(Rr + 2 * sg, 2)))
        for sg in range(4):
            e('v_exp_f32 v%d, v%d\nv_exp_f32 v%d, v%d' % (Er + 4 * sg, Er + 4 * sg, Er + 4 * sg + 1, Er + 4 * sg + 1))
        allred('v_add_f32', 'v_rcp_f32 v%d, v%d')
        e('s_waitcnt lgkmcnt(0)\ns_mov_b64 exec, 1\nv_mov_b32 v3, 1\nds_add_u32 v8, v3 offset:4\ns_mov_b64 exec, -1')
        for sg in range(4):
            e('v_pk_mul_f32 %s, %s, %s op_sel_hi:[1,0]' % (vr(Er + 4 * sg, 2), vr(Er + 4 * sg, 2), vr(Rr + 2 * sg, 2)))
        def pv(j, sg, k):
            e('v_mfma_f32_16x16x32_bf16 %s, %s, %s, 0' % (vr(Sr + 4 * k, 4), vr(Vr + 4 * j, 4), vr(Pr + 4 * sg, 4)))
        for sg in range(4):
            x0, x1 = Er + 4 * sg + 2, Er + 4 * sg + 3
            e('v_cvt_pk_bf16_f32 v%d, v%d, v%d\nv_cvt_pk_bf16_f32 v%d, v%d, v%d' % (x0, Er + 4 * sg, Er + 4 * sg, x1, Er + 4 * sg + 1, Er + 4 * sg + 1))
            for r in range(4):
                e('v_and_b32 v%d, v%d, v%d' % (Pr + 4 * sg + r, 212 + r, (x0, x1)[r & 1]))
            if sg: pv(sg - 1, sg - 1, 2 * sg - 2); pv(sg, sg - 1, 2 * sg - 1)
        pv(3, 3, 6); pv(4, 3, 7)
        if self.opt.get('ats') == 2: self.ts(3)
        Or = 220
        def cv(j, k):
            e('v_cvt_pk_bf16_f32 v%d, v%d, v%d\nv_cvt_pk_bf16_f32 v%d, v%d, v%d' % (Or + 2 * j, Sr + 4 * k, Sr + 4 * k + 1, Or + 2 * j + 1, Sr + 4 * k + 2, Sr + 4 * k + 3))
        e('v_lshlrev_b32 v4, 2, v0\nv_mov_b32 v5, s10\nv_mov_b32 v6, 0x10000')
        cv(0, 0); cv(1, 2); cv(2, 4)
        e('s_mov_b64 exec, 0xffff'); cv(1, 1)
        e('s_mov_b32 exec_lo, -1'); cv(2, 3)
        e('s_mov_b64 exec, -1'); cv(3, 6)
        e('s_mov_b32 exec_hi, 0xffff'); cv(3, 5)
        e('s_not_b64 exec, s[28:29]'); cv(0, 7)
        e('s_mov_b64 exec, -1')
        e("""s_and_b32 s11, s31, s9
        s_cbranch_scc1 L_oloc
        buffer_store_dwordx4 v[220:223], v254, s[52:55], s25 offen sc1
        v_add3_u32 v3, v220, v221, v222
        buffer_store_dwordx4 v[224:227], v254, s[52:55], s25 offen offset:1024 sc1
        v_add3_u32 v3, v3, v223, v224
        v_add3_u32 v3, v3, v225, v226
        v_add3_u32 v3, v3, v227, s10
        buffer_store_dword v3, v4, s[52:55], s26 offen sc1
        s_mov_b64 exec, 1
        buffer_store_dword v5, v4, s[52:55], s30 offen sc1
        s_branch L_opub
        L_oloc:
        buffer_store_dwordx4 v[220:223], v254, s[52:55], s25 offen
        v_add3_u32 v3, v220, v221, v222
        buffer_store_dwordx4 v[224:227], v254, s[52:55], s25 offen offset:1024
        v_add3_u32 v3, v3, v223, v224
        v_add3_u32 v3, v3, v225, v226
        v_add3_u32 v3, v3, v227, s10
        buffer_store_dword v3, v4, s[52:55], s26 offen
        s_mov_b64 exec, 1
        buffer_store_dword v5, v4, s[52:55], s30 offen
        L_opub:
        ds_add_u32 v8, v6 offset:4
        s_mov_b64 exec, -1""")
        self.tail.append(lambda: self.xretry(Er, Xr))

    def xretry(self, Er, Xr):
        e = self.e
        for k in range(2):
            own, got = Er + 12 * k, Xr + 4 * k
            e("""L_xretry%d:
            s_mov_b32 s15, 0
            L_xr%d:
            s_mov_b64 exec, vcc
            s_add_u32 s15, s15, 1
            s_cmp_ge_u32 s15, %d
            s_cbranch_scc1 L_xe%d
            s_cmp_lg_u32 s15, 48
            s_cbranch_scc1 L_xs%d
            s_add_u32 s12, s%d, %d
            v_mov_b32 v%d, s10
            buffer_store_dwordx3 %s, v254, %s, s12 offen sc1
            L_xs%d:
            s_cmp_gt_u32 s15, 48
            s_cselect_b32 s11, s15, 0
            s_bitcmp1_b32 s11, 0
            s_cselect_b32 s75, s10, s74
            s_cselect_b32 s12, %d, 0
            s_add_u32 s12, s12, s%d
            buffer_load_dwordx3 %s, v254, %s, s12 offen sc1
            s_waitcnt vmcnt(0)
            v_cmp_ne_u32 vcc, s75, v%d
            s_cmp_lg_u64 vcc, 0
            s_cbranch_scc1 L_xr%d
            L_xe%d:
            s_mov_b64 exec, -1
            s_branch L_xok%d""" % (k, k, SPIN, k, k, 70 + k, WS_XCB - WS_XCH, own + 2, vr(own, 3), sq(rWS), k, WS_XCB - WS_XCH, 72 + k,
                                   vr(got, 3), sq(rWS), got + 2, k, k, k))

    def xn_prep(self):
        e = self.e
        XF, XN, T = 16, 196, 28
        a, b = self.lab('pc'), self.lab('pk')
        e("""s_mov_b32 s15, %d
        %s:
        v_cmp_ne_u32 vcc, s10, v237
        s_cmp_eq_u64 vcc, 0
        s_cbranch_scc1 %s
        s_sub_u32 s15, s15, 1
        s_cmp_eq_u32 s15, 0
        s_cbranch_scc1 %s
        s_sleep 8
        buffer_load_dwordx2 v[236:237], v235, %s, 0 offen sc1
        s_waitcnt vmcnt(0)
        s_branch %s
        %s:
        v_and_b32 v34, 0xffff0000, v236
        v_rcp_f32 v34, v34
        v_lshlrev_b32 v236, 16, v236""" % (SPIN, a, b, b, sq(rWS), a, b))
        def rnd():
            for d in range(6): e('v_cvt_pk_bf16_f32 v%d, v%d, v%d' % (T + d, XN + 2 * d, XN + 2 * d + 1))
            for d in range(6): e('v_lshlrev_b32 v%d, 16, v%d\nv_and_b32 v%d, 0xffff0000, v%d' % (XN + 2 * d, T + d, XN + 2 * d + 1, T + d))
        for d in range(6):
            e('v_lshlrev_b32 v%d, 16, v%d\nv_and_b32 v%d, 0xffff0000, v%d' % (XF + 2 * d, 238 + d, XF + 2 * d + 1, 238 + d))
        for d in range(6):
            e('v_pk_add_f32 %s, %s, v[236:237] op_sel_hi:[1,0] neg_lo:[0,1] neg_hi:[0,1]' % (vr(XN + 2 * d, 2), vr(XF + 2 * d, 2)))
        rnd()
        for d in range(6):
            e('v_pk_mul_f32 %s, %s, v[34:35] op_sel_hi:[1,0]' % (vr(XN + 2 * d, 2), vr(XN + 2 * d, 2)))
        rnd()
        for d in range(6):
            e('v_pk_add_f32 %s, %s, %s' % (vr(XN + 2 * d, 2), vr(XN + 2 * d, 2), vr(XF + 2 * d, 2)))

    def phase2(self):
        e = self.e
        NPRE = 8
        WF, XN = 16, 196
        OFL = [176 + 4 * k for k in range(5)] + [208 + 4 * k for k in range(5)]
        ACL = [228, 236, 240, 248, 12]
        CKL = [1, 2, 4, 10, 11]
        OF = 176
        UPD = TAB + 1024
        e('L_phase2:\ns_setprio 0')
        self.ts(7)
        def wrd(ks, slot):
            ops = []
            for t in range(5):
                for hh in range(2):
                    ll, jq = ks // 2, 2 * (ks % 2) + hh
                    av, rows = 244, 64 * ll + 16 * jq - 4 * ll
                    if jq == 0 and ll == 4: rows += 64
                    elif jq == 0: av = 244 + ll
                    ops.append('ds_read_b64_tr_b16 %s, v%d offset:%d' % (vr(WF + 20 * slot + 4 * t + 2 * hh, 2), av, rows * 160 + 32 * t))
            return ops
        e('v_mov_b32 v8, %d\nv_lshlrev_b32 v9, 2, v0\nds_read_b32 v7, v8 offset:4' % (TAB + 896))
        e("""s_waitcnt lgkmcnt(0)
        v_readfirstlane_b32 s11, v7
        s_mov_b32 s72, 0
        s_mov_b32 s73, 1
        s_and_b32 s11, s11, 0xff
        s_cmp_lt_u32 s11, 8
        s_cselect_b32 s11, s38, 0
        s_cmp_eq_u32 s11, 3
        s_cbranch_scc1 L_wskip
        s_mov_b32 s73, 0
        L_wrd:
        s_mov_b32 s15, %d
        L_wochk:
        ds_read_b32 v7, v8 offset:4
        s_waitcnt lgkmcnt(0)
        v_readfirstlane_b32 s11, v7
        s_and_b32 s11, s11, 0xff
        s_cmp_ge_u32 s11, 8
        s_cbranch_scc1 L_wook
        s_sleep 1
        s_sub_u32 s15, s15, 1
        s_cmp_lg_u32 s15, 0
        s_cbranch_scc1 L_wochk
        L_wook:""" % (SPIN * 4))
        for ks in range(NPRE):
            for x in wrd(ks, ks): e(x)
        e("""s_mov_b32 s15, %d
        s_cmp_lg_u32 s73, 0
        s_cbranch_scc1 L_wdone
        L_wskip:""" % SPIN)
        if self.opt.get('pts') in (1, 2): self.ts(3)
        e("""s_mov_b32 s15, %d
        s_cmp_eq_u32 s38, 0
        s_cbranch_scc1 L_ohint
        s_and_b32 s101, s100, s9
        s_mov_b32 s13, 0x80008
        s_cselect_b32 s13, 0x80010, s13
        s_cselect_b32 s14, LTH, RTH
        s_cbranch_scc1 L_ow2
        s_cmp_eq_u32 s38, 3
        s_cbranch_scc0 L_ow2
        s_waitcnt vmcnt(0)
        s_mov_b64 exec, 1
        v_mov_b32 v6, 0x100
        ds_add_u32 v8, v6 offset:4
        s_mov_b64 exec, -1
        s_mov_b32 s38, 2
        L_ow2:
        ds_read_b32 v3, v8 offset:4
        s_waitcnt lgkmcnt(0)
        v_readfirstlane_b32 s11, v3
        s_bfe_u32 s11, s11, s13
        s_cmp_ge_u32 s11, s14
        s_cbranch_scc1 L_ook
        s_sleep 1
        s_sub_u32 s15, s15, 1
        s_cmp_lg_u32 s15, 0
        s_cbranch_scc1 L_ow2
        L_ook:
        s_mov_b32 s15, %d""" % (SPIN * 4, SPIN))
        self.ts(8)
        if self.opt.get('wb'):
            e('''s_lshl_b32 s11, s4, 3
            s_add_u32 s11, s11, s5
            s_cmpk_lg_u32 s11, %d
            s_cbranch_scc1 L_nowb
            buffer_wbl2 sc1
            L_nowb:''' % (31 * 8 + 5))
        for j in range(5):
            e('L_old%d:' % j)
            for h in range(2):
                e('buffer_load_dwordx4 %s, v254, %s, s%d offen offset:%d sc1' % (vr(OFL[2 * j + h], 4), sq(rWS), 22 + j // 2, 2048 * (j % 2) + 1024 * h))
            e('buffer_load_dword v%d, v9, %s, s27 offen offset:%d sc1' % (CKL[j], sq(rWS), 256 * j))
        e('''s_cmp_eq_u32 s38, 3
        s_cbranch_scc0 L_noack
        s_waitcnt vmcnt(15)
        s_mov_b64 exec, 1
        v_mov_b32 v6, 0x100
        ds_add_u32 v8, v6 offset:4
        s_mov_b64 exec, -1
        s_mov_b32 s38, 2
        L_noack:''')
        e('s_cmp_lg_u32 s72, 0\ns_cbranch_scc1 L_odisp\ns_cmp_lg_u32 s73, 0\ns_cbranch_scc1 L_wrd\nL_wdone:\ns_waitcnt lgkmcnt(0)')
        def val(j):
            o, p = OFL[2 * j], OFL[2 * j + 1]
            return ['v_add3_u32 v3, v%d, v%d, v%d' % (o, o + 1, o + 2), 'v_add3_u32 v5, v%d, v%d, v%d' % (o + 3, p, p + 1),
                    'v_add3_u32 v3, v3, v%d, v%d' % (p + 2, p + 3), 'v_add3_u32 v3, v3, v5, s10',
                    'v_cmp_ne_u32 vcc, v3, v%d' % CKL[j]]
        def chk(j): e('s_mov_b32 s72, %d\ns_cmp_lg_u64 vcc, 0\ns_cbranch_scc1 L_oretry' % (j + 1))
        def mm(ks, fill=()):
            slot = ks if ks < NPRE else ks - NPRE
            if ks >= NPRE: e('s_waitcnt lgkmcnt(%d)' % min(15, 10 * (9 - ks)))
            for t in range(5):
                c = '0' if ks == 0 else vr(ACL[t], 4)
                e('v_mfma_f32_16x16x32_bf16 %s, %s, %s, %s' % (vr(ACL[t], 4), vr(WF + 20 * slot + 4 * t, 4), vr(OFL[ks], 4), c))
                for x in fill[t::5]: e(x)
        e('s_waitcnt vmcnt(12)')
        for x in val(0): e(x)
        chk(0); e('L_ogo0:')
        for j in range(5):
            if self.opt.get('pts') == 3 and j in (0, 2, 4): self.ts(1 + j // 2)
            mm(2 * j, wrd(9, 1) if j == 1 else ())
            if j < 4:
                e('s_waitcnt vmcnt(%d)' % (3 * (3 - j)))
                mm(2 * j + 1, val(j + 1) + (wrd(8, 0) if j == 0 else []))
                chk(j + 1); e('L_ogo%d:' % (j + 1))
            else:
                mm(9)
        def ovals():
            for j in range(5):
                e('L_oval%d:\ns_waitcnt vmcnt(%d)' % (j, 3 * (4 - j)))
                for x in val(j): e(x)
                chk(j); e('s_branch L_ogo%d' % j)
        self.tail.append(ovals)
        def otail():
            e("""L_oretry:
            s_waitcnt vmcnt(0)
            s_sub_u32 s15, s15, 1
            s_cmp_eq_u32 s15, 0
            s_cbranch_scc1 L_ogive
            s_sleep %d""" % self.opt.get('osl', 2))
            for j in range(5):
                e('s_cmp_eq_u32 s72, %d\ns_cbranch_scc1 L_old%d' % (j + 1, j))
            e('L_odisp:')
            for j in range(4):
                e('s_cmp_eq_u32 s72, %d\ns_cbranch_scc1 L_oval%d' % (j + 1, j))
            e('s_branch L_oval4\nL_ogive:\ns_mov_b32 s15, 1')
            for j in range(4):
                e('s_cmp_eq_u32 s72, %d\ns_cbranch_scc1 L_ogo%d' % (j + 1, j))
            e('s_branch L_ogo4')
            e("""L_ohint:
            v_lshlrev_b32 v3, 7, v0
            s_mov_b64 exec, 31
            L_of:
            buffer_load_dword v5, v3, %s, s63 offen sc1
            s_waitcnt vmcnt(0)
            v_cmp_ne_u32 vcc, s10, v5
            s_cmp_eq_u64 vcc, 0
            s_cbranch_scc1 L_of2
            s_mov_b64 exec, vcc
            s_sleep HSL
            s_sub_u32 s15, s15, 1
            s_cmp_lg_u32 s15, 0
            s_cbranch_scc1 L_of
            L_of2:
            s_mov_b64 exec, -1
            s_branch L_ook""" % sq(rWS))
        self.tail.append(otail)
        if self.opt.get('pts') == 1: self.ts(1)
        e("""v_mov_b32 v8, %d
        s_cmp_eq_u32 s61, 0
        s_cbranch_scc0 L_red1""" % UPD)
        pr = lambda t0, d: vr(ACL[t0 + d // 2] + 2 * (d % 2), 2)
        for t in (3, 4):
            e('ds_write_b128 v232, %s offset:%d' % (vr(ACL[t], 4), 4 * P * t))
        for d in range(6):
            e('v_pk_add_f32 %s, %s, %s' % (vr(XN + 2 * d, 2), vr(XN + 2 * d, 2), pr(0, d)))
        e('s_waitcnt lgkmcnt(0)\ns_barrier\nds_read2_b32 v[6:7], v8 offset0:0 offset1:1')
        for t in range(3):
            e('ds_read_b128 %s, v232 offset:%d' % (vr(16 + 4 * t, 4), 4 * P * t))
        e('s_waitcnt lgkmcnt(3)\ns_branch L_red2\nL_red1:')
        for t in range(3):
            e('ds_write_b128 v232, %s offset:%d' % (vr(ACL[t], 4), 4 * P * t))
        for d in range(4):
            e('v_pk_add_f32 %s, %s, %s' % (vr(XN + 2 * d, 2), vr(XN + 2 * d, 2), pr(3, d)))
        e('s_waitcnt lgkmcnt(0)\ns_barrier\nds_read2_b32 v[6:7], v8 offset0:0 offset1:1')
        for t in (3, 4):
            e('ds_read_b128 %s, v232 offset:%d' % (vr(16 + 4 * (t - 3), 4), 4 * P * t))
        e('s_waitcnt lgkmcnt(2)\nL_red2:')
        if self.opt.get('pts') == 2: self.ts(1)
        e("""v_readfirstlane_b32 s76, v6
        v_readfirstlane_b32 s77, v7
        s_lshr_b32 s11, s76, 4
        s_cmp_eq_u32 s11, s60
        s_cbranch_scc1 L_exrow0
        L_exb0:
        s_lshr_b32 s11, s77, 4
        s_cmp_eq_u32 s11, s60
        s_cbranch_scc1 L_exrow1
        L_exb1:
        s_waitcnt lgkmcnt(0)""")
        for d in range(6):
            e('v_pk_add_f32 %s, %s, %s' % (vr(16 + 2 * d, 2), vr(16 + 2 * d, 2), vr(XN + 2 * d, 2)))
            e('v_cvt_pk_bf16_f32 v%d, v%d, v%d' % (32 + d, 16 + 2 * d, 17 + 2 * d))
            if d == 3:
                e('v_permlane16_swap_b32 v32, v34\nv_permlane16_swap_b32 v33, v35')
                e('buffer_store_dwordx4 v[32:35], v233, %s, 0 offen OUTF' % sq(rOUT))
                e('s_cmp_lg_u32 s61, 0\ns_cbranch_scc1 L_fin')
        e('buffer_store_dwordx2 v[36:37], v234, %s, 0 offen offset:64 OUTF' % sq(rOUT))
        e('L_fin:')
        if self.opt.get('ts'):
            if self.opt.get('pts') in (1, 2): self.ts(2)
            if self.opt.get('rcnt'): e('s_waitcnt lgkmcnt(0)\ns_sub_u32 s11, %d, s15\ns_add_u32 s84, s80, s11' % SPIN)
            e('s_waitcnt vmcnt(0)')
            self.ts(9)
            e('s_waitcnt lgkmcnt(0)\nv_mov_b32 v15, 0')
            for k in range(10):
                e('v_mov_b32 v%d, s%d' % (16 + k, 80 + 2 * k))
            e("""s_lshl_b32 s11, s2, 3
            s_add_u32 s11, s11, s5
            s_lshl_b32 s11, s11, 6
            s_add_u32 s11, s11, %d
            s_mov_b64 exec, 1
            buffer_store_dwordx4 v[16:19], v15, %s, s11 offen
            buffer_store_dwordx4 v[20:23], v15, %s, s11 offen offset:16
            buffer_store_dwordx2 v[24:25], v15, %s, s11 offen offset:32""" % (WS_TS, sq(rWS), sq(rWS), sq(rWS)))
        e('s_endpgm')
        for k in range(2):
            e("""L_exrow%d:
            v_lshrrev_b32 v3, 4, v0
            s_mul_i32 s11, s61, 192
            s_add_u32 s11, s11, %d
            v_lshl_add_u32 v3, v3, 4, s11""" % (k, UPD + 16 + 1536 * k))
            for t in range(3):
                e('ds_read_b128 %s, v3 offset:%d' % (vr(OF + 4 * t, 4), 64 * t))
            e("""v_and_b32 v3, 15, v0
            s_and_b32 s11, s%d, 15
            v_cmp_eq_u32 vcc, s11, v3
            s_waitcnt lgkmcnt(0)""" % (76 + k))
            for d in range(6):
                e('v_pk_add_f32 %s, %s, %s' % (vr(OF + 2 * d, 2), vr(OF + 2 * d, 2), vr(XN + 2 * d, 2)))
            for r in range(12):
                e('v_cndmask_b32 v%d, v%d, v%d, vcc' % (XN + r, XN + r, OF + r))
            e('s_branch L_exb%d' % k)

    def p2wo(self):
        e = self.e
        UPD = TAB + 1024
        e('L_p2wo:')
        self.p2_loads()
        e("""v_mov_b32 v8, %d
        v_mov_b32 v3, 1
        s_waitcnt vmcnt(0)
        s_mov_b64 exec, 1
        ds_add_u32 v8, v3 offset:4
        s_mov_b64 exec, -1
        XNPREP
        s_lshl_b32 s11, s2, 3
        s_add_u32 s11, s11, s5
        s_cmpk_lg_u32 s11, 1927
        s_cbranch_scc1 L_noep
        v_add_u32 v4, 0x2e0000, v254
        s_mov_b32 s15, 200000
        L_ep:
        buffer_load_dwordx4 v[16:19], v4, s[52:55], 0 offen sc1
        s_waitcnt vmcnt(0)
        v_xor_b32 v16, s10, v16
        v_xor_b32 v17, s10, v17
        v_xor_b32 v18, s10, v18
        v_xor_b32 v19, s10, v19
        v_or3_b32 v16, v16, v17, v18
        v_or_b32 v16, v16, v19
        v_lshlrev_b32 v16, 4, v16
        v_cmp_ne_u32 vcc, 0, v16
        s_cmp_eq_u64 vcc, 0
        s_cbranch_scc1 L_ep2
        s_sleep 8
        s_sub_u32 s15, s15, 1
        s_cmp_lg_u32 s15, 0
        s_cbranch_scc1 L_ep
        L_ep2:
        v_mov_b32 v4, 0
        v_mov_b32 v5, s10
        s_mov_b64 exec, 1
        global_store_dword v4, v5, s[36:37] sc1
        s_mov_b64 exec, -1
        L_noep:
        s_cmp_lg_u32 s5, 6
        s_cbranch_scc1 L_phase2
        v_mov_b32 v4, 0
        s_mov_b32 s15, %d
        L_sel:
        buffer_load_dwordx4 v[16:19], v4, %s, 0 offen offset:%d sc1
        s_waitcnt vmcnt(0)
        v_readfirstlane_b32 s11, v17
        v_readfirstlane_b32 s12, v19
        v_readfirstlane_b32 s76, v16
        v_readfirstlane_b32 s79, v18
        s_cmp_eq_u32 s11, s12
        s_cselect_b32 s11, s11, 0
        s_cselect_b32 s12, s10, 1
        s_mov_b32 s78, 0
        s_cmp_eq_u32 s11, s12
        s_cbranch_scc1 L_selok
        s_sleep 8
        s_sub_u32 s15, s15, 1
        s_cmp_lg_u32 s15, 0
        s_cbranch_scc1 L_sel
        L_selok:
        s_and_b32 s77, s76, 0xffff
        s_sub_u32 s77, 2047, s77
        s_lshl_b32 s11, s78, 2
        s_add_u32 s11, s11, %d
        v_mov_b32 v3, s11
        v_mov_b32 v4, s77
        ds_write_b32 v3, v4
        s_lshr_b32 s11, s77, 6
        s_lshr_b32 s12, s60, 2
        s_cmp_lg_u32 s11, s12
        s_cbranch_scc1 L_selnext
        v_mul_u32_u24 v3, 13, v0
        v_lshrrev_b32 v3, 8, v3
        v_mul_u32_u24 v4, 20, v3
        v_sub_u32 v4, v0, v4
        v_mul_u32_u24 v5, 40960, v3
        v_lshl_add_u32 v5, v4, 5, v5
        v_lshrrev_b32 v4, 2, v4
        v_lshl_add_u32 v5, v4, 7, v5
        s_lshr_b32 s14, s4, 2
        s_mul_i32 s14, s14, 1280
        s_lshl_b32 s13, s78, 4
        s_add_u32 s14, s14, s13
        s_add_u32 s14, s14, %d
        s_lshr_b32 s11, s76, 16
        s_bitcmp1_b32 s11, 15
        s_mov_b32 s13, 0xffff
        s_cmov_b32 s13, 0x8000
        s_xor_b32 s11, s11, s13
        s_lshl_b32 s11, s11, 16
        v_mov_b32 v6, 0xbfb8aa3b
        v_mul_f32 v6, s11, v6
        v_exp_f32 v6, v6
        v_add_f32 v6, 1.0, v6
        v_rcp_f32 v6, v6
        v_cvt_pk_bf16_f32 v6, v6, v6
        v_and_b32 v6, 0xffff0000, v6
        s_mul_i32 s11, s78, 1536
        s_add_u32 s11, s11, %d
        v_add_u32 v7, s11, v254
        s_mov_b32 s15, %d
        s_mov_b32 exec_hi, 0xfffffff
        L_yf:
        s_mov_b32 s12, s14""" % (TAB + 896, SPIN, sq(rWS), WS_SEL, UPD, WS_Y, UPD + 16, SPIN))
        assert all((x * 13) >> 8 == x // 20 for x in range(60))
        for j in range(4):
            for h in range(2):
                e('buffer_load_dwordx4 %s, v5, %s, s12 offen offset:%d sc1' % (vr(32 + 8 * j + 4 * h, 4), sq(rWS), 128 * h))
            if j < 3: e('s_add_u32 s12, s12, 10240')
        e('s_waitcnt vmcnt(0)\nv_mov_b32 v3, 0')
        for j in range(4):
            e('v_xor_b32 v4, s10, v%d\nv_xor_b32 v9, s10, v%d\nv_or3_b32 v3, v3, v4, v9' % (32 + 8 * j + 2, 32 + 8 * j + 6))
        e("""v_cmp_ne_u32 vcc, 0, v3
        s_cmp_eq_u64 vcc, 0
        s_cbranch_scc1 L_yok
        s_mov_b64 exec, vcc
        s_sleep 4
        s_sub_u32 s15, s15, 1
        s_cmp_lg_u32 s15, 0
        s_cbranch_scc1 L_yf
        L_yok:
        s_mov_b32 exec_lo, -1
        s_mov_b32 exec_hi, 0xfffffff""")
        for h in range(2):
            e('v_pk_add_f32 %s, %s, %s' % (vr(16 + 2 * h, 2), vr(32 + 4 * h, 2), vr(40 + 4 * h, 2)))
        for j in (2, 3):
            for h in range(2):
                e('v_pk_add_f32 %s, %s, %s' % (vr(16 + 2 * h, 2), vr(16 + 2 * h, 2), vr(32 + 8 * j + 4 * h, 2)))
        e("""ds_write_b128 v7, v[16:19] offset:320
        s_waitcnt lgkmcnt(0)
        s_mov_b64 exec, 0xfffff
        ds_read_b128 v[20:23], v7 offset:640
        ds_read_b128 v[24:27], v7 offset:960
        s_waitcnt lgkmcnt(0)""")
        for j in (1, 2):
            for h in range(2):
                e('v_pk_add_f32 %s, %s, %s' % (vr(16 + 2 * h, 2), vr(16 + 2 * h, 2), vr(16 + 4 * j + 2 * h, 2)))
        def rnd2():
            e("""v_cvt_pk_bf16_f32 v20, v16, v17
            v_cvt_pk_bf16_f32 v21, v18, v19
            v_lshlrev_b32 v16, 16, v20
            v_and_b32 v17, 0xffff0000, v20
            v_lshlrev_b32 v18, 16, v21
            v_and_b32 v19, 0xffff0000, v21""")
        rnd2()
        for r in range(4): e('v_mul_f32 v%d, v%d, v6' % (16 + r, 16 + r))
        rnd2()
        e("""ds_write_b128 v7, v[16:19]
        s_waitcnt lgkmcnt(0)
        s_mov_b64 exec, -1
        L_selnext:
        s_mov_b32 s76, s79
        s_add_u32 s78, s78, 1
        s_cmp_lt_u32 s78, 2
        s_cbranch_scc1 L_selok
        s_branch L_phase2""")

    def expert(self):
        e = self.e
        BUF = 32768
        ETS = self.opt.get('ets', 0)
        e("""L_aux:
        s_cmp_ge_u32 s79, 4
        s_cbranch_scc1 L_idle""")
        e("""s_mul_i32 s68, s78, 12
        s_add_u32 s68, s68, s79
        s_lshl_b32 s11, s77, 1
        s_lshl_b32 s11, s11, s76
        s_add_u32 s68, s68, s11
        s_lshl_b32 s11, s76, 2
        s_add_u32 s68, s68, s11
        s_and_b32 s14, s5, 1
        s_lshr_b32 s69, s5, 1
        v_lshrrev_b32 v2, 3, v0
        v_and_b32 v3, 7, v0
        v_bfe_u32 v4, v0, 4, 1
        v_lshl_or_b32 v4, s14, 1, v4
        v_lshlrev_b32 v4, 1, v4
        v_xor_b32 v4, v3, v4
        s_and_b32 s12, s68, 1
        s_mul_i32 s12, s12, 320
        s_lshl_b32 s11, s14, 3
        s_add_u32 s11, s11, s12
        v_add_u32 v2, s11, v2
        v_mul_u32_u24 v2, 3072, v2
        v_lshl_add_u32 v2, v4, 4, v2
        s_and_b32 s11, s68, 30
        s_and_b32 s12, s69, 1
        s_add_u32 s11, s11, s12
        s_lshl_b32 s11, s11, 7
        v_add_u32 v10, s11, v2
        s_lshl_b32 s74, s69, 13
        s_lshl_b32 s11, s14, 10
        s_add_u32 s75, s74, s11
        s_waitcnt lgkmcnt(0)
        s_cmp_lt_u32 s5, 4
        s_cselect_b32 s44, s26, s28
        s_cselect_b32 s45, s27, s29
        s_mov_b32 s46, %d
        s_mov_b32 s47, 0x20000""" % GB)
        nt = ' nt' if self.opt.get('nt', 1) else ''
        def issue(s):
            base = (s % 4) * BUF
            for a in range(4):
                e('s_add_u32 m0, s75, %d\ns_mov_b32 s12, %d' % (base + a * 2048, (64 * s + 16 * a) * 3072))
                e('buffer_load_dwordx4 v10, %s, s12 offen%s lds' % (sq(rW), nt))
        if ETS == 1: self.ts(1)
        issue(0)
        e('s_branch L_expert2')
        self.expert_rest = lambda: self.expert2(issue)

    def expert2(self, issue):
        e = self.e
        WG_, XS = 32, 112
        BUF = 32768
        MX = TAB + 4096
        ETS = self.opt.get('ets', 0)
        e('L_expert2:')
        self.tag_load()
        self.srd(rX, pX, XB); self.srd(rWS, pWS, WSB)
        self.p2_setup()
        self.wo_setup(11)
        e("""v_and_b32 v1, 15, v0
        v_lshrrev_b32 v2, 4, v0
        v_lshrrev_b32 v3, 2, v1
        v_and_b32 v4, 3, v1
        v_lshrrev_b32 v5, 1, v3
        v_and_b32 v6, 1, v2
        v_lshl_or_b32 v5, v6, 1, v5
        s_lshl_b32 s11, s14, 1
        v_xor_b32 v5, s11, v5
        v_lshl_add_u32 v7, v2, 3, v3
        v_lshlrev_b32 v8, 7, v7
        v_lshl_add_u32 v8, v5, 5, v8
        v_lshl_add_u32 v8, v4, 3, v8
        v_add_u32 v16, s74, v8
        s_lshl_b32 s11, s5, 6
        v_add_u32 v21, s11, v0
        v_lshlrev_b32 v17, 4, v21
        v_add_u32 v17, %d, v17
        v_and_b32 v5, 1, v1
        v_mul_u32_u24 v19, 656, v5
        v_lshl_add_u32 v19, v2, 4, v19
        v_add_u32 v19, %d, v19
        v_lshlrev_b32 v20, 5, v2
        v_lshl_add_u32 v20, v1, 4, v20
        s_lshl_b32 s72, s68, 1
        s_lshr_b32 s11, s5, 2
        s_add_u32 s72, s72, s11
        s_lshl_b32 s72, s72, 11
        s_and_b32 s11, s5, 3
        s_lshl_b32 s11, s11, 8
        s_add_u32 s72, s72, s11
        s_add_u32 s72, s72, %d
        v_mov_b32 v8, %d
        v_mov_b32 v9, 0
        ds_write_b32 v8, v9 offset:4""" % (WS_KEY, MX, WS_H, TAB + 896))
        issue(1); issue(2); issue(3)
        self.tag_ready()
        def consume(s, n):
            base = (s % 4) * BUF
            e('s_waitcnt vmcnt(%d)\ns_barrier' % n)
            if ETS == 1 and s in (0, 2, 4): self.ts({0: 4, 2: 5, 4: 6}[s])
            e('v_add_u32 v8, %d, v16\nv_xor_b32 v9, 32, v8' % base)
            for t in range(2):
                for tl in range(2):
                    for hh in range(2):
                        e('ds_read_b64_tr_b16 %s, v%d offset:%d' % (vr(WG_ + 40 * tl + 4 * (2 * s + t) + 2 * hh, 2), 8 + tl, (32 * t + 4 * hh) * 128))
        B = 120
        v = lambda k: 'v%d' % (B + k)
        def sweep():
            e('s_mov_b32 s12, 8192')
            e('buffer_load_dwordx4 %s, v17, %s, 0 offen sc1\nbuffer_load_dwordx4 %s, v17, %s, s12 offen sc1' % (vr(B + 2, 4), sq(rWS), vr(B + 6, 4), sq(rWS)))
        SW = self.opt.get('sw', 0)
        consume(0, 12)
        e('s_waitcnt lgkmcnt(0)\ns_barrier')
        self.count_in(7)
        if SW == 0: sweep()
        issue(4)
        consume(1, 12 + 2 * (SW == 0))
        if SW == 1: sweep()
        consume(2, 8 + 2 * (SW <= 1))
        if SW == 2: sweep()
        consume(3, 6)
        if SW: consume(4, 2)
        MK = TAB
        e("""s_mov_b32 s15, %d
        s_waitcnt vmcnt(%d)
        L_sweep:
        v_xor_b32 v5, s10, %s
        v_xor_b32 v6, s10, %s
        v_xor_b32 v7, s10, %s
        v_xor_b32 v8, s10, %s
        v_or3_b32 v5, v5, v6, v7
        v_or_b32 v5, v5, v8
        v_cmp_ne_u32 vcc, 0, v5
        s_cmp_eq_u64 vcc, 0
        s_cbranch_scc1 L_swok
        s_mov_b64 exec, vcc
        s_sub_u32 s15, s15, 1
        s_cmp_eq_u32 s15, 0
        s_cbranch_scc1 L_swok
        s_sleep 4""" % (SPIN, 0 if SW else 4, v(3), v(5), v(7), v(9)))
        sweep()
        e('s_waitcnt vmcnt(0)\ns_branch L_sweep\nL_swok:\ns_mov_b64 exec, -1')
        if ETS == 2: self.ts(1)
        e("""v_max_u32 v5, %s, %s
        v_min_u32 v6, %s, %s
        v_max_u32 v7, %s, %s
        v_min_u32 v8, %s, %s
        v_max_u32 v3, v5, v7
        v_min_u32 v5, v5, v7
        v_max3_u32 v4, v5, v6, v8""" % (v(2), v(4), v(2), v(4), v(6), v(8), v(6), v(8)))
        def merge16():
            for n in (8, 4, 2, 1):
                d = 'row_ror:%d row_mask:0xf bank_mask:0xf' % n
                e("""v_min_u32_dpp v5, v3, v3 %s
                v_max_u32_dpp v4, v4, v4 %s
                v_max_u32_dpp v3, v3, v3 %s
                v_max_u32 v4, v4, v5""" % (d, d, d))
        merge16()
        e("""s_lshl_b32 s11, s5, 5
        s_add_u32 s11, s11, %d
        v_lshl_add_u32 v7, v2, 3, s11
        v_mov_b32 v8, v3
        v_mov_b32 v9, v4
        ds_write_b64 v7, v[8:9]
        v_lshlrev_b32 v7, 4, v1
        v_add_u32 v7, %d, v7
        s_waitcnt lgkmcnt(0)
        s_barrier
        s_cmp_ge_u32 s5, 3
        s_cbranch_scc1 L_noxn
        ds_read_b128 %s, v7
        s_waitcnt lgkmcnt(0)
        v_max_u32 v3, %s, %s
        v_min_u32 v5, %s, %s
        v_max3_u32 v4, v5, %s, %s""" % (MK, MK, vr(B + 2, 4), v(2), v(4), v(2), v(4), v(3), v(5)))
        merge16()
        if ETS == 2: self.ts(4)
        e("""v_readfirstlane_b32 s76, v3
        v_readfirstlane_b32 s77, v4
        s_cmp_lg_u32 s5, 2
        s_cbranch_scc1 L_rx
        s_cmp_lg_u32 s68, 0
        s_cbranch_scc1 L_noxn
        v_mov_b32 v4, s76
        v_mov_b32 v5, s10
        v_mov_b32 v6, s77
        v_mov_b32 v7, s10
        v_mov_b32 v3, 0
        s_mov_b64 exec, 1
        buffer_store_dwordx4 v[4:7], v3, %s, 0 offen offset:%d sc1
        s_mov_b64 exec, -1
        s_branch L_noxn
        L_rx:
        s_cmp_eq_u32 s5, 0
        s_cselect_b32 s11, s76, s77
        s_and_b32 s11, s11, 0xffff
        s_sub_u32 s11, 2047, s11
        s_lshl_b32 s13, s11, 3
        s_add_u32 s13, s13, %d
        s_mul_i32 s11, s11, 1280
        s_and_b32 s12, s68, 1
        s_mul_i32 s12, s12, 640
        s_add_u32 s11, s11, s12
        s_mul_i32 s12, s5, 656
        s_add_u32 s12, s12, %d
        v_add_u32 v9, s12, v254
        v_mov_b32 v7, 0
        s_mov_b32 exec_hi, 0xff
        s_mov_b32 s15, %d
        buffer_load_dwordx4 %s, v254, %s, s11 offen
        L_rst:
        buffer_load_dwordx2 %s, v7, %s, s13 offen sc1
        s_waitcnt vmcnt(0)
        v_cmp_ne_u32 vcc, s10, %s
        s_cmp_eq_u64 vcc, 0
        s_cbranch_scc1 L_rstok
        s_sub_u32 s15, s15, 1
        s_cmp_lg_u32 s15, 0
        s_cbranch_scc1 L_rst
        L_rstok:
        v_and_b32 v3, 0xffff0000, %s
        v_rcp_f32 v3, v3
        v_lshlrev_b32 v4, 16, %s""" % (sq(rWS), WS_SEL, WS_STAT, MX, SPIN, vr(B + 2, 4), sq(rX), vr(B + 6, 2), sq(rWS), v(7), v(6), v(6)))
        F = B + 8
        def unp():
            for d in range(4):
                e('v_lshlrev_b32 v%d, 16, v%d\nv_and_b32 v%d, 0xffff0000, v%d' % (F + 2 * d, B + 2 + d, F + 2 * d + 1, B + 2 + d))
        def pk():
            for d in range(4): e('v_cvt_pk_bf16_f32 v%d, v%d, v%d' % (B + 2 + d, F + 2 * d, F + 2 * d + 1))
        unp()
        for r in range(8): e('v_sub_f32 v%d, v%d, v4' % (F + r, F + r))
        pk(); unp()
        for r in range(8): e('v_mul_f32 v%d, v%d, v3' % (F + r, F + r))
        pk()
        e('ds_write_b128 v9, %s\ns_mov_b64 exec, -1\nL_noxn:\ns_waitcnt lgkmcnt(0)' % vr(B + 2, 4))
        if SW:
            e('s_barrier')
        else:
            consume(4, 0)
            e('s_waitcnt lgkmcnt(0)')
        if ETS == 2: self.ts(5)
        for ks in range(10):
            e('ds_read_b128 %s, v19 offset:%d' % (vr(XS + 4 * ks, 4), 64 * ks))
        R = 160
        for k in range(4):
            e('v_mov_b32 v%d, s10\nv_mov_b32 v%d, 0' % (R + 8 + 4 * k + 2, R + 8 + 4 * k + 3))
        for ks in range(10):
            e('s_waitcnt lgkmcnt(%d)' % (9 - ks))
            for tl in range(2):
                e('v_mfma_f32_16x16x32_bf16 %s, %s, %s, %s' % (vr(R + 4 * tl, 4), vr(WG_ + 40 * tl + 4 * ks, 4), vr(XS + 4 * ks, 4), '0' if ks == 0 else vr(R + 4 * tl, 4)))
        e('v_cmp_gt_u32 vcc, 2, v1\ns_and_b64 exec, exec, vcc')
        for tl in range(2):
            for h in range(2):
                d = R + 8 + 4 * (2 * tl + h)
                e('v_mov_b32 v%d, v%d\nv_mov_b32 v%d, v%d' % (d, R + 4 * tl + 2 * h, d + 1, R + 4 * tl + 2 * h + 1))
                e('buffer_store_dwordx4 %s, v20, %s, s72 offen offset:%d sc1' % (vr(d, 4), sq(rWS), 1024 * h + 128 * tl))
        e('s_mov_b64 exec, -1')
        self.ts(2)
        e('s_barrier')
        e('L_woall:')
        self.wo_block(11, 's5')
        e('s_add_u32 s71, s5, 8'); self.wo_block(11, 's71')
        e('s_cmp_lt_u32 s5, 4\ns_cbranch_scc1 L_p2wo\ns_add_u32 s71, s5, 12')
        self.wo_block(11, 's71')
        e('s_branch L_p2wo')

    def down(self):
        e = self.e
        WD, YA = 32, 112
        BUF = 40960
        MH = TAB + 384
        nt = ' nt' if self.opt.get('nt', 1) else ''
        e("""L_idle:
        s_lshl_b32 s68, s78, 1
        s_add_u32 s68, s68, s77
        s_mul_i32 s68, s68, 3
        s_add_u32 s68, s68, s79
        s_sub_u32 s68, s68, 4
        s_mul_i32 s72, s5, 5120
        s_mul_i32 s73, s68, 163840
        s_add_u32 s73, s73, s72
        s_bfe_u32 s11, s5, 0x10001
        s_lshl_b32 s11, s11, 2""")
        for a in range(5):
            e("""v_add_u32 v2, %d, v0
            v_mul_u32_u24 v3, 820, v2
            v_lshrrev_b32 v3, 16, v3
            v_mul_u32_u24 v4, 80, v3
            v_sub_u32 v4, v2, v4
            v_or_b32 v5, s11, v3
            v_lshlrev_b32 v5, 1, v5
            v_xor_b32 v4, v4, v5
            v_mul_u32_u24 v3, 1280, v3
            v_lshl_add_u32 v%d, v4, 4, v3""" % (64 * a, 26 + a))
        def issue(s):
            base = (s % 3) * BUF
            for a in range(5):
                e('s_add_u32 m0, s72, %d\ns_add_u32 s12, s73, %d' % (base + a * 1024, s * 40960))
                e('buffer_load_dwordx4 v%d, %s, s12 offen%s lds' % (26 + a, sq(rD), nt))
        e('s_waitcnt lgkmcnt(0)')
        self.srd(rD, pD, GB)
        issue(0)
        e('s_branch L_down2')
        self.down_rest = lambda: self.down2(issue)

    def down2(self, issue):
        e = self.e
        WD, YA = 32, 112
        BUF = 40960
        MH = TAB + 384
        e('L_down2:')
        self.tag_load()
        self.srd(rX, pX, XB); self.srd(rWS, pWS, WSB)
        self.p2_setup()
        self.wo_setup(11)
        e("""v_and_b32 v1, 15, v0
        v_lshrrev_b32 v2, 4, v0
        v_lshrrev_b32 v3, 2, v1
        v_and_b32 v4, 3, v1
        v_and_b32 v6, 1, v2
        v_lshl_add_u32 v7, v2, 3, v3
        v_lshl_or_b32 v5, v6, 2, v3
        v_mul_u32_u24 v7, 1280, v7
        v_lshl_add_u32 v7, v4, 3, v7
        s_mul_i32 s11, s5, 5""")
        for j in range(5):
            e("""s_add_u32 s12, s11, %d
            v_xor_b32 v8, s12, v5
            v_lshl_add_u32 v%d, v8, 5, v7""" % (j, 18 + j))
        e("""v_mov_b32 v8, %d
        v_mov_b32 v9, 0
        ds_write_b32 v8, v9 offset:4""" % (TAB + 896))
        issue(1); issue(2)
        self.tag_ready()
        def consume(s, n):
            base = (s % 3) * BUF
            e('s_waitcnt vmcnt(%d)\ns_barrier' % n)
            for j in range(5):
                e('v_add_u32 v8, %d, v%d' % (base, 18 + j))
                for hh in range(2):
                    e('ds_read_b64_tr_b16 %s, v8 offset:%d' % (vr(WD + 20 * s + 4 * j + 2 * hh, 2), 5120 * hh))
        consume(0, 10)
        e('s_waitcnt lgkmcnt(0)\ns_barrier')
        self.count_in(7)
        issue(3)
        consume(1, 10)
        consume(2, 5)
        e('s_waitcnt lgkmcnt(0)\ns_barrier')
        e('s_cmp_eq_u32 s5, 0\ns_cbranch_scc1 L_dn0\ns_sub_u32 s71, s5, 1')
        self.wo_block(11, 's71')
        e('s_waitcnt vmcnt(5)\ns_branch L_dn0b\nL_dn0:\ns_waitcnt vmcnt(0)\nL_dn0b:')
        consume(3, 63)
        e('s_cmp_eq_u32 s5, 0\ns_cbranch_scc1 L_dn1\ns_add_u32 s71, s5, 6')
        self.wo_block(11, 's71')
        e('s_cmp_eq_u32 s5, 7\ns_cbranch_scc1 L_dn2\ns_add_u32 s71, s5, 13')
        self.wo_block(11, 's71')
        e('s_branch L_dn2\nL_dn1:\ns_setprio 3')
        self.ts(2)
        HB = 132
        e("""s_lshl_b32 s12, s68, 13
        s_add_u32 s12, s12, %d
        s_add_u32 s13, s12, 4096
        s_mov_b32 s15, %d
        HINTSKIP
        s_mov_b64 exec, 1
        L_hp0:
        buffer_load_dwordx4 %s, v254, %s, s12 offen sc1
        buffer_load_dwordx4 %s, v254, %s, s13 offen sc1
        s_waitcnt vmcnt(0)
        v_xor_b32 v4, s10, v%d
        v_xor_b32 v5, s10, v%d
        v_or_b32 v3, v4, v5
        v_cmp_ne_u32 vcc, 0, v3
        s_cmp_eq_u64 vcc, 0
        s_cbranch_scc1 L_hp1
        s_sleep 2
        s_sub_u32 s15, s15, 1
        s_cmp_lg_u32 s15, 0
        s_cbranch_scc1 L_hp0
        L_hp1:
        s_mov_b64 exec, -1
        s_mov_b32 s15, %d
        L_hp:""" % (WS_H, SPIN, vr(HB, 4), sq(rWS), vr(HB + 4, 4), sq(rWS), HB + 2, HB + 6, SPIN))
        for k in range(8):
            e('buffer_load_dwordx4 %s, v254, %s, s%d offen offset:%d sc1' % (vr(HB + 4 * k, 4), sq(rWS), 12 + k // 4, 1024 * (k % 4)))
        e('s_waitcnt vmcnt(0)\nv_mov_b32 v3, 0')
        for k in range(0, 8, 2):
            e('v_xor_b32 v4, s10, v%d\nv_xor_b32 v5, s10, v%d\nv_or3_b32 v3, v3, v4, v5' % (HB + 4 * k + 2, HB + 4 * k + 6))
        e("""v_cmp_ne_u32 vcc, 0, v3
        s_cmp_eq_u64 vcc, 0
        s_cbranch_scc1 L_hok
        s_mov_b64 exec, vcc
        s_sleep 2
        s_sub_u32 s15, s15, 1
        s_cmp_lg_u32 s15, 0
        s_cbranch_scc1 L_hp
        L_hok:
        s_mov_b64 exec, -1""")
        if self.opt.get('ets') == 2: self.ts(6)
        for k in range(4):
            e('v_pk_add_f32 %s, %s, %s' % (vr(HB + 4 * k, 2), vr(HB + 4 * k, 2), vr(HB + 16 + 4 * k, 2)))
        for k in range(4):
            e('v_cvt_pk_bf16_f32 v%d, v%d, v%d' % (4 + k, HB + 4 * k, HB + 4 * k + 1))
        for k in range(4):
            e('v_lshlrev_b32 v%d, 16, v%d\nv_and_b32 v%d, 0xffff0000, v%d' % (HB + 2 * k, 4 + k, HB + 2 * k + 1, 4 + k))
        F = HB + 8
        for r in range(4): e('v_mul_f32 v%d, 0xbfb8aa3b, v%d' % (F + r, HB + r))
        for r in range(4): e('v_exp_f32 v%d, v%d' % (F + r, F + r))
        for r in range(4): e('v_add_f32 v%d, 1.0, v%d' % (F + r, F + r))
        for r in range(4): e('v_rcp_f32 v%d, v%d' % (F + r, F + r))
        for r in range(4): e('v_mul_f32 v%d, v%d, v%d' % (HB + r, HB + r, F + r))
        for k in range(2):
            e('v_cvt_pk_bf16_f32 v%d, v%d, v%d' % (4 + k, HB + 2 * k, HB + 2 * k + 1))
        for k in range(2):
            e('v_lshlrev_b32 v%d, 16, v%d\nv_and_b32 v%d, 0xffff0000, v%d' % (HB + 2 * k, 4 + k, HB + 2 * k + 1, 4 + k))
        for r in range(4): e('v_mul_f32 v%d, v%d, v%d' % (HB + r, HB + r, HB + 4 + r))
        e("""v_cvt_pk_bf16_f32 v24, v%d, v%d
        v_cvt_pk_bf16_f32 v25, v%d, v%d
        v_and_b32 v3, 1, v0
        v_lshrrev_b32 v4, 1, v0
        v_lshlrev_b32 v3, 8, v3
        v_lshl_add_u32 v3, v4, 3, v3
        v_add_u32 v3, %d, v3
        ds_write_b64 v3, v[24:25]
        L_dn2:
        v_and_b32 v5, 1, v1
        v_lshlrev_b32 v6, 8, v5
        v_lshl_add_u32 v6, v2, 4, v6
        v_add_u32 v6, %d, v6
        v_lshlrev_b32 v7, 5, v2
        v_lshl_add_u32 v7, v1, 4, v7
        s_mul_i32 s11, s68, 10240
        s_mul_i32 s12, s5, 1280
        s_add_u32 s11, s11, s12
        s_add_u32 s11, s11, %d""" % (HB, HB + 1, HB + 2, HB + 3, MH, MH, WS_Y))
        YG = 168
        for k in range(10):
            e('v_mov_b32 v%d, s10\nv_mov_b32 v%d, 0' % (YG + 4 * k + 2, YG + 4 * k + 3))
        e('s_waitcnt lgkmcnt(0)\ns_barrier')
        for ks in range(4):
            e('ds_read_b128 %s, v6 offset:%d' % (vr(16 + 4 * ks, 4), 64 * ks))
        for ks in range(4):
            e('s_waitcnt lgkmcnt(%d)' % (3 - ks))
            for j in range(5):
                e('v_mfma_f32_16x16x32_bf16 %s, %s, %s, %s' % (vr(YA + 4 * j, 4), vr(WD + 20 * ks + 4 * j, 4), vr(16 + 4 * ks, 4), '0' if ks == 0 else vr(YA + 4 * j, 4)))
        e('v_cmp_gt_u32 vcc, 2, v1\ns_and_b64 exec, exec, vcc')
        for j in range(5):
            for h in range(2):
                d = YG + 4 * (2 * j + h)
                e('v_mov_b32 v%d, v%d\nv_mov_b32 v%d, v%d' % (d, YA + 4 * j + 2 * h, d + 1, YA + 4 * j + 2 * h + 1))
                e('buffer_store_dwordx4 %s, v7, %s, s11 offen offset:%d sc1' % (vr(d, 4), sq(rWS), 256 * j + 128 * h))
        e('s_mov_b64 exec, -1')
        self.ts(3)

    def build(self):
        self.tail = []
        self.prologue()
        self.loader()
        self.expert()
        self.down()
        self.loader_rest()
        self.expert_rest()
        self.down_rest()
        self.p2wo()
        self.w23()
        self.stats()
        self.gemm1()
        self.attention()
        self.phase2()
        for f in self.tail: f()
        self.e('L_end:\ns_endpgm')
        return self.L

HEAD = open('cdna_kernels/%s.s.ref' % NAME).read().split('; Override launch')[0]

def generate(opt):
    g = G(opt)
    L = g.build()
    L = [x.replace('HINTSKIP', 's_branch L_hp' if opt.get('nohint') else 's_nop 0') for x in L]
    L = [x.replace('IMSLEEP', 's_sleep %d' % opt.get('ims', 1) if opt.get('ims', 1) else 's_nop 0') for x in L]
    L = [x.replace('COLOC', str(opt.get('coloc', 1))) for x in L]
    L = [x.replace(' OUTF', ('', ' nt', ' sc1', ' sc0 sc1')[opt.get('outf', 0)]) for x in L]
    L = [x.replace('OMODE', str(opt.get('omode', 2))) for x in L]
    if opt.get('noxch'): L = [x for x in L if not (any('v254, s[52:55], s7%d offen' % k in x for k in range(4)) or 's_cbranch_scc1 L_xretry' in x)]
    if opt.get('noval'): L = [x for x in L if 's_cbranch_scc1 L_oretry' not in x]; L = [x.replace('s_cmp_ge_u32 s11, 6', 's_cmp_ge_u32 s11, 0') for x in L]
    if opt.get('nopub'): L = [x for x in L if not ('s25 offen' in x or 's26 offen' in x)]
    if opt.get('noold'): L = [x for x in L if not (('s22 offen' in x or 's23 offen' in x or 's24 offen' in x or 's27 offen' in x) and 'load' in x)]
    if opt.get('nost'): L = [x for x in L if 's[56:59]' not in x]
    L = [x.replace('LTH', str(opt.get('lth', 6))).replace('RTH', str(opt.get('rth', 6))) for x in L]
    L = [x.replace('HSL', str(opt.get('hsl', 2))) for x in L]
    L, added = hz.fix(L)
    k = NAME + '_kernel'
    s = HEAD + '; @launch grid=(256,1,1) block=(512,1,1) lds=%d\n' % LDS_BYTES
    s += '.amdgcn_target "amdgcn-amd-amdhsa--gfx950"\n.text\n.globl %s\n.p2align 8\n.type %s,@function\n%s:\n' % (k, k, k)
    s += '\n'.join(L) + '\n'
    s += """.section .rodata,"a"
.p2align 6
.amdhsa_kernel %s
  .amdhsa_next_free_vgpr 256
  .amdhsa_next_free_sgpr 102
  .amdhsa_accum_offset 256
  .amdhsa_group_segment_fixed_size 0
  .amdhsa_kernarg_size 88
  .amdhsa_user_sgpr_count 2
  .amdhsa_user_sgpr_kernarg_segment_ptr 1
  .amdhsa_system_sgpr_workgroup_id_x 1
  .amdhsa_float_denorm_mode_32 3
.end_amdhsa_kernel
""" % k
    import subprocess, re, os, tempfile
    d = tempfile.mkdtemp()
    open(d + '/a.s', 'w').write(s.replace('CODE_LAST', '0x1000'))
    subprocess.run(['clang', '-x', 'assembler', '-target', 'amdgcn-amd-amdhsa', '-mcpu=gfx950', '-c', d + '/a.s', '-o', d + '/a.o'], check=True)
    h = subprocess.run(['llvm-objdump', '-h', d + '/a.o'], capture_output=True, text=True).stdout
    size = int(re.search(r'\.text\s+([0-9a-f]+)', h).group(1), 16)
    generate.size = size
    sy = subprocess.run(['llvm-objdump', '-t', d + '/a.o'], capture_output=True, text=True).stdout
    pc = int(re.search(r'^([0-9a-f]+) .* L_pc$', sy, re.M).group(1), 16)
    return s.replace('CODE_LAST', hex((size - pc - 4) & ~3))

if __name__ == '__main__':
    opt = {}
    out = 'cdna_kernels/%s.s' % NAME
    for a in sys.argv[1:]:
        if a.startswith('-o'):
            out = a[2:]
        else:
            kx, vx = a.split('=')
            opt[kx] = int(vx)
    open(out, 'w').write(generate(opt))
    print('wrote', out, 'code bytes', generate.size)
```

```python
import sys
sys.path.insert(0, 'dev')
import hz

NAME = 'parallel_sum__sliding_local_dilated__moe_arch_mod__prompt'
XB, WB, WOB, GB = 2621440, 2457600, 819200, 1966080
WSB = 0xb00000
WS_EPOCH, WS_SEL, WS_YFLAG, WS_STAT, WS_KEY, WS_FLAG = 0x0, 0x100, 0x9000, 0x1000, 0x5000, 0x2b0000
WS_XCH, WS_O, WS_Y, WS_XCB = 0x10000, 0x300000, 0x600000, 0x800000
WS_TS = 0x7c0000
WS_CHK = 0x580000
WS_PRES = 0x2e0000
WS_H = 0x5d0000
WS_XN = 0xe000
SLOT, XPART, DEPTH = 38912, 14336, 3
P = 496
WOIMG = 55552
TAB = 157952
LDS_BYTES = 163840
SPIN = 200000

sXCD, sSLOT, sWAVE, sI, sLL, sL, sROLE, sTAG = 's3', 's4', 's5', 's6', 's7', 's8', 's9', 's10'
pX, pW, pWO, pWR, pG, pU, pD, pOUT, pDBG, pWS = 16, 18, 20, 24, 26, 28, 30, 32, 34, 36
rX, rW, rWO, rWS, rOUT, rU, rD = 40, 44, 48, 52, 56, 60, 64

def sp(n): return 's[%d:%d]' % (n, n + 1)
def sq(n): return 's[%d:%d]' % (n, n + 3)
def vr(n, k=1): return 'v%d' % n if k == 1 else 'v[%d:%d]' % (n, n + k - 1)

class G:
    def __init__(self, opt):
        self.L = []; self.opt = opt; self.nl = 0; self.nts = 0
        self.D = opt.get('depth', 4); self.S0 = (2 - 9) % self.D
    def e(self, s):
        for ln in s.strip('\n').split('\n'):
            ln = ln.strip()
            if not ln: continue
            if ln == 'XNPREP':
                self.xn_prep(); continue
            self.L.append(ln if ln.endswith(':') else '    ' + ln)
    def lab(self, base):
        self.nl += 1
        return 'L_%s_%d' % (base, self.nl)
    def srd(self, r, p, nbytes):
        self.e('s_mov_b32 s%d, s%d\ns_mov_b32 s%d, s%d\ns_mov_b32 s%d, %d\ns_mov_b32 s%d, 0x20000' % (r, p, r + 1, p + 1, r + 2, nbytes, r + 3))
    def ts(self, k, force=False):
        if self.opt.get('lt2') and not force and k not in (0, 9): return
        if self.opt.get('ts') and not (self.opt.get('ts_off') and k in (4, 5, 6)):
            self.e('%s s[%d:%d]' % ('s_memtime' if self.opt.get('cyc') else 's_memrealtime', 80 + 2 * k, 81 + 2 * k))
    def allreduce16(self, v, op='v_add_f32'):
        for n in (8, 4, 2, 1):
            self.e('%s_dpp v%d, v%d, v%d row_ror:%d row_mask:0xf bank_mask:0xf' % (op, v, v, v, n))
    def tag_load(self):
        self.e('s_load_dword s10, s[36:37], %d' % WS_EPOCH)
    def count_in(self, wave, va=4):
        lab = self.lab('cnt')
        self.e('''s_cmp_lg_u32 s5, %d
        s_cbranch_scc1 %s
        s_lshl_b32 s11, s3, 5
        s_add_u32 s11, s11, s4
        s_lshl_b32 s11, s11, 2
        s_add_u32 s11, s11, %d
        v_mov_b32 v%d, s11
        s_getreg_b32 s11, hwreg(HW_REG_XCC_ID, 0, 4)
        s_lshl_b32 s11, s11, 28
        s_xor_b32 s11, s11, s10
        v_mov_b32 v%d, s11
        s_mov_b64 exec, 1
        buffer_store_dword v%d, v%d, %s, 0 offen sc1
        s_mov_b64 exec, -1
        %s:''' % (wave, lab, WS_PRES, va, va + 1, va + 1, va, sq(rWS), lab))
    def tag_ready(self):
        self.e('s_waitcnt lgkmcnt(0)\ns_add_u32 s10, s10, 1')

    def prologue(self):
        e = self.e
        self.ts(0)
        e("""s_load_dwordx16 s[16:31], s[0:1], 0
        s_load_dwordx4 s[32:35], s[0:1], 64
        s_load_dwordx2 s[36:37], s[0:1], 80
        s_cmp_ge_u32 s2, 256
        s_cbranch_scc1 L_end
        v_lshrrev_b32 v1, 6, v0
        v_and_b32 v0, 63, v0
        s_lshr_b32 s4, s2, 3
        v_readfirstlane_b32 s5, v1
        s_and_b32 s3, s2, 7""")
        e("""s_cmp_lg_u32 s5, 3
        s_cbranch_scc1 L_nopf
        s_getpc_b64 s[12:13]
        L_pc:
        s_and_b32 s14, s4, %d
        s_lshl_b32 s14, s14, 13
        v_lshl_add_u32 v2, v0, 7, s14
        v_min_u32 v2, CODE_LAST, v2
        global_load_dword v255, v2, s[12:13]
        L_nopf:""" % (self.opt.get('pfblocks', 4) - 1))
        if self.opt.get('ts'):
            for k in range(1, 10): e('s_mov_b32 s%d, 0' % (80 + 2 * k))
        e("""s_bfe_u32 s76, s2, 0x10001
        s_and_b32 s77, s2, 1
        s_bfe_u32 s78, s2, 0x10002
        s_mul_i32 s11, s4, 52
        s_lshr_b32 s11, s11, 8
        s_mul_i32 s12, s11, 5
        s_sub_u32 s7, s4, s12
        s_mul_i32 s12, s78, 11
        s_add_u32 s6, s11, s12
        s_mul_i32 s12, s76, 6
        s_add_u32 s6, s6, s12
        s_mul_i32 s12, s77, 5
        s_add_u32 s8, s7, s12
        s_mul_i32 s12, s76, 5
        s_sub_u32 s12, 30, s12
        s_sub_u32 s79, s4, s12
        s_cmp_ge_u32 s4, s12
        s_cbranch_scc1 L_aux
        s_cmp_ge_u32 s5, 4
        s_cbranch_scc1 L_loader
        s_mul_i32 s12, s5, 10
        s_add_u32 s12, s12, s8
        s_cmp_ge_u32 s12, 24
        s_cbranch_scc1 L_w23
        s_mul_i32 s11, s6, 96
        s_lshl_b32 s12, s12, 2
        s_add_u32 s11, s11, s12""")
        e("""L_stats:
        s_setprio 3
        v_lshrrev_b32 v2, 4, v0
        v_add_u32 v2, s11, v2
        v_and_b32 v3, 15, v0
        v_lshlrev_b32 v4, 4, v3
        v_mul_u32_u24 v5, 1280, v2
        v_add_u32 v5, v5, v4
        s_waitcnt lgkmcnt(0)""")
        for j in range(5):
            e('global_load_dwordx4 %s, v4, %s offset:%d' % (vr(40 + 4 * j, 4), sp(pWR), 256 * j))
        self.srd(rX, pX, XB)
        for j in range(5):
            e('buffer_load_dwordx4 %s, v5, %s, 0 offen offset:%d' % (vr(20 + 4 * j, 4), sq(rX), 256 * j))
        e('s_branch L_stats2')

    def att_setup(self):
        self.e("""v_and_b32 v100, 15, v0
        v_lshrrev_b32 v101, 4, v0
        s_lshl_b32 s11, s5, 4
        v_add_u32 v102, s11, v100
        v_mul_u32_u24 v102, %d, v102
        v_lshlrev_b32 v103, 3, v101
        v_mov_b32 v104, 0x08100800
        v_lshrrev_b32 v103, v103, v104
        v_and_b32 v103, 0xff, v103
        v_add_u32 v231, v102, v103
        v_add_u32 v228, %d, v231
        v_lshrrev_b32 v102, 2, v0
        v_add_u32 v102, s11, v102
        v_mul_u32_u24 v102, %d, v102
        v_and_b32 v103, 3, v0
        v_lshl_add_u32 v229, v103, 3, v102
        v_and_b32 v102, 1, v0
        v_lshl_add_u32 v103, v101, 2, v102
        v_lshlrev_b32 v102, 4, v102
        v_mov_b32 v104, 0xffff
        v_lshlrev_b32 v104, v102, v104
        v_cmp_le_u32 vcc, v103, v100
        v_cndmask_b32 v212, 0, v104, vcc
        v_xor_b32 v214, v212, v104
        v_add_u32 v103, 2, v103
        v_cmp_le_u32 vcc, v103, v100
        v_cndmask_b32 v213, 0, v104, vcc
        v_xor_b32 v215, v213, v104""" % (P, 16 * P, P))
        for r in range(16):
            self.e('v_mov_b32 v%d, 0' % (196 + r))

    def att_scalars(self):
        CUR0, CUR1 = 0xf000ff00fff0ffff, 0xc000fc00ffc0fffc
        txt = ("""s_mov_b32 s64, 0xaaaaaaaa
        s_mov_b32 s65, 0xaaaaaaaa
        s_mov_b32 s66, 0x%x
        s_mov_b32 s67, 0x%x
        s_mov_b32 s68, 0x%x
        s_mov_b32 s69, 0x%x
        s_getreg_b32 s74, hwreg(HW_REG_XCC_ID, 0, 4)
        s_lshl_b32 s74, s74, 12
        s_xor_b32 s74, s74, s10
        s_and_b32 s74, s74, 0xffff
        s_and_b32 s75, s74, 0xff
        s_lshr_b32 s39, s74, 8
        s_mul_i32 s12, s6, 10
        s_add_u32 s12, s12, s8
        s_mul_i32 s12, s12, 12
        s_add_u32 s12, s12, s5
        s_lshl_b32 s12, s12, 9
        s_add_u32 s12, s12, %d
        s_mov_b32 s13, 0x7f000000
        s_sub_u32 s14, s12, 3072
        s_cmp_ge_u32 s7, 1
        s_cselect_b32 s70, s12, s13
        s_cselect_b32 s72, s14, s13
        s_cselect_b32 s76, s74, 0
        s_add_u32 s14, s12, 3072
        s_add_u32 s12, s12, 6144
        s_cmp_le_u32 s7, 3
        s_cselect_b32 s71, s14, s13
        s_cselect_b32 s73, s12, s13
        s_cselect_b32 s77, s74, 0
        s_lshl_b32 s11, s7, 3
        s_lshl_b64 s[28:29], -1, s11
        s_lshl_b64 s[28:29], s[28:29], s11
        s_mul_i32 s12, s6, 6
        s_add_u32 s12, s12, s5
        s_lshr_b32 s11, s12, 4
        s_cmp_eq_u32 s11, s3
        s_cselect_b32 s31, 1, 0
        s_mul_i32 s14, s12, 10
        s_add_u32 s14, s14, s8
        s_lshl_b32 s25, s14, 11
        s_add_u32 s25, s25, %d
        s_lshl_b32 s26, s14, 7
        s_add_u32 s26, s26, %d
        s_cmpk_ge_u32 s12, 128
        s_cselect_b32 s25, s13, s25
        s_cselect_b32 s26, s13, s26
        s_mov_b32 s38, 3""" % (CUR0 & 0xffffffff, CUR0 >> 32, CUR1 & 0xffffffff, CUR1 >> 32, WS_XCH, WS_O, WS_FLAG))
        return [x.strip() for x in txt.split('\n')]


    def p2_setup(self):
        self.e("""s_lshl_b32 s60, s3, 2
        s_and_b32 s11, s4, 3
        s_add_u32 s60, s60, s11
        s_lshl_b32 s60, s60, 2
        s_and_b32 s12, s5, 3
        s_add_u32 s60, s60, s12
        s_lshr_b32 s61, s5, 2
        s_xor_b32 s61, s61, s3
        s_and_b32 s61, s61, 1
        s_lshr_b32 s62, s4, 2
        s_mul_i32 s62, s62, 80
        s_mul_i32 s12, s61, 48
        s_add_u32 s62, s62, s12
        s_mov_b32 s38, 0
        v_and_b32 v100, 15, v0
        v_lshrrev_b32 v101, 4, v0
        s_lshl_b32 s12, s60, 4
        v_add_u32 v102, s12, v100
        v_lshlrev_b32 v235, 3, v102
        v_add_u32 v235, %d, v235
        v_mul_u32_u24 v102, 1280, v102
        v_lshl_add_u32 v102, v101, 3, v102
        s_lshl_b32 s12, s62, 1
        v_add_u32 v234, s12, v102
        v_lshlrev_b32 v254, 4, v0
        v_and_b32 v102, 1, v101
        v_mul_u32_u24 v102, 24, v102
        v_add_u32 v233, v234, v102
        v_lshrrev_b32 v102, 2, v0
        v_and_b32 v103, 3, v0
        v_mul_u32_u24 v102, 160, v102
        v_lshl_add_u32 v102, v103, 3, v102
        s_xor_b32 s12, s61, s11
        s_and_b32 s12, s12, 1
        s_mul_i32 s12, s12, 51200
        s_add_u32 s12, s12, %d
        v_add_u32 v244, s12, v102
        v_add_u32 v103, 10240, v244
        v_cmp_gt_u32 vcc, 16, v0
        v_cndmask_b32 v245, v244, v103, vcc
        v_cmp_gt_u32 vcc, 32, v0
        v_cndmask_b32 v246, v244, v103, vcc
        v_cmp_gt_u32 vcc, 48, v0
        v_cndmask_b32 v247, v244, v103, vcc""" % (WS_STAT, WOIMG))
        self.srd(rOUT, pOUT, XB)
        self.e('''s_mul_i32 s62, s61, 0x7f000000
        s_mul_i32 s12, s60, 10
        s_mul_i32 s11, s61, 5
        s_add_u32 s12, s12, s11
        s_lshl_b32 s63, s12, 7
        s_add_u32 s63, s63, %d
        s_and_b32 s11, s5, 3
        s_mul_i32 s11, s11, %d
        s_add_u32 s11, s11, 160
        v_mul_u32_u24 v101, %d, v101
        v_add3_u32 v232, v101, v254, s11
        s_lshl_b32 s22, s12, 11
        s_add_u32 s22, s22, %d
        s_add_u32 s23, s22, 4096
        s_add_u32 s24, s22, 8192''' % (WS_FLAG, 20 * P, P - 256, WS_O))
        self.e('''s_cmp_ge_u32 s60, 36
        s_cselect_b32 s11, 1, 0
        s_cmpk_ge_u32 s60, 66
        s_addc_u32 s11, s11, 0
        s_cmpk_ge_u32 s60, 102
        s_addc_u32 s11, s11, 0
        s_lshl_b32 s11, s11, 1
        s_add_u32 s11, s11, s61
        s_cmp_eq_u32 s11, s3
        s_cselect_b32 s100, %d, 0''' % self.opt.get('lf', 1))

    def p2_loads(self, ret=False):
        ops = ['buffer_load_dwordx2 v[236:237], v235, %s, 0 offen sc1' % sq(rWS)]
        ops += ['buffer_load_dwordx4 v[238:241], v233, %s, 0 offen' % sq(rX), 'buffer_load_dwordx2 v[242:243], v234, %s, s62 offen offset:64' % sq(rX)]
        if ret: return ops
        for x in ops: self.e(x)

    def w23(self):
        e = self.e
        e('L_w23:\ns_waitcnt lgkmcnt(0)')
        self.tag_load()
        self.srd(rX, pX, XB); self.srd(rWS, pWS, WSB)
        self.att_setup(); self.p2_setup()
        self.tag_ready()
        e('s_branch L_gemm')

    def stats(self):
        e = self.e
        X, Wr, F = 20, 40, 60
        e('L_stats2:')
        self.tag_load()
        self.srd(rWS, pWS, WSB)
        self.att_setup(); self.p2_setup()
        e('v_mov_b32 v9, 0x3f803f80\nv_mov_b32 v10, 0\nv_mov_b32 v11, 0\nv_mov_b32 v12, 0\nv_mov_b32 v13, 0')
        e('s_waitcnt vmcnt(0)')
        if self.opt.get('sts') == 1: self.ts(2)
        for d in range(20):
            e('v_dot2c_f32_bf16 v%d, v%d, v9' % (10 + (d & 3), X + d))
        for d in range(10):
            e('v_lshlrev_b32 v%d, 16, v%d\nv_and_b32 v%d, 0xffff0000, v%d' % (F + 2 * d, X + d, F + 2 * d + 1, X + d))
        e('v_add_f32 v10, v10, v11\nv_add_f32 v12, v12, v13\nv_add_f32 v6, v10, v12')
        for k, n in enumerate((8, 4, 2, 1)):
            for d in (10 + 2 * k, 11 + 2 * k):
                e('v_lshlrev_b32 v%d, 16, v%d\nv_and_b32 v%d, 0xffff0000, v%d' % (F + 2 * d, X + d, F + 2 * d + 1, X + d))
            e('v_add_f32_dpp v6, v6, v6 row_ror:%d row_mask:0xf bank_mask:0xf' % n)
        for d in (18, 19):
            e('v_lshlrev_b32 v%d, 16, v%d\nv_and_b32 v%d, 0xffff0000, v%d' % (F + 2 * d, X + d, F + 2 * d + 1, X + d))
        e("""v_mul_f32 v7, 0x3acccccd, v6
        v_cvt_pk_bf16_f32 v8, v7, v7
        v_lshlrev_b32 v6, 16, v8
        v_mov_b32 v10, 0
        v_mov_b32 v11, 0
        v_mov_b32 v12, 0
        v_mov_b32 v13, 0""")
        for r in range(40):
            e('v_sub_f32 v%d, v%d, v6' % (F + r, F + r))
        for r in range(40):
            e('v_fmac_f32 v%d, v%d, v%d' % (10 + (r & 3), F + r, F + r))
        e('v_sub_f32 v7, v7, v6\nv_add_f32 v10, v10, v11\nv_add_f32 v12, v12, v13\nv_add_f32 v14, v10, v12')
        e('v_mov_b32 v10, 0\nv_mov_b32 v11, 0')
        for k, n in enumerate((8, 4, 2, 1)):
            for d in range(5 * k, 5 * k + 5):
                e('v_cvt_pk_bf16_f32 v%d, v%d, v%d' % (X + d, F + 2 * d, F + 2 * d + 1))
            e('v_add_f32_dpp v14, v14, v14 row_ror:%d row_mask:0xf bank_mask:0xf' % n)
        e('s_waitcnt vmcnt(0)')
        for d in range(20):
            e('v_dot2c_f32_bf16 v%d, v%d, v%d' % (10 + (d & 1), X + d, Wr + d))
        e("""v_mul_f32 v14, 0x3acccccd, v14
        v_fma_f32 v14, -v7, v7, v14
        v_max_f32 v14, 0, v14
        v_cvt_pk_bf16_f32 v14, v14, v14
        v_add_f32 v10, v10, v11
        v_and_b32 v14, 0xffff0000, v14
        v_add_f32 v14, 0x3727c5ac, v14
        v_add_f32_dpp v10, v10, v10 row_ror:8 row_mask:0xf bank_mask:0xf
        v_cvt_pk_bf16_f32 v14, v14, v14
        v_and_b32 v14, 0xffff0000, v14
        v_add_f32_dpp v10, v10, v10 row_ror:4 row_mask:0xf bank_mask:0xf
        v_sqrt_f32 v14, v14
        v_and_b32 v8, 0xffff, v8
        v_add_f32_dpp v10, v10, v10 row_ror:2 row_mask:0xf bank_mask:0xf
        v_cvt_pk_bf16_f32 v14, v14, v14
        v_and_b32 v14, 0xffff0000, v14
        v_add_f32_dpp v10, v10, v10 row_ror:1 row_mask:0xf bank_mask:0xf
        v_rcp_f32 v12, v14
        v_or_b32 v16, v8, v14
        v_mul_f32 v10, v10, v12""")
        e("""v_cvt_pk_bf16_f32 v10, v10, v10
        v_bfe_i32 v11, v10, 15, 1
        v_or_b32 v11, 0x8000, v11
        v_xor_b32 v10, v10, v11
        v_lshlrev_b32 v10, 16, v10
        v_sub_u32 v11, 2047, v2
        v_or_b32 v18, v10, v11
        v_cmp_eq_u32 vcc, 0, v3
        v_cndmask_b32 v16, v18, v16, vcc
        v_lshlrev_b32 v5, 14, v3
        v_lshl_add_u32 v5, v2, 3, v5
        s_movk_i32 s14, 2048
        v_cmp_gt_u32 vcc, 2, v3
        v_cmp_gt_u32 s[12:13], s14, v2
        s_and_b64 s[70:71], vcc, s[12:13]""")
        if self.opt.get('sts') == 2: self.ts(2)
        self.tag_ready()
        if self.opt.get('sts') == 3: self.ts(2)
        e("""v_mov_b32 v17, s10
        s_mov_b32 s11, %d
        s_mov_b64 exec, s[70:71]
        s_cbranch_execz L_stend
        buffer_store_dwordx2 v[16:17], v5, %s, s11 offen sc1
        L_stend:
        s_mov_b64 exec, -1""" % (WS_STAT, sq(rWS)))
        assert WS_KEY - WS_STAT == 1 << 14

    def wo_setup(self, vb):
        e = self.e
        self.srd(rWO, pWO, WOB)
        e('''s_lshr_b32 s11, s4, 2
        s_mul_i32 s11, s11, 160
        s_and_b32 s70, s4, 1
        s_mul_i32 s70, s70, 10''')
        for j in range(5):
            e('''v_add_u32 v2, %d, v0
            v_mul_u32_u24 v3, 6554, v2
            v_lshrrev_b32 v3, 16, v3
            v_mul_u32_u24 v4, 10, v3
            v_sub_u32 v4, v2, v4
            v_mul_u32_u24 v3, 1280, v3
            v_lshl_add_u32 v3, v4, 4, v3
            v_add_u32 v%d, s11, v3''' % (64 * j, vb + j))
    def wo_block(self, vb, spos):
        e = self.e
        e('''s_add_u32 s12, %s, s70
        s_cmp_ge_u32 s12, 20
        s_cselect_b32 s13, 20, 0
        s_sub_u32 s12, s12, s13
        s_mul_i32 s12, s12, 40960
        s_mul_i32 s13, %s, 5120
        s_add_u32 s13, s13, %d''' % (spos, spos, WOIMG))
        for j in range(5):
            e('s_add_u32 m0, s13, %d' % (1024 * j))
            e('buffer_load_dwordx4 v%d, %s, s12 offen lds' % (vb + j, sq(rWO)))

    def loader(self):
        e = self.e
        e('L_loader:')
        RA, RB, RM, RS = (self.opt.get(k, d) for k, d in (('ra', 1), ('rb', 1), ('rm', 4), ('rs', 3)))
        assert all((x * (65536 // RM + 1)) >> 16 == x // RM for x in range(200)) and (RM - 1) * RS < 10
        e('''s_sub_u32 s14, s5, 4
        s_and_b32 s15, s14, 1
        v_lshrrev_b32 v2, 3, v0
        v_and_b32 v3, 7, v0
        v_lshrrev_b32 v4, 4, v0
        s_lshl_b32 s11, s15, 2
        v_add_u32 v5, s11, v4
        v_xor_b32 v5, v3, v5
        s_mul_i32 s11, s6, 96
        s_lshl_b32 s12, s14, 3
        s_add_u32 s11, s11, s12
        s_sub_u32 s11, s11, 16
        s_mul_i32 s11, s11, 1280
        v_mul_u32_u24 v6, 1280, v2
        v_lshl_add_u32 v6, v5, 4, v6
        v_add_u32 v10, s11, v6
        v_add_u32 v11, 40960, v10
        v_add_u32 v12, 0x14000, v10
        v_add_u32 v13, 0x1e000, v10
        v_and_b32 v4, 1, v4
        v_lshl_or_b32 v4, s15, 1, v4
        v_lshlrev_b32 v4, 1, v4
        v_xor_b32 v4, v3, v4
        v_add_u32 v2, s12, v2
        v_mul_u32_u24 v2, 3840, v2
        v_lshl_add_u32 v2, v4, 4, v2
        s_lshl_b32 s11, s8, 7
        v_add_u32 v14, s11, v2
        s_mul_i32 s68, s7, %d
        s_mul_i32 s11, s6, %d
        s_add_u32 s68, s68, s11
        s_mul_i32 s11, s68, %d
        s_lshr_b32 s11, s11, 16
        s_mul_i32 s11, s11, %d
        s_sub_u32 s68, s68, s11
        s_mul_i32 s68, s68, %d
        s_lshl_b32 s69, s14, 10
        s_cmp_eq_u32 s14, 0
        s_cselect_b32 s72, 0xffff0000, -1
        s_mov_b32 s73, -1
        s_waitcnt lgkmcnt(0)''' % (RA, RB, 65536 // RM + 1, RM, RS))
        self.srd(rX, pX, XB); self.srd(rW, pW, WB)
        self.ts(1)
        def issue(c, parts=(0, 1, 2)):
            base = ((c + self.S0) % self.D) * SLOT
            if 0 in parts:
                sk = self.lab('xs')
                e('s_lshl_b32 s11, s68, 7\ns_mul_i32 s39, s68, 245760')
                e('s_add_u32 m0, s69, %d\ns_mov_b64 exec, s[72:73]' % base)
                e('buffer_load_dwordx4 v10, %s, s11 offen lds\ns_mov_b64 exec, -1' % sq(rX))
                for a in (1, 2):
                    e('s_add_u32 m0, s69, %d' % (base + a * 4096))
                    e('buffer_load_dwordx4 v%d, %s, s11 offen lds' % (10 + a, sq(rX)))
                e('s_cmp_ge_u32 s14, 2\ns_cbranch_scc1 %s' % sk)
                e('s_add_u32 m0, s69, %d' % (base + 3 * 4096))
                e('buffer_load_dwordx4 v13, %s, s11 offen lds' % sq(rX))
                e('%s:' % sk)
                e('s_add_u32 s68, s68, 1\ns_cmp_eq_u32 s68, 10\ns_cselect_b32 s68, 0, s68')
            for hb in range(2):
                if hb + 1 in parts:
                    for y in range(3):
                        e('s_add_u32 m0, s69, %d\ns_add_u32 s13, s39, %d' % (base + XPART + y * 8192 + hb * 4096, y * 1280 + hb * 122880))
                        e('buffer_load_dwordx4 v14, %s, s13 offen lds' % sq(rW))
        issue(0)
        e('s_branch L_loader2')
        self.loader_rest = lambda: self.loader2(issue)

    def loader2(self, issue):
        e = self.e
        e('L_loader2:')
        self.tag_load()
        self.srd(rWS, pWS, WSB)
        self.wo_setup(20)
        e('''s_mul_i32 s11, s6, 96
        s_lshl_b32 s12, s14, 6
        s_add_u32 s11, s11, s12
        s_sub_u32 s11, s11, 16
        v_add_u32 v26, s11, v0
        v_lshlrev_b32 v27, 3, v26
        v_add_u32 v27, %d, v27
        v_add_u32 v28, s12, v0''' % WS_STAT)
        self.att_setup(); self.p2_setup()
        e('''v_lshrrev_b32 v3, 4, v28
        v_subrev_u32 v4, 96, v28
        v_cmp_gt_u32 vcc, 96, v28
        v_cndmask_b32 v3, v4, v3, vcc
        s_mul_i32 s13, s6, 6
        v_add_u32 v4, s13, v3
        v_mul_u32_u24 v5, 10, v4
        v_add_u32 v5, s8, v5
        v_and_b32 v36, 15, v28
        v_lshl_add_u32 v36, v5, 4, v36
        v_add_u32 v36, %d, v36
        v_add_u32 v5, %d, v5
        v_cndmask_b32 v36, v5, v36, vcc
        v_lshrrev_b32 v4, 4, v4
        v_cmp_eq_u32 vcc, s3, v4
        v_cmp_gt_u32 s[12:13], 6, v3
        s_and_b64 vcc, vcc, s[12:13]
        v_mov_b32 v37, 0xfe0000
        v_cndmask_b32 v36, v37, v36, vcc
        s_mul_i32 s11, s6, 10
        s_add_u32 s11, s11, s8
        s_mul_i32 s11, s11, 48
        s_add_u32 s11, s11, %d
        v_add_u32 v5, s11, v28
        s_cmp_eq_u32 s7, 0
        s_cselect_b32 s12, 24, 0
        s_add_u32 s12, s12, 128
        s_cmp_eq_u32 s7, 4
        s_cselect_b32 s13, 24, 48
        s_add_u32 s13, s13, 128
        v_cmp_le_u32 vcc, s12, v28
        v_cndmask_b32 v36, v36, v5, vcc
        v_cmp_le_u32 vcc, s13, v28
        v_cndmask_b32 v36, v36, v37, vcc
        v_lshlrev_b32 v36, 7, v36''' % (WS_O // 128, WS_FLAG // 128, WS_XCH // 128 - 128))
        INI = self.opt.get('ini', 6)
        issue(1, tuple(range(INI - 3)))
        self.tag_ready()
        assert WOIMG + 12 * 5120 >= 3 * SLOT and WOIMG + 4 * 5120 <= 2 * SLOT
        WOA, WOB_, STB = self.opt.get('woa', 7), self.opt.get('wob', 9), self.opt.get('stb', 5)
        assert self.D == 3 or (min(WOA, WOB_) >= 7 and 4 * SLOT <= TAB and STB + self.D - 1 <= 8)
        TBL = STB + self.opt.get('tbl', self.D - 1); seq = [('c', k) for k in range(INI)]; nxt = INI
        extra = {}
        for c in range(10):
            if c: seq.append(('x', extra.get(c - 1, 0)))
            need = [('c', 3 * c + 2)] + ([('t', 2)] if c == TBL else [])
            n = min(sum(3 if k == 'c' else v for k, v in seq[seq.index(nd) + 1:]) for nd in need)
            e('s_waitcnt vmcnt(%d)' % n)
            if self.opt.get('lts') and c in (0, 1, 2): self.ts(4 + c)
            e('s_barrier')
            if c == 0: self.ts(2)
            if self.opt.get('lt2') and 0 <= c - self.opt['lt2'] + 1 < 8: self.ts(c - self.opt['lt2'] + 2, True)
            ahead = min(3, max(0, (c - self.opt.get('deep', 4) + 1) * self.opt.get('ramp', 1))) if self.D == 4 else 0
            if c < self.opt.get('lag', 0): ahead -= 6 - INI
            while nxt < 30 and nxt < 3 * (c + 3) + ahead:
                issue(nxt // 3, (nxt % 3,)); seq.append(('c', nxt)); nxt += 1
            if c == 9: self.zero_fill()
            if c == self.opt.get('clm', 6):
                e('buffer_load_dword v37, v36, %s, 0 offen' % sq(rWS))
                extra[c] = extra.get(c, 0) + 1
            if c == STB:
                e('''v_and_b32 v34, 31, v0
                v_lshlrev_b32 v34, 2, v34
                s_lshl_b32 s11, s3, 7
                s_add_u32 s11, s11, %d
                buffer_load_dword v35, v34, %s, s11 offen sc1''' % (WS_PRES, sq(rWS)))
                e('buffer_load_dwordx2 v[30:31], v27, %s, 0 offen sc1' % sq(rWS)); assert c not in extra; seq.append(('t', 2))
            if self.opt.get('nowo'):
                pass
            elif c == WOA:
                e('s_and_b32 s71, s4, 2\ns_lshl_b32 s71, s71, 1\ns_add_u32 s71, s71, s14\ns_add_u32 s71, s71, 12'); self.wo_block(20, 's71'); extra[c] = extra.get(c, 0) + 5
            elif c == WOB_:
                e('s_and_b32 s71, s4, 2\ns_lshl_b32 s71, s71, 1\ns_sub_u32 s71, s14, s71\ns_add_u32 s71, s71, 16'); self.wo_block(20, 's71'); extra[c] = extra.get(c, 0) + 5
            if c == TBL:
                e('''s_mov_b32 s15, %d
                s_movk_i32 s75, 2048
                v_cmp_gt_u32 s[76:77], s75, v26
                L_tchk:
                v_cmp_ne_u32 vcc, s10, v31
                s_and_b64 vcc, vcc, s[76:77]
                s_cmp_eq_u64 vcc, 0
                s_cbranch_scc1 L_tok
                s_sub_u32 s15, s15, 1
                s_cmp_eq_u32 s15, 0
                s_cbranch_scc1 L_tok
                s_sleep 4
                buffer_load_dwordx2 v[30:31], v27, %s, 0 offen sc1
                s_waitcnt vmcnt(0)
                s_branch L_tchk
                L_tok:
                v_mov_b32 v32, 0x3f800000
                v_cndmask_b32 v30, v32, v30, s[76:77]
                v_and_b32 v32, 0xffff0000, v30
                v_rcp_f32 v32, v32
                v_lshlrev_b32 v30, 16, v30
                v_mul_f32 v33, -v30, v32
                v_lshlrev_b32 v29, 3, v28
                v_add_u32 v29, %d, v29
                v_cmp_le_u32 vcc, 112, v28
                v_cndmask_b32 v32, v32, 0, vcc
                v_cndmask_b32 v33, v33, 0, vcc
                s_getreg_b32 s11, hwreg(HW_REG_XCC_ID, 0, 4)
                s_lshl_b32 s11, s11, 28
                s_xor_b32 s11, s11, s10
                v_cmp_ne_u32 vcc, s11, v35
                s_cmp_eq_u64 vcc, 0
                s_cselect_b32 s9, COLOC, 0
                v_mov_b32 v30, s9
                v_cmp_eq_u32 vcc, 114, v28
                v_cndmask_b32 v32, v32, v30, vcc
                v_cmp_ge_u32 vcc, 114, v28
                s_and_b64 exec, exec, vcc
                ds_write_b64 v29, v[32:33]
                s_mov_b64 exec, -1
                s_waitcnt lgkmcnt(0)''' % (SPIN, sq(rWS), TAB))
        self.ts(3)
        e('s_cmp_ge_u32 s14, 2\ns_cbranch_scc1 L_w67')
        self.p2_loads()
        for x in self.att_scalars(): e(x)
        e('s_branch L_img2\nL_w67:')
        e('s_mov_b32 s38, 2\ns_cmp_eq_u32 s14, 3\ns_cbranch_scc1 L_w7')
        if not self.opt.get('nowo'):
            e('s_mov_b32 s71, 0\nL_w6:')
            self.wo_block(20, 's71')
            if self.opt.get('thr', 63) < 63: e('s_waitcnt vmcnt(%d)' % self.opt.get('thr', 63))
            e('s_add_u32 s71, s71, 1\ns_cmp_lt_u32 s71, 4\ns_cbranch_scc1 L_w6')
        e('''s_branch L_p2wo
        L_w7:
        s_mov_b32 s15, %d
        L_w7a:
        ds_read_b32 v3, v8 offset:8
        s_waitcnt lgkmcnt(0)
        v_readfirstlane_b32 s11, v3
        s_cmp_ge_u32 s11, 4
        s_cbranch_scc1 L_w7b
        s_sleep 1
        s_sub_u32 s15, s15, 1
        s_cmp_lg_u32 s15, 0
        s_cbranch_scc1 L_w7a
        L_w7b:''' % (SPIN * 4))
        if not self.opt.get('nowo'):
            e('s_mov_b32 s71, 4\nL_w7c:')
            self.wo_block(20, 's71')
            if self.opt.get('thr', 63) < 63: e('s_waitcnt vmcnt(%d)' % self.opt.get('thr', 63))
            e('s_add_u32 s71, s71, 1\ns_cmp_lt_u32 s71, 12\ns_cbranch_scc1 L_w7c')
        e('s_branch L_p2wo')

    def zero_fill(self):
        e = self.e
        e('''v_lshrrev_b32 v3, 1, v28
        v_and_b32 v4, 1, v28
        v_mul_u32_u24 v3, %d, v3
        v_mul_u32_u24 v4, 160, v4
        v_add_u32 v3, v3, v4
        v_mov_b32 v4, 0
        v_mov_b32 v5, 0
        v_cmp_gt_u32 vcc, 224, v28
        s_and_b64 exec, exec, vcc''' % P)
        for z in range(4):
            e('''s_cmp_gt_u32 s7, %d
            s_cselect_b32 s11, %d, %d
            v_add_u32 v6, s11, v3
            ds_write_b64 v6, v[4:5]''' % (z, 8 * z, 8 * (16 + z)))
        e('''s_mov_b64 exec, -1
        v_mov_b32 v8, %d
        v_mov_b32 v3, 1
        s_waitcnt lgkmcnt(0)
        s_mov_b64 exec, 1
        ds_add_u32 v8, v3 offset:12
        s_mov_b64 exec, -1''' % (TAB + 896))

    def gemm1(self):
        e = self.e
        ACC, BA, BB, ST = 16, 100, 140, 180
        def acc(y, T): return ACC + (y * 7 + T) * 4
        e('''L_gemm:
        s_setprio 3
        s_cmp_lg_u32 s5, 3
        s_cbranch_scc1 L_noones
        v_mov_b32 v8, 0x3f803f80
        v_mov_b32 v9, v8
        v_mov_b32 v10, v8
        v_mov_b32 v11, v8
        v_and_b32 v2, 15, v0
        v_lshlrev_b32 v2, 4, v2
        v_lshrrev_b32 v3, 4, v0
        v_min_u32 v3, %d, v3
        v_mul_u32_u24 v3, %d, v3
        v_add_u32 v2, v2, v3
        ds_write_b128 v2, v[8:11]
        s_waitcnt lgkmcnt(0)
        L_noones:''' % (self.D - 1, SLOT))
        e('''v_and_b32 v1, 15, v0
        v_lshrrev_b32 v2, 4, v0
        v_lshrrev_b32 v3, 1, v1
        v_xor_b32 v3, v2, v3
        v_lshlrev_b32 v3, 4, v3
        v_lshl_add_u32 v8, v1, 7, v3
        v_xor_b32 v9, 64, v8
        v_lshrrev_b32 v3, 2, v1
        v_and_b32 v14, 3, v1
        v_lshrrev_b32 v15, 1, v3
        v_and_b32 v10, 1, v2
        v_lshl_or_b32 v15, v10, 1, v15
        v_xor_b32 v15, s5, v15
        v_lshl_add_u32 v3, v2, 3, v3
        v_lshlrev_b32 v3, 7, v3
        v_lshl_add_u32 v3, v15, 5, v3
        v_lshl_add_u32 v3, v14, 3, v3
        v_add_u32 v10, %d, v3
        v_add_u32 v11, SL0, v8
        v_add_u32 v12, SL0, v9
        v_add_u32 v13, SL0, v10
        v_lshlrev_b32 v14, 3, v1
        v_add_u32 v14, %d, v14
        s_lshl_b32 s11, s5, 2
        s_add_u32 s11, s11, s7
        v_add_u32 v3, s11, v2
        v_mul_u32_u24 v15, %d, v1
        v_lshl_add_u32 v15, v3, 3, v15
        v_mov_b32 v6, %d
        v_mov_b32 v7, 1
        s_mov_b32 s78, 1
        s_mov_b32 s79, SL1'''.replace('SL0', str(self.S0 * SLOT)).replace('SL1', str((self.S0 + 1) % self.D * SLOT)) % (XPART, TAB, P, TAB + 896))
        assert 2 * SLOT == 77824
        def reads(buf, t):
            ops = []
            for y in range(3):
                for hh in range(2):
                    ops.append('ds_read_b64_tr_b16 %s, v13 offset:%d' % (vr(buf + 28 + 4 * y + 2 * hh, 2), y * 8192 + (32 * t + 4 * hh) * 128))
            for T in range(7):
                ops.append('ds_read_b128 %s, v%d offset:%d' % (vr(buf + 4 * T, 4), 11 + t, T * 2048))
            return [] if self.opt.get('noread') else ops
        def mf(buf, y, T, first=False):
            return 'v_mfma_f32_16x16x32_bf16 %s, %s, %s, %s' % (vr(acc(y, T), 4), vr(buf + 28 + 4 * y, 4), vr(buf + 4 * T, 4), '0' if first else vr(acc(y, T), 4))
        def half(rbuf, t, mbuf, tail=(), first=False):
            R = reads(rbuf, t) + list(tail); M = [mf(mbuf, y, T, first) for T in range(7) for y in range(3)]
            X = []
            if self.opt.get('csv'):
                M[0] = None
                if self.opt['csv'] == 1:
                    for r in range(4):
                        X += ['v_lshlrev_b32 v194, 16, v%d' % (mbuf + 28 + r), 'v_and_b32 v195, 0xffff0000, v%d' % (mbuf + 28 + r), 'v_add_f32 v16, v16, v194', 'v_add_f32 v17, v17, v195']
            for k in range(21):
                if k == 20: e('s_waitcnt lgkmcnt(0)')
                if not self.opt.get('nomfma') and M[k]: e(M[k])
                if k < len(R): e(R[k])
                if X and k >= 3: e(X.pop(0))
            assert len(R) <= 20
        nxt = ['v_add_u32 v11, s79, v8\nv_add_u32 v12, s79, v9', 'v_add_u32 v13, s79, v10\ns_add_u32 s79, s79, %d' % SLOT,
               's_cmp_eq_u32 s79, %d\ns_cselect_b32 s79, 0, s79' % (SLOT * self.D)]
        if self.opt.get('clm', 6) == -1:
            e('''s_mul_i32 s11, s6, 10
            s_add_u32 s11, s11, s8
            s_lshl_b32 s11, s11, 2
            s_add_u32 s11, s11, s5
            s_mul_i32 s11, s11, 3072
            s_add_u32 s11, s11, %d
            v_mov_b32 v216, 0
            v_mov_b32 v217, 0
            v_xor_b32 v218, s10, 1
            v_mov_b32 v219, 0''' % WS_XCH)
            for k in range(3):
                e('buffer_store_dwordx4 v[216:219], v254, %s, s11 offen offset:%d' % (sq(rWS), 1024 * k))
        self.ts(1)
        e('s_barrier')
        for x in reads(BA, 0): e(x)
        self.count_in(3)
        if self.opt.get('pre2'):
            e('v_mov_b32 v216, 0\nv_mov_b32 v217, 0\nv_xor_b32 v218, s10, 1\nv_mov_b32 v219, 0')
            for k in range(3):
                e('''s_mul_i32 s11, s5, 3
                s_add_u32 s11, s11, %d
                s_lshr_b32 s12, s11, 1
                s_and_b32 s11, s11, 1
                s_mul_i32 s13, s6, 6
                s_add_u32 s12, s12, s13
                s_min_u32 s12, s12, 127
                s_mul_i32 s12, s12, 10
                s_add_u32 s12, s12, s8
                s_lshl_b32 s12, s12, 1
                s_add_u32 s12, s12, s11
                s_lshl_b32 s12, s12, 10
                s_add_u32 s12, s12, %d
                buffer_store_dwordx4 v[216:219], v254, %s, s12 offen sc1''' % (k, WS_O, sq(rWS)))
        e('s_waitcnt lgkmcnt(0)')
        half(BB, 1, BA, nxt, True)
        e('L_kloop:\ns_barrier')
        half(BA, 0, BB, ['s_add_u32 s78, s78, 1\ns_cmp_ge_u32 s78, 10'])
        e('s_cbranch_scc1 L_ktail')
        half(BB, 1, BA, nxt)
        e('s_branch L_kloop\nL_ktail:')
        CS = (BA + 28, BA + 32, BB + 28)
        def fixt(y, T, pk):
            a = acc(y, T); st = vr(ST + 2 * T, 2); ops = []
            for h in range(2):
                ops.append('v_pk_mul_f32 %s, %s, %s op_sel_hi:[1,0]' % (vr(a + 2 * h, 2), vr(a + 2 * h, 2), st))
            if pk:
                for h in range(2):
                    ops.append('v_pk_fma_f32 %s, %s, %s, %s op_sel:[0,1,0] op_sel_hi:[1,1,1]' % (vr(a + 2 * h, 2), vr(CS[y] + 2 * h, 2), st, vr(a + 2 * h, 2)))
            else:
                for r in range(4):
                    ops.append('v_fmac_f32 v%d, v%d, v%d' % (a + r, CS[y] + r, ST + 2 * T + 1))
            ops.append('v_cvt_pk_bf16_f32 v%d, v%d, v%d' % (a, a, a + 1))
            ops.append('v_cvt_pk_bf16_f32 v%d, v%d, v%d' % (a + 1, a + 2, a + 3))
            ops.append('ds_write_b64 v15, %s offset:%d' % (vr(a, 2), T * 16 * P + y * 160))
            return ops
        def csum(y):
            return ['v_mov_b32_dpp v%d, v%d row_newbcast:0 row_mask:0xf bank_mask:0xf' % (CS[y] + r, acc(y, 0) + r) for r in range(4)]
        self.fixv = lambda: csum(2) + [x for T in range(7) for x in fixt(2, T, True)]
        R = reads(BB, 1)
        R = R[:2] + R[6:] + R[2:6] + ['ds_read_b64 %s, v14 offset:%d' % (vr(ST + 2 * T, 2), 128 * T) for T in range(7)]
        M = [mf(bf, y, T) for bf, y in ((BA, 0), (BA, 1), (BB, 0), (BB, 1), (BA, 2), (BB, 2)) for T in range(7)]
        units = [('c', 0, 0)] + [('t', 0, T) for T in range(1, 7)] + [('c', 1, 0)] + [('t', 1, T) for T in range(7)]
        SC = self.att_scalars(); assert len(SC) <= 56
        PL = self.p2_loads(True)
        q = []; FILL = self.opt.get('fill', 3)
        for k in range(42):
            if k == 14: e('s_waitcnt lgkmcnt(11)')
            if k == 17:
                e('s_waitcnt lgkmcnt(0)\ns_mov_b64 exec, 1\nds_add_u32 v6, v7 offset:8\ns_mov_b64 exec, -1')
            e(M[k])
            if k < 10:
                e(R[2 * k]); e(R[2 * k + 1])
            if 10 <= k < 13: e(PL[k - 10])
            if k < 14:
                for _ in range(4):
                    if SC: e(SC.pop(0))
            if k >= 18:
                for _ in range(FILL):
                    if not q and units:
                        u = units.pop(0)
                        q = csum(u[1]) if u[0] == 'c' else fixt(u[1], u[2], False)
                    if q: e(q.pop(0))
        self.ts(3)
        for x in q: e(x)
        first = True
        for u in units:
            for x in (csum(u[1]) if u[0] == 'c' else fixt(u[1], u[2], not first)): e(x)
            first = False

    def attention(self):
        e = self.e
        e('L_img:')
        e('''s_mov_b64 exec, 1
        ds_add_u32 v6, v7 offset:12
        s_mov_b64 exec, -1
        L_img2:
        v_mov_b32 v8, %d
        s_mov_b32 s15, %d
        L_imw:
        ds_read_b32 v3, v8 offset:12
        s_waitcnt lgkmcnt(0)
        v_readfirstlane_b32 s11, v3
        s_cmp_ge_u32 s11, 8
        s_cbranch_scc1 L_imok
        IMSLEEP
        s_sub_u32 s15, s15, 1
        s_cmp_lg_u32 s15, 0
        s_cbranch_scc1 L_imw
        L_imok:
        s_setprio 3''' % (TAB + 896, SPIN * 8))
        if self.opt.get('lts'): self.opt['ts_off'] = 1
        self.ts(4)
        if self.opt.get('dump_img'):
            e("""s_mul_i32 s11, s6, 10
            s_add_u32 s11, s11, s8
            s_mul_i32 s11, s11, 0x10000
            s_add_u32 s11, s11, 0x1000000
            s_lshl_b32 s12, s5, 10
            v_lshlrev_b32 v2, 4, v0
            v_add_u32 v2, s12, v2
            s_mov_b32 s54, 0x10000000""")
            for j in range(10):
                e("""ds_read_b128 v[100:103], v2
                s_waitcnt lgkmcnt(0)
                buffer_store_dwordx4 v[100:103], v2, %s, s11 offen
                v_add_u32 v2, 6144, v2
                s_waitcnt vmcnt(0)""" % sq(rWS))
        Qr, Kr, Vr, Sr, Er, Xr, Pr, Rr = 196, 16, 48, 100, 132, 148, 72, 88
        def qrd(sgs):
            e('s_mov_b32 exec_hi, 0')
            for sg in sgs: e('ds_read_b64 %s, v228 offset:%d' % (vr(Qr + 4 * sg, 2), 40 * sg))
            e('s_mov_b32 exec_hi, 0xffff')
            for sg in sgs: e('ds_read_b64 %s, v228 offset:%d' % (vr(Qr + 4 * sg + 2, 2), 40 * sg + 16))
            e('s_mov_b64 exec, -1')
        def krd(sg):
            for h, av in enumerate((228, 231)):
                for u in range(2):
                    e('ds_read_b64 %s, v%d offset:%d' % (vr(Kr + 8 * sg + 4 * h + 2 * u, 2), av, 160 + 40 * sg + 16 * u))
        qrd((0, 3)); krd(0); krd(3)
        e('v_mov_b32 v9, 0xffffff00\nv_lshlrev_b32 v230, 3, v0\nv_mov_b32 v10, 0x0c0c0400')
        def smf(sg):
            for h in range(2):
                e('v_mfma_f32_16x16x32_bf16 %s, %s, %s, 0' % (vr(Sr + 8 * sg + 4 * h, 4), vr(Kr + 8 * sg + 4 * h, 4), vr(Qr + 4 * sg, 4)))
        def sel(sg):
            c = Sr + 8 * sg; p = c + 4
            e('v_cndmask_b32 v%d, v%d, v%d, s[64:65]' % (c, c, c + 1)); e('v_cndmask_b32 v%d, v%d, v%d, s[64:65]' % (c + 2, c + 2, c + 3))
            e('v_cndmask_b32 v%d, v%d, v%d, s[64:65]' % (p, p, p + 1)); e('v_cndmask_b32 v%d, v%d, v%d, s[64:65]' % (p + 2, p + 2, p + 3))
            e('v_cndmask_b32 v%d, v%d, v%d, s[66:67]' % (Er + 4 * sg, p, c)); e('v_cndmask_b32 v%d, v%d, v%d, s[68:69]' % (Er + 4 * sg + 1, p + 2, c + 2))
        vrd = []
        for j in range(5):
            vrd.append('ds_read_b64_tr_b16 %s, v229 offset:%d' % (vr(Vr + 4 * j, 2), 16 * P + 320 + 32 * j))
            vrd.append('ds_read_b64_tr_b16 %s, v229 offset:%d' % (vr(Vr + 4 * j + 2, 2), 320 + 32 * j))
        e('s_waitcnt lgkmcnt(4)'); smf(0)
        e('s_waitcnt lgkmcnt(0)'); smf(3)
        qrd((1, 2)); krd(1)
        sel(0)
        e('v_and_or_b32 v%d, v%d, v9, s75\nv_and_or_b32 v%d, v%d, v9, s39\nbuffer_store_dwordx2 %s, v230, %s, s70 offen' % (Er + 2, Er + 0, Er + 3, Er + 1, vr(Er + 2, 2), sq(rWS)))
        sel(3)
        e('v_and_or_b32 v%d, v%d, v9, s75\nv_and_or_b32 v%d, v%d, v9, s39\nbuffer_store_dwordx2 %s, v230, %s, s71 offen' % (Er + 14, Er + 12, Er + 15, Er + 13, vr(Er + 14, 2), sq(rWS)))
        self.ts(5)
        krd(2)
        e('s_waitcnt lgkmcnt(4)'); smf(1)
        e('s_waitcnt lgkmcnt(0)'); smf(2)
        sel(1); sel(2)
        xl = ['buffer_load_dwordx2 %s, v230, %s, s%d offen sc1' % (vr(Xr + 4 * k, 2), sq(rWS), 72 + k) for k in range(2)]
        XW = self.opt.get('xw', 1)
        e('v_mov_b32 v12, 0x3ea52b5c')
        e('s_cmp_ge_u32 s5, 4\ns_cbranch_scc1 L_nov')
        FV = self.fixv()
        for n, x in enumerate(FV):
            if n == 4 + 7 * XW:
                for y in xl: e(y)
            e(x)
        e('s_mov_b64 exec, 1\nds_add_u32 v6, v7\ns_mov_b64 exec, -1\n%s\ns_branch L_nov2\nL_nov:\n%s' % (('s_setprio 2', 's_setprio 1') if self.opt.get('ap', 1) else ('s_nop 0', 's_nop 0')))
        for y in xl: e(y)
        XP = self.opt.get('xp', 1)
        if XP:
            e('s_waitcnt vmcnt(4)'); self.xn_prep(); e('s_setprio 3\nL_nov2:')
        else:
            e('L_nov2:\ns_waitcnt vmcnt(4)'); self.xn_prep()
        if self.opt.get('ats'): self.ts(1)
        e('s_waitcnt vmcnt(0)')
        if self.opt.get('ats') == 1: self.ts(3)
        for k in range(2):
            e("""v_perm_b32 v3, v%d, v%d, v10
            v_cmp_ne_u32 vcc, s%d, v3
            s_cmp_lg_u64 vcc, 0
            s_cbranch_scc1 L_xretry%d
            L_xok%d:""" % (Xr + 4 * k + 1, Xr + 4 * k, 76 + k, k, k))
        e('s_mov_b64 exec, 1\nv_mov_b32 v11, 1\nds_add_u32 v8, v11 offset:4\ns_mov_b64 exec, -1')
        for r in (0, 1, 4, 5): e('v_and_b32 v%d, v9, v%d' % (Xr + r, Xr + r))
        e('v_pk_add_f32 %s, %s, %s' % (vr(Er, 2), vr(Er, 2), vr(Xr, 2)))
        e('v_pk_add_f32 %s, %s, %s' % (vr(Er + 12, 2), vr(Er + 12, 2), vr(Xr + 4, 2)))
        self.ts(6)
        e("""s_or_b32 s11, s6, s5
        s_cmp_lg_u32 s11, 0
        s_cbranch_scc1 L_nomask
        v_mov_b32 v3, 0xce6e6b28""")
        for sg in range(4):
            e('v_cndmask_b32 v%d, v3, v%d, s[66:67]\nv_cndmask_b32 v%d, v3, v%d, s[68:69]' % (Er + 4 * sg, Er + 4 * sg, Er + 4 * sg + 1, Er + 4 * sg + 1))
        e('L_nomask:')
        A, B_, C, D_ = Rr, Rr + 2, Rr + 4, Rr + 6
        def allred(op, mid=None):
            for sg in range(4):
                e('%s v%d, v%d, v%d' % (op, Rr + 2 * sg, Er + 4 * sg, Er + 4 * sg + 1))
            e('v_permlane32_swap_b32 v%d, v%d\nv_permlane32_swap_b32 v%d, v%d' % (A, C, B_, D_))
            e('%s v%d, v%d, v%d\n%s v%d, v%d, v%d' % (op, A, A, C, op, B_, B_, D_))
            e('v_permlane16_swap_b32 v%d, v%d' % (A, B_))
            e('%s v%d, v%d, v%d' % (op, A, A, B_))
            if mid: e(mid % (A, A))
            e('v_mov_b32 v%d, v%d\nv_permlane16_swap_b32 v%d, v%d' % (B_, A, A, B_))
            e('v_mov_b32 v%d, v%d\nv_mov_b32 v%d, v%d' % (C, A, D_, B_))
            e('v_permlane32_swap_b32 v%d, v%d\nv_permlane32_swap_b32 v%d, v%d' % (A, C, B_, D_))
        e('ds_read_b32 v4, v8 offset:16\nds_read_b32 v3, v8')
        allred('v_max_f32', 'v_mul_f32 v%d, v12, v%d')
        e('''s_waitcnt lgkmcnt(0)
        v_readfirstlane_b32 s11, v3
        v_readfirstlane_b32 s9, v4
        s_cmp_lt_u32 s11, 4
        s_cbranch_scc1 L_vw
        L_vok:''')
        self.tail.append(lambda: e('''L_vw:
        s_mov_b32 s15, 800000
        L_vw2:
        ds_read_b32 v3, v8
        s_waitcnt lgkmcnt(0)
        v_readfirstlane_b32 s11, v3
        s_cmp_ge_u32 s11, 4
        s_cbranch_scc1 L_vok
        s_sub_u32 s15, s15, 1
        s_cmp_lg_u32 s15, 0
        s_cbranch_scc1 L_vw2
        s_branch L_vok'''))
        if self.opt.get('ats'): self.ts(2)
        for x in vrd: e(x)
        for sg in range(4):
            e('v_pk_fma_f32 %s, %s, v[12:13], %s op_sel_hi:[1,0,0] neg_lo:[0,0,1] neg_hi:[0,0,1]' % (vr(Er + 4 * sg, 2), vr(Er + 4 * sg, 2), vr(Rr + 2 * sg, 2)))
        for sg in range(4):
            e('v_exp_f32 v%d, v%d\nv_exp_f32 v%d, v%d' % (Er + 4 * sg, Er + 4 * sg, Er + 4 * sg + 1, Er + 4 * sg + 1))
        allred('v_add_f32', 'v_rcp_f32 v%d, v%d')
        e('s_waitcnt lgkmcnt(0)')
        for sg in range(4):
            e('v_pk_mul_f32 %s, %s, %s op_sel_hi:[1,0]' % (vr(Er + 4 * sg, 2), vr(Er + 4 * sg, 2), vr(Rr + 2 * sg, 2)))
        def pv(j, sg, k):
            e('v_mfma_f32_16x16x32_bf16 %s, %s, %s, 0' % (vr(Sr + 4 * k, 4), vr(Vr + 4 * j, 4), vr(Pr + 4 * sg, 4)))
        for sg in range(4):
            x0, x1 = Er + 4 * sg + 2, Er + 4 * sg + 3
            e('v_cvt_pk_bf16_f32 v%d, v%d, v%d\nv_cvt_pk_bf16_f32 v%d, v%d, v%d' % (x0, Er + 4 * sg, Er + 4 * sg, x1, Er + 4 * sg + 1, Er + 4 * sg + 1))
            for r in range(4):
                e('v_and_b32 v%d, v%d, v%d' % (Pr + 4 * sg + r, 212 + r, (x0, x1)[r & 1]))
            if sg: pv(sg - 1, sg - 1, 2 * sg - 2); pv(sg, sg - 1, 2 * sg - 1)
        pv(3, 3, 6); pv(4, 3, 7)
        if self.opt.get('ats') == 2: self.ts(3)
        Or = 220
        def cv(j, k):
            e('v_cvt_pk_bf16_f32 v%d, v%d, v%d\nv_cvt_pk_bf16_f32 v%d, v%d, v%d' % (Or + 2 * j, Sr + 4 * k, Sr + 4 * k + 1, Or + 2 * j + 1, Sr + 4 * k + 2, Sr + 4 * k + 3))
        e('v_mov_b32 v4, 64\nv_cndmask_b32 v4, v0, v4, s[64:65]\nv_mov_b32 v6, 0x10000')
        cv(0, 0); cv(1, 2); cv(2, 4)
        e('s_mov_b64 exec, 0xffff'); cv(1, 1)
        e('s_mov_b32 exec_lo, -1'); cv(2, 3)
        e('s_mov_b64 exec, -1'); cv(3, 6)
        e('s_mov_b32 exec_hi, 0xffff'); cv(3, 5)
        e('s_not_b64 exec, s[28:29]'); cv(0, 7)
        e('s_mov_b64 exec, -1')
        e("""s_and_b32 s11, s31, s9
        s_cbranch_scc1 L_oloc
        buffer_store_dwordx4 v[220:223], v254, s[52:55], s25 offen sc1
        buffer_store_dwordx4 v[224:227], v254, s[52:55], s25 offen offset:1024 sc1
        v_add3_u32 v3, v222, v223, v224
        v_add3_u32 v7, v225, v226, v227
        v_add3_u32 v3, v3, v220, v221
        v_add_u32 v3, v3, v7
        v_add_u32_dpp v3, v3, v3 quad_perm:[1,0,3,2] row_mask:0xf bank_mask:0xf
        v_add_u32_dpp v3, v3, v3 quad_perm:[2,3,0,1] row_mask:0xf bank_mask:0xf
        v_cndmask_b32 v3, v3, 0, s[64:65]
        v_add_u32 v3, s10, v3
        s_mov_b32 exec_lo, 0x11111113
        s_mov_b32 exec_hi, 0x11111111
        buffer_store_dword v3, v4, s[52:55], s26 offen sc1
        s_branch L_opub
        L_oloc:
        buffer_store_dwordx4 v[220:223], v254, s[52:55], s25 offen
        buffer_store_dwordx4 v[224:227], v254, s[52:55], s25 offen offset:1024
        v_add3_u32 v3, v222, v223, v224
        v_add3_u32 v7, v225, v226, v227
        v_add3_u32 v3, v3, v220, v221
        v_add_u32 v3, v3, v7
        v_add_u32_dpp v3, v3, v3 quad_perm:[1,0,3,2] row_mask:0xf bank_mask:0xf
        v_add_u32_dpp v3, v3, v3 quad_perm:[2,3,0,1] row_mask:0xf bank_mask:0xf
        v_cndmask_b32 v3, v3, 0, s[64:65]
        v_add_u32 v3, s10, v3
        s_mov_b32 exec_lo, 0x11111113
        s_mov_b32 exec_hi, 0x11111111
        buffer_store_dword v3, v4, s[52:55], s26 offen
        L_opub:
        s_mov_b64 exec, 1
        ds_add_u32 v8, v6 offset:4
        s_mov_b64 exec, -1""")
        if XP:
            e('s_setprio 0\ns_cmp_ge_u32 s5, 4\ns_cbranch_scc1 L_phase2')
            self.xn_prep()
        self.tail.append(lambda: self.xretry(Er, Xr))

    def xretry(self, Er, Xr):
        e = self.e
        for k in range(2):
            own, got = Er + 12 * k, Xr + 4 * k
            e("""L_xretry%d:
            s_mov_b32 s15, 0
            L_xr%d:
            s_add_u32 s15, s15, 1
            s_cmp_ge_u32 s15, %d
            s_cbranch_scc1 L_xok%d
            s_cmp_lt_u32 s15, 48
            s_cbranch_scc1 L_xf%d
            s_cmp_lg_u32 s15, 48
            s_cbranch_scc1 L_xs%d
            s_lshl_b32 s12, s%d, 1
            s_add_u32 s12, s12, %d
            v_mov_b32 v%d, s10
            buffer_store_dwordx3 %s, v254, %s, s12 offen sc1
            L_xs%d:
            s_lshl_b32 s12, s%d, 1
            s_add_u32 s12, s12, %d
            buffer_load_dwordx3 %s, v254, %s, s12 offen sc1
            s_waitcnt vmcnt(0)
            v_cmp_ne_u32 vcc, s10, v%d
            s_cmp_eq_u64 vcc, 0
            s_cbranch_scc1 L_xok%d
            L_xf%d:
            buffer_load_dwordx2 %s, v230, %s, s%d offen sc1
            s_waitcnt vmcnt(0)
            v_perm_b32 v3, v%d, v%d, v10
            v_cmp_ne_u32 vcc, s74, v3
            s_cmp_lg_u64 vcc, 0
            s_cbranch_scc1 L_xr%d
            s_branch L_xok%d""" % (k, k, SPIN, k, k, k, 70 + k, WS_XCB - 2 * WS_XCH, own + 2, vr(own, 3), sq(rWS), k, 72 + k, WS_XCB - 2 * WS_XCH,
                                   vr(got, 3), sq(rWS), got + 2, k, k, vr(got, 2), sq(rWS), 72 + k, got + 1, got, k, k))

    def xn_prep(self):
        e = self.e
        XF, XN, T = 16, 196, 28
        a, b = self.lab('pc'), self.lab('pk')
        e("""s_mov_b32 s15, %d
        %s:
        v_cmp_ne_u32 vcc, s10, v237
        s_cmp_eq_u64 vcc, 0
        s_cbranch_scc1 %s
        s_sub_u32 s15, s15, 1
        s_cmp_eq_u32 s15, 0
        s_cbranch_scc1 %s
        s_sleep 8
        buffer_load_dwordx2 v[236:237], v235, %s, 0 offen sc1
        s_waitcnt vmcnt(0)
        s_branch %s
        %s:
        v_permlane16_swap_b32 v238, v240
        v_permlane16_swap_b32 v239, v241
        v_and_b32 v34, 0xffff0000, v236
        v_rcp_f32 v34, v34
        v_lshlrev_b32 v236, 16, v236""" % (SPIN, a, b, b, sq(rWS), a, b))
        def rnd():
            for d in range(6): e('v_cvt_pk_bf16_f32 v%d, v%d, v%d' % (T + d, XN + 2 * d, XN + 2 * d + 1))
            for d in range(6): e('v_lshlrev_b32 v%d, 16, v%d\nv_and_b32 v%d, 0xffff0000, v%d' % (XN + 2 * d, T + d, XN + 2 * d + 1, T + d))
        for d in range(6):
            e('v_lshlrev_b32 v%d, 16, v%d\nv_and_b32 v%d, 0xffff0000, v%d' % (XF + 2 * d, 238 + d, XF + 2 * d + 1, 238 + d))
        for d in range(6):
            e('v_pk_add_f32 %s, %s, v[236:237] op_sel_hi:[1,0] neg_lo:[0,1] neg_hi:[0,1]' % (vr(XN + 2 * d, 2), vr(XF + 2 * d, 2)))
        rnd()
        for d in range(6):
            e('v_pk_mul_f32 %s, %s, v[34:35] op_sel_hi:[1,0]' % (vr(XN + 2 * d, 2), vr(XN + 2 * d, 2)))
        rnd()
        for d in range(6):
            e('v_pk_add_f32 %s, %s, %s' % (vr(XN + 2 * d, 2), vr(XN + 2 * d, 2), vr(XF + 2 * d, 2)))

    def phase2(self):
        e = self.e
        NPRE = 8
        WF, XN = 16, 196
        OFL = [176 + 4 * k for k in range(5)] + [208 + 4 * k for k in range(5)]
        ACL = [228, 236, 240, 248, 12]
        CKL = [1, 2, 4, 10, 11]
        OF = 176
        UPD = TAB + 1024
        e('L_phase2:\ns_setprio 0')
        self.ts(7)
        def wrd(ks, slot):
            ops = []
            for t in range(5):
                for hh in range(2):
                    ll, jq = ks // 2, 2 * (ks % 2) + hh
                    av, rows = 244, 64 * ll + 16 * jq - 4 * ll
                    if jq == 0 and ll == 4: rows += 64
                    elif jq == 0: av = 244 + ll
                    ops.append('ds_read_b64_tr_b16 %s, v%d offset:%d' % (vr(WF + 20 * slot + 4 * t + 2 * hh, 2), av, rows * 160 + 32 * t))
            return ops
        e('v_mov_b32 v8, %d\nv_and_b32 v9, 60, v0\nds_read_b32 v7, v8 offset:4' % (TAB + 896))
        e("""s_waitcnt lgkmcnt(0)
        v_readfirstlane_b32 s11, v7
        s_mov_b32 s72, 0
        s_mov_b32 s73, 1
        s_and_b32 s11, s11, 0xff
        s_cmp_lt_u32 s11, 8
        s_cselect_b32 s11, s38, 0
        s_cmp_eq_u32 s11, 3
        s_cbranch_scc1 L_wskip
        s_mov_b32 s73, 0
        L_wrd:
        s_mov_b32 s15, %d
        L_wochk:
        ds_read_b32 v7, v8 offset:4
        s_waitcnt lgkmcnt(0)
        v_readfirstlane_b32 s11, v7
        s_and_b32 s11, s11, 0xff
        s_cmp_ge_u32 s11, 8
        s_cbranch_scc1 L_wook
        s_sleep 1
        s_sub_u32 s15, s15, 1
        s_cmp_lg_u32 s15, 0
        s_cbranch_scc1 L_wochk
        L_wook:""" % (SPIN * 4))
        for ks in range(NPRE):
            for x in wrd(ks, ks): e(x)
        e("""s_mov_b32 s15, %d
        s_cmp_lg_u32 s73, 0
        s_cbranch_scc1 L_wdone
        L_wskip:""" % SPIN)
        if self.opt.get('pts') in (1, 2): self.ts(3)
        e("""s_mov_b32 s15, %d
        s_cmp_eq_u32 s38, 0
        s_cbranch_scc1 L_ohint
        s_and_b32 s101, s100, s9
        s_mov_b32 s13, 0x80008
        s_cselect_b32 s13, 0x80010, s13
        s_cselect_b32 s14, LTH, RTH
        s_cbranch_scc1 L_ow2
        s_cmp_eq_u32 s38, 3
        s_cbranch_scc0 L_ow2
        s_waitcnt vmcnt(0)
        s_mov_b64 exec, 1
        v_mov_b32 v6, 0x100
        ds_add_u32 v8, v6 offset:4
        s_mov_b64 exec, -1
        s_mov_b32 s38, 2
        L_ow2:
        ds_read_b32 v3, v8 offset:4
        s_waitcnt lgkmcnt(0)
        v_readfirstlane_b32 s11, v3
        s_bfe_u32 s11, s11, s13
        s_cmp_ge_u32 s11, s14
        s_cbranch_scc1 L_ook
        s_sleep 1
        s_sub_u32 s15, s15, 1
        s_cmp_lg_u32 s15, 0
        s_cbranch_scc1 L_ow2
        L_ook:
        s_mov_b32 s15, %d""" % (SPIN * 4, SPIN))
        self.ts(8)
        if self.opt.get('wb'):
            e('''s_lshl_b32 s11, s4, 3
            s_add_u32 s11, s11, s5
            s_cmpk_lg_u32 s11, %d
            s_cbranch_scc1 L_nowb
            buffer_wbl2 sc1
            L_nowb:''' % (31 * 8 + 5))
        for j in range(5):
            e('L_old%d:' % j)
            for h in range(2):
                e('buffer_load_dwordx4 %s, v254, %s, s%d offen offset:%d sc1' % (vr(OFL[2 * j + h], 4), sq(rWS), 22 + j // 2, 2048 * (j % 2) + 1024 * h))
            e('buffer_load_dword v%d, v9, %s, s63 offen offset:%d sc1' % (CKL[j], sq(rWS), 128 * j))
        e('''s_cmp_eq_u32 s38, 3
        s_cbranch_scc0 L_noack
        s_waitcnt vmcnt(15)
        s_mov_b64 exec, 1
        v_mov_b32 v6, 0x100
        ds_add_u32 v8, v6 offset:4
        s_mov_b64 exec, -1
        s_mov_b32 s38, 2
        L_noack:''')
        e('s_cmp_lg_u32 s72, 0\ns_cbranch_scc1 L_odisp\ns_cmp_lg_u32 s73, 0\ns_cbranch_scc1 L_wrd\nL_wdone:\ns_waitcnt lgkmcnt(0)')
        def val(j):
            o, p = OFL[2 * j], OFL[2 * j + 1]
            return ['v_add3_u32 v3, v%d, v%d, v%d' % (o, o + 1, o + 2), 'v_add3_u32 v5, v%d, v%d, v%d' % (o + 3, p, p + 1),
                    'v_add3_u32 v3, v3, v%d, v%d\nv_add_u32 v3, v3, v5' % (p + 2, p + 3),
                    'v_subrev_u32 v5, s10, v%d\nv_add_u32_dpp v3, v3, v3 quad_perm:[1,0,3,2] row_mask:0xf bank_mask:0xf' % CKL[j],
                    's_nop 0\nv_add_u32_dpp v3, v3, v3 quad_perm:[2,3,0,1] row_mask:0xf bank_mask:0xf\nv_cmp_ne_u32 vcc, v3, v5']
        def chk(j): e('s_mov_b32 s72, %d\ns_cmp_lg_u64 vcc, 0\ns_cbranch_scc1 L_oretry' % (j + 1))
        def mm(ks, fill=()):
            slot = ks if ks < NPRE else ks - NPRE
            if ks >= NPRE: e('s_waitcnt lgkmcnt(%d)' % min(15, 10 * (9 - ks)))
            for t in range(5):
                c = '0' if ks == 0 else vr(ACL[t], 4)
                e('v_mfma_f32_16x16x32_bf16 %s, %s, %s, %s' % (vr(ACL[t], 4), vr(WF + 20 * slot + 4 * t, 4), vr(OFL[ks], 4), c))
                for x in fill[t::5]: e(x)
        e('s_waitcnt vmcnt(12)')
        for x in val(0): e(x)
        chk(0); e('L_ogo0:')
        for j in range(5):
            if self.opt.get('pts') == 3 and j in (0, 2, 4): self.ts(1 + j // 2)
            mm(2 * j, wrd(9, 1) if j == 1 else ())
            if j < 4:
                e('s_waitcnt vmcnt(%d)' % (3 * (3 - j)))
                mm(2 * j + 1, val(j + 1) + (wrd(8, 0) if j == 0 else []))
                chk(j + 1); e('L_ogo%d:' % (j + 1))
            else:
                mm(9)
        def ovals():
            for j in range(5):
                e('L_oval%d:\ns_waitcnt vmcnt(%d)' % (j, 3 * (4 - j)))
                for x in val(j): e(x)
                chk(j); e('s_branch L_ogo%d' % j)
        self.tail.append(ovals)
        def otail():
            e("""L_oretry:
            s_waitcnt vmcnt(0)
            s_sub_u32 s15, s15, 1
            s_cmp_eq_u32 s15, 0
            s_cbranch_scc1 L_ogive
            s_sleep %d""" % self.opt.get('osl', 2))
            for j in range(5):
                e('s_cmp_eq_u32 s72, %d\ns_cbranch_scc1 L_old%d' % (j + 1, j))
            e('L_odisp:')
            for j in range(4):
                e('s_cmp_eq_u32 s72, %d\ns_cbranch_scc1 L_oval%d' % (j + 1, j))
            e('s_branch L_oval4\nL_ogive:\ns_mov_b32 s15, 1')
            for j in range(4):
                e('s_cmp_eq_u32 s72, %d\ns_cbranch_scc1 L_ogo%d' % (j + 1, j))
            e('s_branch L_ogo4')
            e("""L_ohint:
            v_lshlrev_b32 v3, 7, v0
            s_mov_b64 exec, 31
            L_of:
            buffer_load_dword v5, v3, %s, s63 offen offset:64 sc1
            s_waitcnt vmcnt(0)
            v_cmp_ne_u32 vcc, s10, v5
            s_cmp_eq_u64 vcc, 0
            s_cbranch_scc1 L_of2
            s_mov_b64 exec, vcc
            s_sleep HSL
            s_sub_u32 s15, s15, 1
            s_cmp_lg_u32 s15, 0
            s_cbranch_scc1 L_of
            L_of2:
            s_mov_b64 exec, -1
            s_branch L_ook""" % sq(rWS))
        self.tail.append(otail)
        if self.opt.get('pts') == 1: self.ts(1)
        e("""v_mov_b32 v8, %d
        s_cmp_eq_u32 s61, 0
        s_cbranch_scc0 L_red1""" % UPD)
        pr = lambda t0, d: vr(ACL[t0 + d // 2] + 2 * (d % 2), 2)
        for t in (3, 4):
            e('ds_write_b128 v232, %s offset:%d' % (vr(ACL[t], 4), 4 * P * t))
        for d in range(6):
            e('v_pk_add_f32 %s, %s, %s' % (vr(XN + 2 * d, 2), vr(XN + 2 * d, 2), pr(0, d)))
        e('s_waitcnt lgkmcnt(0)\ns_barrier\nds_read2_b32 v[6:7], v8 offset0:0 offset1:1')
        for t in range(3):
            e('ds_read_b128 %s, v232 offset:%d' % (vr(16 + 4 * t, 4), 4 * P * t))
        e('s_waitcnt lgkmcnt(3)\ns_branch L_red2\nL_red1:')
        for t in range(3):
            e('ds_write_b128 v232, %s offset:%d' % (vr(ACL[t], 4), 4 * P * t))
        for d in range(4):
            e('v_pk_add_f32 %s, %s, %s' % (vr(XN + 2 * d, 2), vr(XN + 2 * d, 2), pr(3, d)))
        e('s_waitcnt lgkmcnt(0)\ns_barrier\nds_read2_b32 v[6:7], v8 offset0:0 offset1:1')
        for t in (3, 4):
            e('ds_read_b128 %s, v232 offset:%d' % (vr(16 + 4 * (t - 3), 4), 4 * P * t))
        e('s_waitcnt lgkmcnt(2)\nL_red2:')
        if self.opt.get('pts') == 2: self.ts(1)
        e("""v_readfirstlane_b32 s76, v6
        v_readfirstlane_b32 s77, v7
        s_lshr_b32 s11, s76, 4
        s_cmp_eq_u32 s11, s60
        s_cbranch_scc1 L_exrow0
        L_exb0:
        s_lshr_b32 s11, s77, 4
        s_cmp_eq_u32 s11, s60
        s_cbranch_scc1 L_exrow1
        L_exb1:
        s_waitcnt lgkmcnt(0)""")
        for d in range(6):
            e('v_pk_add_f32 %s, %s, %s' % (vr(16 + 2 * d, 2), vr(16 + 2 * d, 2), vr(XN + 2 * d, 2)))
            e('v_cvt_pk_bf16_f32 v%d, v%d, v%d' % (32 + d, 16 + 2 * d, 17 + 2 * d))
            if d == 3:
                e('v_permlane16_swap_b32 v32, v34\nv_permlane16_swap_b32 v33, v35')
                e('buffer_store_dwordx4 v[32:35], v233, %s, 0 offen OUTF' % sq(rOUT))
                e('s_cmp_lg_u32 s61, 0\ns_cbranch_scc1 L_fin')
        e('buffer_store_dwordx2 v[36:37], v234, %s, 0 offen offset:64 OUTF' % sq(rOUT))
        e('L_fin:')
        if self.opt.get('ts'):
            if self.opt.get('pts') in (1, 2): self.ts(2)
            if self.opt.get('rcnt'): e('s_waitcnt lgkmcnt(0)\ns_sub_u32 s11, %d, s15\ns_add_u32 s84, s80, s11' % SPIN)
            e('s_waitcnt vmcnt(0)')
            self.ts(9)
            e('s_waitcnt lgkmcnt(0)\nv_mov_b32 v15, 0')
            for k in range(10):
                e('v_mov_b32 v%d, s%d' % (16 + k, 80 + 2 * k))
            e("""s_lshl_b32 s11, s2, 3
            s_add_u32 s11, s11, s5
            s_lshl_b32 s11, s11, 6
            s_add_u32 s11, s11, %d
            s_mov_b64 exec, 1
            buffer_store_dwordx4 v[16:19], v15, %s, s11 offen
            buffer_store_dwordx4 v[20:23], v15, %s, s11 offen offset:16
            buffer_store_dwordx2 v[24:25], v15, %s, s11 offen offset:32""" % (WS_TS, sq(rWS), sq(rWS), sq(rWS)))
        e('s_endpgm')
        for k in range(2):
            e("""L_exrow%d:
            v_lshrrev_b32 v3, 4, v0
            s_mul_i32 s11, s61, 192
            s_add_u32 s11, s11, %d
            v_lshl_add_u32 v3, v3, 4, s11""" % (k, UPD + 16 + 1536 * k))
            for t in range(3):
                e('ds_read_b128 %s, v3 offset:%d' % (vr(OF + 4 * t, 4), 64 * t))
            e("""v_and_b32 v3, 15, v0
            s_and_b32 s11, s%d, 15
            v_cmp_eq_u32 vcc, s11, v3
            s_waitcnt lgkmcnt(0)""" % (76 + k))
            for d in range(6):
                e('v_pk_add_f32 %s, %s, %s' % (vr(OF + 2 * d, 2), vr(OF + 2 * d, 2), vr(XN + 2 * d, 2)))
            for r in range(12):
                e('v_cndmask_b32 v%d, v%d, v%d, vcc' % (XN + r, XN + r, OF + r))
            e('s_branch L_exb%d' % k)

    def p2wo(self):
        e = self.e
        UPD = TAB + 1024
        e('L_p2wo:')
        self.p2_loads()
        e("""v_mov_b32 v8, %d
        v_mov_b32 v3, 1
        s_waitcnt vmcnt(0)
        s_mov_b64 exec, 1
        ds_add_u32 v8, v3 offset:4
        s_mov_b64 exec, -1
        XNPREP
        s_lshl_b32 s11, s2, 3
        s_add_u32 s11, s11, s5
        s_cmpk_lg_u32 s11, 1927
        s_cbranch_scc1 L_noep
        v_add_u32 v4, 0x2e0000, v254
        s_mov_b32 s15, 200000
        L_ep:
        buffer_load_dwordx4 v[16:19], v4, s[52:55], 0 offen sc1
        s_waitcnt vmcnt(0)
        v_xor_b32 v16, s10, v16
        v_xor_b32 v17, s10, v17
        v_xor_b32 v18, s10, v18
        v_xor_b32 v19, s10, v19
        v_or3_b32 v16, v16, v17, v18
        v_or_b32 v16, v16, v19
        v_lshlrev_b32 v16, 4, v16
        v_cmp_ne_u32 vcc, 0, v16
        s_cmp_eq_u64 vcc, 0
        s_cbranch_scc1 L_ep2
        s_sleep 8
        s_sub_u32 s15, s15, 1
        s_cmp_lg_u32 s15, 0
        s_cbranch_scc1 L_ep
        L_ep2:
        v_mov_b32 v4, 0
        v_mov_b32 v5, s10
        s_mov_b64 exec, 1
        global_store_dword v4, v5, s[36:37] sc1
        s_mov_b64 exec, -1
        L_noep:
        s_cmp_lg_u32 s5, 6
        s_cbranch_scc1 L_phase2
        v_mov_b32 v4, 0
        s_mov_b32 s15, %d
        L_sel:
        buffer_load_dwordx4 v[16:19], v4, %s, 0 offen offset:%d sc1
        s_waitcnt vmcnt(0)
        v_readfirstlane_b32 s11, v17
        v_readfirstlane_b32 s12, v19
        v_readfirstlane_b32 s76, v16
        v_readfirstlane_b32 s79, v18
        s_cmp_eq_u32 s11, s12
        s_cselect_b32 s11, s11, 0
        s_cselect_b32 s12, s10, 1
        s_mov_b32 s78, 0
        s_cmp_eq_u32 s11, s12
        s_cbranch_scc1 L_selok
        s_sleep 8
        s_sub_u32 s15, s15, 1
        s_cmp_lg_u32 s15, 0
        s_cbranch_scc1 L_sel
        L_selok:
        s_and_b32 s77, s76, 0xffff
        s_sub_u32 s77, 2047, s77
        s_lshl_b32 s11, s78, 2
        s_add_u32 s11, s11, %d
        v_mov_b32 v3, s11
        v_mov_b32 v4, s77
        ds_write_b32 v3, v4
        s_lshr_b32 s11, s77, 6
        s_lshr_b32 s12, s60, 2
        s_cmp_lg_u32 s11, s12
        s_cbranch_scc1 L_selnext
        v_mul_u32_u24 v3, 13, v0
        v_lshrrev_b32 v3, 8, v3
        v_mul_u32_u24 v4, 20, v3
        v_sub_u32 v4, v0, v4
        v_mul_u32_u24 v5, 40960, v3
        v_lshl_add_u32 v5, v4, 5, v5
        v_lshrrev_b32 v4, 2, v4
        v_lshl_add_u32 v5, v4, 7, v5
        s_lshr_b32 s14, s4, 2
        s_mul_i32 s14, s14, 1280
        s_lshl_b32 s13, s78, 4
        s_add_u32 s14, s14, s13
        s_add_u32 s14, s14, %d
        s_lshr_b32 s11, s76, 16
        s_bitcmp1_b32 s11, 15
        s_mov_b32 s13, 0xffff
        s_cmov_b32 s13, 0x8000
        s_xor_b32 s11, s11, s13
        s_lshl_b32 s11, s11, 16
        v_mov_b32 v6, 0xbfb8aa3b
        v_mul_f32 v6, s11, v6
        v_exp_f32 v6, v6
        v_add_f32 v6, 1.0, v6
        v_rcp_f32 v6, v6
        v_cvt_pk_bf16_f32 v6, v6, v6
        v_and_b32 v6, 0xffff0000, v6
        s_mul_i32 s11, s78, 1536
        s_add_u32 s11, s11, %d
        v_add_u32 v7, s11, v254
        s_mov_b32 s15, %d
        s_mov_b32 exec_hi, 0xfffffff
        L_yf:
        s_mov_b32 s12, s14""" % (TAB + 896, SPIN, sq(rWS), WS_SEL, UPD, WS_Y, UPD + 16, SPIN))
        assert all((x * 13) >> 8 == x // 20 for x in range(60))
        for j in range(4):
            for h in range(2):
                e('buffer_load_dwordx4 %s, v5, %s, s12 offen offset:%d sc1' % (vr(32 + 8 * j + 4 * h, 4), sq(rWS), 128 * h))
            if j < 3: e('s_add_u32 s12, s12, 10240')
        e('s_waitcnt vmcnt(0)\nv_mov_b32 v3, 0')
        for j in range(4):
            e('v_xor_b32 v4, s10, v%d\nv_xor_b32 v9, s10, v%d\nv_or3_b32 v3, v3, v4, v9' % (32 + 8 * j + 2, 32 + 8 * j + 6))
        e("""v_cmp_ne_u32 vcc, 0, v3
        s_cmp_eq_u64 vcc, 0
        s_cbranch_scc1 L_yok
        s_mov_b64 exec, vcc
        s_sleep 4
        s_sub_u32 s15, s15, 1
        s_cmp_lg_u32 s15, 0
        s_cbranch_scc1 L_yf
        L_yok:
        s_mov_b32 exec_lo, -1
        s_mov_b32 exec_hi, 0xfffffff""")
        for h in range(2):
            e('v_pk_add_f32 %s, %s, %s' % (vr(16 + 2 * h, 2), vr(32 + 4 * h, 2), vr(40 + 4 * h, 2)))
        for j in (2, 3):
            for h in range(2):
                e('v_pk_add_f32 %s, %s, %s' % (vr(16 + 2 * h, 2), vr(16 + 2 * h, 2), vr(32 + 8 * j + 4 * h, 2)))
        e("""ds_write_b128 v7, v[16:19] offset:320
        s_waitcnt lgkmcnt(0)
        s_mov_b64 exec, 0xfffff
        ds_read_b128 v[20:23], v7 offset:640
        ds_read_b128 v[24:27], v7 offset:960
        s_waitcnt lgkmcnt(0)""")
        for j in (1, 2):
            for h in range(2):
                e('v_pk_add_f32 %s, %s, %s' % (vr(16 + 2 * h, 2), vr(16 + 2 * h, 2), vr(16 + 4 * j + 2 * h, 2)))
        def rnd2():
            e("""v_cvt_pk_bf16_f32 v20, v16, v17
            v_cvt_pk_bf16_f32 v21, v18, v19
            v_lshlrev_b32 v16, 16, v20
            v_and_b32 v17, 0xffff0000, v20
            v_lshlrev_b32 v18, 16, v21
            v_and_b32 v19, 0xffff0000, v21""")
        rnd2()
        for r in range(4): e('v_mul_f32 v%d, v%d, v6' % (16 + r, 16 + r))
        rnd2()
        e("""ds_write_b128 v7, v[16:19]
        s_waitcnt lgkmcnt(0)
        s_mov_b64 exec, -1
        L_selnext:
        s_mov_b32 s76, s79
        s_add_u32 s78, s78, 1
        s_cmp_lt_u32 s78, 2
        s_cbranch_scc1 L_selok
        s_branch L_phase2""")

    def expert(self):
        e = self.e
        BUF = 32768
        ETS = self.opt.get('ets', 0)
        e("""L_aux:
        s_cmp_ge_u32 s79, 4
        s_cbranch_scc1 L_idle""")
        e("""s_mul_i32 s68, s78, 12
        s_add_u32 s68, s68, s79
        s_lshl_b32 s11, s77, 1
        s_lshl_b32 s11, s11, s76
        s_add_u32 s68, s68, s11
        s_lshl_b32 s11, s76, 2
        s_add_u32 s68, s68, s11
        s_and_b32 s14, s5, 1
        s_lshr_b32 s69, s5, 1
        v_lshrrev_b32 v2, 3, v0
        v_and_b32 v3, 7, v0
        v_bfe_u32 v4, v0, 4, 1
        v_lshl_or_b32 v4, s14, 1, v4
        v_lshlrev_b32 v4, 1, v4
        v_xor_b32 v4, v3, v4
        s_and_b32 s12, s68, 1
        s_mul_i32 s12, s12, 320
        s_lshl_b32 s11, s14, 3
        s_add_u32 s11, s11, s12
        v_add_u32 v2, s11, v2
        v_mul_u32_u24 v2, 3072, v2
        v_lshl_add_u32 v2, v4, 4, v2
        s_and_b32 s11, s68, 30
        s_and_b32 s12, s69, 1
        s_add_u32 s11, s11, s12
        s_lshl_b32 s11, s11, 7
        v_add_u32 v10, s11, v2
        s_lshl_b32 s74, s69, 13
        s_lshl_b32 s11, s14, 10
        s_add_u32 s75, s74, s11
        s_waitcnt lgkmcnt(0)
        s_cmp_lt_u32 s5, 4
        s_cselect_b32 s44, s26, s28
        s_cselect_b32 s45, s27, s29
        s_mov_b32 s46, %d
        s_mov_b32 s47, 0x20000""" % GB)
        nt = ' nt' if self.opt.get('nt', 1) else ''
        def issue(s):
            base = (s % 4) * BUF
            for a in range(4):
                e('s_add_u32 m0, s75, %d\ns_mov_b32 s12, %d' % (base + a * 2048, (64 * s + 16 * a) * 3072))
                e('buffer_load_dwordx4 v10, %s, s12 offen%s lds' % (sq(rW), nt))
        if ETS == 1: self.ts(1)
        issue(0)
        e('s_branch L_expert2')
        self.expert_rest = lambda: self.expert2(issue)

    def expert2(self, issue):
        e = self.e
        WG_, XS = 32, 112
        BUF = 32768
        MX = TAB + 4096
        ETS = self.opt.get('ets', 0)
        e('L_expert2:')
        self.tag_load()
        self.srd(rX, pX, XB); self.srd(rWS, pWS, WSB)
        self.p2_setup()
        self.wo_setup(11)
        e("""v_and_b32 v1, 15, v0
        v_lshrrev_b32 v2, 4, v0
        v_lshrrev_b32 v3, 2, v1
        v_and_b32 v4, 3, v1
        v_lshrrev_b32 v5, 1, v3
        v_and_b32 v6, 1, v2
        v_lshl_or_b32 v5, v6, 1, v5
        s_lshl_b32 s11, s14, 1
        v_xor_b32 v5, s11, v5
        v_lshl_add_u32 v7, v2, 3, v3
        v_lshlrev_b32 v8, 7, v7
        v_lshl_add_u32 v8, v5, 5, v8
        v_lshl_add_u32 v8, v4, 3, v8
        v_add_u32 v16, s74, v8
        s_lshl_b32 s11, s5, 6
        v_add_u32 v21, s11, v0
        v_lshlrev_b32 v17, 4, v21
        v_add_u32 v17, %d, v17
        v_and_b32 v5, 1, v1
        v_mul_u32_u24 v19, 656, v5
        v_lshl_add_u32 v19, v2, 4, v19
        v_add_u32 v19, %d, v19
        v_lshlrev_b32 v20, 5, v2
        v_lshl_add_u32 v20, v1, 4, v20
        s_lshl_b32 s72, s68, 1
        s_lshr_b32 s11, s5, 2
        s_add_u32 s72, s72, s11
        s_lshl_b32 s72, s72, 11
        s_and_b32 s11, s5, 3
        s_lshl_b32 s11, s11, 8
        s_add_u32 s72, s72, s11
        s_add_u32 s72, s72, %d
        v_mov_b32 v8, %d
        v_mov_b32 v9, 0
        ds_write_b32 v8, v9 offset:4""" % (WS_KEY, MX, WS_H, TAB + 896))
        issue(1); issue(2); issue(3)
        self.tag_ready()
        def consume(s, n):
            base = (s % 4) * BUF
            e('s_waitcnt vmcnt(%d)\ns_barrier' % n)
            if ETS == 1 and s in (0, 2, 4): self.ts({0: 4, 2: 5, 4: 6}[s])
            e('v_add_u32 v8, %d, v16\nv_xor_b32 v9, 32, v8' % base)
            for t in range(2):
                for tl in range(2):
                    for hh in range(2):
                        e('ds_read_b64_tr_b16 %s, v%d offset:%d' % (vr(WG_ + 40 * tl + 4 * (2 * s + t) + 2 * hh, 2), 8 + tl, (32 * t + 4 * hh) * 128))
        B = 120
        v = lambda k: 'v%d' % (B + k)
        def sweep():
            e('s_mov_b32 s12, 8192')
            e('buffer_load_dwordx4 %s, v17, %s, 0 offen sc1\nbuffer_load_dwordx4 %s, v17, %s, s12 offen sc1' % (vr(B + 2, 4), sq(rWS), vr(B + 6, 4), sq(rWS)))
        SW = self.opt.get('sw', 0)
        consume(0, 12)
        e('s_waitcnt lgkmcnt(0)\ns_barrier')
        self.count_in(7)
        if SW == 0: sweep()
        issue(4)
        consume(1, 12 + 2 * (SW == 0))
        if SW == 1: sweep()
        consume(2, 8 + 2 * (SW <= 1))
        if SW == 2: sweep()
        consume(3, 6)
        if SW: consume(4, 2)
        MK = TAB
        e("""s_mov_b32 s15, %d
        s_waitcnt vmcnt(%d)
        L_sweep:
        v_xor_b32 v5, s10, %s
        v_xor_b32 v6, s10, %s
        v_xor_b32 v7, s10, %s
        v_xor_b32 v8, s10, %s
        v_or3_b32 v5, v5, v6, v7
        v_or_b32 v5, v5, v8
        v_cmp_ne_u32 vcc, 0, v5
        s_cmp_eq_u64 vcc, 0
        s_cbranch_scc1 L_swok
        s_mov_b64 exec, vcc
        s_sub_u32 s15, s15, 1
        s_cmp_eq_u32 s15, 0
        s_cbranch_scc1 L_swok
        s_sleep 4""" % (SPIN, 0 if SW else 4, v(3), v(5), v(7), v(9)))
        sweep()
        e('s_waitcnt vmcnt(0)\ns_branch L_sweep\nL_swok:\ns_mov_b64 exec, -1')
        if ETS == 2: self.ts(1)
        e("""v_max_u32 v5, %s, %s
        v_min_u32 v6, %s, %s
        v_max_u32 v7, %s, %s
        v_min_u32 v8, %s, %s
        v_max_u32 v3, v5, v7
        v_min_u32 v5, v5, v7
        v_max3_u32 v4, v5, v6, v8""" % (v(2), v(4), v(2), v(4), v(6), v(8), v(6), v(8)))
        def merge16():
            for n in (8, 4, 2, 1):
                d = 'row_ror:%d row_mask:0xf bank_mask:0xf' % n
                e("""v_min_u32_dpp v5, v3, v3 %s
                v_max_u32_dpp v4, v4, v4 %s
                v_max_u32_dpp v3, v3, v3 %s
                v_max_u32 v4, v4, v5""" % (d, d, d))
        merge16()
        e("""s_lshl_b32 s11, s5, 5
        s_add_u32 s11, s11, %d
        v_lshl_add_u32 v7, v2, 3, s11
        v_mov_b32 v8, v3
        v_mov_b32 v9, v4
        ds_write_b64 v7, v[8:9]
        v_lshlrev_b32 v7, 4, v1
        v_add_u32 v7, %d, v7
        s_waitcnt lgkmcnt(0)
        s_barrier
        s_cmp_ge_u32 s5, 3
        s_cbranch_scc1 L_noxn
        ds_read_b128 %s, v7
        s_waitcnt lgkmcnt(0)
        v_max_u32 v3, %s, %s
        v_min_u32 v5, %s, %s
        v_max3_u32 v4, v5, %s, %s""" % (MK, MK, vr(B + 2, 4), v(2), v(4), v(2), v(4), v(3), v(5)))
        merge16()
        if ETS == 2: self.ts(4)
        e("""v_readfirstlane_b32 s76, v3
        v_readfirstlane_b32 s77, v4
        s_cmp_lg_u32 s5, 2
        s_cbranch_scc1 L_rx
        s_cmp_lg_u32 s68, 0
        s_cbranch_scc1 L_noxn
        v_mov_b32 v4, s76
        v_mov_b32 v5, s10
        v_mov_b32 v6, s77
        v_mov_b32 v7, s10
        v_mov_b32 v3, 0
        s_mov_b64 exec, 1
        buffer_store_dwordx4 v[4:7], v3, %s, 0 offen offset:%d sc1
        s_mov_b64 exec, -1
        s_branch L_noxn
        L_rx:
        s_cmp_eq_u32 s5, 0
        s_cselect_b32 s11, s76, s77
        s_and_b32 s11, s11, 0xffff
        s_sub_u32 s11, 2047, s11
        s_lshl_b32 s13, s11, 3
        s_add_u32 s13, s13, %d
        s_mul_i32 s11, s11, 1280
        s_and_b32 s12, s68, 1
        s_mul_i32 s12, s12, 640
        s_add_u32 s11, s11, s12
        s_mul_i32 s12, s5, 656
        s_add_u32 s12, s12, %d
        v_add_u32 v9, s12, v254
        v_mov_b32 v7, 0
        s_mov_b32 exec_hi, 0xff
        s_mov_b32 s15, %d
        buffer_load_dwordx4 %s, v254, %s, s11 offen
        L_rst:
        buffer_load_dwordx2 %s, v7, %s, s13 offen sc1
        s_waitcnt vmcnt(0)
        v_cmp_ne_u32 vcc, s10, %s
        s_cmp_eq_u64 vcc, 0
        s_cbranch_scc1 L_rstok
        s_sub_u32 s15, s15, 1
        s_cmp_lg_u32 s15, 0
        s_cbranch_scc1 L_rst
        L_rstok:
        v_and_b32 v3, 0xffff0000, %s
        v_rcp_f32 v3, v3
        v_lshlrev_b32 v4, 16, %s""" % (sq(rWS), WS_SEL, WS_STAT, MX, SPIN, vr(B + 2, 4), sq(rX), vr(B + 6, 2), sq(rWS), v(7), v(6), v(6)))
        F = B + 8
        def unp():
            for d in range(4):
                e('v_lshlrev_b32 v%d, 16, v%d\nv_and_b32 v%d, 0xffff0000, v%d' % (F + 2 * d, B + 2 + d, F + 2 * d + 1, B + 2 + d))
        def pk():
            for d in range(4): e('v_cvt_pk_bf16_f32 v%d, v%d, v%d' % (B + 2 + d, F + 2 * d, F + 2 * d + 1))
        unp()
        for r in range(8): e('v_sub_f32 v%d, v%d, v4' % (F + r, F + r))
        pk(); unp()
        for r in range(8): e('v_mul_f32 v%d, v%d, v3' % (F + r, F + r))
        pk()
        e('ds_write_b128 v9, %s\ns_mov_b64 exec, -1\nL_noxn:\ns_waitcnt lgkmcnt(0)' % vr(B + 2, 4))
        if SW:
            e('s_barrier')
        else:
            consume(4, 0)
            e('s_waitcnt lgkmcnt(0)')
        if ETS == 2: self.ts(5)
        for ks in range(10):
            e('ds_read_b128 %s, v19 offset:%d' % (vr(XS + 4 * ks, 4), 64 * ks))
        R = 160
        for k in range(4):
            e('v_mov_b32 v%d, s10\nv_mov_b32 v%d, 0' % (R + 8 + 4 * k + 2, R + 8 + 4 * k + 3))
        for ks in range(10):
            e('s_waitcnt lgkmcnt(%d)' % (9 - ks))
            for tl in range(2):
                e('v_mfma_f32_16x16x32_bf16 %s, %s, %s, %s' % (vr(R + 4 * tl, 4), vr(WG_ + 40 * tl + 4 * ks, 4), vr(XS + 4 * ks, 4), '0' if ks == 0 else vr(R + 4 * tl, 4)))
        e('v_cmp_gt_u32 vcc, 2, v1\ns_and_b64 exec, exec, vcc')
        for tl in range(2):
            for h in range(2):
                d = R + 8 + 4 * (2 * tl + h)
                e('v_mov_b32 v%d, v%d\nv_mov_b32 v%d, v%d' % (d, R + 4 * tl + 2 * h, d + 1, R + 4 * tl + 2 * h + 1))
                e('buffer_store_dwordx4 %s, v20, %s, s72 offen offset:%d sc1' % (vr(d, 4), sq(rWS), 1024 * h + 128 * tl))
        e('s_mov_b64 exec, -1')
        self.ts(2)
        e('s_barrier')
        e('L_woall:')
        self.wo_block(11, 's5')
        e('s_add_u32 s71, s5, 8'); self.wo_block(11, 's71')
        e('s_cmp_lt_u32 s5, 4\ns_cbranch_scc1 L_p2wo\ns_add_u32 s71, s5, 12')
        self.wo_block(11, 's71')
        e('s_branch L_p2wo')

    def down(self):
        e = self.e
        WD, YA = 32, 112
        BUF = 40960
        MH = TAB + 384
        nt = ' nt' if self.opt.get('nt', 1) else ''
        e("""L_idle:
        s_lshl_b32 s68, s78, 1
        s_add_u32 s68, s68, s77
        s_mul_i32 s68, s68, 3
        s_add_u32 s68, s68, s79
        s_sub_u32 s68, s68, 4
        s_mul_i32 s72, s5, 5120
        s_mul_i32 s73, s68, 163840
        s_add_u32 s73, s73, s72
        s_bfe_u32 s11, s5, 0x10001
        s_lshl_b32 s11, s11, 2""")
        for a in range(5):
            e("""v_add_u32 v2, %d, v0
            v_mul_u32_u24 v3, 820, v2
            v_lshrrev_b32 v3, 16, v3
            v_mul_u32_u24 v4, 80, v3
            v_sub_u32 v4, v2, v4
            v_or_b32 v5, s11, v3
            v_lshlrev_b32 v5, 1, v5
            v_xor_b32 v4, v4, v5
            v_mul_u32_u24 v3, 1280, v3
            v_lshl_add_u32 v%d, v4, 4, v3""" % (64 * a, 26 + a))
        def issue(s):
            base = (s % 3) * BUF
            for a in range(5):
                e('s_add_u32 m0, s72, %d\ns_add_u32 s12, s73, %d' % (base + a * 1024, s * 40960))
                e('buffer_load_dwordx4 v%d, %s, s12 offen%s lds' % (26 + a, sq(rD), nt))
        e('s_waitcnt lgkmcnt(0)')
        self.srd(rD, pD, GB)
        issue(0)
        e('s_branch L_down2')
        self.down_rest = lambda: self.down2(issue)

    def down2(self, issue):
        e = self.e
        WD, YA = 32, 112
        BUF = 40960
        MH = TAB + 384
        e('L_down2:')
        self.tag_load()
        self.srd(rX, pX, XB); self.srd(rWS, pWS, WSB)
        self.p2_setup()
        self.wo_setup(11)
        e("""v_and_b32 v1, 15, v0
        v_lshrrev_b32 v2, 4, v0
        v_lshrrev_b32 v3, 2, v1
        v_and_b32 v4, 3, v1
        v_and_b32 v6, 1, v2
        v_lshl_add_u32 v7, v2, 3, v3
        v_lshl_or_b32 v5, v6, 2, v3
        v_mul_u32_u24 v7, 1280, v7
        v_lshl_add_u32 v7, v4, 3, v7
        s_mul_i32 s11, s5, 5""")
        for j in range(5):
            e("""s_add_u32 s12, s11, %d
            v_xor_b32 v8, s12, v5
            v_lshl_add_u32 v%d, v8, 5, v7""" % (j, 18 + j))
        e("""v_mov_b32 v8, %d
        v_mov_b32 v9, 0
        ds_write_b32 v8, v9 offset:4""" % (TAB + 896))
        issue(1); issue(2)
        self.tag_ready()
        def consume(s, n):
            base = (s % 3) * BUF
            e('s_waitcnt vmcnt(%d)\ns_barrier' % n)
            for j in range(5):
                e('v_add_u32 v8, %d, v%d' % (base, 18 + j))
                for hh in range(2):
                    e('ds_read_b64_tr_b16 %s, v8 offset:%d' % (vr(WD + 20 * s + 4 * j + 2 * hh, 2), 5120 * hh))
        consume(0, 10)
        e('s_waitcnt lgkmcnt(0)\ns_barrier')
        self.count_in(7)
        issue(3)
        consume(1, 10)
        consume(2, 5)
        e('s_waitcnt lgkmcnt(0)\ns_barrier')
        e('s_cmp_eq_u32 s5, 0\ns_cbranch_scc1 L_dn0\ns_sub_u32 s71, s5, 1')
        self.wo_block(11, 's71')
        e('s_waitcnt vmcnt(5)\ns_branch L_dn0b\nL_dn0:\ns_waitcnt vmcnt(0)\nL_dn0b:')
        consume(3, 63)
        e('s_cmp_eq_u32 s5, 0\ns_cbranch_scc1 L_dn1\ns_add_u32 s71, s5, 6')
        self.wo_block(11, 's71')
        e('s_cmp_eq_u32 s5, 7\ns_cbranch_scc1 L_dn2\ns_add_u32 s71, s5, 13')
        self.wo_block(11, 's71')
        e('s_branch L_dn2\nL_dn1:\ns_setprio 3')
        self.ts(2)
        HB = 132
        e("""s_lshl_b32 s12, s68, 13
        s_add_u32 s12, s12, %d
        s_add_u32 s13, s12, 4096
        s_mov_b32 s15, %d
        HINTSKIP
        s_mov_b64 exec, 1
        L_hp0:
        buffer_load_dwordx4 %s, v254, %s, s12 offen sc1
        buffer_load_dwordx4 %s, v254, %s, s13 offen sc1
        s_waitcnt vmcnt(0)
        v_xor_b32 v4, s10, v%d
        v_xor_b32 v5, s10, v%d
        v_or_b32 v3, v4, v5
        v_cmp_ne_u32 vcc, 0, v3
        s_cmp_eq_u64 vcc, 0
        s_cbranch_scc1 L_hp1
        s_sleep 2
        s_sub_u32 s15, s15, 1
        s_cmp_lg_u32 s15, 0
        s_cbranch_scc1 L_hp0
        L_hp1:
        s_mov_b64 exec, -1
        s_mov_b32 s15, %d
        L_hp:""" % (WS_H, SPIN, vr(HB, 4), sq(rWS), vr(HB + 4, 4), sq(rWS), HB + 2, HB + 6, SPIN))
        for k in range(8):
            e('buffer_load_dwordx4 %s, v254, %s, s%d offen offset:%d sc1' % (vr(HB + 4 * k, 4), sq(rWS), 12 + k // 4, 1024 * (k % 4)))
        e('s_waitcnt vmcnt(0)\nv_mov_b32 v3, 0')
        for k in range(0, 8, 2):
            e('v_xor_b32 v4, s10, v%d\nv_xor_b32 v5, s10, v%d\nv_or3_b32 v3, v3, v4, v5' % (HB + 4 * k + 2, HB + 4 * k + 6))
        e("""v_cmp_ne_u32 vcc, 0, v3
        s_cmp_eq_u64 vcc, 0
        s_cbranch_scc1 L_hok
        s_mov_b64 exec, vcc
        s_sleep 2
        s_sub_u32 s15, s15, 1
        s_cmp_lg_u32 s15, 0
        s_cbranch_scc1 L_hp
        L_hok:
        s_mov_b64 exec, -1""")
        if self.opt.get('ets') == 2: self.ts(6)
        for k in range(4):
            e('v_pk_add_f32 %s, %s, %s' % (vr(HB + 4 * k, 2), vr(HB + 4 * k, 2), vr(HB + 16 + 4 * k, 2)))
        for k in range(4):
            e('v_cvt_pk_bf16_f32 v%d, v%d, v%d' % (4 + k, HB + 4 * k, HB + 4 * k + 1))
        for k in range(4):
            e('v_lshlrev_b32 v%d, 16, v%d\nv_and_b32 v%d, 0xffff0000, v%d' % (HB + 2 * k, 4 + k, HB + 2 * k + 1, 4 + k))
        F = HB + 8
        for r in range(4): e('v_mul_f32 v%d, 0xbfb8aa3b, v%d' % (F + r, HB + r))
        for r in range(4): e('v_exp_f32 v%d, v%d' % (F + r, F + r))
        for r in range(4): e('v_add_f32 v%d, 1.0, v%d' % (F + r, F + r))
        for r in range(4): e('v_rcp_f32 v%d, v%d' % (F + r, F + r))
        for r in range(4): e('v_mul_f32 v%d, v%d, v%d' % (HB + r, HB + r, F + r))
        for k in range(2):
            e('v_cvt_pk_bf16_f32 v%d, v%d, v%d' % (4 + k, HB + 2 * k, HB + 2 * k + 1))
        for k in range(2):
            e('v_lshlrev_b32 v%d, 16, v%d\nv_and_b32 v%d, 0xffff0000, v%d' % (HB + 2 * k, 4 + k, HB + 2 * k + 1, 4 + k))
        for r in range(4): e('v_mul_f32 v%d, v%d, v%d' % (HB + r, HB + r, HB + 4 + r))
        e("""v_cvt_pk_bf16_f32 v24, v%d, v%d
        v_cvt_pk_bf16_f32 v25, v%d, v%d
        v_and_b32 v3, 1, v0
        v_lshrrev_b32 v4, 1, v0
        v_lshlrev_b32 v3, 8, v3
        v_lshl_add_u32 v3, v4, 3, v3
        v_add_u32 v3, %d, v3
        ds_write_b64 v3, v[24:25]
        L_dn2:
        v_and_b32 v5, 1, v1
        v_lshlrev_b32 v6, 8, v5
        v_lshl_add_u32 v6, v2, 4, v6
        v_add_u32 v6, %d, v6
        v_lshlrev_b32 v7, 5, v2
        v_lshl_add_u32 v7, v1, 4, v7
        s_mul_i32 s11, s68, 10240
        s_mul_i32 s12, s5, 1280
        s_add_u32 s11, s11, s12
        s_add_u32 s11, s11, %d""" % (HB, HB + 1, HB + 2, HB + 3, MH, MH, WS_Y))
        YG = 168
        for k in range(10):
            e('v_mov_b32 v%d, s10\nv_mov_b32 v%d, 0' % (YG + 4 * k + 2, YG + 4 * k + 3))
        e('s_waitcnt lgkmcnt(0)\ns_barrier')
        for ks in range(4):
            e('ds_read_b128 %s, v6 offset:%d' % (vr(16 + 4 * ks, 4), 64 * ks))
        for ks in range(4):
            e('s_waitcnt lgkmcnt(%d)' % (3 - ks))
            for j in range(5):
                e('v_mfma_f32_16x16x32_bf16 %s, %s, %s, %s' % (vr(YA + 4 * j, 4), vr(WD + 20 * ks + 4 * j, 4), vr(16 + 4 * ks, 4), '0' if ks == 0 else vr(YA + 4 * j, 4)))
        e('v_cmp_gt_u32 vcc, 2, v1\ns_and_b64 exec, exec, vcc')
        for j in range(5):
            for h in range(2):
                d = YG + 4 * (2 * j + h)
                e('v_mov_b32 v%d, v%d\nv_mov_b32 v%d, v%d' % (d, YA + 4 * j + 2 * h, d + 1, YA + 4 * j + 2 * h + 1))
                e('buffer_store_dwordx4 %s, v7, %s, s11 offen offset:%d sc1' % (vr(d, 4), sq(rWS), 256 * j + 128 * h))
        e('s_mov_b64 exec, -1')
        self.ts(3)

    def build(self):
        self.tail = []
        self.prologue()
        self.loader()
        self.expert()
        self.down()
        self.loader_rest()
        self.expert_rest()
        self.down_rest()
        self.p2wo()
        self.w23()
        self.stats()
        self.gemm1()
        self.attention()
        self.phase2()
        for f in self.tail: f()
        self.e('L_end:\ns_endpgm')
        return self.L

HEAD = open('cdna_kernels/%s.s.ref' % NAME).read().split('; Override launch')[0]

def generate(opt):
    g = G(opt)
    L = g.build()
    L = [x.replace('HINTSKIP', 's_branch L_hp' if opt.get('nohint') else 's_nop 0') for x in L]
    L = [x.replace('IMSLEEP', 's_sleep %d' % opt.get('ims', 1) if opt.get('ims', 1) else 's_nop 0') for x in L]
    L = [x.replace('COLOC', str(opt.get('coloc', 1))) for x in L]
    L = [x.replace(' OUTF', ('', ' nt', ' sc1', ' sc0 sc1')[opt.get('outf', 0)]) for x in L]
    L = [x.replace('OMODE', str(opt.get('omode', 2))) for x in L]
    if opt.get('noxch'): L = [x for x in L if not (any('v254, s[52:55], s7%d offen' % k in x for k in range(4)) or 's_cbranch_scc1 L_xretry' in x)]
    if opt.get('noval'): L = [x for x in L if 's_cbranch_scc1 L_oretry' not in x]; L = [x.replace('s_cmp_ge_u32 s11, 6', 's_cmp_ge_u32 s11, 0') for x in L]
    if opt.get('nopub'): L = [x for x in L if not ('s25 offen' in x or 's26 offen' in x)]
    if opt.get('noold'): L = [x for x in L if not (('s22 offen' in x or 's23 offen' in x or 's24 offen' in x or 's27 offen' in x) and 'load' in x)]
    if opt.get('nost'): L = [x for x in L if 's[56:59]' not in x]
    L = [x.replace('LTH', str(opt.get('lth', 6))).replace('RTH', str(opt.get('rth', 6))) for x in L]
    L = [x.replace('HSL', str(opt.get('hsl', 2))) for x in L]
    if opt.get('ntx'): L = [x + ' nt' if 'buffer_store' in x and 'sc1' not in x and any(k in x for k in ('s70 offen', 's71 offen', 's74 offen')) else x for x in L]
    if opt.get('nto'): L = [x + ' nt' if 'buffer_store' in x and 'sc1' not in x and any(k in x for k in ('s25 offen', 's26 offen', 's30 offen')) else x for x in L]
    if opt.get('ntw'): L = [x.replace('offen lds', 'offen nt lds') if 's[44:47]' in x or (opt['ntw'] > 1 and 's[40:43]' in x) else x for x in L]
    FL = {1: ' nt', 2: ' sc0', 3: ' sc0 sc1', 4: ' nt sc1'}
    if opt.get('lo'): L = [x.replace(' sc1', FL[opt['lo']]) if 'buffer_load' in x and any(k in x for k in ('s22 offen', 's23 offen', 's24 offen', 's63 offen')) else x for x in L]
    if opt.get('lx'): L = [x.replace(' sc1', FL[opt['lx']]) if 'buffer_load' in x and 'v230' in x else x for x in L]
    L, added = hz.fix(L)
    k = NAME + '_kernel'
    s = HEAD + '; @launch grid=(256,1,1) block=(512,1,1) lds=%d\n' % LDS_BYTES
    s += '.amdgcn_target "amdgcn-amd-amdhsa--gfx950"\n.text\n.globl %s\n.p2align 8\n.type %s,@function\n%s:\n' % (k, k, k)
    s += '\n'.join(L) + '\n'
    s += """.section .rodata,"a"
.p2align 6
.amdhsa_kernel %s
  .amdhsa_next_free_vgpr 256
  .amdhsa_next_free_sgpr 102
  .amdhsa_accum_offset 256
  .amdhsa_group_segment_fixed_size 0
  .amdhsa_kernarg_size 88
  .amdhsa_user_sgpr_count 2
  .amdhsa_user_sgpr_kernarg_segment_ptr 1
  .amdhsa_system_sgpr_workgroup_id_x 1
  .amdhsa_float_denorm_mode_32 3
.end_amdhsa_kernel
""" % k
    import subprocess, re, os, tempfile
    d = tempfile.mkdtemp()
    open(d + '/a.s', 'w').write(s.replace('CODE_LAST', '0x1000'))
    subprocess.run(['clang', '-x', 'assembler', '-target', 'amdgcn-amd-amdhsa', '-mcpu=gfx950', '-c', d + '/a.s', '-o', d + '/a.o'], check=True)
    h = subprocess.run(['llvm-objdump', '-h', d + '/a.o'], capture_output=True, text=True).stdout
    size = int(re.search(r'\.text\s+([0-9a-f]+)', h).group(1), 16)
    generate.size = size
    sy = subprocess.run(['llvm-objdump', '-t', d + '/a.o'], capture_output=True, text=True).stdout
    pc = int(re.search(r'^([0-9a-f]+) .* L_pc$', sy, re.M).group(1), 16)
    return s.replace('CODE_LAST', hex((size - pc - 4) & ~3))

if __name__ == '__main__':
    opt = {}
    out = 'cdna_kernels/%s.s' % NAME
    for a in sys.argv[1:]:
        if a.startswith('-o'):
            out = a[2:]
        else:
            kx, vx = a.split('=')
            opt[kx] = int(vx)
    open(out, 'w').write(generate(opt))
    print('wrote', out, 'code bytes', generate.size)
```

```python
import sys
sys.path.insert(0, 'dev')
import hz

NAME = 'parallel_sum__sliding_local_dilated__moe_arch_mod__prompt'
XB, WB, WOB, GB = 2621440, 2457600, 819200, 1966080
WSB = 0xb00000
WS_EPOCH, WS_SEL, WS_YFLAG, WS_STAT, WS_KEY, WS_FLAG = 0x0, 0x100, 0x9000, 0x1000, 0x5000, 0x2b0000
WS_XCH, WS_O, WS_Y, WS_XCB = 0x10000, 0x300000, 0x600000, 0x800000
WS_TS = 0x7c0000
WS_CHK = 0x580000
WS_PRES = 0x2e0000
WS_H = 0x5d0000
WS_XN = 0xe000
SLOT, XPART, DEPTH = 38912, 14336, 3
P = 496
WOIMG = 55552
TAB = 157952
LDS_BYTES = 163840
SPIN = 200000

sXCD, sSLOT, sWAVE, sI, sLL, sL, sROLE, sTAG = 's3', 's4', 's5', 's6', 's7', 's8', 's9', 's10'
pX, pW, pWO, pWR, pG, pU, pD, pOUT, pDBG, pWS = 16, 18, 20, 24, 26, 28, 30, 32, 34, 36
rX, rW, rWO, rWS, rOUT, rU, rD = 40, 44, 48, 52, 56, 60, 64

def sp(n): return 's[%d:%d]' % (n, n + 1)
def sq(n): return 's[%d:%d]' % (n, n + 3)
def vr(n, k=1): return 'v%d' % n if k == 1 else 'v[%d:%d]' % (n, n + k - 1)

class G:
    def __init__(self, opt):
        self.L = []; self.opt = opt; self.nl = 0; self.nts = 0
        self.D = opt.get('depth', 4); self.S0 = (2 - 9) % self.D
    def e(self, s):
        for ln in s.strip('\n').split('\n'):
            ln = ln.strip()
            if not ln: continue
            if ln == 'XNPREP':
                self.xn_prep(); continue
            self.L.append(ln if ln.endswith(':') else '    ' + ln)
    def lab(self, base):
        self.nl += 1
        return 'L_%s_%d' % (base, self.nl)
    def srd(self, r, p, nbytes):
        self.e('s_mov_b32 s%d, s%d\ns_mov_b32 s%d, s%d\ns_mov_b32 s%d, %d\ns_mov_b32 s%d, 0x20000' % (r, p, r + 1, p + 1, r + 2, nbytes, r + 3))
    def ts(self, k, force=False):
        if self.opt.get('lt2') and not force and k not in (0, 9): return
        if self.opt.get('clk'):
            m = {0: (0, 1), 3: (2, 3), 7: (4, 5), 9: (6, 7)}
            if k in m:
                self.e('s_memrealtime s[%d:%d]\ns_memtime s[%d:%d]' % (80 + 2 * m[k][0], 81 + 2 * m[k][0], 80 + 2 * m[k][1], 81 + 2 * m[k][1]))
            return
        if self.opt.get('ts') and not (self.opt.get('ts_off') and k in (4, 5, 6)):
            self.e('%s s[%d:%d]' % ('s_memtime' if self.opt.get('cyc') else 's_memrealtime', 80 + 2 * k, 81 + 2 * k))
    def allreduce16(self, v, op='v_add_f32'):
        for n in (8, 4, 2, 1):
            self.e('%s_dpp v%d, v%d, v%d row_ror:%d row_mask:0xf bank_mask:0xf' % (op, v, v, v, n))
    def tag_load(self):
        self.e('s_load_dword s10, s[36:37], %d' % WS_EPOCH)
    def count_in(self, wave, va=4):
        lab = self.lab('cnt')
        self.e('''s_cmp_lg_u32 s5, %d
        s_cbranch_scc1 %s
        s_lshl_b32 s11, s3, 5
        s_add_u32 s11, s11, s4
        s_lshl_b32 s11, s11, 2
        s_add_u32 s11, s11, %d
        v_mov_b32 v%d, s11
        s_getreg_b32 s11, hwreg(HW_REG_XCC_ID, 0, 4)
        s_lshl_b32 s11, s11, 28
        s_xor_b32 s11, s11, s10
        v_mov_b32 v%d, s11
        s_mov_b64 exec, 1
        buffer_store_dword v%d, v%d, %s, 0 offen sc1
        s_mov_b64 exec, -1
        %s:''' % (wave, lab, WS_PRES, va, va + 1, va + 1, va, sq(rWS), lab))
    def tag_ready(self):
        self.e('s_waitcnt lgkmcnt(0)\ns_add_u32 s10, s10, 1')

    def prologue(self):
        e = self.e
        self.ts(0)
        e("""s_load_dwordx16 s[16:31], s[0:1], 0
        s_load_dwordx4 s[32:35], s[0:1], 64
        s_load_dwordx2 s[36:37], s[0:1], 80
        s_cmp_ge_u32 s2, 256
        s_cbranch_scc1 L_end
        v_lshrrev_b32 v1, 6, v0
        v_and_b32 v0, 63, v0
        s_lshr_b32 s4, s2, 3
        v_readfirstlane_b32 s5, v1
        s_and_b32 s3, s2, 7""")
        e("""s_cmp_lg_u32 s5, 3
        s_cbranch_scc1 L_nopf
        s_getpc_b64 s[12:13]
        L_pc:
        s_and_b32 s14, s4, %d
        s_lshl_b32 s14, s14, 13
        v_lshl_add_u32 v2, v0, 7, s14
        v_min_u32 v2, CODE_LAST, v2
        global_load_dword v255, v2, s[12:13]
        L_nopf:""" % (self.opt.get('pfblocks', 4) - 1))
        if self.opt.get('ts'):
            for k in range(2 if self.opt.get('clk') else 1, 10): e('s_mov_b32 s%d, 0' % (80 + 2 * k))
        e("""s_bfe_u32 s76, s2, 0x10001
        s_and_b32 s77, s2, 1
        s_bfe_u32 s78, s2, 0x10002
        s_mul_i32 s11, s4, 52
        s_lshr_b32 s11, s11, 8
        s_mul_i32 s12, s11, 5
        s_sub_u32 s7, s4, s12
        s_mul_i32 s12, s78, 11
        s_add_u32 s6, s11, s12
        s_mul_i32 s12, s76, 6
        s_add_u32 s6, s6, s12
        s_mul_i32 s12, s77, 5
        s_add_u32 s8, s7, s12
        s_mul_i32 s12, s76, 5
        s_sub_u32 s12, 30, s12
        s_sub_u32 s79, s4, s12
        s_cmp_ge_u32 s4, s12
        s_cbranch_scc1 L_aux
        s_cmp_ge_u32 s5, 4
        s_cbranch_scc1 L_loader
        s_mul_i32 s12, s5, 10
        s_add_u32 s12, s12, s8
        s_cmp_ge_u32 s12, 24
        s_cbranch_scc1 L_w23
        s_mul_i32 s11, s6, 96
        s_lshl_b32 s12, s12, 2
        s_add_u32 s11, s11, s12""")
        e("""L_stats:
        s_setprio 3
        v_lshrrev_b32 v2, 4, v0
        v_add_u32 v2, s11, v2
        v_and_b32 v3, 15, v0
        v_lshlrev_b32 v4, 4, v3
        v_mul_u32_u24 v5, 1280, v2
        v_add_u32 v5, v5, v4
        s_waitcnt lgkmcnt(0)""")
        for j in range(5):
            e('global_load_dwordx4 %s, v4, %s offset:%d' % (vr(40 + 4 * j, 4), sp(pWR), 256 * j))
        self.srd(rX, pX, XB)
        for j in range(5):
            e('buffer_load_dwordx4 %s, v5, %s, 0 offen offset:%d' % (vr(20 + 4 * j, 4), sq(rX), 256 * j))
        e('s_branch L_stats2')

    def att_setup(self):
        self.e("""v_and_b32 v100, 15, v0
        v_lshrrev_b32 v101, 4, v0
        s_lshl_b32 s11, s5, 4
        v_add_u32 v102, s11, v100
        v_mul_u32_u24 v102, %d, v102
        v_lshlrev_b32 v103, 3, v101
        v_mov_b32 v104, 0x08100800
        v_lshrrev_b32 v103, v103, v104
        v_and_b32 v103, 0xff, v103
        v_add_u32 v231, v102, v103
        v_add_u32 v228, %d, v231
        v_lshrrev_b32 v102, 2, v0
        v_add_u32 v102, s11, v102
        v_mul_u32_u24 v102, %d, v102
        v_and_b32 v103, 3, v0
        v_lshl_add_u32 v229, v103, 3, v102
        v_and_b32 v102, 1, v0
        v_lshl_add_u32 v103, v101, 2, v102
        v_lshlrev_b32 v102, 4, v102
        v_mov_b32 v104, 0xffff
        v_lshlrev_b32 v104, v102, v104
        v_cmp_le_u32 vcc, v103, v100
        v_cndmask_b32 v212, 0, v104, vcc
        v_xor_b32 v214, v212, v104
        v_add_u32 v103, 2, v103
        v_cmp_le_u32 vcc, v103, v100
        v_cndmask_b32 v213, 0, v104, vcc
        v_xor_b32 v215, v213, v104""" % (P, 16 * P, P))
        for r in range(16):
            self.e('v_mov_b32 v%d, 0' % (196 + r))

    def att_scalars(self):
        CUR0, CUR1 = 0xf000ff00fff0ffff, 0xc000fc00ffc0fffc
        txt = ("""s_mov_b32 s64, 0xaaaaaaaa
        s_mov_b32 s65, 0xaaaaaaaa
        s_mov_b32 s66, 0x%x
        s_mov_b32 s67, 0x%x
        s_mov_b32 s68, 0x%x
        s_mov_b32 s69, 0x%x
        s_getreg_b32 s74, hwreg(HW_REG_XCC_ID, 0, 4)
        s_lshl_b32 s74, s74, 12
        s_xor_b32 s74, s74, s10
        s_and_b32 s74, s74, 0xffff
        s_and_b32 s75, s74, 0xff
        s_lshr_b32 s39, s74, 8
        s_mul_i32 s12, s6, 10
        s_add_u32 s12, s12, s8
        s_mul_i32 s12, s12, 12
        s_add_u32 s12, s12, s5
        s_lshl_b32 s12, s12, 9
        s_add_u32 s12, s12, %d
        s_mov_b32 s13, 0x7f000000
        s_sub_u32 s14, s12, 3072
        s_cmp_ge_u32 s7, 1
        s_cselect_b32 s70, s12, s13
        s_cselect_b32 s72, s14, s13
        s_cselect_b32 s76, s74, 0
        s_add_u32 s14, s12, 3072
        s_add_u32 s12, s12, 6144
        s_cmp_le_u32 s7, 3
        s_cselect_b32 s71, s14, s13
        s_cselect_b32 s73, s12, s13
        s_cselect_b32 s77, s74, 0
        s_lshl_b32 s11, s7, 3
        s_lshl_b64 s[28:29], -1, s11
        s_lshl_b64 s[28:29], s[28:29], s11
        s_mul_i32 s12, s6, 6
        s_add_u32 s12, s12, s5
        s_lshr_b32 s11, s12, 4
        s_cmp_eq_u32 s11, s3
        s_cselect_b32 s31, 1, 0
        s_mul_i32 s14, s12, 10
        s_add_u32 s14, s14, s8
        s_lshl_b32 s25, s14, 11
        s_add_u32 s25, s25, %d
        s_lshl_b32 s26, s14, 7
        s_add_u32 s26, s26, %d
        s_cmpk_ge_u32 s12, 128
        s_cselect_b32 s25, s13, s25
        s_cselect_b32 s26, s13, s26
        s_mov_b32 s38, 3""" % (CUR0 & 0xffffffff, CUR0 >> 32, CUR1 & 0xffffffff, CUR1 >> 32, WS_XCH, WS_O, WS_FLAG))
        return [x.strip() for x in txt.split('\n')]


    def p2_setup(self):
        self.e("""s_lshl_b32 s60, s3, 2
        s_and_b32 s11, s4, 3
        s_add_u32 s60, s60, s11
        s_lshl_b32 s60, s60, 2
        s_and_b32 s12, s5, 3
        s_add_u32 s60, s60, s12
        s_lshr_b32 s61, s5, 2
        s_xor_b32 s61, s61, s3
        s_and_b32 s61, s61, 1
        s_lshr_b32 s62, s4, 2
        s_mul_i32 s62, s62, 80
        s_mov_b32 s38, 0
        v_and_b32 v100, 15, v0
        v_lshrrev_b32 v101, 4, v0
        s_lshl_b32 s12, s60, 4
        v_add_u32 v102, s12, v100
        v_lshlrev_b32 v235, 3, v102
        v_add_u32 v235, %d, v235
        v_mul_u32_u24 v102, 1280, v102
        v_lshl_add_u32 v102, v101, 3, v102
        s_lshl_b32 s12, s62, 1
        v_add_u32 v234, s12, v102
        v_lshlrev_b32 v254, 4, v0
        v_and_b32 v102, 1, v101
        v_mul_u32_u24 v102, 24, v102
        v_add_u32 v233, v234, v102
        v_lshrrev_b32 v102, 2, v0
        v_and_b32 v103, 3, v0
        v_mul_u32_u24 v102, 160, v102
        v_lshl_add_u32 v102, v103, 3, v102
        s_xor_b32 s12, s61, s11
        s_and_b32 s12, s12, 1
        s_mul_i32 s12, s12, 51200
        s_add_u32 s12, s12, %d
        v_add_u32 v244, s12, v102
        v_add_u32 v103, 10240, v244
        v_cmp_gt_u32 vcc, 16, v0
        v_cndmask_b32 v245, v244, v103, vcc
        v_cmp_gt_u32 vcc, 32, v0
        v_cndmask_b32 v246, v244, v103, vcc
        v_cmp_gt_u32 vcc, 48, v0
        v_cndmask_b32 v247, v244, v103, vcc""" % (WS_STAT, WOIMG))
        self.srd(rOUT, pOUT, XB)
        self.e('''s_mul_i32 s12, s60, 10
        s_mul_i32 s11, s61, 5
        s_add_u32 s12, s12, s11
        s_lshl_b32 s63, s12, 7
        s_add_u32 s63, s63, %d
        s_and_b32 s11, s5, 3
        s_mul_i32 s11, s11, %d
        s_add_u32 s11, s11, 160
        v_mul_u32_u24 v101, %d, v101
        v_add3_u32 v232, v101, v254, s11
        s_lshl_b32 s22, s12, 11
        s_add_u32 s22, s22, %d
        s_add_u32 s23, s22, 4096
        s_add_u32 s24, s22, 8192''' % (WS_FLAG, 20 * P, P - 256, WS_O))
        self.e('''s_cmp_ge_u32 s60, 36
        s_cselect_b32 s11, 1, 0
        s_cmpk_ge_u32 s60, 66
        s_addc_u32 s11, s11, 0
        s_cmpk_ge_u32 s60, 102
        s_addc_u32 s11, s11, 0
        s_lshl_b32 s11, s11, 1
        s_add_u32 s11, s11, s61
        s_cmp_eq_u32 s11, s3
        s_cselect_b32 s100, %d, 0''' % self.opt.get('lf', 1))

    def p2_loads(self):
        self.e('buffer_load_dwordx2 v[160:161], v235, %s, 0 offen sc1' % sq(rWS))
        self.e('buffer_load_dwordx4 v[162:165], v233, %s, 0 offen\nbuffer_load_dwordx4 v[166:169], v233, %s, 0 offen offset:64' % (sq(rX), sq(rX)))
        self.e('buffer_load_dwordx2 v[170:171], v234, %s, 0 offen offset:128' % sq(rX))

    def w23(self):
        e = self.e
        e('L_w23:\ns_waitcnt lgkmcnt(0)')
        self.tag_load()
        self.srd(rX, pX, XB); self.srd(rWS, pWS, WSB)
        self.att_setup(); self.p2_setup()
        self.tag_ready()
        e('s_branch L_gemm')

    def stats(self):
        e = self.e
        X, Wr, F = 20, 40, 60
        e('L_stats2:')
        self.tag_load()
        self.srd(rWS, pWS, WSB)
        self.att_setup(); self.p2_setup()
        e('v_mov_b32 v9, 0x3f803f80\nv_mov_b32 v10, 0\nv_mov_b32 v11, 0\nv_mov_b32 v12, 0\nv_mov_b32 v13, 0')
        e('s_waitcnt vmcnt(0)')
        if self.opt.get('sts') == 1: self.ts(2)
        for d in range(20):
            e('v_dot2c_f32_bf16 v%d, v%d, v9' % (10 + (d & 3), X + d))
        for d in range(10):
            e('v_lshlrev_b32 v%d, 16, v%d\nv_and_b32 v%d, 0xffff0000, v%d' % (F + 2 * d, X + d, F + 2 * d + 1, X + d))
        e('v_add_f32 v10, v10, v11\nv_add_f32 v12, v12, v13\nv_add_f32 v6, v10, v12')
        for k, n in enumerate((8, 4, 2, 1)):
            for d in (10 + 2 * k, 11 + 2 * k):
                e('v_lshlrev_b32 v%d, 16, v%d\nv_and_b32 v%d, 0xffff0000, v%d' % (F + 2 * d, X + d, F + 2 * d + 1, X + d))
            e('v_add_f32_dpp v6, v6, v6 row_ror:%d row_mask:0xf bank_mask:0xf' % n)
        for d in (18, 19):
            e('v_lshlrev_b32 v%d, 16, v%d\nv_and_b32 v%d, 0xffff0000, v%d' % (F + 2 * d, X + d, F + 2 * d + 1, X + d))
        e("""v_mul_f32 v7, 0x3acccccd, v6
        v_cvt_pk_bf16_f32 v8, v7, v7
        v_lshlrev_b32 v6, 16, v8
        v_mov_b32 v10, 0
        v_mov_b32 v11, 0
        v_mov_b32 v12, 0
        v_mov_b32 v13, 0""")
        for r in range(40):
            e('v_sub_f32 v%d, v%d, v6' % (F + r, F + r))
        for r in range(40):
            e('v_fmac_f32 v%d, v%d, v%d' % (10 + (r & 3), F + r, F + r))
        e('v_sub_f32 v7, v7, v6\nv_add_f32 v10, v10, v11\nv_add_f32 v12, v12, v13\nv_add_f32 v14, v10, v12')
        e('v_mov_b32 v10, 0\nv_mov_b32 v11, 0')
        for k, n in enumerate((8, 4, 2, 1)):
            for d in range(5 * k, 5 * k + 5):
                e('v_cvt_pk_bf16_f32 v%d, v%d, v%d' % (X + d, F + 2 * d, F + 2 * d + 1))
            e('v_add_f32_dpp v14, v14, v14 row_ror:%d row_mask:0xf bank_mask:0xf' % n)
        e('s_waitcnt vmcnt(0)')
        for d in range(20):
            e('v_dot2c_f32_bf16 v%d, v%d, v%d' % (10 + (d & 1), X + d, Wr + d))
        e("""v_mul_f32 v14, 0x3acccccd, v14
        v_fma_f32 v14, -v7, v7, v14
        v_max_f32 v14, 0, v14
        v_cvt_pk_bf16_f32 v14, v14, v14
        v_add_f32 v10, v10, v11
        v_and_b32 v14, 0xffff0000, v14
        v_add_f32 v14, 0x3727c5ac, v14
        v_add_f32_dpp v10, v10, v10 row_ror:8 row_mask:0xf bank_mask:0xf
        v_cvt_pk_bf16_f32 v14, v14, v14
        v_and_b32 v14, 0xffff0000, v14
        v_add_f32_dpp v10, v10, v10 row_ror:4 row_mask:0xf bank_mask:0xf
        v_sqrt_f32 v14, v14
        v_and_b32 v8, 0xffff, v8
        v_add_f32_dpp v10, v10, v10 row_ror:2 row_mask:0xf bank_mask:0xf
        v_cvt_pk_bf16_f32 v14, v14, v14
        v_and_b32 v14, 0xffff0000, v14
        v_add_f32_dpp v10, v10, v10 row_ror:1 row_mask:0xf bank_mask:0xf
        v_rcp_f32 v12, v14
        v_or_b32 v16, v8, v14
        v_mul_f32 v10, v10, v12""")
        e("""v_cvt_pk_bf16_f32 v10, v10, v10
        v_bfe_i32 v11, v10, 15, 1
        v_or_b32 v11, 0x8000, v11
        v_xor_b32 v10, v10, v11
        v_lshlrev_b32 v10, 16, v10
        v_sub_u32 v11, 2047, v2
        v_or_b32 v18, v10, v11
        v_cmp_eq_u32 vcc, 0, v3
        v_cndmask_b32 v16, v18, v16, vcc
        v_lshlrev_b32 v5, 14, v3
        v_lshl_add_u32 v5, v2, 3, v5
        s_movk_i32 s14, 2048
        v_cmp_gt_u32 vcc, 2, v3
        v_cmp_gt_u32 s[12:13], s14, v2
        s_and_b64 s[70:71], vcc, s[12:13]""")
        if self.opt.get('sts') == 2: self.ts(2)
        self.tag_ready()
        if self.opt.get('sts') == 3: self.ts(2)
        e("""v_mov_b32 v17, s10
        s_mov_b32 s11, %d
        s_mov_b64 exec, s[70:71]
        s_cbranch_execz L_stend
        buffer_store_dwordx2 v[16:17], v5, %s, s11 offen sc1
        L_stend:
        s_mov_b64 exec, -1""" % (WS_STAT, sq(rWS)))
        assert WS_KEY - WS_STAT == 1 << 14

    def wo_setup(self, vb):
        e = self.e
        self.srd(rWO, pWO, WOB)
        e('''s_lshr_b32 s11, s4, 2
        s_mul_i32 s11, s11, 160
        s_and_b32 s70, s4, 1
        s_mul_i32 s70, s70, 10''')
        for j in range(5):
            e('''v_add_u32 v2, %d, v0
            v_mul_u32_u24 v3, 6554, v2
            v_lshrrev_b32 v3, 16, v3
            v_mul_u32_u24 v4, 10, v3
            v_sub_u32 v4, v2, v4
            v_mul_u32_u24 v3, 1280, v3
            v_lshl_add_u32 v3, v4, 4, v3
            v_add_u32 v%d, s11, v3''' % (64 * j, vb + j))
    def wo_block(self, vb, spos):
        e = self.e
        e('''s_add_u32 s12, %s, s70
        s_cmp_ge_u32 s12, 20
        s_cselect_b32 s13, 20, 0
        s_sub_u32 s12, s12, s13
        s_mul_i32 s12, s12, 40960
        s_mul_i32 s13, %s, 5120
        s_add_u32 s13, s13, %d''' % (spos, spos, WOIMG))
        for j in range(5):
            e('s_add_u32 m0, s13, %d' % (1024 * j))
            e('buffer_load_dwordx4 v%d, %s, s12 offen lds' % (vb + j, sq(rWO)))

    def loader(self):
        e = self.e
        e('L_loader:')
        RA, RB, RM, RS = (self.opt.get(k, d) for k, d in (('ra', 1), ('rb', 1), ('rm', 4), ('rs', 6)))
        assert all((x * (65536 // RM + 1)) >> 16 == x // RM for x in range(200)) and (RM - 1) * RS < 20
        e('''s_sub_u32 s14, s5, 4
        s_and_b32 s15, s14, 1
        v_lshrrev_b32 v2, 3, v0
        v_and_b32 v3, 7, v0
        v_lshrrev_b32 v4, 4, v0
        s_lshl_b32 s11, s15, 2
        v_add_u32 v5, s11, v4
        v_xor_b32 v5, v3, v5
        s_mul_i32 s11, s6, 96
        s_lshl_b32 s12, s14, 3
        s_add_u32 s11, s11, s12
        s_sub_u32 s11, s11, 16
        s_mul_i32 s11, s11, 1280
        v_mul_u32_u24 v6, 1280, v2
        v_lshl_add_u32 v6, v5, 4, v6
        v_add_u32 v10, s11, v6
        v_add_u32 v11, 40960, v10
        v_add_u32 v12, 0x14000, v10
        v_add_u32 v13, 0x1e000, v10
        v_and_b32 v4, 1, v4
        v_lshl_or_b32 v4, s15, 1, v4
        v_lshlrev_b32 v4, 1, v4
        v_xor_b32 v4, v3, v4
        v_add_u32 v2, s12, v2
        v_mul_u32_u24 v2, 3840, v2
        v_lshl_add_u32 v2, v4, 4, v2
        s_lshl_b32 s11, s8, 7
        v_add_u32 v14, s11, v2
        s_mul_i32 s68, s7, %d
        s_mul_i32 s11, s6, %d
        s_add_u32 s68, s68, s11
        s_mul_i32 s11, s68, %d
        s_lshr_b32 s11, s11, 16
        s_mul_i32 s11, s11, %d
        s_sub_u32 s68, s68, s11
        s_mul_i32 s68, s68, %d
        s_lshr_b32 s68, s68, 1
        s_lshl_b32 s69, s14, 10
        s_cmp_eq_u32 s14, 0
        s_cselect_b32 s72, 0xffff0000, -1
        s_mov_b32 s73, -1
        s_waitcnt lgkmcnt(0)''' % (RA, RB, 65536 // RM + 1, RM, RS))
        self.srd(rX, pX, XB); self.srd(rW, pW, WB)
        self.ts(1)
        def issue(c, parts=(0, 1, 2)):
            base = ((c + self.S0) % self.D) * SLOT
            if 0 in parts:
                sk = self.lab('xs')
                e('s_lshl_b32 s11, s68, 7\ns_mul_i32 s39, s68, 245760')
                e('s_add_u32 m0, s69, %d\ns_mov_b64 exec, s[72:73]' % base)
                e('buffer_load_dwordx4 v10, %s, s11 offen lds\ns_mov_b64 exec, -1' % sq(rX))
                for a in (1, 2):
                    e('s_add_u32 m0, s69, %d' % (base + a * 4096))
                    e('buffer_load_dwordx4 v%d, %s, s11 offen lds' % (10 + a, sq(rX)))
                e('s_cmp_ge_u32 s14, 2\ns_cbranch_scc1 %s' % sk)
                e('s_add_u32 m0, s69, %d' % (base + 3 * 4096))
                e('buffer_load_dwordx4 v13, %s, s11 offen lds' % sq(rX))
                e('%s:' % sk)
                e('s_add_u32 s68, s68, 1\ns_cmp_eq_u32 s68, 10\ns_cselect_b32 s68, 0, s68')
            for hb in range(2):
                if hb + 1 in parts:
                    for y in range(3):
                        e('s_add_u32 m0, s69, %d\ns_add_u32 s13, s39, %d' % (base + XPART + y * 8192 + hb * 4096, y * 1280 + hb * 122880))
                        e('buffer_load_dwordx4 v14, %s, s13 offen lds' % sq(rW))
        issue(0)
        e('s_branch L_loader2')
        self.loader_rest = lambda: self.loader2(issue)

    def loader2(self, issue):
        e = self.e
        e('L_loader2:')
        self.tag_load()
        self.srd(rWS, pWS, WSB)
        self.wo_setup(20)
        e('''s_mul_i32 s11, s6, 96
        s_lshl_b32 s12, s14, 6
        s_add_u32 s11, s11, s12
        s_sub_u32 s11, s11, 16
        v_add_u32 v26, s11, v0
        v_lshlrev_b32 v27, 3, v26
        v_add_u32 v27, %d, v27
        v_add_u32 v28, s12, v0''' % WS_STAT)
        self.att_setup(); self.p2_setup()
        e('''v_lshrrev_b32 v3, 4, v28
        v_subrev_u32 v4, 96, v28
        v_cmp_gt_u32 vcc, 96, v28
        v_cndmask_b32 v3, v4, v3, vcc
        s_mul_i32 s13, s6, 6
        v_add_u32 v4, s13, v3
        v_mul_u32_u24 v5, 10, v4
        v_add_u32 v5, s8, v5
        v_and_b32 v36, 15, v28
        v_lshl_add_u32 v36, v5, 4, v36
        v_add_u32 v36, %d, v36
        v_add_u32 v5, %d, v5
        v_cndmask_b32 v36, v5, v36, vcc
        v_lshrrev_b32 v4, 4, v4
        v_cmp_eq_u32 vcc, s3, v4
        v_cmp_gt_u32 s[12:13], 6, v3
        s_and_b64 vcc, vcc, s[12:13]
        v_mov_b32 v37, 0xfe0000
        v_cndmask_b32 v36, v37, v36, vcc
        s_mul_i32 s11, s6, 10
        s_add_u32 s11, s11, s8
        s_mul_i32 s11, s11, 48
        s_add_u32 s11, s11, %d
        v_add_u32 v5, s11, v28
        s_cmp_eq_u32 s7, 0
        s_cselect_b32 s12, 24, 0
        s_add_u32 s12, s12, 128
        s_cmp_eq_u32 s7, 4
        s_cselect_b32 s13, 24, 48
        s_add_u32 s13, s13, 128
        v_cmp_le_u32 vcc, s12, v28
        v_cndmask_b32 v36, v36, v5, vcc
        v_cmp_le_u32 vcc, s13, v28
        v_cndmask_b32 v36, v36, v37, vcc
        v_lshlrev_b32 v36, 7, v36''' % (WS_O // 128, WS_FLAG // 128, WS_XCH // 128 - 128))
        INI = self.opt.get('ini', 6)
        issue(1, tuple(range(INI - 3)))
        self.tag_ready()
        assert WOIMG + 12 * 5120 >= 3 * SLOT and WOIMG + 4 * 5120 <= 2 * SLOT
        WOA, WOB_, STB = self.opt.get('woa', 7), self.opt.get('wob', 9), self.opt.get('stb', 5)
        assert self.D == 3 or (min(WOA, WOB_) >= 7 and 4 * SLOT <= TAB and STB + self.D - 1 <= 8)
        TBL = STB + self.opt.get('tbl', self.D - 1); seq = [('c', k) for k in range(INI)]; nxt = INI
        extra = {}
        for c in range(10):
            if c: seq.append(('x', extra.get(c - 1, 0)))
            need = [('c', 3 * c + 2)] + ([('t', 2)] if c == TBL else [])
            n = min(sum(3 if k == 'c' else v for k, v in seq[seq.index(nd) + 1:]) for nd in need)
            e('s_waitcnt vmcnt(%d)' % n)
            if self.opt.get('lts') and c in (0, 1, 2): self.ts(4 + c)
            e('s_barrier')
            if c == 0: self.ts(2)
            if self.opt.get('lt2') and 0 <= c - self.opt['lt2'] + 1 < 8: self.ts(c - self.opt['lt2'] + 2, True)
            ahead = min(3, max(0, (c - self.opt.get('deep', 4) + 1) * self.opt.get('ramp', 1))) if self.D == 4 else 0
            if c < self.opt.get('lag', 0): ahead -= 6 - INI
            while nxt < 30 and nxt < 3 * (c + 3) + ahead:
                issue(nxt // 3, (nxt % 3,)); seq.append(('c', nxt)); nxt += 1
            if c == 9: self.zero_fill()
            if c == self.opt.get('clm', 6):
                e('buffer_load_dword v37, v36, %s, 0 offen' % sq(rWS))
                extra[c] = extra.get(c, 0) + 1
            if c == STB:
                e('''v_and_b32 v34, 31, v0
                v_lshlrev_b32 v34, 2, v34
                s_lshl_b32 s11, s3, 7
                s_add_u32 s11, s11, %d
                buffer_load_dword v35, v34, %s, s11 offen sc1''' % (WS_PRES, sq(rWS)))
                e('buffer_load_dwordx2 v[30:31], v27, %s, 0 offen sc1' % sq(rWS)); assert c not in extra; seq.append(('t', 2))
            if self.opt.get('nowo'):
                pass
            elif c == WOA:
                e('s_and_b32 s71, s4, 2\ns_lshl_b32 s71, s71, 1\ns_add_u32 s71, s71, s14\ns_add_u32 s71, s71, 12'); self.wo_block(20, 's71'); extra[c] = extra.get(c, 0) + 5
            elif c == WOB_:
                e('s_and_b32 s71, s4, 2\ns_lshl_b32 s71, s71, 1\ns_sub_u32 s71, s14, s71\ns_add_u32 s71, s71, 16'); self.wo_block(20, 's71'); extra[c] = extra.get(c, 0) + 5
            if c == TBL:
                e('''s_mov_b32 s15, %d
                s_movk_i32 s75, 2048
                v_cmp_gt_u32 s[76:77], s75, v26
                L_tchk:
                v_cmp_ne_u32 vcc, s10, v31
                s_and_b64 vcc, vcc, s[76:77]
                s_cmp_eq_u64 vcc, 0
                s_cbranch_scc1 L_tok
                s_sub_u32 s15, s15, 1
                s_cmp_eq_u32 s15, 0
                s_cbranch_scc1 L_tok
                s_sleep 4
                buffer_load_dwordx2 v[30:31], v27, %s, 0 offen sc1
                s_waitcnt vmcnt(0)
                s_branch L_tchk
                L_tok:
                v_mov_b32 v32, 0x3f800000
                v_cndmask_b32 v30, v32, v30, s[76:77]
                v_and_b32 v32, 0xffff0000, v30
                v_rcp_f32 v32, v32
                v_lshlrev_b32 v30, 16, v30
                v_mul_f32 v33, -v30, v32
                v_lshlrev_b32 v29, 3, v28
                v_add_u32 v29, %d, v29
                v_cmp_le_u32 vcc, 112, v28
                v_cndmask_b32 v32, v32, 0, vcc
                v_cndmask_b32 v33, v33, 0, vcc
                s_getreg_b32 s11, hwreg(HW_REG_XCC_ID, 0, 4)
                s_lshl_b32 s11, s11, 28
                s_xor_b32 s11, s11, s10
                v_cmp_ne_u32 vcc, s11, v35
                s_cmp_eq_u64 vcc, 0
                s_cselect_b32 s9, COLOC, 0
                v_mov_b32 v30, s9
                v_cmp_eq_u32 vcc, 114, v28
                v_cndmask_b32 v32, v32, v30, vcc
                v_cmp_ge_u32 vcc, 114, v28
                s_and_b64 exec, exec, vcc
                ds_write_b64 v29, v[32:33]
                s_mov_b64 exec, -1
                s_waitcnt lgkmcnt(0)''' % (SPIN, sq(rWS), TAB))
        self.ts(3)
        e('s_cmp_ge_u32 s14, 2\ns_cbranch_scc1 L_w67')
        self.p2_loads()
        for x in self.att_scalars(): e(x)
        e('s_branch L_img2\nL_w67:')
        e('s_mov_b32 s38, 2\ns_cmp_eq_u32 s14, 3\ns_cbranch_scc1 L_w7')
        if not self.opt.get('nowo'):
            e('s_mov_b32 s71, 0\nL_w6:')
            self.wo_block(20, 's71')
            if self.opt.get('thr', 63) < 63: e('s_waitcnt vmcnt(%d)' % self.opt.get('thr', 63))
            e('s_add_u32 s71, s71, 1\ns_cmp_lt_u32 s71, 4\ns_cbranch_scc1 L_w6')
        e('''s_branch L_p2wo
        L_w7:
        s_mov_b32 s15, %d
        L_w7a:
        ds_read_b32 v3, v8 offset:8
        s_waitcnt lgkmcnt(0)
        v_readfirstlane_b32 s11, v3
        s_cmp_ge_u32 s11, 4
        s_cbranch_scc1 L_w7b
        s_sleep 1
        s_sub_u32 s15, s15, 1
        s_cmp_lg_u32 s15, 0
        s_cbranch_scc1 L_w7a
        L_w7b:''' % (SPIN * 4))
        if not self.opt.get('nowo'):
            e('s_mov_b32 s71, 4\nL_w7c:')
            self.wo_block(20, 's71')
            if self.opt.get('thr', 63) < 63: e('s_waitcnt vmcnt(%d)' % self.opt.get('thr', 63))
            e('s_add_u32 s71, s71, 1\ns_cmp_lt_u32 s71, 12\ns_cbranch_scc1 L_w7c')
        e('s_branch L_p2wo')

    def zero_fill(self):
        e = self.e
        e('''v_lshrrev_b32 v3, 1, v28
        v_and_b32 v4, 1, v28
        v_mul_u32_u24 v3, %d, v3
        v_mul_u32_u24 v4, 160, v4
        v_add_u32 v3, v3, v4
        v_mov_b32 v4, 0
        v_mov_b32 v5, 0
        v_cmp_gt_u32 vcc, 224, v28
        s_and_b64 exec, exec, vcc''' % P)
        for z in range(4):
            e('''s_cmp_gt_u32 s7, %d
            s_cselect_b32 s11, %d, %d
            v_add_u32 v6, s11, v3
            ds_write_b64 v6, v[4:5]''' % (z, 8 * z, 8 * (16 + z)))
        e('''s_mov_b64 exec, -1
        v_mov_b32 v8, %d
        v_mov_b32 v3, 1
        s_waitcnt lgkmcnt(0)
        s_mov_b64 exec, 1
        ds_add_u32 v8, v3 offset:12
        s_mov_b64 exec, -1''' % (TAB + 896))

    def gemm1(self):
        e = self.e
        ACC, BA, BB, ST = 16, 100, 140, 180
        def acc(y, T): return ACC + (y * 7 + T) * 4
        e('''L_gemm:
        s_setprio 3
        s_cmp_lg_u32 s5, 3
        s_cbranch_scc1 L_noones
        v_mov_b32 v8, 0x3f803f80
        v_mov_b32 v9, v8
        v_mov_b32 v10, v8
        v_mov_b32 v11, v8
        v_and_b32 v2, 15, v0
        v_lshlrev_b32 v2, 4, v2
        v_lshrrev_b32 v3, 4, v0
        v_min_u32 v3, %d, v3
        v_mul_u32_u24 v3, %d, v3
        v_add_u32 v2, v2, v3
        ds_write_b128 v2, v[8:11]
        s_waitcnt lgkmcnt(0)
        L_noones:''' % (self.D - 1, SLOT))
        e('''v_and_b32 v1, 15, v0
        v_lshrrev_b32 v2, 4, v0
        v_lshrrev_b32 v3, 1, v1
        v_xor_b32 v3, v2, v3
        v_lshlrev_b32 v3, 4, v3
        v_lshl_add_u32 v8, v1, 7, v3
        v_xor_b32 v9, 64, v8
        v_lshrrev_b32 v3, 2, v1
        v_and_b32 v14, 3, v1
        v_lshrrev_b32 v15, 1, v3
        v_and_b32 v10, 1, v2
        v_lshl_or_b32 v15, v10, 1, v15
        v_xor_b32 v15, s5, v15
        v_lshl_add_u32 v3, v2, 3, v3
        v_lshlrev_b32 v3, 7, v3
        v_lshl_add_u32 v3, v15, 5, v3
        v_lshl_add_u32 v3, v14, 3, v3
        v_add_u32 v10, %d, v3
        v_add_u32 v11, SL0, v8
        v_add_u32 v12, SL0, v9
        v_add_u32 v13, SL0, v10
        v_lshlrev_b32 v14, 3, v1
        v_add_u32 v14, %d, v14
        s_lshl_b32 s11, s5, 2
        s_add_u32 s11, s11, s7
        v_add_u32 v3, s11, v2
        v_mul_u32_u24 v15, %d, v1
        v_lshl_add_u32 v15, v3, 3, v15
        v_mov_b32 v6, %d
        v_mov_b32 v7, 1
        s_mov_b32 s78, 1
        s_mov_b32 s79, SL1'''.replace('SL0', str(self.S0 * SLOT)).replace('SL1', str((self.S0 + 1) % self.D * SLOT)) % (XPART, TAB, P, TAB + 896))
        assert 2 * SLOT == 77824
        def reads(buf, t):
            ops = []
            for y in range(3):
                for hh in range(2):
                    ops.append('ds_read_b64_tr_b16 %s, v13 offset:%d' % (vr(buf + 28 + 4 * y + 2 * hh, 2), y * 8192 + (32 * t + 4 * hh) * 128))
            for T in range(7):
                ops.append('ds_read_b128 %s, v%d offset:%d' % (vr(buf + 4 * T, 4), 11 + t, T * 2048))
            return [] if self.opt.get('noread') else ops
        def mf(buf, y, T, first=False):
            return 'v_mfma_f32_16x16x32_bf16 %s, %s, %s, %s' % (vr(acc(y, T), 4), vr(buf + 28 + 4 * y, 4), vr(buf + 4 * T, 4), '0' if first else vr(acc(y, T), 4))
        def half(rbuf, t, mbuf, tail=(), first=False):
            R = reads(rbuf, t) + list(tail); M = [mf(mbuf, y, T, first) for T in range(7) for y in range(3)]
            X = []
            if self.opt.get('csv'):
                M[0] = None
                if self.opt['csv'] == 1:
                    for r in range(4):
                        X += ['v_lshlrev_b32 v194, 16, v%d' % (mbuf + 28 + r), 'v_and_b32 v195, 0xffff0000, v%d' % (mbuf + 28 + r), 'v_add_f32 v16, v16, v194', 'v_add_f32 v17, v17, v195']
            for k in range(21):
                if k == 20: e('s_waitcnt lgkmcnt(0)')
                if not self.opt.get('nomfma') and M[k]: e(M[k])
                if k < len(R): e(R[k])
                if X and k >= 3: e(X.pop(0))
            assert len(R) <= 20
        nxt = ['v_add_u32 v11, s79, v8\nv_add_u32 v12, s79, v9', 'v_add_u32 v13, s79, v10\ns_add_u32 s79, s79, %d' % SLOT,
               's_cmp_eq_u32 s79, %d\ns_cselect_b32 s79, 0, s79' % (SLOT * self.D)]
        if self.opt.get('clm', 6) == -1:
            e('''s_mul_i32 s11, s6, 10
            s_add_u32 s11, s11, s8
            s_lshl_b32 s11, s11, 2
            s_add_u32 s11, s11, s5
            s_mul_i32 s11, s11, 3072
            s_add_u32 s11, s11, %d
            v_mov_b32 v216, 0
            v_mov_b32 v217, 0
            v_xor_b32 v218, s10, 1
            v_mov_b32 v219, 0''' % WS_XCH)
            for k in range(3):
                e('buffer_store_dwordx4 v[216:219], v254, %s, s11 offen offset:%d' % (sq(rWS), 1024 * k))
        self.ts(1)
        e('s_barrier')
        for x in reads(BA, 0): e(x)
        self.count_in(3)
        if self.opt.get('pre2'):
            e('v_mov_b32 v216, 0\nv_mov_b32 v217, 0\nv_xor_b32 v218, s10, 1\nv_mov_b32 v219, 0')
            for k in range(3):
                e('''s_mul_i32 s11, s5, 3
                s_add_u32 s11, s11, %d
                s_lshr_b32 s12, s11, 1
                s_and_b32 s11, s11, 1
                s_mul_i32 s13, s6, 6
                s_add_u32 s12, s12, s13
                s_min_u32 s12, s12, 127
                s_mul_i32 s12, s12, 10
                s_add_u32 s12, s12, s8
                s_lshl_b32 s12, s12, 1
                s_add_u32 s12, s12, s11
                s_lshl_b32 s12, s12, 10
                s_add_u32 s12, s12, %d
                buffer_store_dwordx4 v[216:219], v254, %s, s12 offen sc1''' % (k, WS_O, sq(rWS)))
        e('s_waitcnt lgkmcnt(0)')
        half(BB, 1, BA, nxt, True)
        e('L_kloop:\ns_barrier')
        half(BA, 0, BB, ['s_add_u32 s78, s78, 1\ns_cmp_ge_u32 s78, 10'])
        e('s_cbranch_scc1 L_ktail')
        half(BB, 1, BA, nxt)
        e('s_branch L_kloop\nL_ktail:')
        CS = (BA + 28, BA + 32, BB + 28)
        MR = (194, 216, 218, 220, 222, 224, 226)
        def fixt(y, T, pk):
            a = acc(y, T); st = vr(ST + 2 * T, 2); ops = []
            for h in range(2):
                ops.append('v_pk_mul_f32 %s, %s, %s op_sel_hi:[1,0]' % (vr(a + 2 * h, 2), vr(a + 2 * h, 2), st))
            for h in range(2):
                ops.append('v_pk_fma_f32 %s, %s, %s, %s op_sel_hi:[1,0,1]' % (vr(a + 2 * h, 2), vr(CS[y] + 2 * h, 2), vr(MR[T], 2), vr(a + 2 * h, 2)))
            ops.append('v_cvt_pk_bf16_f32 v%d, v%d, v%d' % (a, a, a + 1))
            ops.append('v_cvt_pk_bf16_f32 v%d, v%d, v%d' % (a + 1, a + 2, a + 3))
            ops.append('ds_write_b64 v15, %s offset:%d' % (vr(a, 2), T * 16 * P + y * 160))
            return ops
        def csum(y):
            return ['v_mov_b32_dpp v%d, v%d row_newbcast:0 row_mask:0xf bank_mask:0xf' % (CS[y] + r, acc(y, 0) + r) for r in range(4)]
        self.fixv = lambda: csum(2) + [x for T in range(7) for x in fixt(2, T, True)]
        R = reads(BB, 1)
        R = R[:2] + R[6:] + R[2:6] + ['ds_read_b64 %s, v14 offset:%d' % (vr(ST + 2 * T, 2), 128 * T) for T in range(7)]
        M = [mf(bf, y, T) for bf, y in ((BA, 0), (BA, 1), (BB, 0), (BB, 1), (BA, 2), (BB, 2)) for T in range(7)]
        units = [('c', 0, 0)] + [('t', 0, T) for T in range(1, 7)] + [('c', 1, 0)] + [('t', 1, T) for T in range(7)]
        SC = self.att_scalars(); assert len(SC) <= 56
        MV = ['v_mov_b32 v%d, v%d' % (MR[T], ST + 2 * T + 1) for T in (1, 2, 3, 4, 5, 6, 0)]
        q = []; FILL = self.opt.get('fill', 4)
        for k in range(42):
            if k == 14: e('s_waitcnt lgkmcnt(11)')
            if k == 17:
                e('s_waitcnt lgkmcnt(0)\ns_mov_b64 exec, 1\nds_add_u32 v6, v7 offset:8\ns_mov_b64 exec, -1')
            e(M[k])
            if k < 10:
                e(R[2 * k]); e(R[2 * k + 1])
            if k < 14:
                for _ in range(4):
                    if SC: e(SC.pop(0))
            if k >= 17 and MV: e(MV.pop(0))
            if k >= 18:
                for _ in range(FILL):
                    if not q and units:
                        u = units.pop(0)
                        assert k >= 14 + 7 * u[1] + u[2]
                        q = csum(u[1]) if u[0] == 'c' else fixt(u[1], u[2], False)
                    if q: e(q.pop(0))
        self.ts(3)
        for x in q: e(x)
        first = True
        for u in units:
            for x in (csum(u[1]) if u[0] == 'c' else fixt(u[1], u[2], not first)): e(x)
            first = False

    def attention(self):
        e = self.e
        e('L_img:')
        e('''s_mov_b64 exec, 1
        ds_add_u32 v6, v7 offset:12
        s_mov_b64 exec, -1
        L_img2:
        v_mov_b32 v8, %d
        s_mov_b32 s15, %d
        L_imw:
        ds_read_b32 v3, v8 offset:12
        s_waitcnt lgkmcnt(0)
        v_readfirstlane_b32 s11, v3
        s_cmp_ge_u32 s11, 8
        s_cbranch_scc1 L_imok
        IMSLEEP
        s_sub_u32 s15, s15, 1
        s_cmp_lg_u32 s15, 0
        s_cbranch_scc1 L_imw
        L_imok:
        s_setprio 3''' % (TAB + 896, SPIN * 8))
        if self.opt.get('lts'): self.opt['ts_off'] = 1
        self.ts(4)
        if self.opt.get('dump_img'):
            e("""s_mul_i32 s11, s6, 10
            s_add_u32 s11, s11, s8
            s_mul_i32 s11, s11, 0x10000
            s_add_u32 s11, s11, 0x1000000
            s_lshl_b32 s12, s5, 10
            v_lshlrev_b32 v2, 4, v0
            v_add_u32 v2, s12, v2
            s_mov_b32 s54, 0x10000000""")
            for j in range(10):
                e("""ds_read_b128 v[100:103], v2
                s_waitcnt lgkmcnt(0)
                buffer_store_dwordx4 v[100:103], v2, %s, s11 offen
                v_add_u32 v2, 6144, v2
                s_waitcnt vmcnt(0)""" % sq(rWS))
        Qr, Kr, Vr, Sr, Er, Xr, Pr, Rr = 196, 16, 48, 100, 132, 148, 72, 88
        def qrd(sgs):
            e('s_mov_b32 exec_hi, 0')
            for sg in sgs: e('ds_read_b64 %s, v228 offset:%d' % (vr(Qr + 4 * sg, 2), 40 * sg))
            e('s_mov_b32 exec_hi, 0xffff')
            for sg in sgs: e('ds_read_b64 %s, v228 offset:%d' % (vr(Qr + 4 * sg + 2, 2), 40 * sg + 16))
            e('s_mov_b64 exec, -1')
        def krd(sg):
            for h, av in enumerate((228, 231)):
                for u in range(2):
                    e('ds_read_b64 %s, v%d offset:%d' % (vr(Kr + 8 * sg + 4 * h + 2 * u, 2), av, 160 + 40 * sg + 16 * u))
        qrd((0, 3)); krd(0); krd(3)
        e('v_mov_b32 v9, 0xffffff00\nv_lshlrev_b32 v230, 3, v0\nv_mov_b32 v10, 0x0c0c0400')
        def smf(sg):
            for h in range(2):
                e('v_mfma_f32_16x16x32_bf16 %s, %s, %s, 0' % (vr(Sr + 8 * sg + 4 * h, 4), vr(Kr + 8 * sg + 4 * h, 4), vr(Qr + 4 * sg, 4)))
        def sel(sg):
            c = Sr + 8 * sg; p = c + 4
            e('v_cndmask_b32 v%d, v%d, v%d, s[64:65]' % (c, c, c + 1)); e('v_cndmask_b32 v%d, v%d, v%d, s[64:65]' % (c + 2, c + 2, c + 3))
            e('v_cndmask_b32 v%d, v%d, v%d, s[64:65]' % (p, p, p + 1)); e('v_cndmask_b32 v%d, v%d, v%d, s[64:65]' % (p + 2, p + 2, p + 3))
            e('v_cndmask_b32 v%d, v%d, v%d, s[66:67]' % (Er + 4 * sg, p, c)); e('v_cndmask_b32 v%d, v%d, v%d, s[68:69]' % (Er + 4 * sg + 1, p + 2, c + 2))
        vrd = []
        for j in range(5):
            vrd.append('ds_read_b64_tr_b16 %s, v229 offset:%d' % (vr(Vr + 4 * j, 2), 16 * P + 320 + 32 * j))
            vrd.append('ds_read_b64_tr_b16 %s, v229 offset:%d' % (vr(Vr + 4 * j + 2, 2), 320 + 32 * j))
        e('s_waitcnt lgkmcnt(4)'); smf(0)
        e('s_waitcnt lgkmcnt(0)'); smf(3)
        qrd((1, 2)); krd(1)
        sel(0)
        e('v_and_or_b32 v%d, v%d, v9, s75\nv_and_or_b32 v%d, v%d, v9, s39\nbuffer_store_dwordx2 %s, v230, %s, s70 offen' % (Er + 2, Er + 0, Er + 3, Er + 1, vr(Er + 2, 2), sq(rWS)))
        sel(3)
        e('v_and_or_b32 v%d, v%d, v9, s75\nv_and_or_b32 v%d, v%d, v9, s39\nbuffer_store_dwordx2 %s, v230, %s, s71 offen' % (Er + 14, Er + 12, Er + 15, Er + 13, vr(Er + 14, 2), sq(rWS)))
        self.ts(5)
        krd(2)
        e('s_waitcnt lgkmcnt(4)'); smf(1)
        e('s_waitcnt lgkmcnt(0)'); smf(2)
        sel(1); sel(2)
        xl = ['buffer_load_dwordx2 %s, v230, %s, s%d offen sc1' % (vr(Xr + 4 * k, 2), sq(rWS), 72 + k) for k in range(2)]
        XW = self.opt.get('xw', 1)
        e('v_mov_b32 v12, 0x3ea52b5c')
        e('s_cmp_ge_u32 s5, 4\ns_cbranch_scc1 L_nov')
        FV = self.fixv()
        for n, x in enumerate(FV):
            if n == 4 + 7 * XW:
                for y in xl: e(y)
            e(x)
        e('s_mov_b64 exec, 1\nds_add_u32 v6, v7\ns_mov_b64 exec, -1\n%s\ns_branch L_nov2\nL_nov:\n%s' % (('s_setprio 2', 's_setprio 1') if self.opt.get('ap', 1) else ('s_nop 0', 's_nop 0')))
        for y in xl: e(y)
        e('s_waitcnt vmcnt(4)'); self.xn_prep(); e('s_setprio 3\nL_nov2:')
        if self.opt.get('ats'): self.ts(1)
        e('s_waitcnt vmcnt(0)')
        if self.opt.get('ats') == 1: self.ts(3)
        for k in range(2):
            e("""v_perm_b32 v3, v%d, v%d, v10
            v_cmp_ne_u32 vcc, s%d, v3
            s_cmp_lg_u64 vcc, 0
            s_cbranch_scc1 L_xretry%d
            L_xok%d:""" % (Xr + 4 * k + 1, Xr + 4 * k, 76 + k, k, k))
        e('s_mov_b64 exec, 1\nv_mov_b32 v11, 1\nds_add_u32 v8, v11 offset:4\ns_mov_b64 exec, -1')
        for r in (0, 1, 4, 5): e('v_and_b32 v%d, v9, v%d' % (Xr + r, Xr + r))
        e('v_pk_add_f32 %s, %s, %s' % (vr(Er, 2), vr(Er, 2), vr(Xr, 2)))
        e('v_pk_add_f32 %s, %s, %s' % (vr(Er + 12, 2), vr(Er + 12, 2), vr(Xr + 4, 2)))
        self.ts(6)
        e("""s_or_b32 s11, s6, s5
        s_cmp_lg_u32 s11, 0
        s_cbranch_scc1 L_nomask
        v_mov_b32 v3, 0xce6e6b28""")
        for sg in range(4):
            e('v_cndmask_b32 v%d, v3, v%d, s[66:67]\nv_cndmask_b32 v%d, v3, v%d, s[68:69]' % (Er + 4 * sg, Er + 4 * sg, Er + 4 * sg + 1, Er + 4 * sg + 1))
        e('L_nomask:')
        A, B_, C, D_ = Rr, Rr + 2, Rr + 4, Rr + 6
        def allred(op, mid=None):
            for sg in range(4):
                e('%s v%d, v%d, v%d' % (op, Rr + 2 * sg, Er + 4 * sg, Er + 4 * sg + 1))
            e('v_permlane32_swap_b32 v%d, v%d\nv_permlane32_swap_b32 v%d, v%d' % (A, C, B_, D_))
            e('%s v%d, v%d, v%d\n%s v%d, v%d, v%d' % (op, A, A, C, op, B_, B_, D_))
            e('v_permlane16_swap_b32 v%d, v%d' % (A, B_))
            e('%s v%d, v%d, v%d' % (op, A, A, B_))
            if mid: e(mid % (A, A))
            e('v_mov_b32 v%d, v%d\nv_permlane16_swap_b32 v%d, v%d' % (B_, A, A, B_))
            e('v_mov_b32 v%d, v%d\nv_mov_b32 v%d, v%d' % (C, A, D_, B_))
            e('v_permlane32_swap_b32 v%d, v%d\nv_permlane32_swap_b32 v%d, v%d' % (A, C, B_, D_))
        e('ds_read_b32 v4, v8 offset:16\nds_read_b32 v3, v8')
        allred('v_max_f32', 'v_mul_f32 v%d, v12, v%d')
        e('''s_waitcnt lgkmcnt(0)
        v_readfirstlane_b32 s11, v3
        v_readfirstlane_b32 s9, v4
        s_cmp_lt_u32 s11, 4
        s_cbranch_scc1 L_vw
        L_vok:''')
        self.tail.append(lambda: e('''L_vw:
        s_mov_b32 s15, 800000
        L_vw2:
        ds_read_b32 v3, v8
        s_waitcnt lgkmcnt(0)
        v_readfirstlane_b32 s11, v3
        s_cmp_ge_u32 s11, 4
        s_cbranch_scc1 L_vok
        s_sub_u32 s15, s15, 1
        s_cmp_lg_u32 s15, 0
        s_cbranch_scc1 L_vw2
        s_branch L_vok'''))
        if self.opt.get('ats'): self.ts(2)
        for x in vrd: e(x)
        for sg in range(4):
            e('v_pk_fma_f32 %s, %s, v[12:13], %s op_sel_hi:[1,0,0] neg_lo:[0,0,1] neg_hi:[0,0,1]' % (vr(Er + 4 * sg, 2), vr(Er + 4 * sg, 2), vr(Rr + 2 * sg, 2)))
        for sg in range(4):
            e('v_exp_f32 v%d, v%d\nv_exp_f32 v%d, v%d' % (Er + 4 * sg, Er + 4 * sg, Er + 4 * sg + 1, Er + 4 * sg + 1))
        allred('v_add_f32', 'v_rcp_f32 v%d, v%d')
        e('s_waitcnt lgkmcnt(0)')
        for sg in range(4):
            e('v_pk_mul_f32 %s, %s, %s op_sel_hi:[1,0]' % (vr(Er + 4 * sg, 2), vr(Er + 4 * sg, 2), vr(Rr + 2 * sg, 2)))
        def pv(j, sg, k):
            e('v_mfma_f32_16x16x32_bf16 %s, %s, %s, 0' % (vr(Sr + 4 * k, 4), vr(Vr + 4 * j, 4), vr(Pr + 4 * sg, 4)))
        for sg in range(4):
            x0, x1 = Er + 4 * sg + 2, Er + 4 * sg + 3
            e('v_cvt_pk_bf16_f32 v%d, v%d, v%d\nv_cvt_pk_bf16_f32 v%d, v%d, v%d' % (x0, Er + 4 * sg, Er + 4 * sg, x1, Er + 4 * sg + 1, Er + 4 * sg + 1))
            for r in range(4):
                e('v_and_b32 v%d, v%d, v%d' % (Pr + 4 * sg + r, 212 + r, (x0, x1)[r & 1]))
            if sg: pv(sg - 1, sg - 1, 2 * sg - 2); pv(sg, sg - 1, 2 * sg - 1)
        pv(3, 3, 6); pv(4, 3, 7)
        if self.opt.get('ats') == 2: self.ts(3)
        Or = 220
        def cv(j, k):
            e('v_cvt_pk_bf16_f32 v%d, v%d, v%d\nv_cvt_pk_bf16_f32 v%d, v%d, v%d' % (Or + 2 * j, Sr + 4 * k, Sr + 4 * k + 1, Or + 2 * j + 1, Sr + 4 * k + 2, Sr + 4 * k + 3))
        e('v_mov_b32 v4, 64\nv_cndmask_b32 v4, v0, v4, s[64:65]\nv_mov_b32 v6, 0x10000')
        cv(0, 0); cv(1, 2); cv(2, 4)
        e('s_mov_b64 exec, 0xffff'); cv(1, 1)
        e('s_mov_b32 exec_lo, -1'); cv(2, 3)
        e('s_mov_b64 exec, -1'); cv(3, 6)
        e('s_mov_b32 exec_hi, 0xffff'); cv(3, 5)
        e('s_not_b64 exec, s[28:29]'); cv(0, 7)
        e('s_mov_b64 exec, -1')
        e("""s_and_b32 s11, s31, s9
        s_cbranch_scc1 L_oloc
        buffer_store_dwordx4 v[220:223], v254, s[52:55], s25 offen sc1
        buffer_store_dwordx4 v[224:227], v254, s[52:55], s25 offen offset:1024 sc1
        v_add3_u32 v3, v222, v223, v224
        v_add3_u32 v7, v225, v226, v227
        v_add3_u32 v3, v3, v220, v221
        v_add_u32 v3, v3, v7
        v_add_u32_dpp v3, v3, v3 quad_perm:[1,0,3,2] row_mask:0xf bank_mask:0xf
        v_add_u32_dpp v3, v3, v3 quad_perm:[2,3,0,1] row_mask:0xf bank_mask:0xf
        v_cndmask_b32 v3, v3, 0, s[64:65]
        v_add_u32 v3, s10, v3
        s_mov_b32 exec_lo, 0x11111113
        s_mov_b32 exec_hi, 0x11111111
        buffer_store_dword v3, v4, s[52:55], s26 offen sc1
        s_branch L_opub
        L_oloc:
        buffer_store_dwordx4 v[220:223], v254, s[52:55], s25 offen
        buffer_store_dwordx4 v[224:227], v254, s[52:55], s25 offen offset:1024
        v_add3_u32 v3, v222, v223, v224
        v_add3_u32 v7, v225, v226, v227
        v_add3_u32 v3, v3, v220, v221
        v_add_u32 v3, v3, v7
        v_add_u32_dpp v3, v3, v3 quad_perm:[1,0,3,2] row_mask:0xf bank_mask:0xf
        v_add_u32_dpp v3, v3, v3 quad_perm:[2,3,0,1] row_mask:0xf bank_mask:0xf
        v_cndmask_b32 v3, v3, 0, s[64:65]
        v_add_u32 v3, s10, v3
        s_mov_b32 exec_lo, 0x11111113
        s_mov_b32 exec_hi, 0x11111111
        buffer_store_dword v3, v4, s[52:55], s26 offen
        L_opub:
        s_mov_b64 exec, 1
        ds_add_u32 v8, v6 offset:4
        s_mov_b64 exec, -1""")
        self.tail.append(lambda: self.xretry(Er, Xr))

    def xretry(self, Er, Xr):
        e = self.e
        for k in range(2):
            own, got = Er + 12 * k, Xr + 4 * k
            e("""L_xretry%d:
            s_mov_b32 s15, 0
            L_xr%d:
            s_add_u32 s15, s15, 1
            s_cmp_ge_u32 s15, %d
            s_cbranch_scc1 L_xok%d
            s_cmp_lt_u32 s15, 48
            s_cbranch_scc1 L_xf%d
            s_cmp_lg_u32 s15, 48
            s_cbranch_scc1 L_xs%d
            s_lshl_b32 s12, s%d, 1
            s_add_u32 s12, s12, %d
            v_mov_b32 v%d, s10
            buffer_store_dwordx3 %s, v254, %s, s12 offen sc1
            L_xs%d:
            s_lshl_b32 s12, s%d, 1
            s_add_u32 s12, s12, %d
            buffer_load_dwordx3 %s, v254, %s, s12 offen sc1
            s_waitcnt vmcnt(0)
            v_cmp_ne_u32 vcc, s10, v%d
            s_cmp_eq_u64 vcc, 0
            s_cbranch_scc1 L_xok%d
            L_xf%d:
            buffer_load_dwordx2 %s, v230, %s, s%d offen sc1
            s_waitcnt vmcnt(0)
            v_perm_b32 v3, v%d, v%d, v10
            v_cmp_ne_u32 vcc, s74, v3
            s_cmp_lg_u64 vcc, 0
            s_cbranch_scc1 L_xr%d
            s_branch L_xok%d""" % (k, k, SPIN, k, k, k, 70 + k, WS_XCB - 2 * WS_XCH, own + 2, vr(own, 3), sq(rWS), k, 72 + k, WS_XCB - 2 * WS_XCH,
                                   vr(got, 3), sq(rWS), got + 2, k, k, vr(got, 2), sq(rWS), 72 + k, got + 1, got, k, k))

    def xn_prep(self):
        e = self.e
        XF, XN, T = 16, 176, 36
        a, b = self.lab('pc'), self.lab('pk')
        e("""s_mov_b32 s15, %d
        %s:
        v_cmp_ne_u32 vcc, s10, v161
        s_cmp_eq_u64 vcc, 0
        s_cbranch_scc1 %s
        s_sub_u32 s15, s15, 1
        s_cmp_eq_u32 s15, 0
        s_cbranch_scc1 %s
        s_sleep 8
        buffer_load_dwordx2 v[160:161], v235, %s, 0 offen sc1
        s_waitcnt vmcnt(0)
        s_branch %s
        %s:
        v_permlane16_swap_b32 v162, v164
        v_permlane16_swap_b32 v163, v165
        v_permlane16_swap_b32 v166, v168
        v_permlane16_swap_b32 v167, v169
        v_and_b32 v46, 0xffff0000, v160
        v_rcp_f32 v46, v46
        v_lshlrev_b32 v160, 16, v160""" % (SPIN, a, b, b, sq(rWS), a, b))
        def rnd():
            for d in range(10): e('v_cvt_pk_bf16_f32 v%d, v%d, v%d' % (T + d, XN + 2 * d, XN + 2 * d + 1))
            for d in range(10): e('v_lshlrev_b32 v%d, 16, v%d\nv_and_b32 v%d, 0xffff0000, v%d' % (XN + 2 * d, T + d, XN + 2 * d + 1, T + d))
        for d in range(10):
            e('v_lshlrev_b32 v%d, 16, v%d\nv_and_b32 v%d, 0xffff0000, v%d' % (XF + 2 * d, 162 + d, XF + 2 * d + 1, 162 + d))
        for d in range(10):
            e('v_pk_add_f32 %s, %s, v[160:161] op_sel_hi:[1,0] neg_lo:[0,1] neg_hi:[0,1]' % (vr(XN + 2 * d, 2), vr(XF + 2 * d, 2)))
        rnd()
        for d in range(10):
            e('v_pk_mul_f32 %s, %s, v[46:47] op_sel_hi:[1,0]' % (vr(XN + 2 * d, 2), vr(XN + 2 * d, 2)))
        rnd()
        for d in range(10):
            e('v_pk_add_f32 %s, %s, %s' % (vr(XN + 2 * d, 2), vr(XN + 2 * d, 2), vr(XF + 2 * d, 2)))

    def phase2(self):
        e = self.e
        NPRE = 8
        WF, XN = 16, 196
        OFL = [196 + 4 * k for k in range(9)] + [236]
        ACL = [176 + 4 * k for k in range(5)]
        CKL = [1, 2, 4, 10, 11]
        OF = 176
        UPD = TAB + 1024
        e('L_phase2:\ns_setprio 0')
        self.ts(7)
        e('s_cmp_ge_u32 s5, 4\ns_cbranch_scc1 L_nz')
        for r in range(20): e('v_mov_b32 v%d, 0' % (176 + r))
        e('L_nz:')
        def wrd(ks, slot):
            ops = []
            for t in range(5):
                for hh in range(2):
                    ll, jq = ks // 2, 2 * (ks % 2) + hh
                    av, rows = 244, 64 * ll + 16 * jq - 4 * ll
                    if jq == 0 and ll == 4: rows += 64
                    elif jq == 0: av = 244 + ll
                    ops.append('ds_read_b64_tr_b16 %s, v%d offset:%d' % (vr(WF + 20 * slot + 4 * t + 2 * hh, 2), av, rows * 160 + 32 * t))
            return ops
        e('v_mov_b32 v8, %d\nv_and_b32 v9, 60, v0\nds_read_b32 v7, v8 offset:4' % (TAB + 896))
        e("""s_waitcnt lgkmcnt(0)
        v_readfirstlane_b32 s11, v7
        s_mov_b32 s72, 0
        s_mov_b32 s73, 1
        s_and_b32 s11, s11, 0xff
        LDEFER
        s_cmp_lt_u32 s11, 8
        s_cselect_b32 s11, s38, 0
        s_cmp_eq_u32 s11, 3
        s_cbranch_scc1 L_wskip
        s_mov_b32 s73, 0
        L_wrd:
        s_mov_b32 s15, %d
        L_wochk:
        ds_read_b32 v7, v8 offset:4
        s_waitcnt lgkmcnt(0)
        v_readfirstlane_b32 s11, v7
        s_and_b32 s11, s11, 0xff
        s_cmp_ge_u32 s11, 8
        s_cbranch_scc1 L_wook
        s_sleep 1
        s_sub_u32 s15, s15, 1
        s_cmp_lg_u32 s15, 0
        s_cbranch_scc1 L_wochk
        L_wook:""" % (SPIN * 4))
        for ks in range(NPRE):
            for x in wrd(ks, ks): e(x)
        e("""s_mov_b32 s15, %d
        s_cmp_lg_u32 s73, 0
        s_cbranch_scc1 L_wdone
        L_wskip:""" % SPIN)
        if self.opt.get('yl', 1): e('s_cmp_eq_u32 s5, 6\ns_cbranch_scc1 L_selok\nL_yret:')
        if self.opt.get('pts') in (1, 2): self.ts(3)
        e("""s_mov_b32 s15, %d
        s_cmp_eq_u32 s38, 0
        s_cbranch_scc1 L_ohint
        s_and_b32 s101, s100, s9
        s_mov_b32 s13, 0x80008
        s_cselect_b32 s13, 0x80010, s13
        s_cselect_b32 s14, LTH, RTH
        s_cbranch_scc1 L_ow2
        s_cmp_eq_u32 s38, 3
        s_cbranch_scc0 L_ow2
        s_waitcnt vmcnt(0)
        s_mov_b64 exec, 1
        v_mov_b32 v6, 0x100
        ds_add_u32 v8, v6 offset:4
        s_mov_b64 exec, -1
        s_mov_b32 s38, 2
        L_ow2:
        ds_read_b32 v3, v8 offset:4
        s_waitcnt lgkmcnt(0)
        v_readfirstlane_b32 s11, v3
        s_bfe_u32 s11, s11, s13
        s_cmp_ge_u32 s11, s14
        s_cbranch_scc1 L_ook
        s_sleep 1
        s_sub_u32 s15, s15, 1
        s_cmp_lg_u32 s15, 0
        s_cbranch_scc1 L_ow2
        L_ook:
        s_mov_b32 s15, %d""" % (SPIN * 4, SPIN))
        self.ts(8)
        if self.opt.get('wb'):
            e('''s_lshl_b32 s11, s4, 3
            s_add_u32 s11, s11, s5
            s_cmpk_lg_u32 s11, %d
            s_cbranch_scc1 L_nowb
            buffer_wbl2 sc1
            L_nowb:''' % (31 * 8 + 5))
        for j in range(5):
            e('L_old%d:' % j)
            for h in range(2):
                e('buffer_load_dwordx4 %s, v254, %s, s%d offen offset:%d sc1' % (vr(OFL[2 * j + h], 4), sq(rWS), 22 + j // 2, 2048 * (j % 2) + 1024 * h))
            e('buffer_load_dword v%d, v9, %s, s63 offen offset:%d sc1' % (CKL[j], sq(rWS), 128 * j))
        e('''s_cmp_eq_u32 s38, 3
        s_cbranch_scc0 L_noack
        s_waitcnt vmcnt(15)
        s_mov_b64 exec, 1
        v_mov_b32 v6, 0x100
        ds_add_u32 v8, v6 offset:4
        s_mov_b64 exec, -1
        s_mov_b32 s38, 2
        L_noack:''')
        e('s_cmp_lg_u32 s72, 0\ns_cbranch_scc1 L_odisp\ns_cmp_lg_u32 s73, 0\ns_cbranch_scc1 L_wrd\nL_wdone:\ns_waitcnt lgkmcnt(0)')
        def val(j):
            o, p = OFL[2 * j], OFL[2 * j + 1]
            return ['v_add3_u32 v3, v%d, v%d, v%d' % (o, o + 1, o + 2), 'v_add3_u32 v5, v%d, v%d, v%d' % (o + 3, p, p + 1),
                    'v_add3_u32 v3, v3, v%d, v%d\nv_add_u32 v3, v3, v5' % (p + 2, p + 3),
                    'v_subrev_u32 v5, s10, v%d\nv_add_u32_dpp v3, v3, v3 quad_perm:[1,0,3,2] row_mask:0xf bank_mask:0xf' % CKL[j],
                    's_nop 0\nv_add_u32_dpp v3, v3, v3 quad_perm:[2,3,0,1] row_mask:0xf bank_mask:0xf\nv_cmp_ne_u32 vcc, v3, v5']
        def chk(j): e('s_mov_b32 s72, %d\ns_cmp_lg_u64 vcc, 0\ns_cbranch_scc1 L_oretry' % (j + 1))
        def mm(ks, fill=()):
            slot = ks if ks < NPRE else ks - NPRE
            for t in range(5):
                c = vr(ACL[t], 4)
                e('v_mfma_f32_16x16x32_bf16 %s, %s, %s, %s' % (vr(ACL[t], 4), vr(WF + 20 * slot + 4 * t, 4), vr(OFL[ks], 4), c))
                for x in fill[t::5]: e(x)
        e('s_waitcnt vmcnt(12)')
        for x in val(0): e(x)
        chk(0); e('L_ogo0:')
        for j in range(5):
            if self.opt.get('pts') == 3 and j in (0, 2, 4): self.ts(1 + j // 2)
            if j == 4: e('s_waitcnt lgkmcnt(0)\nds_read2_b32 v[6:7], v8 offset0:1 offset1:5')
            mm(2 * j, wrd(9, 1) if j == 1 else ())
            if j < 4:
                e('s_waitcnt vmcnt(%d)' % (3 * (3 - j)))
                mm(2 * j + 1, val(j + 1) + (wrd(8, 0) if j == 0 else []))
                chk(j + 1); e('L_ogo%d:' % (j + 1))
        def ovals():
            for j in range(5):
                e('L_oval%d:\ns_waitcnt vmcnt(%d)' % (j, 3 * (4 - j)))
                for x in val(j): e(x)
                chk(j); e('s_branch L_ogo%d' % j)
        self.tail.append(ovals)
        def otail():
            e("""L_oretry:
            s_waitcnt vmcnt(0)
            s_sub_u32 s15, s15, 1
            s_cmp_eq_u32 s15, 0
            s_cbranch_scc1 L_ogive
            s_sleep %d""" % self.opt.get('osl', 2))
            for j in range(5):
                e('s_cmp_eq_u32 s72, %d\ns_cbranch_scc1 L_old%d' % (j + 1, j))
            e('L_odisp:')
            for j in range(4):
                e('s_cmp_eq_u32 s72, %d\ns_cbranch_scc1 L_oval%d' % (j + 1, j))
            e('s_branch L_oval4\nL_ogive:\ns_mov_b32 s15, 1')
            for j in range(4):
                e('s_cmp_eq_u32 s72, %d\ns_cbranch_scc1 L_ogo%d' % (j + 1, j))
            e('s_branch L_ogo4')
            e("""L_ohint:
            v_lshlrev_b32 v3, 7, v0
            s_mov_b64 exec, 31
            L_of:
            buffer_load_dword v5, v3, %s, s63 offen offset:64 sc1
            s_waitcnt vmcnt(0)
            v_cmp_ne_u32 vcc, s10, v5
            s_cmp_eq_u64 vcc, 0
            s_cbranch_scc1 L_of2
            s_mov_b64 exec, vcc
            s_sleep HSL
            s_sub_u32 s15, s15, 1
            s_cmp_lg_u32 s15, 0
            s_cbranch_scc1 L_of
            L_of2:
            s_mov_b64 exec, -1
            s_branch L_ook""" % sq(rWS))
        self.tail.append(otail)
        PR = 56
        e('s_cmp_ge_u32 s5, 4\ns_cbranch_scc1 L_fini')
        mm(9)
        if self.opt.get('pts') == 1: self.ts(1)
        e('s_lshl_b32 s11, s5, 3\ns_lshl_b32 s11, 1, s11\nv_mov_b32 v3, s11')
        for t in range(5):
            e('ds_write_b128 v232, %s offset:%d' % (vr(ACL[t], 4), 4 * P * t))
        e("""s_mov_b64 exec, 1
        ds_add_u32 v8, v3 offset:20
        s_mov_b64 exec, -1
        s_branch L_fin
        L_fini:
        s_and_b32 s13, s5, 3
        s_lshl_b32 s13, s13, 3
        s_mov_b32 s15, %d
        L_fw:
        s_waitcnt lgkmcnt(0)
        v_readfirstlane_b32 s11, v6
        v_readfirstlane_b32 s12, v7
        s_lshr_b32 s11, s11, 24
        s_lshr_b32 s12, s12, s13
        s_and_b32 s11, s11, s12
        s_bitcmp1_b32 s11, 0
        s_cbranch_scc0 L_fre
        L_fok:
        ds_read2_b32 v[6:7], v8 offset0:32 offset1:33""" % (SPIN * 4))
        self.tail.append(lambda: e("""L_fre:
        s_sub_u32 s15, s15, 1
        s_cmp_eq_u32 s15, 0
        s_cbranch_scc1 L_fok
        ds_read2_b32 v[6:7], v8 offset0:1 offset1:5
        s_branch L_fw"""))
        assert UPD - (TAB + 896) == 128
        mm(9, ['ds_read_b128 %s, v232 offset:%d' % (vr(PR + 4 * t, 4), 4 * P * t) for t in range(5)])
        if self.opt.get('pts') == 1: self.ts(1)
        e("""s_waitcnt lgkmcnt(5)
        v_readfirstlane_b32 s76, v6
        v_readfirstlane_b32 s77, v7
        s_lshr_b32 s11, s76, 4
        s_cmp_eq_u32 s11, s60
        s_cbranch_scc1 L_exrow0
        L_exb0:
        s_lshr_b32 s11, s77, 4
        s_cmp_eq_u32 s11, s60
        s_cbranch_scc1 L_exrow1
        L_exb1:
        s_waitcnt lgkmcnt(0)""")
        for d in range(10):
            e('v_pk_add_f32 %s, %s, %s' % (vr(PR + 2 * d, 2), vr(PR + 2 * d, 2), vr(176 + 2 * d, 2)))
            e('v_cvt_pk_bf16_f32 v%d, v%d, v%d' % (80 + d, PR + 2 * d, PR + 2 * d + 1))
            if d in (5, 9):
                q = 80 + (d - 5)
                e('v_permlane16_swap_b32 v%d, v%d\nv_permlane16_swap_b32 v%d, v%d' % (q, q + 2, q + 1, q + 3))
                e('buffer_store_dwordx4 %s, v233, %s, 0 offen offset:%d OUTF' % (vr(q, 4), sq(rOUT), 16 * (d - 5)))
        e('buffer_store_dwordx2 v[88:89], v234, %s, 0 offen offset:128 OUTF' % sq(rOUT))
        e('L_fin:')
        if self.opt.get('ts'):
            if self.opt.get('pts') in (1, 2): self.ts(2)
            if self.opt.get('rcnt'): e('s_waitcnt lgkmcnt(0)\ns_sub_u32 s11, %d, s15\ns_add_u32 s84, s80, s11' % SPIN)
            e('s_waitcnt vmcnt(0)')
            self.ts(9)
            e('s_waitcnt lgkmcnt(0)\nv_mov_b32 v15, 0')
            for k in range(10):
                e('v_mov_b32 v%d, s%d' % (16 + k, 80 + 2 * k))
            e("""s_lshl_b32 s11, s2, 3
            s_add_u32 s11, s11, s5
            s_lshl_b32 s11, s11, 6
            s_add_u32 s11, s11, %d
            s_mov_b64 exec, 1
            buffer_store_dwordx4 v[16:19], v15, %s, s11 offen
            buffer_store_dwordx4 v[20:23], v15, %s, s11 offen offset:16
            buffer_store_dwordx2 v[24:25], v15, %s, s11 offen offset:32""" % (WS_TS, sq(rWS), sq(rWS), sq(rWS)))
        e('s_endpgm')
        for k in range(2):
            e("""L_exrow%d:
            v_and_b32 v3, 48, v0
            v_add_u32 v3, %d, v3""" % (k, UPD + 16 + 1536 * k))
            for t in range(5):
                e('ds_read_b128 %s, v3 offset:%d' % (vr(96 + 4 * t, 4), 64 * t))
            e("""v_and_b32 v3, 15, v0
            s_and_b32 s11, s%d, 15
            v_cmp_eq_u32 vcc, s11, v3
            s_waitcnt lgkmcnt(0)
            s_mov_b64 exec, vcc""" % (76 + k))
            for d in range(10):
                e('v_pk_add_f32 %s, %s, %s' % (vr(PR + 2 * d, 2), vr(PR + 2 * d, 2), vr(96 + 2 * d, 2)))
            e('s_mov_b64 exec, -1\ns_branch L_exb%d' % k)

    def p2wo(self):
        e = self.e
        UPD = TAB + 1024
        e('L_p2wo:\ns_cmp_lt_u32 s5, 4\ns_cbranch_scc1 L_p2w1')
        self.p2_loads()
        e('L_p2w1:')
        e("""v_mov_b32 v8, %d
        v_mov_b32 v3, 1
        s_waitcnt vmcnt(0)
        s_mov_b64 exec, 1
        ds_add_u32 v8, v3 offset:4
        s_mov_b64 exec, -1
        s_cmp_lt_u32 s5, 4
        s_cbranch_scc1 L_phase2
        XNPREP
        s_lshl_b32 s11, s2, 3
        s_add_u32 s11, s11, s5
        s_cmpk_lg_u32 s11, 1927
        s_cbranch_scc1 L_noep
        v_add_u32 v4, 0x2e0000, v254
        s_mov_b32 s15, 200000
        L_ep:
        buffer_load_dwordx4 v[16:19], v4, s[52:55], 0 offen sc1
        s_waitcnt vmcnt(0)
        v_xor_b32 v16, s10, v16
        v_xor_b32 v17, s10, v17
        v_xor_b32 v18, s10, v18
        v_xor_b32 v19, s10, v19
        v_or3_b32 v16, v16, v17, v18
        v_or_b32 v16, v16, v19
        v_lshlrev_b32 v16, 4, v16
        v_cmp_ne_u32 vcc, 0, v16
        s_cmp_eq_u64 vcc, 0
        s_cbranch_scc1 L_ep2
        s_sleep 8
        s_sub_u32 s15, s15, 1
        s_cmp_lg_u32 s15, 0
        s_cbranch_scc1 L_ep
        L_ep2:
        v_mov_b32 v4, 0
        v_mov_b32 v5, s10
        s_mov_b64 exec, 1
        global_store_dword v4, v5, s[36:37] sc1
        s_mov_b64 exec, -1
        L_noep:
        s_cmp_lg_u32 s5, 6
        s_cbranch_scc1 L_phase2
        v_mov_b32 v4, 0
        s_mov_b32 s15, %d
        L_sel:
        buffer_load_dwordx4 v[16:19], v4, %s, 0 offen offset:%d sc1
        s_waitcnt vmcnt(0)
        v_readfirstlane_b32 s11, v17
        v_readfirstlane_b32 s12, v19
        v_readfirstlane_b32 s76, v16
        v_readfirstlane_b32 s79, v18
        s_cmp_eq_u32 s11, s12
        s_cselect_b32 s11, s11, 0
        s_cselect_b32 s12, s10, 1
        s_mov_b32 s78, 0
        s_cmp_eq_u32 s11, s12
        s_cbranch_scc1 SELGO
        s_sleep 8
        s_sub_u32 s15, s15, 1
        s_cmp_lg_u32 s15, 0
        s_cbranch_scc1 L_sel
        s_branch SELGO
        L_selok:
        s_and_b32 s77, s76, 0xffff
        s_sub_u32 s77, 2047, s77
        s_lshl_b32 s11, s78, 2
        s_add_u32 s11, s11, %d
        v_mov_b32 v3, s11
        v_mov_b32 v4, s77
        ds_write_b32 v3, v4
        s_lshr_b32 s11, s77, 6
        s_lshr_b32 s12, s60, 2
        s_cmp_lg_u32 s11, s12
        s_cbranch_scc1 L_selnext
        v_mul_u32_u24 v3, 13, v0
        v_lshrrev_b32 v3, 8, v3
        v_mul_u32_u24 v4, 20, v3
        v_sub_u32 v4, v0, v4
        v_mul_u32_u24 v5, 40960, v3
        v_lshl_add_u32 v5, v4, 5, v5
        v_lshrrev_b32 v4, 2, v4
        v_lshl_add_u32 v5, v4, 7, v5
        s_lshr_b32 s14, s4, 2
        s_mul_i32 s14, s14, 1280
        s_lshl_b32 s13, s78, 4
        s_add_u32 s14, s14, s13
        s_add_u32 s14, s14, %d
        s_lshr_b32 s11, s76, 16
        s_bitcmp1_b32 s11, 15
        s_mov_b32 s13, 0xffff
        s_cmov_b32 s13, 0x8000
        s_xor_b32 s11, s11, s13
        s_lshl_b32 s11, s11, 16
        v_mov_b32 v6, 0xbfb8aa3b
        v_mul_f32 v6, s11, v6
        v_exp_f32 v6, v6
        v_add_f32 v6, 1.0, v6
        v_rcp_f32 v6, v6
        v_cvt_pk_bf16_f32 v6, v6, v6
        v_and_b32 v6, 0xffff0000, v6
        s_mul_i32 s11, s78, 1536
        s_add_u32 s11, s11, %d
        v_add_u32 v7, s11, v254
        s_mov_b32 s15, %d
        s_mov_b32 exec_hi, 0xfffffff
        L_yf:
        s_mov_b32 s12, s14""" % (TAB + 896, SPIN, sq(rWS), WS_SEL, UPD, WS_Y, UPD + 16, SPIN))
        assert all((x * 13) >> 8 == x // 20 for x in range(60))
        YB = (196, 204, 212, 220); S0, S1, S2 = 236, 240, 228
        for j in range(4):
            for h in range(2):
                e('buffer_load_dwordx3 %s, v5, %s, s12 offen offset:%d sc1' % (vr(YB[j] + 4 * h, 3), sq(rWS), 128 * h))
            if j < 3: e('s_add_u32 s12, s12, 10240')
        e('s_waitcnt vmcnt(0)\nv_mov_b32 v3, 0')
        for j in range(4):
            e('v_xor_b32 v4, s10, v%d\nv_xor_b32 v10, s10, v%d\nv_or3_b32 v3, v3, v4, v10' % (YB[j] + 2, YB[j] + 6))
        e("""v_cmp_ne_u32 vcc, 0, v3
        s_cmp_eq_u64 vcc, 0
        s_cbranch_scc1 L_yok
        s_mov_b64 exec, vcc
        s_sleep 4
        s_sub_u32 s15, s15, 1
        s_cmp_lg_u32 s15, 0
        s_cbranch_scc1 L_yf
        L_yok:
        s_mov_b32 exec_lo, -1
        s_mov_b32 exec_hi, 0xfffffff""")
        for h in range(2):
            e('v_pk_add_f32 %s, %s, %s' % (vr(S0 + 2 * h, 2), vr(YB[0] + 4 * h, 2), vr(YB[1] + 4 * h, 2)))
        for j in (2, 3):
            for h in range(2):
                e('v_pk_add_f32 %s, %s, %s' % (vr(S0 + 2 * h, 2), vr(S0 + 2 * h, 2), vr(YB[j] + 4 * h, 2)))
        e("""ds_write_b128 v7, %s offset:320
        s_mov_b64 exec, 0xfffff
        ds_read_b128 %s, v7 offset:640
        ds_read_b128 %s, v7 offset:960
        s_waitcnt lgkmcnt(0)""" % (vr(S0, 4), vr(S1, 4), vr(S2, 4)))
        for sj in (S1, S2):
            for h in range(2):
                e('v_pk_add_f32 %s, %s, %s' % (vr(S0 + 2 * h, 2), vr(S0 + 2 * h, 2), vr(sj + 2 * h, 2)))
        def rnd2():
            for h in range(2): e('v_cvt_pk_bf16_f32 v%d, v%d, v%d' % (S1 + h, S0 + 2 * h, S0 + 2 * h + 1))
            for h in range(2): e('v_lshlrev_b32 v%d, 16, v%d\nv_and_b32 v%d, 0xffff0000, v%d' % (S0 + 2 * h, S1 + h, S0 + 2 * h + 1, S1 + h))
        rnd2()
        for r in range(4): e('v_mul_f32 v%d, v%d, v6' % (S0 + r, S0 + r))
        rnd2()
        e("""ds_write_b128 v7, %s
        s_waitcnt lgkmcnt(0)
        s_mov_b64 exec, -1
        L_selnext:
        s_mov_b32 s76, s79
        s_add_u32 s78, s78, 1
        s_cmp_lt_u32 s78, 2
        s_cbranch_scc1 L_selok
        v_mov_b32 v3, 0x1000000
        s_mov_b64 exec, 1
        ds_add_u32 v8, v3 offset:4
        s_mov_b64 exec, -1
        s_branch L_yret""" % vr(S0, 4))

    def expert(self):
        e = self.e
        BUF = 32768
        ETS = self.opt.get('ets', 0)
        e("""L_aux:
        s_cmp_ge_u32 s79, 4
        s_cbranch_scc1 L_idle""")
        e("""s_mul_i32 s68, s78, 12
        s_add_u32 s68, s68, s79
        s_lshl_b32 s11, s77, 1
        s_lshl_b32 s11, s11, s76
        s_add_u32 s68, s68, s11
        s_lshl_b32 s11, s76, 2
        s_add_u32 s68, s68, s11
        s_and_b32 s14, s5, 1
        s_lshr_b32 s69, s5, 1
        v_lshrrev_b32 v2, 3, v0
        v_and_b32 v3, 7, v0
        v_bfe_u32 v4, v0, 4, 1
        v_lshl_or_b32 v4, s14, 1, v4
        v_lshlrev_b32 v4, 1, v4
        v_xor_b32 v4, v3, v4
        s_and_b32 s12, s68, 1
        s_mul_i32 s12, s12, 320
        s_lshl_b32 s11, s14, 3
        s_add_u32 s11, s11, s12
        v_add_u32 v2, s11, v2
        v_mul_u32_u24 v2, 3072, v2
        v_lshl_add_u32 v2, v4, 4, v2
        s_and_b32 s11, s68, 30
        s_and_b32 s12, s69, 1
        s_add_u32 s11, s11, s12
        s_lshl_b32 s11, s11, 7
        v_add_u32 v10, s11, v2
        s_lshl_b32 s74, s69, 13
        s_lshl_b32 s11, s14, 10
        s_add_u32 s75, s74, s11
        s_waitcnt lgkmcnt(0)
        s_cmp_lt_u32 s5, 4
        s_cselect_b32 s44, s26, s28
        s_cselect_b32 s45, s27, s29
        s_mov_b32 s46, %d
        s_mov_b32 s47, 0x20000""" % GB)
        nt = ' nt' if self.opt.get('nt', 1) else ''
        def issue(s):
            base = (s % 4) * BUF
            for a in range(4):
                e('s_add_u32 m0, s75, %d\ns_mov_b32 s12, %d' % (base + a * 2048, (64 * s + 16 * a) * 3072))
                e('buffer_load_dwordx4 v10, %s, s12 offen%s lds' % (sq(rW), nt))
        if ETS == 1: self.ts(1)
        issue(0)
        e('s_branch L_expert2')
        self.expert_rest = lambda: self.expert2(issue)

    def expert2(self, issue):
        e = self.e
        WG_, XS = 32, 112
        BUF = 32768
        MX = TAB + 4096
        ETS = self.opt.get('ets', 0)
        e('L_expert2:')
        self.tag_load()
        self.srd(rX, pX, XB); self.srd(rWS, pWS, WSB)
        self.p2_setup()
        self.wo_setup(11)
        e("""v_and_b32 v1, 15, v0
        v_lshrrev_b32 v2, 4, v0
        v_lshrrev_b32 v3, 2, v1
        v_and_b32 v4, 3, v1
        v_lshrrev_b32 v5, 1, v3
        v_and_b32 v6, 1, v2
        v_lshl_or_b32 v5, v6, 1, v5
        s_lshl_b32 s11, s14, 1
        v_xor_b32 v5, s11, v5
        v_lshl_add_u32 v7, v2, 3, v3
        v_lshlrev_b32 v8, 7, v7
        v_lshl_add_u32 v8, v5, 5, v8
        v_lshl_add_u32 v8, v4, 3, v8
        v_add_u32 v16, s74, v8
        s_lshl_b32 s11, s5, 6
        v_add_u32 v21, s11, v0
        v_lshlrev_b32 v17, 4, v21
        v_add_u32 v17, %d, v17
        v_and_b32 v5, 1, v1
        v_mul_u32_u24 v19, 656, v5
        v_lshl_add_u32 v19, v2, 4, v19
        v_add_u32 v19, %d, v19
        v_lshlrev_b32 v20, 5, v2
        v_lshl_add_u32 v20, v1, 4, v20
        s_lshl_b32 s72, s68, 1
        s_lshr_b32 s11, s5, 2
        s_add_u32 s72, s72, s11
        s_lshl_b32 s72, s72, 11
        s_and_b32 s11, s5, 3
        s_lshl_b32 s11, s11, 8
        s_add_u32 s72, s72, s11
        s_add_u32 s72, s72, %d
        v_mov_b32 v8, %d
        v_mov_b32 v9, 0
        ds_write_b32 v8, v9 offset:4
        ds_write_b32 v8, v9 offset:20""" % (WS_KEY, MX, WS_H, TAB + 896))
        issue(1); issue(2); issue(3)
        self.tag_ready()
        def consume(s, n):
            base = (s % 4) * BUF
            e('s_waitcnt vmcnt(%d)\ns_barrier' % n)
            if ETS == 1 and s in (0, 2, 4): self.ts({0: 4, 2: 5, 4: 6}[s])
            e('v_add_u32 v8, %d, v16\nv_xor_b32 v9, 32, v8' % base)
            for t in range(2):
                for tl in range(2):
                    for hh in range(2):
                        e('ds_read_b64_tr_b16 %s, v%d offset:%d' % (vr(WG_ + 40 * tl + 4 * (2 * s + t) + 2 * hh, 2), 8 + tl, (32 * t + 4 * hh) * 128))
        B = 120
        v = lambda k: 'v%d' % (B + k)
        def sweep():
            e('s_mov_b32 s12, 8192')
            e('buffer_load_dwordx4 %s, v17, %s, 0 offen sc1\nbuffer_load_dwordx4 %s, v17, %s, s12 offen sc1' % (vr(B + 2, 4), sq(rWS), vr(B + 6, 4), sq(rWS)))
        SW = self.opt.get('sw', 0)
        consume(0, 12)
        e('s_waitcnt lgkmcnt(0)\ns_barrier')
        self.count_in(7)
        if SW == 0: sweep()
        issue(4)
        consume(1, 12 + 2 * (SW == 0))
        if SW == 1: sweep()
        consume(2, 8 + 2 * (SW <= 1))
        if SW == 2: sweep()
        consume(3, 6)
        if SW: consume(4, 2)
        MK = TAB
        e("""s_mov_b32 s15, %d
        s_waitcnt vmcnt(%d)
        L_sweep:
        v_xor_b32 v5, s10, %s
        v_xor_b32 v6, s10, %s
        v_xor_b32 v7, s10, %s
        v_xor_b32 v8, s10, %s
        v_or3_b32 v5, v5, v6, v7
        v_or_b32 v5, v5, v8
        v_cmp_ne_u32 vcc, 0, v5
        s_cmp_eq_u64 vcc, 0
        s_cbranch_scc1 L_swok
        s_mov_b64 exec, vcc
        s_sub_u32 s15, s15, 1
        s_cmp_eq_u32 s15, 0
        s_cbranch_scc1 L_swok
        s_sleep 4""" % (SPIN, 0 if SW else 4, v(3), v(5), v(7), v(9)))
        sweep()
        e('s_waitcnt vmcnt(0)\ns_branch L_sweep\nL_swok:\ns_mov_b64 exec, -1')
        if ETS == 2: self.ts(1)
        e("""v_max_u32 v5, %s, %s
        v_min_u32 v6, %s, %s
        v_max_u32 v7, %s, %s
        v_min_u32 v8, %s, %s
        v_max_u32 v3, v5, v7
        v_min_u32 v5, v5, v7
        v_max3_u32 v4, v5, v6, v8""" % (v(2), v(4), v(2), v(4), v(6), v(8), v(6), v(8)))
        def merge16():
            for n in (8, 4, 2, 1):
                d = 'row_ror:%d row_mask:0xf bank_mask:0xf' % n
                e("""v_min_u32_dpp v5, v3, v3 %s
                v_max_u32_dpp v4, v4, v4 %s
                v_max_u32_dpp v3, v3, v3 %s
                v_max_u32 v4, v4, v5""" % (d, d, d))
        merge16()
        e("""s_lshl_b32 s11, s5, 5
        s_add_u32 s11, s11, %d
        v_lshl_add_u32 v7, v2, 3, s11
        v_mov_b32 v8, v3
        v_mov_b32 v9, v4
        ds_write_b64 v7, v[8:9]
        v_lshlrev_b32 v7, 4, v1
        v_add_u32 v7, %d, v7
        s_waitcnt lgkmcnt(0)
        s_barrier
        s_cmp_ge_u32 s5, 3
        s_cbranch_scc1 L_noxn
        ds_read_b128 %s, v7
        s_waitcnt lgkmcnt(0)
        v_max_u32 v3, %s, %s
        v_min_u32 v5, %s, %s
        v_max3_u32 v4, v5, %s, %s""" % (MK, MK, vr(B + 2, 4), v(2), v(4), v(2), v(4), v(3), v(5)))
        merge16()
        if ETS == 2: self.ts(4)
        e("""v_readfirstlane_b32 s76, v3
        v_readfirstlane_b32 s77, v4
        s_cmp_lg_u32 s5, 2
        s_cbranch_scc1 L_rx
        s_cmp_lg_u32 s68, 0
        s_cbranch_scc1 L_noxn
        v_mov_b32 v4, s76
        v_mov_b32 v5, s10
        v_mov_b32 v6, s77
        v_mov_b32 v7, s10
        v_mov_b32 v3, 0
        s_mov_b64 exec, 1
        buffer_store_dwordx4 v[4:7], v3, %s, 0 offen offset:%d sc1
        s_mov_b64 exec, -1
        s_branch L_noxn
        L_rx:
        s_cmp_eq_u32 s5, 0
        s_cselect_b32 s11, s76, s77
        s_and_b32 s11, s11, 0xffff
        s_sub_u32 s11, 2047, s11
        s_lshl_b32 s13, s11, 3
        s_add_u32 s13, s13, %d
        s_mul_i32 s11, s11, 1280
        s_and_b32 s12, s68, 1
        s_mul_i32 s12, s12, 640
        s_add_u32 s11, s11, s12
        s_mul_i32 s12, s5, 656
        s_add_u32 s12, s12, %d
        v_add_u32 v9, s12, v254
        v_mov_b32 v7, 0
        s_mov_b32 exec_hi, 0xff
        s_mov_b32 s15, %d
        buffer_load_dwordx4 %s, v254, %s, s11 offen
        L_rst:
        buffer_load_dwordx2 %s, v7, %s, s13 offen sc1
        s_waitcnt vmcnt(0)
        v_cmp_ne_u32 vcc, s10, %s
        s_cmp_eq_u64 vcc, 0
        s_cbranch_scc1 L_rstok
        s_sub_u32 s15, s15, 1
        s_cmp_lg_u32 s15, 0
        s_cbranch_scc1 L_rst
        L_rstok:
        v_and_b32 v3, 0xffff0000, %s
        v_rcp_f32 v3, v3
        v_lshlrev_b32 v4, 16, %s""" % (sq(rWS), WS_SEL, WS_STAT, MX, SPIN, vr(B + 2, 4), sq(rX), vr(B + 6, 2), sq(rWS), v(7), v(6), v(6)))
        F = B + 8
        def unp():
            for d in range(4):
                e('v_lshlrev_b32 v%d, 16, v%d\nv_and_b32 v%d, 0xffff0000, v%d' % (F + 2 * d, B + 2 + d, F + 2 * d + 1, B + 2 + d))
        def pk():
            for d in range(4): e('v_cvt_pk_bf16_f32 v%d, v%d, v%d' % (B + 2 + d, F + 2 * d, F + 2 * d + 1))
        unp()
        for r in range(8): e('v_sub_f32 v%d, v%d, v4' % (F + r, F + r))
        pk(); unp()
        for r in range(8): e('v_mul_f32 v%d, v%d, v3' % (F + r, F + r))
        pk()
        e('ds_write_b128 v9, %s\ns_mov_b64 exec, -1\nL_noxn:\ns_waitcnt lgkmcnt(0)' % vr(B + 2, 4))
        if SW:
            e('s_barrier')
        else:
            consume(4, 0)
            e('s_waitcnt lgkmcnt(0)')
        if ETS == 2: self.ts(5)
        for ks in range(10):
            e('ds_read_b128 %s, v19 offset:%d' % (vr(XS + 4 * ks, 4), 64 * ks))
        R = 160
        for k in range(4):
            e('v_mov_b32 v%d, s10\nv_mov_b32 v%d, 0' % (R + 8 + 4 * k + 2, R + 8 + 4 * k + 3))
        for ks in range(10):
            e('s_waitcnt lgkmcnt(%d)' % (9 - ks))
            for tl in range(2):
                e('v_mfma_f32_16x16x32_bf16 %s, %s, %s, %s' % (vr(R + 4 * tl, 4), vr(WG_ + 40 * tl + 4 * ks, 4), vr(XS + 4 * ks, 4), '0' if ks == 0 else vr(R + 4 * tl, 4)))
        e('v_cmp_gt_u32 vcc, 2, v1\ns_and_b64 exec, exec, vcc')
        for tl in range(2):
            for h in range(2):
                d = R + 8 + 4 * (2 * tl + h)
                e('v_mov_b32 v%d, v%d\nv_mov_b32 v%d, v%d' % (d, R + 4 * tl + 2 * h, d + 1, R + 4 * tl + 2 * h + 1))
                e('buffer_store_dwordx4 %s, v20, %s, s72 offen offset:%d sc1' % (vr(d, 4), sq(rWS), 1024 * h + 128 * tl))
        e('s_mov_b64 exec, -1')
        self.ts(2)
        e('s_barrier')
        e('L_woall:')
        self.wo_block(11, 's5')
        e('s_add_u32 s71, s5, 8'); self.wo_block(11, 's71')
        e('s_cmp_lt_u32 s5, 4\ns_cbranch_scc1 L_p2wo\ns_add_u32 s71, s5, 12')
        self.wo_block(11, 's71')
        e('s_branch L_p2wo')

    def down(self):
        e = self.e
        WD, YA = 32, 112
        BUF = 40960
        MH = TAB + 384
        nt = ' nt' if self.opt.get('nt', 1) else ''
        e("""L_idle:
        s_lshl_b32 s68, s78, 1
        s_add_u32 s68, s68, s77
        s_mul_i32 s68, s68, 3
        s_add_u32 s68, s68, s79
        s_sub_u32 s68, s68, 4
        s_mul_i32 s72, s5, 5120
        s_mul_i32 s73, s68, 163840
        s_add_u32 s73, s73, s72
        s_bfe_u32 s11, s5, 0x10001
        s_lshl_b32 s11, s11, 2""")
        for a in range(5):
            e("""v_add_u32 v2, %d, v0
            v_mul_u32_u24 v3, 820, v2
            v_lshrrev_b32 v3, 16, v3
            v_mul_u32_u24 v4, 80, v3
            v_sub_u32 v4, v2, v4
            v_or_b32 v5, s11, v3
            v_lshlrev_b32 v5, 1, v5
            v_xor_b32 v4, v4, v5
            v_mul_u32_u24 v3, 1280, v3
            v_lshl_add_u32 v%d, v4, 4, v3""" % (64 * a, 26 + a))
        def issue(s):
            base = (s % 3) * BUF
            for a in range(5):
                e('s_add_u32 m0, s72, %d\ns_add_u32 s12, s73, %d' % (base + a * 1024, s * 40960))
                e('buffer_load_dwordx4 v%d, %s, s12 offen%s lds' % (26 + a, sq(rD), nt))
        e('s_waitcnt lgkmcnt(0)')
        self.srd(rD, pD, GB)
        issue(0)
        e('s_branch L_down2')
        self.down_rest = lambda: self.down2(issue)

    def down2(self, issue):
        e = self.e
        WD, YA = 32, 112
        BUF = 40960
        MH = TAB + 384
        e('L_down2:')
        self.tag_load()
        self.srd(rX, pX, XB); self.srd(rWS, pWS, WSB)
        self.p2_setup()
        self.wo_setup(11)
        e("""v_and_b32 v1, 15, v0
        v_lshrrev_b32 v2, 4, v0
        v_lshrrev_b32 v3, 2, v1
        v_and_b32 v4, 3, v1
        v_and_b32 v6, 1, v2
        v_lshl_add_u32 v7, v2, 3, v3
        v_lshl_or_b32 v5, v6, 2, v3
        v_mul_u32_u24 v7, 1280, v7
        v_lshl_add_u32 v7, v4, 3, v7
        s_mul_i32 s11, s5, 5""")
        for j in range(5):
            e("""s_add_u32 s12, s11, %d
            v_xor_b32 v8, s12, v5
            v_lshl_add_u32 v%d, v8, 5, v7""" % (j, 18 + j))
        e("""v_mov_b32 v8, %d
        v_mov_b32 v9, 0
        ds_write_b32 v8, v9 offset:4
        ds_write_b32 v8, v9 offset:20""" % (TAB + 896))
        issue(1); issue(2)
        self.tag_ready()
        def consume(s, n):
            base = (s % 3) * BUF
            e('s_waitcnt vmcnt(%d)\ns_barrier' % n)
            for j in range(5):
                e('v_add_u32 v8, %d, v%d' % (base, 18 + j))
                for hh in range(2):
                    e('ds_read_b64_tr_b16 %s, v8 offset:%d' % (vr(WD + 20 * s + 4 * j + 2 * hh, 2), 5120 * hh))
        consume(0, 10)
        e('s_waitcnt lgkmcnt(0)\ns_barrier')
        self.count_in(7)
        issue(3)
        consume(1, 10)
        consume(2, 5)
        e('s_waitcnt lgkmcnt(0)\ns_barrier')
        e('s_cmp_eq_u32 s5, 0\ns_cbranch_scc1 L_dn0\ns_sub_u32 s71, s5, 1')
        self.wo_block(11, 's71')
        e('s_waitcnt vmcnt(5)\ns_branch L_dn0b\nL_dn0:\ns_waitcnt vmcnt(0)\nL_dn0b:')
        consume(3, 63)
        e('s_cmp_eq_u32 s5, 0\ns_cbranch_scc1 L_dn1\ns_add_u32 s71, s5, 6')
        self.wo_block(11, 's71')
        e('s_cmp_eq_u32 s5, 7\ns_cbranch_scc1 L_dn2\ns_add_u32 s71, s5, 13')
        self.wo_block(11, 's71')
        e('s_branch L_dn2\nL_dn1:\ns_setprio 3')
        self.ts(2)
        HB = 132
        e("""s_lshl_b32 s12, s68, 13
        s_add_u32 s12, s12, %d
        s_add_u32 s13, s12, 4096
        s_mov_b32 s15, %d
        HINTSKIP
        s_mov_b64 exec, 1
        L_hp0:
        buffer_load_dwordx4 %s, v254, %s, s12 offen sc1
        buffer_load_dwordx4 %s, v254, %s, s13 offen sc1
        s_waitcnt vmcnt(0)
        v_xor_b32 v4, s10, v%d
        v_xor_b32 v5, s10, v%d
        v_or_b32 v3, v4, v5
        v_cmp_ne_u32 vcc, 0, v3
        s_cmp_eq_u64 vcc, 0
        s_cbranch_scc1 L_hp1
        s_sleep 2
        s_sub_u32 s15, s15, 1
        s_cmp_lg_u32 s15, 0
        s_cbranch_scc1 L_hp0
        L_hp1:
        s_mov_b64 exec, -1
        s_mov_b32 s15, %d
        L_hp:""" % (WS_H, SPIN, vr(HB, 4), sq(rWS), vr(HB + 4, 4), sq(rWS), HB + 2, HB + 6, SPIN))
        for k in range(8):
            e('buffer_load_dwordx4 %s, v254, %s, s%d offen offset:%d sc1' % (vr(HB + 4 * k, 4), sq(rWS), 12 + k // 4, 1024 * (k % 4)))
        e('s_waitcnt vmcnt(0)\nv_mov_b32 v3, 0')
        for k in range(0, 8, 2):
            e('v_xor_b32 v4, s10, v%d\nv_xor_b32 v5, s10, v%d\nv_or3_b32 v3, v3, v4, v5' % (HB + 4 * k + 2, HB + 4 * k + 6))
        e("""v_cmp_ne_u32 vcc, 0, v3
        s_cmp_eq_u64 vcc, 0
        s_cbranch_scc1 L_hok
        s_mov_b64 exec, vcc
        s_sleep 2
        s_sub_u32 s15, s15, 1
        s_cmp_lg_u32 s15, 0
        s_cbranch_scc1 L_hp
        L_hok:
        s_mov_b64 exec, -1""")
        if self.opt.get('ets') == 2: self.ts(6)
        for k in range(4):
            e('v_pk_add_f32 %s, %s, %s' % (vr(HB + 4 * k, 2), vr(HB + 4 * k, 2), vr(HB + 16 + 4 * k, 2)))
        for k in range(4):
            e('v_cvt_pk_bf16_f32 v%d, v%d, v%d' % (4 + k, HB + 4 * k, HB + 4 * k + 1))
        for k in range(4):
            e('v_lshlrev_b32 v%d, 16, v%d\nv_and_b32 v%d, 0xffff0000, v%d' % (HB + 2 * k, 4 + k, HB + 2 * k + 1, 4 + k))
        F = HB + 8
        for r in range(4): e('v_mul_f32 v%d, 0xbfb8aa3b, v%d' % (F + r, HB + r))
        for r in range(4): e('v_exp_f32 v%d, v%d' % (F + r, F + r))
        for r in range(4): e('v_add_f32 v%d, 1.0, v%d' % (F + r, F + r))
        for r in range(4): e('v_rcp_f32 v%d, v%d' % (F + r, F + r))
        for r in range(4): e('v_mul_f32 v%d, v%d, v%d' % (HB + r, HB + r, F + r))
        for k in range(2):
            e('v_cvt_pk_bf16_f32 v%d, v%d, v%d' % (4 + k, HB + 2 * k, HB + 2 * k + 1))
        for k in range(2):
            e('v_lshlrev_b32 v%d, 16, v%d\nv_and_b32 v%d, 0xffff0000, v%d' % (HB + 2 * k, 4 + k, HB + 2 * k + 1, 4 + k))
        for r in range(4): e('v_mul_f32 v%d, v%d, v%d' % (HB + r, HB + r, HB + 4 + r))
        e("""v_cvt_pk_bf16_f32 v24, v%d, v%d
        v_cvt_pk_bf16_f32 v25, v%d, v%d
        v_and_b32 v3, 1, v0
        v_lshrrev_b32 v4, 1, v0
        v_lshlrev_b32 v3, 8, v3
        v_lshl_add_u32 v3, v4, 3, v3
        v_add_u32 v3, %d, v3
        ds_write_b64 v3, v[24:25]
        L_dn2:
        v_and_b32 v5, 1, v1
        v_lshlrev_b32 v6, 8, v5
        v_lshl_add_u32 v6, v2, 4, v6
        v_add_u32 v6, %d, v6
        v_lshlrev_b32 v7, 5, v2
        v_lshl_add_u32 v7, v1, 4, v7
        s_mul_i32 s11, s68, 10240
        s_mul_i32 s12, s5, 1280
        s_add_u32 s11, s11, s12
        s_add_u32 s11, s11, %d""" % (HB, HB + 1, HB + 2, HB + 3, MH, MH, WS_Y))
        YG = 168
        for k in range(10):
            e('v_mov_b32 v%d, s10\nv_mov_b32 v%d, 0' % (YG + 4 * k + 2, YG + 4 * k + 3))
        e('s_waitcnt lgkmcnt(0)\ns_barrier')
        for ks in range(4):
            e('ds_read_b128 %s, v6 offset:%d' % (vr(16 + 4 * ks, 4), 64 * ks))
        for ks in range(4):
            e('s_waitcnt lgkmcnt(%d)' % (3 - ks))
            for j in range(5):
                e('v_mfma_f32_16x16x32_bf16 %s, %s, %s, %s' % (vr(YA + 4 * j, 4), vr(WD + 20 * ks + 4 * j, 4), vr(16 + 4 * ks, 4), '0' if ks == 0 else vr(YA + 4 * j, 4)))
        e('v_cmp_gt_u32 vcc, 2, v1\ns_and_b64 exec, exec, vcc')
        for j in range(5):
            for h in range(2):
                d = YG + 4 * (2 * j + h)
                e('v_mov_b32 v%d, v%d\nv_mov_b32 v%d, v%d' % (d, YA + 4 * j + 2 * h, d + 1, YA + 4 * j + 2 * h + 1))
                e('buffer_store_dwordx4 %s, v7, %s, s11 offen offset:%d sc1' % (vr(d, 4), sq(rWS), 256 * j + 128 * h))
        e('s_mov_b64 exec, -1')
        self.ts(3)

    def build(self):
        self.tail = []
        for txt, f in (('start-up, role split, first loads of the row statistics', self.prologue),
                       ('loader waves, first chunk', self.loader),
                       ('gate/up workgroups, first stage', self.expert),
                       ('down workgroups, first stage', self.down),
                       ('loader waves, ring loop, row table, wo image', lambda: self.loader_rest()),
                       ('gate/up workgroups, top-2, partial pre-activations', lambda: self.expert_rest()),
                       ('down workgroups, h and partial y', lambda: self.down_rest()),
                       ('waves outside the attention stage, epoch word, expert update of this row block', self.p2wo),
                       ('compute waves without statistics', self.w23),
                       ('row statistics and router key', self.stats),
                       ('q k v gemm', self.gemm1),
                       ('attention', self.attention),
                       ('output stage', self.phase2)):
            self.L.append('; ======== ' + txt)
            f()
        self.L.append('; ======== out-of-line waits and retries')
        for f in self.tail: f()
        self.e('L_end:\ns_endpgm')
        return self.L

DOC = """; ---------------------------------------------------------------------------------------------------------------
; One launch, 256 workgroups of 8 waves, one per CU (all resident; every wait is bounded).  id&7 is the expected die,
; id>>3 the slot; the id map only serves L2 locality, every hand-off is checked and works under any placement.
;
; gemm workgroups (220): row tile i (96 rows + 14 halo rows) x column line l (64 columns of each of q, k, v).
;   waves 4-7 stream x and W through a 4-slot LDS ring (LDS-DMA), waves 0-3 run the MFMAs on raw x; layer norm is
;   attention per 16-row tile with MFMAs (k q^T, true-max softmax, p v); heads cut by a line boundary swap their
;   partial logits with the neighbour workgroup.  o is stored in MFMA operand order for the output stage.
;
; hand-offs through d_ws carry the launch tag = (epoch word found in d_ws) + 1; the word is advanced once every
; workgroup has read it.  o blocks carry check sums.  Stores stay in the local L2 only when the 32 workgroups
; of this id class have all reported the same die; otherwise (and across dies) they are written through.
; ---------------------------------------------------------------------------------------------------------------
"""
HEAD = open('cdna_kernels/%s.s.ref' % NAME).read().split('; Override launch')[0]

def generate(opt):
    g = G(opt)
    L = g.build()
    L = [x.replace('HINTSKIP', 's_branch L_hp' if opt.get('nohint') else 's_nop 0') for x in L]
    L = [x.replace('IMSLEEP', 's_sleep %d' % opt.get('ims', 1) if opt.get('ims', 1) else 's_nop 0') for x in L]
    L = [x.replace('COLOC', str(opt.get('coloc', 1))) for x in L]
    L = [x.replace(' OUTF', ('', ' nt', ' sc1', ' sc0 sc1')[opt.get('outf', 0)]) for x in L]
    L = [x.replace('OMODE', str(opt.get('omode', 2))) for x in L]
    if opt.get('noxch'): L = [x for x in L if not (any('v230, s[52:55], s7%d offen' % k in x for k in range(4)) or 's_cbranch_scc1 L_xretry' in x)]
    if opt.get('noval'): L = [x for x in L if 's_cbranch_scc1 L_oretry' not in x]; pass
    if opt.get('nopub'): L = [x for x in L if 's25 offen' not in x]
    if opt.get('noold'): L = [x for x in L if not (('s22 offen' in x or 's23 offen' in x or 's24 offen' in x or 'v9, s[52:55], s63' in x) and 'load' in x)]
    if opt.get('nost'): L = [x for x in L if 's[56:59]' not in x]
    L = [x.replace('LTH', str(opt.get('lth', 6))).replace('RTH', str(opt.get('rth', 6))) for x in L]
    L = [x.replace('HSL', str(opt.get('hsl', 2))) for x in L]
    if opt.get('ntx'): L = [x + ' nt' if 'buffer_store' in x and 'sc1' not in x and any(k in x for k in ('s70 offen', 's71 offen', 's74 offen')) else x for x in L]
    if opt.get('nto'): L = [x + ' nt' if 'buffer_store' in x and 'sc1' not in x and any(k in x for k in ('s25 offen', 's26 offen', 's30 offen')) else x for x in L]
    if opt.get('ntw'): L = [x.replace('offen lds', 'offen nt lds') if 's[44:47]' in x or (opt['ntw'] > 1 and 's[40:43]' in x) else x for x in L]
    FL = {1: ' nt', 2: ' sc0', 3: ' sc0 sc1', 4: ' nt sc1'}
    if opt.get('lo'): L = [x.replace(' sc1', FL[opt['lo']]) if 'buffer_load' in x and any(k in x for k in ('s22 offen', 's23 offen', 's24 offen', 's63 offen')) else x for x in L]
    if opt.get('lx'): L = [x.replace(' sc1', FL[opt['lx']]) if 'buffer_load' in x and 'v230' in x else x for x in L]
    L = [x.replace('SELGO', 'L_phase2' if opt.get('yl', 1) else 'L_selok') for x in L]
    L = [y for x in L for y in (([] if not opt.get('ld', 0) else ['    s_cmp_lg_u32 s100, 0', '    s_cselect_b32 s11, 0, s11']) if 'LDEFER' in x else [x])]
    L, added = hz.fix(L)
    k = NAME + '_kernel'
    s = HEAD + '; @launch grid=(256,1,1) block=(512,1,1) lds=%d\n' % LDS_BYTES
    s += '.amdgcn_target "amdgcn-amd-amdhsa--gfx950"\n' + DOC + '.text\n.globl %s\n.p2align 8\n.type %s,@function\n%s:\n' % (k, k, k)
    s += '\n'.join(L) + '\n'
    s += """.section .rodata,"a"
.p2align 6
.amdhsa_kernel %s
  .amdhsa_next_free_vgpr 256
  .amdhsa_next_free_sgpr 102
  .amdhsa_accum_offset 256
  .amdhsa_group_segment_fixed_size 0
  .amdhsa_kernarg_size 88
  .amdhsa_user_sgpr_count 2
  .amdhsa_user_sgpr_kernarg_segment_ptr 1
  .amdhsa_system_sgpr_workgroup_id_x 1
  .amdhsa_float_denorm_mode_32 3
.end_amdhsa_kernel
""" % k
    import subprocess, re, os, tempfile
    d = tempfile.mkdtemp()
    open(d + '/a.s', 'w').write(s.replace('CODE_LAST', '0x1000'))
    subprocess.run(['clang', '-x', 'assembler', '-target', 'amdgcn-amd-amdhsa', '-mcpu=gfx950', '-c', d + '/a.s', '-o', d + '/a.o'], check=True)
    h = subprocess.run(['llvm-objdump', '-h', d + '/a.o'], capture_output=True, text=True).stdout
    size = int(re.search(r'\.text\s+([0-9a-f]+)', h).group(1), 16)
    generate.size = size
    sy = subprocess.run(['llvm-objdump', '-t', d + '/a.o'], capture_output=True, text=True).stdout
    pc = int(re.search(r'^([0-9a-f]+) .* L_pc$', sy, re.M).group(1), 16)
    return s.replace('CODE_LAST', hex((size - pc - 4) & ~3))

if __name__ == '__main__':
    opt = {}
    out = 'cdna_kernels/%s.s' % NAME
    for a in sys.argv[1:]:
        if a.startswith('-o'):
            out = a[2:]
        else:
            kx, vx = a.split('=')
            opt[kx] = int(vx)
    open(out, 'w').write(generate(opt))
    print('wrote', out, 'code bytes', generate.size)
```

```python
import sys
sys.path.insert(0, 'dev')
import hz

NAME = 'parallel_sum__sliding_local_dilated__moe_arch_mod__prompt'
XB, WB, WOB, GB = 2621440, 2457600, 819200, 1966080
WSB = 0xb00000
WS_EPOCH, WS_SEL, WS_YFLAG, WS_STAT, WS_KEY, WS_FLAG = 0x0, 0x100, 0x9000, 0x1000, 0x5000, 0x2b0000
WS_XCH, WS_O, WS_Y, WS_XCB = 0x10000, 0x300000, 0x600000, 0x800000
WS_TS = 0x7c0000
WS_CHK = 0x580000
WS_PRES = 0x2e0000
WS_H = 0x5d0000
WS_XN = 0xe000
SLOT, XPART, DEPTH = 38912, 14336, 3
P = 496
WOIMG = 55552
TAB = 157952
LDS_BYTES = 163840
SPIN = 200000

sXCD, sSLOT, sWAVE, sI, sLL, sL, sROLE, sTAG = 's3', 's4', 's5', 's6', 's7', 's8', 's9', 's10'
pX, pW, pWO, pWR, pG, pU, pD, pOUT, pDBG, pWS = 16, 18, 20, 24, 26, 28, 30, 32, 34, 36
rX, rW, rWO, rWS, rOUT, rU, rD = 40, 44, 48, 52, 56, 60, 64

def sp(n): return 's[%d:%d]' % (n, n + 1)
def sq(n): return 's[%d:%d]' % (n, n + 3)
def vr(n, k=1): return 'v%d' % n if k == 1 else 'v[%d:%d]' % (n, n + k - 1)

class G:
    def __init__(self, opt):
        self.L = []; self.opt = opt; self.nl = 0; self.nts = 0
        self.D = opt.get('depth', 4); self.S0 = (2 - 9) % self.D
    def e(self, s):
        for ln in s.strip('\n').split('\n'):
            ln = ln.strip()
            if not ln: continue
            if ln == 'XNPREP':
                self.xn_prep(); continue
            self.L.append(ln if ln.endswith(':') else '    ' + ln)
    def lab(self, base):
        self.nl += 1
        return 'L_%s_%d' % (base, self.nl)
    def srd(self, r, p, nbytes):
        self.e('s_mov_b32 s%d, s%d\ns_mov_b32 s%d, s%d\ns_mov_b32 s%d, %d\ns_mov_b32 s%d, 0x20000' % (r, p, r + 1, p + 1, r + 2, nbytes, r + 3))
    def ts(self, k, force=False):
        if self.opt.get('lt2') and not force and k not in (0, 9): return
        if self.opt.get('clk'):
            m = {0: (0, 1), 3: (2, 3), 7: (4, 5), 9: (6, 7)}
            if k in m:
                self.e('s_memrealtime s[%d:%d]\ns_memtime s[%d:%d]' % (80 + 2 * m[k][0], 81 + 2 * m[k][0], 80 + 2 * m[k][1], 81 + 2 * m[k][1]))
            return
        if self.opt.get('ts') and not (self.opt.get('ts_off') and k in (4, 5, 6)):
            self.e('%s s[%d:%d]' % ('s_memtime' if self.opt.get('cyc') else 's_memrealtime', 80 + 2 * k, 81 + 2 * k))
    def allreduce16(self, v, op='v_add_f32'):
        for n in (8, 4, 2, 1):
            self.e('%s_dpp v%d, v%d, v%d row_ror:%d row_mask:0xf bank_mask:0xf' % (op, v, v, v, n))
    def tag_load(self):
        self.e('s_load_dword s10, s[36:37], %d' % WS_EPOCH)
    def count_in(self, wave, va=4):
        lab = self.lab('cnt')
        self.e('''s_cmp_lg_u32 s5, %d
        s_cbranch_scc1 %s
        s_lshl_b32 s11, s3, 5
        s_add_u32 s11, s11, s4
        s_lshl_b32 s11, s11, 2
        s_add_u32 s11, s11, %d
        v_mov_b32 v%d, s11
        s_getreg_b32 s11, hwreg(HW_REG_XCC_ID, 0, 4)
        s_lshl_b32 s11, s11, 28
        s_xor_b32 s11, s11, s10
        v_mov_b32 v%d, s11
        s_mov_b64 exec, 1
        buffer_store_dword v%d, v%d, %s, 0 offen sc1
        s_mov_b64 exec, -1
        %s:''' % (wave, lab, WS_PRES, va, va + 1, va + 1, va, sq(rWS), lab))
    def tag_ready(self):
        self.e('s_waitcnt lgkmcnt(0)\ns_add_u32 s10, s10, 1')

    def prologue(self):
        e = self.e
        self.ts(0)
        e("""s_load_dwordx16 s[16:31], s[0:1], 0
        s_load_dwordx4 s[32:35], s[0:1], 64
        s_load_dwordx2 s[36:37], s[0:1], 80
        s_cmp_ge_u32 s2, 256
        s_cbranch_scc1 L_end
        v_lshrrev_b32 v1, 6, v0
        v_and_b32 v0, 63, v0
        s_lshr_b32 s4, s2, 3
        v_readfirstlane_b32 s5, v1
        s_and_b32 s3, s2, 7""")
        e("""s_cmp_lg_u32 s5, 3
        s_cbranch_scc1 L_nopf
        s_getpc_b64 s[12:13]
        L_pc:
        s_and_b32 s14, s4, %d
        s_lshl_b32 s14, s14, 13
        v_lshl_add_u32 v2, v0, 7, s14
        v_min_u32 v2, CODE_LAST, v2
        global_load_dword v255, v2, s[12:13]
        L_nopf:""" % (self.opt.get('pfblocks', 4) - 1))
        if self.opt.get('ts'):
            for k in range(2 if self.opt.get('clk') else 1, 10): e('s_mov_b32 s%d, 0' % (80 + 2 * k))
        e("""s_bfe_u32 s76, s2, 0x10001
        s_and_b32 s77, s2, 1
        s_bfe_u32 s78, s2, 0x10002
        s_mul_i32 s11, s4, 52
        s_lshr_b32 s11, s11, 8
        s_mul_i32 s12, s11, 5
        s_sub_u32 s7, s4, s12
        s_mul_i32 s12, s78, 11
        s_add_u32 s6, s11, s12
        s_mul_i32 s12, s76, 6
        s_add_u32 s6, s6, s12
        s_mul_i32 s12, s77, 5
        s_add_u32 s8, s7, s12
        s_mul_i32 s12, s76, 5
        s_sub_u32 s12, 30, s12
        s_sub_u32 s79, s4, s12
        s_cmp_ge_u32 s4, s12
        s_cbranch_scc1 L_aux
        s_cmp_ge_u32 s5, 4
        s_cbranch_scc1 L_loader
        s_mul_i32 s12, s5, 10
        s_add_u32 s12, s12, s8
        s_cmp_ge_u32 s12, 24
        s_cbranch_scc1 L_w23
        s_mul_i32 s11, s6, 96
        s_lshl_b32 s12, s12, 2
        s_add_u32 s11, s11, s12""")
        e("""L_stats:
        s_setprio 3
        v_lshrrev_b32 v2, 4, v0
        v_add_u32 v2, s11, v2
        v_and_b32 v3, 15, v0
        v_lshlrev_b32 v4, 4, v3
        v_mul_u32_u24 v5, 1280, v2
        v_add_u32 v5, v5, v4
        s_waitcnt lgkmcnt(0)""")
        for j in range(5):
            e('global_load_dwordx4 %s, v4, %s offset:%d' % (vr(40 + 4 * j, 4), sp(pWR), 256 * j))
        self.srd(rX, pX, XB)
        for j in range(5):
            e('buffer_load_dwordx4 %s, v5, %s, 0 offen offset:%d' % (vr(20 + 4 * j, 4), sq(rX), 256 * j))
        e('s_branch L_stats2')

    def att_setup(self):
        self.e("""v_and_b32 v100, 15, v0
        v_lshrrev_b32 v101, 4, v0
        s_lshl_b32 s11, s5, 4
        v_add_u32 v102, s11, v100
        v_mul_u32_u24 v102, %d, v102
        v_lshlrev_b32 v103, 3, v101
        v_mov_b32 v104, 0x08100800
        v_lshrrev_b32 v103, v103, v104
        v_and_b32 v103, 0xff, v103
        v_add_u32 v231, v102, v103
        v_add_u32 v228, %d, v231
        v_lshrrev_b32 v102, 2, v0
        v_add_u32 v102, s11, v102
        v_mul_u32_u24 v102, %d, v102
        v_and_b32 v103, 3, v0
        v_lshl_add_u32 v229, v103, 3, v102
        v_and_b32 v102, 1, v0
        v_lshl_add_u32 v103, v101, 2, v102
        v_lshlrev_b32 v102, 4, v102
        v_mov_b32 v104, 0xffff
        v_lshlrev_b32 v104, v102, v104
        v_cmp_le_u32 vcc, v103, v100
        v_cndmask_b32 v212, 0, v104, vcc
        v_xor_b32 v214, v212, v104
        v_add_u32 v103, 2, v103
        v_cmp_le_u32 vcc, v103, v100
        v_cndmask_b32 v213, 0, v104, vcc
        v_xor_b32 v215, v213, v104""" % (P, 16 * P, P))
        for r in range(16):
            self.e('v_mov_b32 v%d, 0' % (196 + r))

    def att_scalars(self):
        CUR0, CUR1 = 0xf000ff00fff0ffff, 0xc000fc00ffc0fffc
        txt = ("""s_mov_b32 s64, 0xaaaaaaaa
        s_mov_b32 s65, 0xaaaaaaaa
        s_mov_b32 s66, 0x%x
        s_mov_b32 s67, 0x%x
        s_mov_b32 s68, 0x%x
        s_mov_b32 s69, 0x%x
        s_getreg_b32 s74, hwreg(HW_REG_XCC_ID, 0, 4)
        s_lshl_b32 s74, s74, 12
        s_xor_b32 s74, s74, s10
        s_and_b32 s74, s74, 0xffff
        s_and_b32 s75, s74, 0xff
        s_lshr_b32 s39, s74, 8
        s_mul_i32 s12, s6, 10
        s_add_u32 s12, s12, s8
        s_mul_i32 s12, s12, 12
        s_add_u32 s12, s12, s5
        s_lshl_b32 s12, s12, 9
        s_add_u32 s12, s12, %d
        s_mov_b32 s13, 0x7f000000
        s_sub_u32 s14, s12, 3072
        s_cmp_ge_u32 s7, 1
        s_cselect_b32 s70, s12, s13
        s_cselect_b32 s72, s14, s13
        s_cselect_b32 s76, s74, 0
        s_add_u32 s14, s12, 3072
        s_add_u32 s12, s12, 6144
        s_cmp_le_u32 s7, 3
        s_cselect_b32 s71, s14, s13
        s_cselect_b32 s73, s12, s13
        s_cselect_b32 s77, s74, 0
        s_lshl_b32 s11, s7, 3
        s_lshl_b64 s[28:29], -1, s11
        s_lshl_b64 s[28:29], s[28:29], s11
        s_mul_i32 s12, s6, 6
        s_add_u32 s12, s12, s5
        s_lshr_b32 s11, s12, 4
        s_cmp_eq_u32 s11, s3
        s_cselect_b32 s31, 1, 0
        s_mul_i32 s14, s12, 10
        s_add_u32 s14, s14, s8
        s_lshl_b32 s25, s14, 11
        s_add_u32 s25, s25, %d
        s_lshl_b32 s26, s14, 7
        s_add_u32 s26, s26, %d
        s_cmpk_ge_u32 s12, 128
        s_cselect_b32 s25, s13, s25
        s_cselect_b32 s26, s13, s26
        s_mov_b32 s38, 3""" % (CUR0 & 0xffffffff, CUR0 >> 32, CUR1 & 0xffffffff, CUR1 >> 32, WS_XCH, WS_O, WS_FLAG))
        return [x.strip() for x in txt.split('\n')]


    def p2_setup(self):
        self.e("""s_lshl_b32 s60, s3, 2
        s_and_b32 s11, s4, 3
        s_add_u32 s60, s60, s11
        s_lshl_b32 s60, s60, 2
        s_and_b32 s12, s5, 3
        s_add_u32 s60, s60, s12
        s_lshr_b32 s61, s5, 2
        s_xor_b32 s61, s61, s3
        s_and_b32 s61, s61, 1
        s_lshr_b32 s62, s4, 2
        s_mul_i32 s62, s62, 80
        s_mul_i32 s12, s61, 48
        s_add_u32 s62, s62, s12
        s_mov_b32 s38, 0
        v_and_b32 v100, 15, v0
        v_lshrrev_b32 v101, 4, v0
        s_lshl_b32 s12, s60, 4
        v_add_u32 v102, s12, v100
        v_lshlrev_b32 v235, 3, v102
        v_add_u32 v235, %d, v235
        v_mul_u32_u24 v102, 1280, v102
        v_lshl_add_u32 v102, v101, 3, v102
        s_lshl_b32 s12, s62, 1
        v_add_u32 v234, s12, v102
        v_lshlrev_b32 v254, 4, v0
        v_and_b32 v102, 1, v101
        v_mul_u32_u24 v102, 24, v102
        v_add_u32 v233, v234, v102
        v_lshrrev_b32 v102, 2, v0
        v_and_b32 v103, 3, v0
        v_mul_u32_u24 v102, 160, v102
        v_lshl_add_u32 v102, v103, 3, v102
        s_xor_b32 s12, s61, s11
        s_and_b32 s12, s12, 1
        s_mul_i32 s12, s12, 51200
        s_add_u32 s12, s12, %d
        v_add_u32 v244, s12, v102
        v_add_u32 v103, 10240, v244
        v_cmp_gt_u32 vcc, 16, v0
        v_cndmask_b32 v245, v244, v103, vcc
        v_cmp_gt_u32 vcc, 32, v0
        v_cndmask_b32 v246, v244, v103, vcc
        v_cmp_gt_u32 vcc, 48, v0
        v_cndmask_b32 v247, v244, v103, vcc""" % (WS_STAT, WOIMG))
        self.srd(rOUT, pOUT, XB)
        self.e('''s_mul_i32 s62, s61, 0x7f000000
        s_mul_i32 s12, s60, 10
        s_mul_i32 s11, s61, 5
        s_add_u32 s12, s12, s11
        s_lshl_b32 s63, s12, 7
        s_add_u32 s63, s63, %d
        s_and_b32 s11, s5, 3
        s_mul_i32 s11, s11, %d
        s_add_u32 s11, s11, 160
        v_mul_u32_u24 v101, %d, v101
        v_add3_u32 v232, v101, v254, s11
        s_lshl_b32 s22, s12, 11
        s_add_u32 s22, s22, %d
        s_add_u32 s23, s22, 4096
        s_add_u32 s24, s22, 8192''' % (WS_FLAG, 20 * P, P - 256, WS_O))
        self.e('''s_cmp_ge_u32 s60, 36
        s_cselect_b32 s11, 1, 0
        s_cmpk_ge_u32 s60, 66
        s_addc_u32 s11, s11, 0
        s_cmpk_ge_u32 s60, 102
        s_addc_u32 s11, s11, 0
        s_lshl_b32 s11, s11, 1
        s_add_u32 s11, s11, s61
        s_cmp_eq_u32 s11, s3
        s_cselect_b32 s100, %d, 0''' % self.opt.get('lf', 1))

    def p2_loads(self, ret=False):
        ops = ['buffer_load_dwordx2 v[236:237], v235, %s, 0 offen sc1' % sq(rWS)]
        ops += ['buffer_load_dwordx4 v[238:241], v233, %s, 0 offen' % sq(rX), 'buffer_load_dwordx2 v[242:243], v234, %s, s62 offen offset:64' % sq(rX)]
        if ret: return ops
        for x in ops: self.e(x)

    def w23(self):
        e = self.e
        e('L_w23:\ns_waitcnt lgkmcnt(0)')
        self.tag_load()
        self.srd(rX, pX, XB); self.srd(rWS, pWS, WSB)
        self.att_setup(); self.p2_setup()
        self.tag_ready()
        e('s_branch L_gemm')

    def stats(self):
        e = self.e
        X, Wr, F = 20, 40, 60
        e('L_stats2:')
        self.tag_load()
        self.srd(rWS, pWS, WSB)
        self.att_setup(); self.p2_setup()
        e('v_mov_b32 v9, 0x3f803f80\nv_mov_b32 v10, 0\nv_mov_b32 v11, 0\nv_mov_b32 v12, 0\nv_mov_b32 v13, 0')
        e('s_waitcnt vmcnt(0)')
        if self.opt.get('sts') == 1: self.ts(2)
        for d in range(20):
            e('v_dot2c_f32_bf16 v%d, v%d, v9' % (10 + (d & 3), X + d))
        for d in range(10):
            e('v_lshlrev_b32 v%d, 16, v%d\nv_and_b32 v%d, 0xffff0000, v%d' % (F + 2 * d, X + d, F + 2 * d + 1, X + d))
        e('v_add_f32 v10, v10, v11\nv_add_f32 v12, v12, v13\nv_add_f32 v6, v10, v12')
        for k, n in enumerate((8, 4, 2, 1)):
            for d in (10 + 2 * k, 11 + 2 * k):
                e('v_lshlrev_b32 v%d, 16, v%d\nv_and_b32 v%d, 0xffff0000, v%d' % (F + 2 * d, X + d, F + 2 * d + 1, X + d))
            e('v_add_f32_dpp v6, v6, v6 row_ror:%d row_mask:0xf bank_mask:0xf' % n)
        for d in (18, 19):
            e('v_lshlrev_b32 v%d, 16, v%d\nv_and_b32 v%d, 0xffff0000, v%d' % (F + 2 * d, X + d, F + 2 * d + 1, X + d))
        e("""v_mul_f32 v7, 0x3acccccd, v6
        v_cvt_pk_bf16_f32 v8, v7, v7
        v_lshlrev_b32 v6, 16, v8
        v_mov_b32 v10, 0
        v_mov_b32 v11, 0
        v_mov_b32 v12, 0
        v_mov_b32 v13, 0""")
        for r in range(40):
            e('v_sub_f32 v%d, v%d, v6' % (F + r, F + r))
        for r in range(40):
            e('v_fmac_f32 v%d, v%d, v%d' % (10 + (r & 3), F + r, F + r))
        e('v_sub_f32 v7, v7, v6\nv_add_f32 v10, v10, v11\nv_add_f32 v12, v12, v13\nv_add_f32 v14, v10, v12')
        e('v_mov_b32 v10, 0\nv_mov_b32 v11, 0')
        for k, n in enumerate((8, 4, 2, 1)):
            for d in range(5 * k, 5 * k + 5):
                e('v_cvt_pk_bf16_f32 v%d, v%d, v%d' % (X + d, F + 2 * d, F + 2 * d + 1))
            e('v_add_f32_dpp v14, v14, v14 row_ror:%d row_mask:0xf bank_mask:0xf' % n)
        e('s_waitcnt vmcnt(0)')
        for d in range(20):
            e('v_dot2c_f32_bf16 v%d, v%d, v%d' % (10 + (d & 1), X + d, Wr + d))
        e("""v_mul_f32 v14, 0x3acccccd, v14
        v_fma_f32 v14, -v7, v7, v14
        v_max_f32 v14, 0, v14
        v_cvt_pk_bf16_f32 v14, v14, v14
        v_add_f32 v10, v10, v11
        v_and_b32 v14, 0xffff0000, v14
        v_add_f32 v14, 0x3727c5ac, v14
        v_add_f32_dpp v10, v10, v10 row_ror:8 row_mask:0xf bank_mask:0xf
        v_cvt_pk_bf16_f32 v14, v14, v14
        v_and_b32 v14, 0xffff0000, v14
        v_add_f32_dpp v10, v10, v10 row_ror:4 row_mask:0xf bank_mask:0xf
        v_sqrt_f32 v14, v14
        v_and_b32 v8, 0xffff, v8
        v_add_f32_dpp v10, v10, v10 row_ror:2 row_mask:0xf bank_mask:0xf
        v_cvt_pk_bf16_f32 v14, v14, v14
        v_and_b32 v14, 0xffff0000, v14
        v_add_f32_dpp v10, v10, v10 row_ror:1 row_mask:0xf bank_mask:0xf
        v_rcp_f32 v12, v14
        v_or_b32 v16, v8, v14
        v_mul_f32 v10, v10, v12""")
        e("""v_cvt_pk_bf16_f32 v10, v10, v10
        v_bfe_i32 v11, v10, 15, 1
        v_or_b32 v11, 0x8000, v11
        v_xor_b32 v10, v10, v11
        v_lshlrev_b32 v10, 16, v10
        v_sub_u32 v11, 2047, v2
        v_or_b32 v18, v10, v11
        v_cmp_eq_u32 vcc, 0, v3
        v_cndmask_b32 v16, v18, v16, vcc
        v_lshlrev_b32 v5, 14, v3
        v_lshl_add_u32 v5, v2, 3, v5
        s_movk_i32 s14, 2048
        v_cmp_gt_u32 vcc, 2, v3
        v_cmp_gt_u32 s[12:13], s14, v2
        s_and_b64 s[70:71], vcc, s[12:13]""")
        if self.opt.get('sts') == 2: self.ts(2)
        self.tag_ready()
        if self.opt.get('sts') == 3: self.ts(2)
        e("""v_mov_b32 v17, s10
        s_mov_b32 s11, %d
        s_mov_b64 exec, s[70:71]
        s_cbranch_execz L_stend
        buffer_store_dwordx2 v[16:17], v5, %s, s11 offen sc1
        L_stend:
        s_mov_b64 exec, -1""" % (WS_STAT, sq(rWS)))
        assert WS_KEY - WS_STAT == 1 << 14

    def wo_setup(self, vb):
        e = self.e
        self.srd(rWO, pWO, WOB)
        e('''s_lshr_b32 s11, s4, 2
        s_mul_i32 s11, s11, 160
        s_and_b32 s70, s4, 1
        s_mul_i32 s70, s70, 10''')
        for j in range(5):
            e('''v_add_u32 v2, %d, v0
            v_mul_u32_u24 v3, 6554, v2
            v_lshrrev_b32 v3, 16, v3
            v_mul_u32_u24 v4, 10, v3
            v_sub_u32 v4, v2, v4
            v_mul_u32_u24 v3, 1280, v3
            v_lshl_add_u32 v3, v4, 4, v3
            v_add_u32 v%d, s11, v3''' % (64 * j, vb + j))
    def wo_block(self, vb, spos):
        e = self.e
        e('''s_add_u32 s12, %s, s70
        s_cmp_ge_u32 s12, 20
        s_cselect_b32 s13, 20, 0
        s_sub_u32 s12, s12, s13
        s_mul_i32 s12, s12, 40960
        s_mul_i32 s13, %s, 5120
        s_add_u32 s13, s13, %d''' % (spos, spos, WOIMG))
        for j in range(5):
            e('s_add_u32 m0, s13, %d' % (1024 * j))
            e('buffer_load_dwordx4 v%d, %s, s12 offen lds' % (vb + j, sq(rWO)))

    def loader(self):
        e = self.e
        e('L_loader:')
        RA, RB, RM, RS = (self.opt.get(k, d) for k, d in (('ra', 1), ('rb', 1), ('rm', 4), ('rs', 3)))
        assert all((x * (65536 // RM + 1)) >> 16 == x // RM for x in range(200)) and (RM - 1) * RS < 10
        e('''s_sub_u32 s14, s5, 4
        s_and_b32 s15, s14, 1
        v_lshrrev_b32 v2, 3, v0
        v_and_b32 v3, 7, v0
        v_lshrrev_b32 v4, 4, v0
        s_lshl_b32 s11, s15, 2
        v_add_u32 v5, s11, v4
        v_xor_b32 v5, v3, v5
        s_mul_i32 s11, s6, 96
        s_lshl_b32 s12, s14, 3
        s_add_u32 s11, s11, s12
        s_sub_u32 s11, s11, 16
        s_mul_i32 s11, s11, 1280
        v_mul_u32_u24 v6, 1280, v2
        v_lshl_add_u32 v6, v5, 4, v6
        v_add_u32 v10, s11, v6
        v_add_u32 v11, 40960, v10
        v_add_u32 v12, 0x14000, v10
        v_add_u32 v13, 0x1e000, v10
        v_and_b32 v4, 1, v4
        v_lshl_or_b32 v4, s15, 1, v4
        v_lshlrev_b32 v4, 1, v4
        v_xor_b32 v4, v3, v4
        v_add_u32 v2, s12, v2
        v_mul_u32_u24 v2, 3840, v2
        v_lshl_add_u32 v2, v4, 4, v2
        s_lshl_b32 s11, s8, 7
        v_add_u32 v14, s11, v2
        s_mul_i32 s68, s7, %d
        s_mul_i32 s11, s6, %d
        s_add_u32 s68, s68, s11
        s_mul_i32 s11, s68, %d
        s_lshr_b32 s11, s11, 16
        s_mul_i32 s11, s11, %d
        s_sub_u32 s68, s68, s11
        s_mul_i32 s68, s68, %d
        s_lshl_b32 s69, s14, 10
        s_cmp_eq_u32 s14, 0
        s_cselect_b32 s72, 0xffff0000, -1
        s_mov_b32 s73, -1
        s_waitcnt lgkmcnt(0)''' % (RA, RB, 65536 // RM + 1, RM, RS))
        self.srd(rX, pX, XB); self.srd(rW, pW, WB)
        self.ts(1)
        def issue(c, parts=(0, 1, 2)):
            base = ((c + self.S0) % self.D) * SLOT
            if 0 in parts:
                sk = self.lab('xs')
                e('s_lshl_b32 s11, s68, 7\ns_mul_i32 s39, s68, 245760')
                e('s_add_u32 m0, s69, %d\ns_mov_b64 exec, s[72:73]' % base)
                e('buffer_load_dwordx4 v10, %s, s11 offen lds\ns_mov_b64 exec, -1' % sq(rX))
                for a in (1, 2):
                    e('s_add_u32 m0, s69, %d' % (base + a * 4096))
                    e('buffer_load_dwordx4 v%d, %s, s11 offen lds' % (10 + a, sq(rX)))
                e('s_cmp_ge_u32 s14, 2\ns_cbranch_scc1 %s' % sk)
                e('s_add_u32 m0, s69, %d' % (base + 3 * 4096))
                e('buffer_load_dwordx4 v13, %s, s11 offen lds' % sq(rX))
                e('%s:' % sk)
                e('s_add_u32 s68, s68, 1\ns_cmp_eq_u32 s68, 10\ns_cselect_b32 s68, 0, s68')
            for hb in range(2):
                if hb + 1 in parts:
                    for y in range(3):
                        e('s_add_u32 m0, s69, %d\ns_add_u32 s13, s39, %d' % (base + XPART + y * 8192 + hb * 4096, y * 1280 + hb * 122880))
                        e('buffer_load_dwordx4 v14, %s, s13 offen lds' % sq(rW))
        issue(0)
        e('s_branch L_loader2')
        self.loader_rest = lambda: self.loader2(issue)

    def loader2(self, issue):
        e = self.e
        e('L_loader2:')
        self.tag_load()
        self.srd(rWS, pWS, WSB)
        self.wo_setup(20)
        e('''s_mul_i32 s11, s6, 96
        s_lshl_b32 s12, s14, 6
        s_add_u32 s11, s11, s12
        s_sub_u32 s11, s11, 16
        v_add_u32 v26, s11, v0
        v_lshlrev_b32 v27, 3, v26
        v_add_u32 v27, %d, v27
        v_add_u32 v28, s12, v0''' % WS_STAT)
        self.att_setup(); self.p2_setup()
        e('''v_lshrrev_b32 v3, 4, v28
        v_subrev_u32 v4, 96, v28
        v_cmp_gt_u32 vcc, 96, v28
        v_cndmask_b32 v3, v4, v3, vcc
        s_mul_i32 s13, s6, 6
        v_add_u32 v4, s13, v3
        v_mul_u32_u24 v5, 10, v4
        v_add_u32 v5, s8, v5
        v_and_b32 v36, 15, v28
        v_lshl_add_u32 v36, v5, 4, v36
        v_add_u32 v36, %d, v36
        v_add_u32 v5, %d, v5
        v_cndmask_b32 v36, v5, v36, vcc
        v_lshrrev_b32 v4, 4, v4
        v_cmp_eq_u32 vcc, s3, v4
        v_cmp_gt_u32 s[12:13], 6, v3
        s_and_b64 vcc, vcc, s[12:13]
        v_mov_b32 v37, 0xfe0000
        v_cndmask_b32 v36, v37, v36, vcc
        s_mul_i32 s11, s6, 10
        s_add_u32 s11, s11, s8
        s_mul_i32 s11, s11, 48
        s_add_u32 s11, s11, %d
        v_add_u32 v5, s11, v28
        s_cmp_eq_u32 s7, 0
        s_cselect_b32 s12, 24, 0
        s_add_u32 s12, s12, 128
        s_cmp_eq_u32 s7, 4
        s_cselect_b32 s13, 24, 48
        s_add_u32 s13, s13, 128
        v_cmp_le_u32 vcc, s12, v28
        v_cndmask_b32 v36, v36, v5, vcc
        v_cmp_le_u32 vcc, s13, v28
        v_cndmask_b32 v36, v36, v37, vcc
        v_lshlrev_b32 v36, 7, v36''' % (WS_O // 128, WS_FLAG // 128, WS_XCH // 128 - 128))
        INI = self.opt.get('ini', 6)
        issue(1, tuple(range(INI - 3)))
        self.tag_ready()
        assert WOIMG + 12 * 5120 >= 3 * SLOT and WOIMG + 4 * 5120 <= 2 * SLOT
        WOA, WOB_, STB = self.opt.get('woa', 7), self.opt.get('wob', 9), self.opt.get('stb', 5)
        assert self.D == 3 or (min(WOA, WOB_) >= 7 and 4 * SLOT <= TAB and STB + self.D - 1 <= 8)
        TBL = STB + self.opt.get('tbl', self.D - 1); seq = [('c', k) for k in range(INI)]; nxt = INI
        extra = {}
        for c in range(10):
            if c: seq.append(('x', extra.get(c - 1, 0)))
            need = [('c', 3 * c + 2)] + ([('t', 2)] if c == TBL else [])
            n = min(sum(3 if k == 'c' else v for k, v in seq[seq.index(nd) + 1:]) for nd in need)
            e('s_waitcnt vmcnt(%d)' % n)
            if self.opt.get('lts') and c in (0, 1, 2): self.ts(4 + c)
            e('s_barrier')
            if c == 0: self.ts(2)
            if self.opt.get('lt2') and 0 <= c - self.opt['lt2'] + 1 < 8: self.ts(c - self.opt['lt2'] + 2, True)
            ahead = min(3, max(0, (c - self.opt.get('deep', 4) + 1) * self.opt.get('ramp', 1))) if self.D == 4 else 0
            if c < self.opt.get('lag', 0): ahead -= 6 - INI
            while nxt < 30 and nxt < 3 * (c + 3) + ahead:
                issue(nxt // 3, (nxt % 3,)); seq.append(('c', nxt)); nxt += 1
            if c == 9: self.zero_fill()
            if c == self.opt.get('clm', 6):
                e('buffer_load_dword v37, v36, %s, 0 offen' % sq(rWS))
                extra[c] = extra.get(c, 0) + 1
            if c == STB:
                e('''v_and_b32 v34, 31, v0
                v_lshlrev_b32 v34, 2, v34
                s_lshl_b32 s11, s3, 7
                s_add_u32 s11, s11, %d
                buffer_load_dword v35, v34, %s, s11 offen sc1''' % (WS_PRES, sq(rWS)))
                e('buffer_load_dwordx2 v[30:31], v27, %s, 0 offen sc1' % sq(rWS)); assert c not in extra; seq.append(('t', 2))
            if self.opt.get('nowo'):
                pass
            elif c == WOA:
                e('s_and_b32 s71, s4, 2\ns_lshl_b32 s71, s71, 1\ns_add_u32 s71, s71, s14\ns_add_u32 s71, s71, 12'); self.wo_block(20, 's71'); extra[c] = extra.get(c, 0) + 5
            elif c == WOB_:
                e('s_and_b32 s71, s4, 2\ns_lshl_b32 s71, s71, 1\ns_sub_u32 s71, s14, s71\ns_add_u32 s71, s71, 16'); self.wo_block(20, 's71'); extra[c] = extra.get(c, 0) + 5
            if c == TBL:
                e('''s_mov_b32 s15, %d
                s_movk_i32 s75, 2048
                v_cmp_gt_u32 s[76:77], s75, v26
                L_tchk:
                v_cmp_ne_u32 vcc, s10, v31
                s_and_b64 vcc, vcc, s[76:77]
                s_cmp_eq_u64 vcc, 0
                s_cbranch_scc1 L_tok
                s_sub_u32 s15, s15, 1
                s_cmp_eq_u32 s15, 0
                s_cbranch_scc1 L_tok
                s_sleep 4
                buffer_load_dwordx2 v[30:31], v27, %s, 0 offen sc1
                s_waitcnt vmcnt(0)
                s_branch L_tchk
                L_tok:
                v_mov_b32 v32, 0x3f800000
                v_cndmask_b32 v30, v32, v30, s[76:77]
                v_and_b32 v32, 0xffff0000, v30
                v_rcp_f32 v32, v32
                v_lshlrev_b32 v30, 16, v30
                v_mul_f32 v33, -v30, v32
                v_lshlrev_b32 v29, 3, v28
                v_add_u32 v29, %d, v29
                v_cmp_le_u32 vcc, 112, v28
                v_cndmask_b32 v32, v32, 0, vcc
                v_cndmask_b32 v33, v33, 0, vcc
                s_getreg_b32 s11, hwreg(HW_REG_XCC_ID, 0, 4)
                s_lshl_b32 s11, s11, 28
                s_xor_b32 s11, s11, s10
                v_cmp_ne_u32 vcc, s11, v35
                s_cmp_eq_u64 vcc, 0
                s_cselect_b32 s9, COLOC, 0
                v_mov_b32 v30, s9
                v_cmp_eq_u32 vcc, 114, v28
                v_cndmask_b32 v32, v32, v30, vcc
                v_cmp_ge_u32 vcc, 114, v28
                s_and_b64 exec, exec, vcc
                ds_write_b64 v29, v[32:33]
                s_mov_b64 exec, -1
                s_waitcnt lgkmcnt(0)''' % (SPIN, sq(rWS), TAB))
        self.ts(3)
        e('s_cmp_ge_u32 s14, 2\ns_cbranch_scc1 L_w67')
        self.p2_loads()
        for x in self.att_scalars(): e(x)
        e('s_branch L_img2\nL_w67:')
        e('s_mov_b32 s38, 2\ns_cmp_eq_u32 s14, 3\ns_cbranch_scc1 L_w7')
        if not self.opt.get('nowo'):
            e('s_mov_b32 s71, 0\nL_w6:')
            self.wo_block(20, 's71')
            if self.opt.get('thr', 63) < 63: e('s_waitcnt vmcnt(%d)' % self.opt.get('thr', 63))
            e('s_add_u32 s71, s71, 1\ns_cmp_lt_u32 s71, 4\ns_cbranch_scc1 L_w6')
        e('''s_branch L_p2wo
        L_w7:
        s_mov_b32 s15, %d
        L_w7a:
        ds_read_b32 v3, v8 offset:8
        s_waitcnt lgkmcnt(0)
        v_readfirstlane_b32 s11, v3
        s_cmp_ge_u32 s11, 4
        s_cbranch_scc1 L_w7b
        s_sleep 1
        s_sub_u32 s15, s15, 1
        s_cmp_lg_u32 s15, 0
        s_cbranch_scc1 L_w7a
        L_w7b:''' % (SPIN * 4))
        if not self.opt.get('nowo'):
            e('s_mov_b32 s71, 4\nL_w7c:')
            self.wo_block(20, 's71')
            if self.opt.get('thr', 63) < 63: e('s_waitcnt vmcnt(%d)' % self.opt.get('thr', 63))
            e('s_add_u32 s71, s71, 1\ns_cmp_lt_u32 s71, 12\ns_cbranch_scc1 L_w7c')
        e('s_branch L_p2wo')

    def zero_fill(self):
        e = self.e
        e('''v_lshrrev_b32 v3, 1, v28
        v_and_b32 v4, 1, v28
        v_mul_u32_u24 v3, %d, v3
        v_mul_u32_u24 v4, 160, v4
        v_add_u32 v3, v3, v4
        v_mov_b32 v4, 0
        v_mov_b32 v5, 0
        v_cmp_gt_u32 vcc, 224, v28
        s_and_b64 exec, exec, vcc''' % P)
        for z in range(4):
            e('''s_cmp_gt_u32 s7, %d
            s_cselect_b32 s11, %d, %d
            v_add_u32 v6, s11, v3
            ds_write_b64 v6, v[4:5]''' % (z, 8 * z, 8 * (16 + z)))
        e('''s_mov_b64 exec, -1
        v_mov_b32 v8, %d
        v_mov_b32 v3, 1
        s_waitcnt lgkmcnt(0)
        s_mov_b64 exec, 1
        ds_add_u32 v8, v3 offset:12
        s_mov_b64 exec, -1''' % (TAB + 896))

    def gemm1(self):
        e = self.e
        ACC, BA, BB, ST = 16, 100, 140, 180
        def acc(y, T): return ACC + (y * 7 + T) * 4
        e('''L_gemm:
        s_setprio 3
        s_cmp_lg_u32 s5, 3
        s_cbranch_scc1 L_noones
        v_mov_b32 v8, 0x3f803f80
        v_mov_b32 v9, v8
        v_mov_b32 v10, v8
        v_mov_b32 v11, v8
        v_and_b32 v2, 15, v0
        v_lshlrev_b32 v2, 4, v2
        v_lshrrev_b32 v3, 4, v0
        v_min_u32 v3, %d, v3
        v_mul_u32_u24 v3, %d, v3
        v_add_u32 v2, v2, v3
        ds_write_b128 v2, v[8:11]
        s_waitcnt lgkmcnt(0)
        L_noones:''' % (self.D - 1, SLOT))
        e('''v_and_b32 v1, 15, v0
        v_lshrrev_b32 v2, 4, v0
        v_lshrrev_b32 v3, 1, v1
        v_xor_b32 v3, v2, v3
        v_lshlrev_b32 v3, 4, v3
        v_lshl_add_u32 v8, v1, 7, v3
        v_xor_b32 v9, 64, v8
        v_lshrrev_b32 v3, 2, v1
        v_and_b32 v14, 3, v1
        v_lshrrev_b32 v15, 1, v3
        v_and_b32 v10, 1, v2
        v_lshl_or_b32 v15, v10, 1, v15
        v_xor_b32 v15, s5, v15
        v_lshl_add_u32 v3, v2, 3, v3
        v_lshlrev_b32 v3, 7, v3
        v_lshl_add_u32 v3, v15, 5, v3
        v_lshl_add_u32 v3, v14, 3, v3
        v_add_u32 v10, %d, v3
        v_add_u32 v11, SL0, v8
        v_add_u32 v12, SL0, v9
        v_add_u32 v13, SL0, v10
        v_lshlrev_b32 v14, 3, v1
        v_add_u32 v14, %d, v14
        s_lshl_b32 s11, s5, 2
        s_add_u32 s11, s11, s7
        v_add_u32 v3, s11, v2
        v_mul_u32_u24 v15, %d, v1
        v_lshl_add_u32 v15, v3, 3, v15
        v_mov_b32 v6, %d
        v_mov_b32 v7, 1
        s_mov_b32 s78, 1
        s_mov_b32 s79, SL1'''.replace('SL0', str(self.S0 * SLOT)).replace('SL1', str((self.S0 + 1) % self.D * SLOT)) % (XPART, TAB, P, TAB + 896))
        assert 2 * SLOT == 77824
        def reads(buf, t):
            ops = []
            for y in range(3):
                for hh in range(2):
                    ops.append('ds_read_b64_tr_b16 %s, v13 offset:%d' % (vr(buf + 28 + 4 * y + 2 * hh, 2), y * 8192 + (32 * t + 4 * hh) * 128))
            for T in range(7):
                ops.append('ds_read_b128 %s, v%d offset:%d' % (vr(buf + 4 * T, 4), 11 + t, T * 2048))
            return [] if self.opt.get('noread') else ops
        def mf(buf, y, T, first=False):
            return 'v_mfma_f32_16x16x32_bf16 %s, %s, %s, %s' % (vr(acc(y, T), 4), vr(buf + 28 + 4 * y, 4), vr(buf + 4 * T, 4), '0' if first else vr(acc(y, T), 4))
        def half(rbuf, t, mbuf, tail=(), first=False):
            R = reads(rbuf, t) + list(tail); M = [mf(mbuf, y, T, first) for T in range(7) for y in range(3)]
            X = []
            if self.opt.get('csv'):
                M[0] = None
                if self.opt['csv'] == 1:
                    for r in range(4):
                        X += ['v_lshlrev_b32 v194, 16, v%d' % (mbuf + 28 + r), 'v_and_b32 v195, 0xffff0000, v%d' % (mbuf + 28 + r), 'v_add_f32 v16, v16, v194', 'v_add_f32 v17, v17, v195']
            for k in range(21):
                if k == 20: e('s_waitcnt lgkmcnt(0)')
                if not self.opt.get('nomfma') and M[k]: e(M[k])
                if k < len(R): e(R[k])
                if X and k >= 3: e(X.pop(0))
            assert len(R) <= 20
        nxt = ['v_add_u32 v11, s79, v8\nv_add_u32 v12, s79, v9', 'v_add_u32 v13, s79, v10\ns_add_u32 s79, s79, %d' % SLOT,
               's_cmp_eq_u32 s79, %d\ns_cselect_b32 s79, 0, s79' % (SLOT * self.D)]
        if self.opt.get('clm', 6) == -1:
            e('''s_mul_i32 s11, s6, 10
            s_add_u32 s11, s11, s8
            s_lshl_b32 s11, s11, 2
            s_add_u32 s11, s11, s5
            s_mul_i32 s11, s11, 3072
            s_add_u32 s11, s11, %d
            v_mov_b32 v216, 0
            v_mov_b32 v217, 0
            v_xor_b32 v218, s10, 1
            v_mov_b32 v219, 0''' % WS_XCH)
            for k in range(3):
                e('buffer_store_dwordx4 v[216:219], v254, %s, s11 offen offset:%d' % (sq(rWS), 1024 * k))
        self.ts(1)
        e('s_barrier')
        for x in reads(BA, 0): e(x)
        self.count_in(3)
        if self.opt.get('pre2'):
            e('v_mov_b32 v216, 0\nv_mov_b32 v217, 0\nv_xor_b32 v218, s10, 1\nv_mov_b32 v219, 0')
            for k in range(3):
                e('''s_mul_i32 s11, s5, 3
                s_add_u32 s11, s11, %d
                s_lshr_b32 s12, s11, 1
                s_and_b32 s11, s11, 1
                s_mul_i32 s13, s6, 6
                s_add_u32 s12, s12, s13
                s_min_u32 s12, s12, 127
                s_mul_i32 s12, s12, 10
                s_add_u32 s12, s12, s8
                s_lshl_b32 s12, s12, 1
                s_add_u32 s12, s12, s11
                s_lshl_b32 s12, s12, 10
                s_add_u32 s12, s12, %d
                buffer_store_dwordx4 v[216:219], v254, %s, s12 offen sc1''' % (k, WS_O, sq(rWS)))
        e('s_waitcnt lgkmcnt(0)')
        half(BB, 1, BA, nxt, True)
        e('L_kloop:\ns_barrier')
        half(BA, 0, BB, ['s_add_u32 s78, s78, 1\ns_cmp_ge_u32 s78, 10'])
        e('s_cbranch_scc1 L_ktail')
        half(BB, 1, BA, nxt)
        e('s_branch L_kloop\nL_ktail:')
        CS = (BA + 28, BA + 32, BB + 28)
        MR = (194, 216, 218, 220, 222, 224, 226)
        def fixt(y, T, pk):
            a = acc(y, T); st = vr(ST + 2 * T, 2); ops = []
            for h in range(2):
                ops.append('v_pk_mul_f32 %s, %s, %s op_sel_hi:[1,0]' % (vr(a + 2 * h, 2), vr(a + 2 * h, 2), st))
            for h in range(2):
                ops.append('v_pk_fma_f32 %s, %s, %s, %s op_sel_hi:[1,0,1]' % (vr(a + 2 * h, 2), vr(CS[y] + 2 * h, 2), vr(MR[T], 2), vr(a + 2 * h, 2)))
            ops.append('v_cvt_pk_bf16_f32 v%d, v%d, v%d' % (a, a, a + 1))
            ops.append('v_cvt_pk_bf16_f32 v%d, v%d, v%d' % (a + 1, a + 2, a + 3))
            ops.append('ds_write_b64 v15, %s offset:%d' % (vr(a, 2), T * 16 * P + y * 160))
            return ops
        def csum(y):
            return ['v_mov_b32_dpp v%d, v%d row_newbcast:0 row_mask:0xf bank_mask:0xf' % (CS[y] + r, acc(y, 0) + r) for r in range(4)]
        self.fixv = lambda: csum(2) + [x for T in range(7) for x in fixt(2, T, True)]
        R = reads(BB, 1)
        R = R[:2] + R[6:] + R[2:6] + ['ds_read_b64 %s, v14 offset:%d' % (vr(ST + 2 * T, 2), 128 * T) for T in range(7)]
        M = [mf(bf, y, T) for bf, y in ((BA, 0), (BA, 1), (BB, 0), (BB, 1), (BA, 2), (BB, 2)) for T in range(7)]
        units = [('c', 0, 0)] + [('t', 0, T) for T in range(1, 7)] + [('c', 1, 0)] + [('t', 1, T) for T in range(7)]
        SC = self.att_scalars(); assert len(SC) <= 56
        PL = self.p2_loads(True)
        MV = ['v_mov_b32 v%d, v%d' % (MR[T], ST + 2 * T + 1) for T in (1, 2, 3, 4, 5, 6, 0)]
        q = []; FILL = self.opt.get('fill', 4)
        for k in range(42):
            if k == 14: e('s_waitcnt lgkmcnt(11)')
            if k == 17:
                e('s_waitcnt lgkmcnt(0)\ns_mov_b64 exec, 1\nds_add_u32 v6, v7 offset:8\ns_mov_b64 exec, -1')
            e(M[k])
            if k < 10:
                e(R[2 * k]); e(R[2 * k + 1])
            if 10 <= k < 13: e(PL[k - 10])
            if k < 14:
                for _ in range(4):
                    if SC: e(SC.pop(0))
            if k >= 17 and MV: e(MV.pop(0))
            if k >= 18:
                for _ in range(FILL):
                    if not q and units:
                        u = units.pop(0)
                        assert k >= 14 + 7 * u[1] + u[2]
                        q = csum(u[1]) if u[0] == 'c' else fixt(u[1], u[2], False)
                    if q: e(q.pop(0))
        self.ts(3)
        for x in q: e(x)
        first = True
        for u in units:
            for x in (csum(u[1]) if u[0] == 'c' else fixt(u[1], u[2], not first)): e(x)
            first = False

    def attention(self):
        e = self.e
        e('L_img:')
        e('''s_mov_b64 exec, 1
        ds_add_u32 v6, v7 offset:12
        s_mov_b64 exec, -1
        L_img2:
        v_mov_b32 v8, %d
        s_mov_b32 s15, %d
        L_imw:
        ds_read_b32 v3, v8 offset:12
        s_waitcnt lgkmcnt(0)
        v_readfirstlane_b32 s11, v3
        s_cmp_ge_u32 s11, 8
        s_cbranch_scc1 L_imok
        IMSLEEP
        s_sub_u32 s15, s15, 1
        s_cmp_lg_u32 s15, 0
        s_cbranch_scc1 L_imw
        L_imok:
        s_setprio 3''' % (TAB + 896, SPIN * 8))
        if self.opt.get('lts'): self.opt['ts_off'] = 1
        self.ts(4)
        if self.opt.get('dump_img'):
            e("""s_mul_i32 s11, s6, 10
            s_add_u32 s11, s11, s8
            s_mul_i32 s11, s11, 0x10000
            s_add_u32 s11, s11, 0x1000000
            s_lshl_b32 s12, s5, 10
            v_lshlrev_b32 v2, 4, v0
            v_add_u32 v2, s12, v2
            s_mov_b32 s54, 0x10000000""")
            for j in range(10):
                e("""ds_read_b128 v[100:103], v2
                s_waitcnt lgkmcnt(0)
                buffer_store_dwordx4 v[100:103], v2, %s, s11 offen
                v_add_u32 v2, 6144, v2
                s_waitcnt vmcnt(0)""" % sq(rWS))
        Qr, Kr, Vr, Sr, Er, Xr, Pr, Rr = 196, 16, 48, 100, 132, 148, 72, 88
        def qrd(sgs):
            e('s_mov_b32 exec_hi, 0')
            for sg in sgs: e('ds_read_b64 %s, v228 offset:%d' % (vr(Qr + 4 * sg, 2), 40 * sg))
            e('s_mov_b32 exec_hi, 0xffff')
            for sg in sgs: e('ds_read_b64 %s, v228 offset:%d' % (vr(Qr + 4 * sg + 2, 2), 40 * sg + 16))
            e('s_mov_b64 exec, -1')
        def krd(sg):
            for h, av in enumerate((228, 231)):
                for u in range(2):
                    e('ds_read_b64 %s, v%d offset:%d' % (vr(Kr + 8 * sg + 4 * h + 2 * u, 2), av, 160 + 40 * sg + 16 * u))
        qrd((0, 3)); krd(0); krd(3)
        e('v_mov_b32 v9, 0xffffff00\nv_lshlrev_b32 v230, 3, v0\nv_mov_b32 v10, 0x0c0c0400')
        def smf(sg):
            for h in range(2):
                e('v_mfma_f32_16x16x32_bf16 %s, %s, %s, 0' % (vr(Sr + 8 * sg + 4 * h, 4), vr(Kr + 8 * sg + 4 * h, 4), vr(Qr + 4 * sg, 4)))
        def sel(sg):
            c = Sr + 8 * sg; p = c + 4
            e('v_cndmask_b32 v%d, v%d, v%d, s[64:65]' % (c, c, c + 1)); e('v_cndmask_b32 v%d, v%d, v%d, s[64:65]' % (c + 2, c + 2, c + 3))
            e('v_cndmask_b32 v%d, v%d, v%d, s[64:65]' % (p, p, p + 1)); e('v_cndmask_b32 v%d, v%d, v%d, s[64:65]' % (p + 2, p + 2, p + 3))
            e('v_cndmask_b32 v%d, v%d, v%d, s[66:67]' % (Er + 4 * sg, p, c)); e('v_cndmask_b32 v%d, v%d, v%d, s[68:69]' % (Er + 4 * sg + 1, p + 2, c + 2))
        vrd = []
        for j in range(5):
            vrd.append('ds_read_b64_tr_b16 %s, v229 offset:%d' % (vr(Vr + 4 * j, 2), 16 * P + 320 + 32 * j))
            vrd.append('ds_read_b64_tr_b16 %s, v229 offset:%d' % (vr(Vr + 4 * j + 2, 2), 320 + 32 * j))
        e('s_waitcnt lgkmcnt(4)'); smf(0)
        e('s_waitcnt lgkmcnt(0)'); smf(3)
        qrd((1, 2)); krd(1)
        sel(0)
        e('v_and_or_b32 v%d, v%d, v9, s75\nv_and_or_b32 v%d, v%d, v9, s39\nbuffer_store_dwordx2 %s, v230, %s, s70 offen' % (Er + 2, Er + 0, Er + 3, Er + 1, vr(Er + 2, 2), sq(rWS)))
        sel(3)
        e('v_and_or_b32 v%d, v%d, v9, s75\nv_and_or_b32 v%d, v%d, v9, s39\nbuffer_store_dwordx2 %s, v230, %s, s71 offen' % (Er + 14, Er + 12, Er + 15, Er + 13, vr(Er + 14, 2), sq(rWS)))
        self.ts(5)
        krd(2)
        e('s_waitcnt lgkmcnt(4)'); smf(1)
        e('s_waitcnt lgkmcnt(0)'); smf(2)
        sel(1); sel(2)
        xl = ['buffer_load_dwordx2 %s, v230, %s, s%d offen sc1' % (vr(Xr + 4 * k, 2), sq(rWS), 72 + k) for k in range(2)]
        XW = self.opt.get('xw', 1)
        e('v_mov_b32 v12, 0x3ea52b5c')
        e('s_cmp_ge_u32 s5, 4\ns_cbranch_scc1 L_nov')
        FV = self.fixv()
        for n, x in enumerate(FV):
            if n == 4 + 7 * XW:
                for y in xl: e(y)
            e(x)
        e('s_mov_b64 exec, 1\nds_add_u32 v6, v7\ns_mov_b64 exec, -1\n%s\ns_branch L_nov2\nL_nov:\n%s' % (('s_setprio 2', 's_setprio 1') if self.opt.get('ap', 1) else ('s_nop 0', 's_nop 0')))
        for y in xl: e(y)
        XP = self.opt.get('xp', 1)
        if XP:
            e('s_waitcnt vmcnt(4)'); self.xn_prep(); e('s_setprio 3\nL_nov2:')
        else:
            e('L_nov2:\ns_waitcnt vmcnt(4)'); self.xn_prep()
        if self.opt.get('ats'): self.ts(1)
        e('s_waitcnt vmcnt(0)')
        if self.opt.get('ats') == 1: self.ts(3)
        for k in range(2):
            e("""v_perm_b32 v3, v%d, v%d, v10
            v_cmp_ne_u32 vcc, s%d, v3
            s_cmp_lg_u64 vcc, 0
            s_cbranch_scc1 L_xretry%d
            L_xok%d:""" % (Xr + 4 * k + 1, Xr + 4 * k, 76 + k, k, k))
        e('s_mov_b64 exec, 1\nv_mov_b32 v11, 1\nds_add_u32 v8, v11 offset:4\ns_mov_b64 exec, -1')
        for r in (0, 1, 4, 5): e('v_and_b32 v%d, v9, v%d' % (Xr + r, Xr + r))
        e('v_pk_add_f32 %s, %s, %s' % (vr(Er, 2), vr(Er, 2), vr(Xr, 2)))
        e('v_pk_add_f32 %s, %s, %s' % (vr(Er + 12, 2), vr(Er + 12, 2), vr(Xr + 4, 2)))
        self.ts(6)
        e("""s_or_b32 s11, s6, s5
        s_cmp_lg_u32 s11, 0
        s_cbranch_scc1 L_nomask
        v_mov_b32 v3, 0xce6e6b28""")
        for sg in range(4):
            e('v_cndmask_b32 v%d, v3, v%d, s[66:67]\nv_cndmask_b32 v%d, v3, v%d, s[68:69]' % (Er + 4 * sg, Er + 4 * sg, Er + 4 * sg + 1, Er + 4 * sg + 1))
        e('L_nomask:')
        A, B_, C, D_ = Rr, Rr + 2, Rr + 4, Rr + 6
        def allred(op, mid=None):
            for sg in range(4):
                e('%s v%d, v%d, v%d' % (op, Rr + 2 * sg, Er + 4 * sg, Er + 4 * sg + 1))
            e('v_permlane32_swap_b32 v%d, v%d\nv_permlane32_swap_b32 v%d, v%d' % (A, C, B_, D_))
            e('%s v%d, v%d, v%d\n%s v%d, v%d, v%d' % (op, A, A, C, op, B_, B_, D_))
            e('v_permlane16_swap_b32 v%d, v%d' % (A, B_))
            e('%s v%d, v%d, v%d' % (op, A, A, B_))
            if mid: e(mid % (A, A))
            e('v_mov_b32 v%d, v%d\nv_permlane16_swap_b32 v%d, v%d' % (B_, A, A, B_))
            e('v_mov_b32 v%d, v%d\nv_mov_b32 v%d, v%d' % (C, A, D_, B_))
            e('v_permlane32_swap_b32 v%d, v%d\nv_permlane32_swap_b32 v%d, v%d' % (A, C, B_, D_))
        e('ds_read_b32 v4, v8 offset:16\nds_read_b32 v3, v8')
        allred('v_max_f32', 'v_mul_f32 v%d, v12, v%d')
        e('''s_waitcnt lgkmcnt(0)
        v_readfirstlane_b32 s11, v3
        v_readfirstlane_b32 s9, v4
        s_cmp_lt_u32 s11, 4
        s_cbranch_scc1 L_vw
        L_vok:''')
        self.tail.append(lambda: e('''L_vw:
        s_mov_b32 s15, 800000
        L_vw2:
        ds_read_b32 v3, v8
        s_waitcnt lgkmcnt(0)
        v_readfirstlane_b32 s11, v3
        s_cmp_ge_u32 s11, 4
        s_cbranch_scc1 L_vok
        s_sub_u32 s15, s15, 1
        s_cmp_lg_u32 s15, 0
        s_cbranch_scc1 L_vw2
        s_branch L_vok'''))
        if self.opt.get('ats'): self.ts(2)
        for x in vrd: e(x)
        for sg in range(4):
            e('v_pk_fma_f32 %s, %s, v[12:13], %s op_sel_hi:[1,0,0] neg_lo:[0,0,1] neg_hi:[0,0,1]' % (vr(Er + 4 * sg, 2), vr(Er + 4 * sg, 2), vr(Rr + 2 * sg, 2)))
        for sg in range(4):
            e('v_exp_f32 v%d, v%d\nv_exp_f32 v%d, v%d' % (Er + 4 * sg, Er + 4 * sg, Er + 4 * sg + 1, Er + 4 * sg + 1))
        allred('v_add_f32', 'v_rcp_f32 v%d, v%d')
        e('s_waitcnt lgkmcnt(0)')
        for sg in range(4):
            e('v_pk_mul_f32 %s, %s, %s op_sel_hi:[1,0]' % (vr(Er + 4 * sg, 2), vr(Er + 4 * sg, 2), vr(Rr + 2 * sg, 2)))
        def pv(j, sg, k):
            e('v_mfma_f32_16x16x32_bf16 %s, %s, %s, 0' % (vr(Sr + 4 * k, 4), vr(Vr + 4 * j, 4), vr(Pr + 4 * sg, 4)))
        for sg in range(4):
            x0, x1 = Er + 4 * sg + 2, Er + 4 * sg + 3
            e('v_cvt_pk_bf16_f32 v%d, v%d, v%d\nv_cvt_pk_bf16_f32 v%d, v%d, v%d' % (x0, Er + 4 * sg, Er + 4 * sg, x1, Er + 4 * sg + 1, Er + 4 * sg + 1))
            for r in range(4):
                e('v_and_b32 v%d, v%d, v%d' % (Pr + 4 * sg + r, 212 + r, (x0, x1)[r & 1]))
            if sg: pv(sg - 1, sg - 1, 2 * sg - 2); pv(sg, sg - 1, 2 * sg - 1)
        pv(3, 3, 6); pv(4, 3, 7)
        if self.opt.get('ats') == 2: self.ts(3)
        Or = 220
        def cv(j, k):
            e('v_cvt_pk_bf16_f32 v%d, v%d, v%d\nv_cvt_pk_bf16_f32 v%d, v%d, v%d' % (Or + 2 * j, Sr + 4 * k, Sr + 4 * k + 1, Or + 2 * j + 1, Sr + 4 * k + 2, Sr + 4 * k + 3))
        e('v_mov_b32 v4, 64\nv_cndmask_b32 v4, v0, v4, s[64:65]\nv_mov_b32 v6, 0x10000')
        cv(0, 0); cv(1, 2); cv(2, 4)
        e('s_mov_b64 exec, 0xffff'); cv(1, 1)
        e('s_mov_b32 exec_lo, -1'); cv(2, 3)
        e('s_mov_b64 exec, -1'); cv(3, 6)
        e('s_mov_b32 exec_hi, 0xffff'); cv(3, 5)
        e('s_not_b64 exec, s[28:29]'); cv(0, 7)
        e('s_mov_b64 exec, -1')
        e("""s_and_b32 s11, s31, s9
        s_cbranch_scc1 L_oloc
        buffer_store_dwordx4 v[220:223], v254, s[52:55], s25 offen sc1
        buffer_store_dwordx4 v[224:227], v254, s[52:55], s25 offen offset:1024 sc1
        v_add3_u32 v3, v222, v223, v224
        v_add3_u32 v7, v225, v226, v227
        v_add3_u32 v3, v3, v220, v221
        v_add_u32 v3, v3, v7
        v_add_u32_dpp v3, v3, v3 quad_perm:[1,0,3,2] row_mask:0xf bank_mask:0xf
        v_add_u32_dpp v3, v3, v3 quad_perm:[2,3,0,1] row_mask:0xf bank_mask:0xf
        v_cndmask_b32 v3, v3, 0, s[64:65]
        v_add_u32 v3, s10, v3
        s_mov_b32 exec_lo, 0x11111113
        s_mov_b32 exec_hi, 0x11111111
        buffer_store_dword v3, v4, s[52:55], s26 offen sc1
        s_branch L_opub
        L_oloc:
        buffer_store_dwordx4 v[220:223], v254, s[52:55], s25 offen
        buffer_store_dwordx4 v[224:227], v254, s[52:55], s25 offen offset:1024
        v_add3_u32 v3, v222, v223, v224
        v_add3_u32 v7, v225, v226, v227
        v_add3_u32 v3, v3, v220, v221
        v_add_u32 v3, v3, v7
        v_add_u32_dpp v3, v3, v3 quad_perm:[1,0,3,2] row_mask:0xf bank_mask:0xf
        v_add_u32_dpp v3, v3, v3 quad_perm:[2,3,0,1] row_mask:0xf bank_mask:0xf
        v_cndmask_b32 v3, v3, 0, s[64:65]
        v_add_u32 v3, s10, v3
        s_mov_b32 exec_lo, 0x11111113
        s_mov_b32 exec_hi, 0x11111111
        buffer_store_dword v3, v4, s[52:55], s26 offen
        L_opub:
        s_mov_b64 exec, 1
        ds_add_u32 v8, v6 offset:4
        s_mov_b64 exec, -1""")
        if XP:
            e('s_setprio 0\ns_cmp_ge_u32 s5, 4\ns_cbranch_scc1 L_phase2')
            self.xn_prep()
        self.tail.append(lambda: self.xretry(Er, Xr))

    def xretry(self, Er, Xr):
        e = self.e
        for k in range(2):
            own, got = Er + 12 * k, Xr + 4 * k
            e("""L_xretry%d:
            s_mov_b32 s15, 0
            L_xr%d:
            s_add_u32 s15, s15, 1
            s_cmp_ge_u32 s15, %d
            s_cbranch_scc1 L_xok%d
            s_cmp_lt_u32 s15, 48
            s_cbranch_scc1 L_xf%d
            s_cmp_lg_u32 s15, 48
            s_cbranch_scc1 L_xs%d
            s_lshl_b32 s12, s%d, 1
            s_add_u32 s12, s12, %d
            v_mov_b32 v%d, s10
            buffer_store_dwordx3 %s, v254, %s, s12 offen sc1
            L_xs%d:
            s_lshl_b32 s12, s%d, 1
            s_add_u32 s12, s12, %d
            buffer_load_dwordx3 %s, v254, %s, s12 offen sc1
            s_waitcnt vmcnt(0)
            v_cmp_ne_u32 vcc, s10, v%d
            s_cmp_eq_u64 vcc, 0
            s_cbranch_scc1 L_xok%d
            L_xf%d:
            buffer_load_dwordx2 %s, v230, %s, s%d offen sc1
            s_waitcnt vmcnt(0)
            v_perm_b32 v3, v%d, v%d, v10
            v_cmp_ne_u32 vcc, s74, v3
            s_cmp_lg_u64 vcc, 0
            s_cbranch_scc1 L_xr%d
            s_branch L_xok%d""" % (k, k, SPIN, k, k, k, 70 + k, WS_XCB - 2 * WS_XCH, own + 2, vr(own, 3), sq(rWS), k, 72 + k, WS_XCB - 2 * WS_XCH,
                                   vr(got, 3), sq(rWS), got + 2, k, k, vr(got, 2), sq(rWS), 72 + k, got + 1, got, k, k))

    def xn_prep(self):
        e = self.e
        XF, XN, T = 16, 196, 28
        a, b = self.lab('pc'), self.lab('pk')
        e("""s_mov_b32 s15, %d
        %s:
        v_cmp_ne_u32 vcc, s10, v237
        s_cmp_eq_u64 vcc, 0
        s_cbranch_scc1 %s
        s_sub_u32 s15, s15, 1
        s_cmp_eq_u32 s15, 0
        s_cbranch_scc1 %s
        s_sleep 8
        buffer_load_dwordx2 v[236:237], v235, %s, 0 offen sc1
        s_waitcnt vmcnt(0)
        s_branch %s
        %s:
        v_permlane16_swap_b32 v238, v240
        v_permlane16_swap_b32 v239, v241
        v_and_b32 v34, 0xffff0000, v236
        v_rcp_f32 v34, v34
        v_lshlrev_b32 v236, 16, v236""" % (SPIN, a, b, b, sq(rWS), a, b))
        def rnd():
            for d in range(6): e('v_cvt_pk_bf16_f32 v%d, v%d, v%d' % (T + d, XN + 2 * d, XN + 2 * d + 1))
            for d in range(6): e('v_lshlrev_b32 v%d, 16, v%d\nv_and_b32 v%d, 0xffff0000, v%d' % (XN + 2 * d, T + d, XN + 2 * d + 1, T + d))
        for d in range(6):
            e('v_lshlrev_b32 v%d, 16, v%d\nv_and_b32 v%d, 0xffff0000, v%d' % (XF + 2 * d, 238 + d, XF + 2 * d + 1, 238 + d))
        for d in range(6):
            e('v_pk_add_f32 %s, %s, v[236:237] op_sel_hi:[1,0] neg_lo:[0,1] neg_hi:[0,1]' % (vr(XN + 2 * d, 2), vr(XF + 2 * d, 2)))
        rnd()
        for d in range(6):
            e('v_pk_mul_f32 %s, %s, v[34:35] op_sel_hi:[1,0]' % (vr(XN + 2 * d, 2), vr(XN + 2 * d, 2)))
        rnd()
        for d in range(6):
            e('v_pk_add_f32 %s, %s, %s' % (vr(XN + 2 * d, 2), vr(XN + 2 * d, 2), vr(XF + 2 * d, 2)))

    def phase2(self):
        e = self.e
        NPRE = 8
        WF, XN = 16, 196
        OFL = [176 + 4 * k for k in range(5)] + [208 + 4 * k for k in range(5)]
        ACL = [228, 236, 240, 248, 12]
        CKL = [1, 2, 4, 10, 11]
        OF = 176
        UPD = TAB + 1024
        e('L_phase2:\ns_setprio 0')
        self.ts(7)
        def wrd(ks, slot):
            ops = []
            for t in range(5):
                for hh in range(2):
                    ll, jq = ks // 2, 2 * (ks % 2) + hh
                    av, rows = 244, 64 * ll + 16 * jq - 4 * ll
                    if jq == 0 and ll == 4: rows += 64
                    elif jq == 0: av = 244 + ll
                    ops.append('ds_read_b64_tr_b16 %s, v%d offset:%d' % (vr(WF + 20 * slot + 4 * t + 2 * hh, 2), av, rows * 160 + 32 * t))
            return ops
        e('v_mov_b32 v8, %d\nv_and_b32 v9, 60, v0\nds_read_b32 v7, v8 offset:4' % (TAB + 896))
        e("""s_waitcnt lgkmcnt(0)
        v_readfirstlane_b32 s11, v7
        s_mov_b32 s72, 0
        s_mov_b32 s73, 1
        s_and_b32 s11, s11, 0xff
        s_cmp_lt_u32 s11, 8
        s_cselect_b32 s11, s38, 0
        s_cmp_eq_u32 s11, 3
        s_cbranch_scc1 L_wskip
        s_mov_b32 s73, 0
        L_wrd:
        s_mov_b32 s15, %d
        L_wochk:
        ds_read_b32 v7, v8 offset:4
        s_waitcnt lgkmcnt(0)
        v_readfirstlane_b32 s11, v7
        s_and_b32 s11, s11, 0xff
        s_cmp_ge_u32 s11, 8
        s_cbranch_scc1 L_wook
        s_sleep 1
        s_sub_u32 s15, s15, 1
        s_cmp_lg_u32 s15, 0
        s_cbranch_scc1 L_wochk
        L_wook:""" % (SPIN * 4))
        for ks in range(NPRE):
            for x in wrd(ks, ks): e(x)
        e("""s_mov_b32 s15, %d
        s_cmp_lg_u32 s73, 0
        s_cbranch_scc1 L_wdone
        L_wskip:""" % SPIN)
        if self.opt.get('pts') in (1, 2): self.ts(3)
        e("""s_mov_b32 s15, %d
        s_cmp_eq_u32 s38, 0
        s_cbranch_scc1 L_ohint
        s_and_b32 s101, s100, s9
        s_mov_b32 s13, 0x80008
        s_cselect_b32 s13, 0x80010, s13
        s_cselect_b32 s14, LTH, RTH
        s_cbranch_scc1 L_ow2
        s_cmp_eq_u32 s38, 3
        s_cbranch_scc0 L_ow2
        s_waitcnt vmcnt(0)
        s_mov_b64 exec, 1
        v_mov_b32 v6, 0x100
        ds_add_u32 v8, v6 offset:4
        s_mov_b64 exec, -1
        s_mov_b32 s38, 2
        L_ow2:
        ds_read_b32 v3, v8 offset:4
        s_waitcnt lgkmcnt(0)
        v_readfirstlane_b32 s11, v3
        s_bfe_u32 s11, s11, s13
        s_cmp_ge_u32 s11, s14
        s_cbranch_scc1 L_ook
        s_sleep 1
        s_sub_u32 s15, s15, 1
        s_cmp_lg_u32 s15, 0
        s_cbranch_scc1 L_ow2
        L_ook:
        s_mov_b32 s15, %d""" % (SPIN * 4, SPIN))
        self.ts(8)
        if self.opt.get('wb'):
            e('''s_lshl_b32 s11, s4, 3
            s_add_u32 s11, s11, s5
            s_cmpk_lg_u32 s11, %d
            s_cbranch_scc1 L_nowb
            buffer_wbl2 sc1
            L_nowb:''' % (31 * 8 + 5))
        for j in range(5):
            e('L_old%d:' % j)
            for h in range(2):
                e('buffer_load_dwordx4 %s, v254, %s, s%d offen offset:%d sc1' % (vr(OFL[2 * j + h], 4), sq(rWS), 22 + j // 2, 2048 * (j % 2) + 1024 * h))
            e('buffer_load_dword v%d, v9, %s, s63 offen offset:%d sc1' % (CKL[j], sq(rWS), 128 * j))
        e('''s_cmp_eq_u32 s38, 3
        s_cbranch_scc0 L_noack
        s_waitcnt vmcnt(15)
        s_mov_b64 exec, 1
        v_mov_b32 v6, 0x100
        ds_add_u32 v8, v6 offset:4
        s_mov_b64 exec, -1
        s_mov_b32 s38, 2
        L_noack:''')
        e('s_cmp_lg_u32 s72, 0\ns_cbranch_scc1 L_odisp\ns_cmp_lg_u32 s73, 0\ns_cbranch_scc1 L_wrd\nL_wdone:\ns_waitcnt lgkmcnt(0)')
        def val(j):
            o, p = OFL[2 * j], OFL[2 * j + 1]
            return ['v_add3_u32 v3, v%d, v%d, v%d' % (o, o + 1, o + 2), 'v_add3_u32 v5, v%d, v%d, v%d' % (o + 3, p, p + 1),
                    'v_add3_u32 v3, v3, v%d, v%d\nv_add_u32 v3, v3, v5' % (p + 2, p + 3),
                    'v_subrev_u32 v5, s10, v%d\nv_add_u32_dpp v3, v3, v3 quad_perm:[1,0,3,2] row_mask:0xf bank_mask:0xf' % CKL[j],
                    's_nop 0\nv_add_u32_dpp v3, v3, v3 quad_perm:[2,3,0,1] row_mask:0xf bank_mask:0xf\nv_cmp_ne_u32 vcc, v3, v5']
        def chk(j): e('s_mov_b32 s72, %d\ns_cmp_lg_u64 vcc, 0\ns_cbranch_scc1 L_oretry' % (j + 1))
        def mm(ks, fill=()):
            slot = ks if ks < NPRE else ks - NPRE
            if ks >= NPRE: e('s_waitcnt lgkmcnt(%d)' % min(15, 10 * (9 - ks)))
            for t in range(5):
                c = '0' if ks == 0 else vr(ACL[t], 4)
                e('v_mfma_f32_16x16x32_bf16 %s, %s, %s, %s' % (vr(ACL[t], 4), vr(WF + 20 * slot + 4 * t, 4), vr(OFL[ks], 4), c))
                for x in fill[t::5]: e(x)
        e('s_waitcnt vmcnt(12)')
        for x in val(0): e(x)
        chk(0); e('L_ogo0:')
        for j in range(5):
            if self.opt.get('pts') == 3 and j in (0, 2, 4): self.ts(1 + j // 2)
            mm(2 * j, wrd(9, 1) if j == 1 else ())
            if j < 4:
                e('s_waitcnt vmcnt(%d)' % (3 * (3 - j)))
                mm(2 * j + 1, val(j + 1) + (wrd(8, 0) if j == 0 else []))
                chk(j + 1); e('L_ogo%d:' % (j + 1))
            else:
                mm(9)
        def ovals():
            for j in range(5):
                e('L_oval%d:\ns_waitcnt vmcnt(%d)' % (j, 3 * (4 - j)))
                for x in val(j): e(x)
                chk(j); e('s_branch L_ogo%d' % j)
        self.tail.append(ovals)
        def otail():
            e("""L_oretry:
            s_waitcnt vmcnt(0)
            s_sub_u32 s15, s15, 1
            s_cmp_eq_u32 s15, 0
            s_cbranch_scc1 L_ogive
            s_sleep %d""" % self.opt.get('osl', 2))
            for j in range(5):
                e('s_cmp_eq_u32 s72, %d\ns_cbranch_scc1 L_old%d' % (j + 1, j))
            e('L_odisp:')
            for j in range(4):
                e('s_cmp_eq_u32 s72, %d\ns_cbranch_scc1 L_oval%d' % (j + 1, j))
            e('s_branch L_oval4\nL_ogive:\ns_mov_b32 s15, 1')
            for j in range(4):
                e('s_cmp_eq_u32 s72, %d\ns_cbranch_scc1 L_ogo%d' % (j + 1, j))
            e('s_branch L_ogo4')
            e("""L_ohint:
            v_lshlrev_b32 v3, 7, v0
            s_mov_b64 exec, 31
            L_of:
            buffer_load_dword v5, v3, %s, s63 offen offset:64 sc1
            s_waitcnt vmcnt(0)
            v_cmp_ne_u32 vcc, s10, v5
            s_cmp_eq_u64 vcc, 0
            s_cbranch_scc1 L_of2
            s_mov_b64 exec, vcc
            s_sleep HSL
            s_sub_u32 s15, s15, 1
            s_cmp_lg_u32 s15, 0
            s_cbranch_scc1 L_of
            L_of2:
            s_mov_b64 exec, -1
            s_branch L_ook""" % sq(rWS))
        self.tail.append(otail)
        if self.opt.get('pts') == 1: self.ts(1)
        e("""v_mov_b32 v8, %d
        s_cmp_eq_u32 s61, 0
        s_cbranch_scc0 L_red1""" % UPD)
        pr = lambda t0, d: vr(ACL[t0 + d // 2] + 2 * (d % 2), 2)
        for t in (3, 4):
            e('ds_write_b128 v232, %s offset:%d' % (vr(ACL[t], 4), 4 * P * t))
        for d in range(6):
            e('v_pk_add_f32 %s, %s, %s' % (vr(XN + 2 * d, 2), vr(XN + 2 * d, 2), pr(0, d)))
        e('s_waitcnt lgkmcnt(0)\ns_barrier\nds_read2_b32 v[6:7], v8 offset0:0 offset1:1')
        for t in range(3):
            e('ds_read_b128 %s, v232 offset:%d' % (vr(16 + 4 * t, 4), 4 * P * t))
        e('s_waitcnt lgkmcnt(3)\ns_branch L_red2\nL_red1:')
        for t in range(3):
            e('ds_write_b128 v232, %s offset:%d' % (vr(ACL[t], 4), 4 * P * t))
        for d in range(4):
            e('v_pk_add_f32 %s, %s, %s' % (vr(XN + 2 * d, 2), vr(XN + 2 * d, 2), pr(3, d)))
        e('s_waitcnt lgkmcnt(0)\ns_barrier\nds_read2_b32 v[6:7], v8 offset0:0 offset1:1')
        for t in (3, 4):
            e('ds_read_b128 %s, v232 offset:%d' % (vr(16 + 4 * (t - 3), 4), 4 * P * t))
        e('s_waitcnt lgkmcnt(2)\nL_red2:')
        if self.opt.get('pts') == 2: self.ts(1)
        e("""v_readfirstlane_b32 s76, v6
        v_readfirstlane_b32 s77, v7
        s_lshr_b32 s11, s76, 4
        s_cmp_eq_u32 s11, s60
        s_cbranch_scc1 L_exrow0
        L_exb0:
        s_lshr_b32 s11, s77, 4
        s_cmp_eq_u32 s11, s60
        s_cbranch_scc1 L_exrow1
        L_exb1:
        s_waitcnt lgkmcnt(0)""")
        for d in range(6):
            e('v_pk_add_f32 %s, %s, %s' % (vr(16 + 2 * d, 2), vr(16 + 2 * d, 2), vr(XN + 2 * d, 2)))
            e('v_cvt_pk_bf16_f32 v%d, v%d, v%d' % (32 + d, 16 + 2 * d, 17 + 2 * d))
            if d == 3:
                e('v_permlane16_swap_b32 v32, v34\nv_permlane16_swap_b32 v33, v35')
                e('buffer_store_dwordx4 v[32:35], v233, %s, 0 offen OUTF' % sq(rOUT))
                e('s_cmp_lg_u32 s61, 0\ns_cbranch_scc1 L_fin')
        e('buffer_store_dwordx2 v[36:37], v234, %s, 0 offen offset:64 OUTF' % sq(rOUT))
        e('L_fin:')
        if self.opt.get('ts'):
            if self.opt.get('pts') in (1, 2): self.ts(2)
            if self.opt.get('rcnt'): e('s_waitcnt lgkmcnt(0)\ns_sub_u32 s11, %d, s15\ns_add_u32 s84, s80, s11' % SPIN)
            e('s_waitcnt vmcnt(0)')
            self.ts(9)
            e('s_waitcnt lgkmcnt(0)\nv_mov_b32 v15, 0')
            for k in range(10):
                e('v_mov_b32 v%d, s%d' % (16 + k, 80 + 2 * k))
            e("""s_lshl_b32 s11, s2, 3
            s_add_u32 s11, s11, s5
            s_lshl_b32 s11, s11, 6
            s_add_u32 s11, s11, %d
            s_mov_b64 exec, 1
            buffer_store_dwordx4 v[16:19], v15, %s, s11 offen
            buffer_store_dwordx4 v[20:23], v15, %s, s11 offen offset:16
            buffer_store_dwordx2 v[24:25], v15, %s, s11 offen offset:32""" % (WS_TS, sq(rWS), sq(rWS), sq(rWS)))
        e('s_endpgm')
        for k in range(2):
            e("""L_exrow%d:
            v_lshrrev_b32 v3, 4, v0
            s_mul_i32 s11, s61, 192
            s_add_u32 s11, s11, %d
            v_lshl_add_u32 v3, v3, 4, s11""" % (k, UPD + 16 + 1536 * k))
            for t in range(3):
                e('ds_read_b128 %s, v3 offset:%d' % (vr(OF + 4 * t, 4), 64 * t))
            e("""v_and_b32 v3, 15, v0
            s_and_b32 s11, s%d, 15
            v_cmp_eq_u32 vcc, s11, v3
            s_waitcnt lgkmcnt(0)""" % (76 + k))
            for d in range(6):
                e('v_pk_add_f32 %s, %s, %s' % (vr(OF + 2 * d, 2), vr(OF + 2 * d, 2), vr(XN + 2 * d, 2)))
            for r in range(12):
                e('v_cndmask_b32 v%d, v%d, v%d, vcc' % (XN + r, XN + r, OF + r))
            e('s_branch L_exb%d' % k)

    def p2wo(self):
        e = self.e
        UPD = TAB + 1024
        e('L_p2wo:')
        self.p2_loads()
        e("""v_mov_b32 v8, %d
        v_mov_b32 v3, 1
        s_waitcnt vmcnt(0)
        s_mov_b64 exec, 1
        ds_add_u32 v8, v3 offset:4
        s_mov_b64 exec, -1
        XNPREP
        s_lshl_b32 s11, s2, 3
        s_add_u32 s11, s11, s5
        s_cmpk_lg_u32 s11, 1927
        s_cbranch_scc1 L_noep
        v_add_u32 v4, 0x2e0000, v254
        s_mov_b32 s15, 200000
        L_ep:
        buffer_load_dwordx4 v[16:19], v4, s[52:55], 0 offen sc1
        s_waitcnt vmcnt(0)
        v_xor_b32 v16, s10, v16
        v_xor_b32 v17, s10, v17
        v_xor_b32 v18, s10, v18
        v_xor_b32 v19, s10, v19
        v_or3_b32 v16, v16, v17, v18
        v_or_b32 v16, v16, v19
        v_lshlrev_b32 v16, 4, v16
        v_cmp_ne_u32 vcc, 0, v16
        s_cmp_eq_u64 vcc, 0
        s_cbranch_scc1 L_ep2
        s_sleep 8
        s_sub_u32 s15, s15, 1
        s_cmp_lg_u32 s15, 0
        s_cbranch_scc1 L_ep
        L_ep2:
        v_mov_b32 v4, 0
        v_mov_b32 v5, s10
        s_mov_b64 exec, 1
        global_store_dword v4, v5, s[36:37] sc1
        s_mov_b64 exec, -1
        L_noep:
        s_cmp_lg_u32 s5, 6
        s_cbranch_scc1 L_phase2
        v_mov_b32 v4, 0
        s_mov_b32 s15, %d
        L_sel:
        buffer_load_dwordx4 v[16:19], v4, %s, 0 offen offset:%d sc1
        s_waitcnt vmcnt(0)
        v_readfirstlane_b32 s11, v17
        v_readfirstlane_b32 s12, v19
        v_readfirstlane_b32 s76, v16
        v_readfirstlane_b32 s79, v18
        s_cmp_eq_u32 s11, s12
        s_cselect_b32 s11, s11, 0
        s_cselect_b32 s12, s10, 1
        s_mov_b32 s78, 0
        s_cmp_eq_u32 s11, s12
        s_cbranch_scc1 L_selok
        s_sleep 8
        s_sub_u32 s15, s15, 1
        s_cmp_lg_u32 s15, 0
        s_cbranch_scc1 L_sel
        L_selok:
        s_and_b32 s77, s76, 0xffff
        s_sub_u32 s77, 2047, s77
        s_lshl_b32 s11, s78, 2
        s_add_u32 s11, s11, %d
        v_mov_b32 v3, s11
        v_mov_b32 v4, s77
        ds_write_b32 v3, v4
        s_lshr_b32 s11, s77, 6
        s_lshr_b32 s12, s60, 2
        s_cmp_lg_u32 s11, s12
        s_cbranch_scc1 L_selnext
        v_mul_u32_u24 v3, 13, v0
        v_lshrrev_b32 v3, 8, v3
        v_mul_u32_u24 v4, 20, v3
        v_sub_u32 v4, v0, v4
        v_mul_u32_u24 v5, 40960, v3
        v_lshl_add_u32 v5, v4, 5, v5
        v_lshrrev_b32 v4, 2, v4
        v_lshl_add_u32 v5, v4, 7, v5
        s_lshr_b32 s14, s4, 2
        s_mul_i32 s14, s14, 1280
        s_lshl_b32 s13, s78, 4
        s_add_u32 s14, s14, s13
        s_add_u32 s14, s14, %d
        s_lshr_b32 s11, s76, 16
        s_bitcmp1_b32 s11, 15
        s_mov_b32 s13, 0xffff
        s_cmov_b32 s13, 0x8000
        s_xor_b32 s11, s11, s13
        s_lshl_b32 s11, s11, 16
        v_mov_b32 v6, 0xbfb8aa3b
        v_mul_f32 v6, s11, v6
        v_exp_f32 v6, v6
        v_add_f32 v6, 1.0, v6
        v_rcp_f32 v6, v6
        v_cvt_pk_bf16_f32 v6, v6, v6
        v_and_b32 v6, 0xffff0000, v6
        s_mul_i32 s11, s78, 1536
        s_add_u32 s11, s11, %d
        v_add_u32 v7, s11, v254
        s_mov_b32 s15, %d
        s_mov_b32 exec_hi, 0xfffffff
        L_yf:
        s_mov_b32 s12, s14""" % (TAB + 896, SPIN, sq(rWS), WS_SEL, UPD, WS_Y, UPD + 16, SPIN))
        assert all((x * 13) >> 8 == x // 20 for x in range(60))
        for j in range(4):
            for h in range(2):
                e('buffer_load_dwordx4 %s, v5, %s, s12 offen offset:%d sc1' % (vr(32 + 8 * j + 4 * h, 4), sq(rWS), 128 * h))
            if j < 3: e('s_add_u32 s12, s12, 10240')
        e('s_waitcnt vmcnt(0)\nv_mov_b32 v3, 0')
        for j in range(4):
            e('v_xor_b32 v4, s10, v%d\nv_xor_b32 v9, s10, v%d\nv_or3_b32 v3, v3, v4, v9' % (32 + 8 * j + 2, 32 + 8 * j + 6))
        e("""v_cmp_ne_u32 vcc, 0, v3
        s_cmp_eq_u64 vcc, 0
        s_cbranch_scc1 L_yok
        s_mov_b64 exec, vcc
        s_sleep 4
        s_sub_u32 s15, s15, 1
        s_cmp_lg_u32 s15, 0
        s_cbranch_scc1 L_yf
        L_yok:
        s_mov_b32 exec_lo, -1
        s_mov_b32 exec_hi, 0xfffffff""")
        for h in range(2):
            e('v_pk_add_f32 %s, %s, %s' % (vr(16 + 2 * h, 2), vr(32 + 4 * h, 2), vr(40 + 4 * h, 2)))
        for j in (2, 3):
            for h in range(2):
                e('v_pk_add_f32 %s, %s, %s' % (vr(16 + 2 * h, 2), vr(16 + 2 * h, 2), vr(32 + 8 * j + 4 * h, 2)))
        e("""ds_write_b128 v7, v[16:19] offset:320
        s_waitcnt lgkmcnt(0)
        s_mov_b64 exec, 0xfffff
        ds_read_b128 v[20:23], v7 offset:640
        ds_read_b128 v[24:27], v7 offset:960
        s_waitcnt lgkmcnt(0)""")
        for j in (1, 2):
            for h in range(2):
                e('v_pk_add_f32 %s, %s, %s' % (vr(16 + 2 * h, 2), vr(16 + 2 * h, 2), vr(16 + 4 * j + 2 * h, 2)))
        def rnd2():
            e("""v_cvt_pk_bf16_f32 v20, v16, v17
            v_cvt_pk_bf16_f32 v21, v18, v19
            v_lshlrev_b32 v16, 16, v20
            v_and_b32 v17, 0xffff0000, v20
            v_lshlrev_b32 v18, 16, v21
            v_and_b32 v19, 0xffff0000, v21""")
        rnd2()
        for r in range(4): e('v_mul_f32 v%d, v%d, v6' % (16 + r, 16 + r))
        rnd2()
        e("""ds_write_b128 v7, v[16:19]
        s_waitcnt lgkmcnt(0)
        s_mov_b64 exec, -1
        L_selnext:
        s_mov_b32 s76, s79
        s_add_u32 s78, s78, 1
        s_cmp_lt_u32 s78, 2
        s_cbranch_scc1 L_selok
        s_branch L_phase2""")

    def expert(self):
        e = self.e
        BUF = 32768
        ETS = self.opt.get('ets', 0)
        e("""L_aux:
        s_cmp_ge_u32 s79, 4
        s_cbranch_scc1 L_idle""")
        e("""s_mul_i32 s68, s78, 12
        s_add_u32 s68, s68, s79
        s_lshl_b32 s11, s77, 1
        s_lshl_b32 s11, s11, s76
        s_add_u32 s68, s68, s11
        s_lshl_b32 s11, s76, 2
        s_add_u32 s68, s68, s11
        s_and_b32 s14, s5, 1
        s_lshr_b32 s69, s5, 1
        v_lshrrev_b32 v2, 3, v0
        v_and_b32 v3, 7, v0
        v_bfe_u32 v4, v0, 4, 1
        v_lshl_or_b32 v4, s14, 1, v4
        v_lshlrev_b32 v4, 1, v4
        v_xor_b32 v4, v3, v4
        s_and_b32 s12, s68, 1
        s_mul_i32 s12, s12, 320
        s_lshl_b32 s11, s14, 3
        s_add_u32 s11, s11, s12
        v_add_u32 v2, s11, v2
        v_mul_u32_u24 v2, 3072, v2
        v_lshl_add_u32 v2, v4, 4, v2
        s_and_b32 s11, s68, 30
        s_and_b32 s12, s69, 1
        s_add_u32 s11, s11, s12
        s_lshl_b32 s11, s11, 7
        v_add_u32 v10, s11, v2
        s_lshl_b32 s74, s69, 13
        s_lshl_b32 s11, s14, 10
        s_add_u32 s75, s74, s11
        s_waitcnt lgkmcnt(0)
        s_cmp_lt_u32 s5, 4
        s_cselect_b32 s44, s26, s28
        s_cselect_b32 s45, s27, s29
        s_mov_b32 s46, %d
        s_mov_b32 s47, 0x20000""" % GB)
        nt = ' nt' if self.opt.get('nt', 1) else ''
        def issue(s):
            base = (s % 4) * BUF
            for a in range(4):
                e('s_add_u32 m0, s75, %d\ns_mov_b32 s12, %d' % (base + a * 2048, (64 * s + 16 * a) * 3072))
                e('buffer_load_dwordx4 v10, %s, s12 offen%s lds' % (sq(rW), nt))
        if ETS == 1: self.ts(1)
        issue(0)
        e('s_branch L_expert2')
        self.expert_rest = lambda: self.expert2(issue)

    def expert2(self, issue):
        e = self.e
        WG_, XS = 32, 112
        BUF = 32768
        MX = TAB + 4096
        ETS = self.opt.get('ets', 0)
        e('L_expert2:')
        self.tag_load()
        self.srd(rX, pX, XB); self.srd(rWS, pWS, WSB)
        self.p2_setup()
        self.wo_setup(11)
        e("""v_and_b32 v1, 15, v0
        v_lshrrev_b32 v2, 4, v0
        v_lshrrev_b32 v3, 2, v1
        v_and_b32 v4, 3, v1
        v_lshrrev_b32 v5, 1, v3
        v_and_b32 v6, 1, v2
        v_lshl_or_b32 v5, v6, 1, v5
        s_lshl_b32 s11, s14, 1
        v_xor_b32 v5, s11, v5
        v_lshl_add_u32 v7, v2, 3, v3
        v_lshlrev_b32 v8, 7, v7
        v_lshl_add_u32 v8, v5, 5, v8
        v_lshl_add_u32 v8, v4, 3, v8
        v_add_u32 v16, s74, v8
        s_lshl_b32 s11, s5, 6
        v_add_u32 v21, s11, v0
        v_lshlrev_b32 v17, 4, v21
        v_add_u32 v17, %d, v17
        v_and_b32 v5, 1, v1
        v_mul_u32_u24 v19, 656, v5
        v_lshl_add_u32 v19, v2, 4, v19
        v_add_u32 v19, %d, v19
        v_lshlrev_b32 v20, 5, v2
        v_lshl_add_u32 v20, v1, 4, v20
        s_lshl_b32 s72, s68, 1
        s_lshr_b32 s11, s5, 2
        s_add_u32 s72, s72, s11
        s_lshl_b32 s72, s72, 11
        s_and_b32 s11, s5, 3
        s_lshl_b32 s11, s11, 8
        s_add_u32 s72, s72, s11
        s_add_u32 s72, s72, %d
        v_mov_b32 v8, %d
        v_mov_b32 v9, 0
        ds_write_b32 v8, v9 offset:4""" % (WS_KEY, MX, WS_H, TAB + 896))
        issue(1); issue(2); issue(3)
        self.tag_ready()
        def consume(s, n):
            base = (s % 4) * BUF
            e('s_waitcnt vmcnt(%d)\ns_barrier' % n)
            if ETS == 1 and s in (0, 2, 4): self.ts({0: 4, 2: 5, 4: 6}[s])
            e('v_add_u32 v8, %d, v16\nv_xor_b32 v9, 32, v8' % base)
            for t in range(2):
                for tl in range(2):
                    for hh in range(2):
                        e('ds_read_b64_tr_b16 %s, v%d offset:%d' % (vr(WG_ + 40 * tl + 4 * (2 * s + t) + 2 * hh, 2), 8 + tl, (32 * t + 4 * hh) * 128))
        B = 120
        v = lambda k: 'v%d' % (B + k)
        def sweep():
            e('s_mov_b32 s12, 8192')
            e('buffer_load_dwordx4 %s, v17, %s, 0 offen sc1\nbuffer_load_dwordx4 %s, v17, %s, s12 offen sc1' % (vr(B + 2, 4), sq(rWS), vr(B + 6, 4), sq(rWS)))
        SW = self.opt.get('sw', 0)
        consume(0, 12)
        e('s_waitcnt lgkmcnt(0)\ns_barrier')
        self.count_in(7)
        if SW == 0: sweep()
        issue(4)
        consume(1, 12 + 2 * (SW == 0))
        if SW == 1: sweep()
        consume(2, 8 + 2 * (SW <= 1))
        if SW == 2: sweep()
        consume(3, 6)
        if SW: consume(4, 2)
        MK = TAB
        e("""s_mov_b32 s15, %d
        s_waitcnt vmcnt(%d)
        L_sweep:
        v_xor_b32 v5, s10, %s
        v_xor_b32 v6, s10, %s
        v_xor_b32 v7, s10, %s
        v_xor_b32 v8, s10, %s
        v_or3_b32 v5, v5, v6, v7
        v_or_b32 v5, v5, v8
        v_cmp_ne_u32 vcc, 0, v5
        s_cmp_eq_u64 vcc, 0
        s_cbranch_scc1 L_swok
        s_mov_b64 exec, vcc
        s_sub_u32 s15, s15, 1
        s_cmp_eq_u32 s15, 0
        s_cbranch_scc1 L_swok
        s_sleep 4""" % (SPIN, 0 if SW else 4, v(3), v(5), v(7), v(9)))
        sweep()
        e('s_waitcnt vmcnt(0)\ns_branch L_sweep\nL_swok:\ns_mov_b64 exec, -1')
        if ETS == 2: self.ts(1)
        e("""v_max_u32 v5, %s, %s
        v_min_u32 v6, %s, %s
        v_max_u32 v7, %s, %s
        v_min_u32 v8, %s, %s
        v_max_u32 v3, v5, v7
        v_min_u32 v5, v5, v7
        v_max3_u32 v4, v5, v6, v8""" % (v(2), v(4), v(2), v(4), v(6), v(8), v(6), v(8)))
        def merge16():
            for n in (8, 4, 2, 1):
                d = 'row_ror:%d row_mask:0xf bank_mask:0xf' % n
                e("""v_min_u32_dpp v5, v3, v3 %s
                v_max_u32_dpp v4, v4, v4 %s
                v_max_u32_dpp v3, v3, v3 %s
                v_max_u32 v4, v4, v5""" % (d, d, d))
        merge16()
        e("""s_lshl_b32 s11, s5, 5
        s_add_u32 s11, s11, %d
        v_lshl_add_u32 v7, v2, 3, s11
        v_mov_b32 v8, v3
        v_mov_b32 v9, v4
        ds_write_b64 v7, v[8:9]
        v_lshlrev_b32 v7, 4, v1
        v_add_u32 v7, %d, v7
        s_waitcnt lgkmcnt(0)
        s_barrier
        s_cmp_ge_u32 s5, 3
        s_cbranch_scc1 L_noxn
        ds_read_b128 %s, v7
        s_waitcnt lgkmcnt(0)
        v_max_u32 v3, %s, %s
        v_min_u32 v5, %s, %s
        v_max3_u32 v4, v5, %s, %s""" % (MK, MK, vr(B + 2, 4), v(2), v(4), v(2), v(4), v(3), v(5)))
        merge16()
        if ETS == 2: self.ts(4)
        e("""v_readfirstlane_b32 s76, v3
        v_readfirstlane_b32 s77, v4
        s_cmp_lg_u32 s5, 2
        s_cbranch_scc1 L_rx
        s_cmp_lg_u32 s68, 0
        s_cbranch_scc1 L_noxn
        v_mov_b32 v4, s76
        v_mov_b32 v5, s10
        v_mov_b32 v6, s77
        v_mov_b32 v7, s10
        v_mov_b32 v3, 0
        s_mov_b64 exec, 1
        buffer_store_dwordx4 v[4:7], v3, %s, 0 offen offset:%d sc1
        s_mov_b64 exec, -1
        s_branch L_noxn
        L_rx:
        s_cmp_eq_u32 s5, 0
        s_cselect_b32 s11, s76, s77
        s_and_b32 s11, s11, 0xffff
        s_sub_u32 s11, 2047, s11
        s_lshl_b32 s13, s11, 3
        s_add_u32 s13, s13, %d
        s_mul_i32 s11, s11, 1280
        s_and_b32 s12, s68, 1
        s_mul_i32 s12, s12, 640
        s_add_u32 s11, s11, s12
        s_mul_i32 s12, s5, 656
        s_add_u32 s12, s12, %d
        v_add_u32 v9, s12, v254
        v_mov_b32 v7, 0
        s_mov_b32 exec_hi, 0xff
        s_mov_b32 s15, %d
        buffer_load_dwordx4 %s, v254, %s, s11 offen
        L_rst:
        buffer_load_dwordx2 %s, v7, %s, s13 offen sc1
        s_waitcnt vmcnt(0)
        v_cmp_ne_u32 vcc, s10, %s
        s_cmp_eq_u64 vcc, 0
        s_cbranch_scc1 L_rstok
        s_sub_u32 s15, s15, 1
        s_cmp_lg_u32 s15, 0
        s_cbranch_scc1 L_rst
        L_rstok:
        v_and_b32 v3, 0xffff0000, %s
        v_rcp_f32 v3, v3
        v_lshlrev_b32 v4, 16, %s""" % (sq(rWS), WS_SEL, WS_STAT, MX, SPIN, vr(B + 2, 4), sq(rX), vr(B + 6, 2), sq(rWS), v(7), v(6), v(6)))
        F = B + 8
        def unp():
            for d in range(4):
                e('v_lshlrev_b32 v%d, 16, v%d\nv_and_b32 v%d, 0xffff0000, v%d' % (F + 2 * d, B + 2 + d, F + 2 * d + 1, B + 2 + d))
        def pk():
            for d in range(4): e('v_cvt_pk_bf16_f32 v%d, v%d, v%d' % (B + 2 + d, F + 2 * d, F + 2 * d + 1))
        unp()
        for r in range(8): e('v_sub_f32 v%d, v%d, v4' % (F + r, F + r))
        pk(); unp()
        for r in range(8): e('v_mul_f32 v%d, v%d, v3' % (F + r, F + r))
        pk()
        e('ds_write_b128 v9, %s\ns_mov_b64 exec, -1\nL_noxn:\ns_waitcnt lgkmcnt(0)' % vr(B + 2, 4))
        if SW:
            e('s_barrier')
        else:
            consume(4, 0)
            e('s_waitcnt lgkmcnt(0)')
        if ETS == 2: self.ts(5)
        for ks in range(10):
            e('ds_read_b128 %s, v19 offset:%d' % (vr(XS + 4 * ks, 4), 64 * ks))
        R = 160
        for k in range(4):
            e('v_mov_b32 v%d, s10\nv_mov_b32 v%d, 0' % (R + 8 + 4 * k + 2, R + 8 + 4 * k + 3))
        for ks in range(10):
            e('s_waitcnt lgkmcnt(%d)' % (9 - ks))
            for tl in range(2):
                e('v_mfma_f32_16x16x32_bf16 %s, %s, %s, %s' % (vr(R + 4 * tl, 4), vr(WG_ + 40 * tl + 4 * ks, 4), vr(XS + 4 * ks, 4), '0' if ks == 0 else vr(R + 4 * tl, 4)))
        e('v_cmp_gt_u32 vcc, 2, v1\ns_and_b64 exec, exec, vcc')
        for tl in range(2):
            for h in range(2):
                d = R + 8 + 4 * (2 * tl + h)
                e('v_mov_b32 v%d, v%d\nv_mov_b32 v%d, v%d' % (d, R + 4 * tl + 2 * h, d + 1, R + 4 * tl + 2 * h + 1))
                e('buffer_store_dwordx4 %s, v20, %s, s72 offen offset:%d sc1' % (vr(d, 4), sq(rWS), 1024 * h + 128 * tl))
        e('s_mov_b64 exec, -1')
        self.ts(2)
        e('s_barrier')
        e('L_woall:')
        self.wo_block(11, 's5')
        e('s_add_u32 s71, s5, 8'); self.wo_block(11, 's71')
        e('s_cmp_lt_u32 s5, 4\ns_cbranch_scc1 L_p2wo\ns_add_u32 s71, s5, 12')
        self.wo_block(11, 's71')
        e('s_branch L_p2wo')

    def down(self):
        e = self.e
        WD, YA = 32, 112
        BUF = 40960
        MH = TAB + 384
        nt = ' nt' if self.opt.get('nt', 1) else ''
        e("""L_idle:
        s_lshl_b32 s68, s78, 1
        s_add_u32 s68, s68, s77
        s_mul_i32 s68, s68, 3
        s_add_u32 s68, s68, s79
        s_sub_u32 s68, s68, 4
        s_mul_i32 s72, s5, 5120
        s_mul_i32 s73, s68, 163840
        s_add_u32 s73, s73, s72
        s_bfe_u32 s11, s5, 0x10001
        s_lshl_b32 s11, s11, 2""")
        for a in range(5):
            e("""v_add_u32 v2, %d, v0
            v_mul_u32_u24 v3, 820, v2
            v_lshrrev_b32 v3, 16, v3
            v_mul_u32_u24 v4, 80, v3
            v_sub_u32 v4, v2, v4
            v_or_b32 v5, s11, v3
            v_lshlrev_b32 v5, 1, v5
            v_xor_b32 v4, v4, v5
            v_mul_u32_u24 v3, 1280, v3
            v_lshl_add_u32 v%d, v4, 4, v3""" % (64 * a, 26 + a))
        def issue(s):
            base = (s % 3) * BUF
            for a in range(5):
                e('s_add_u32 m0, s72, %d\ns_add_u32 s12, s73, %d' % (base + a * 1024, s * 40960))
                e('buffer_load_dwordx4 v%d, %s, s12 offen%s lds' % (26 + a, sq(rD), nt))
        e('s_waitcnt lgkmcnt(0)')
        self.srd(rD, pD, GB)
        issue(0)
        e('s_branch L_down2')
        self.down_rest = lambda: self.down2(issue)

    def down2(self, issue):
        e = self.e
        WD, YA = 32, 112
        BUF = 40960
        MH = TAB + 384
        e('L_down2:')
        self.tag_load()
        self.srd(rX, pX, XB); self.srd(rWS, pWS, WSB)
        self.p2_setup()
        self.wo_setup(11)
        e("""v_and_b32 v1, 15, v0
        v_lshrrev_b32 v2, 4, v0
        v_lshrrev_b32 v3, 2, v1
        v_and_b32 v4, 3, v1
        v_and_b32 v6, 1, v2
        v_lshl_add_u32 v7, v2, 3, v3
        v_lshl_or_b32 v5, v6, 2, v3
        v_mul_u32_u24 v7, 1280, v7
        v_lshl_add_u32 v7, v4, 3, v7
        s_mul_i32 s11, s5, 5""")
        for j in range(5):
            e("""s_add_u32 s12, s11, %d
            v_xor_b32 v8, s12, v5
            v_lshl_add_u32 v%d, v8, 5, v7""" % (j, 18 + j))
        e("""v_mov_b32 v8, %d
        v_mov_b32 v9, 0
        ds_write_b32 v8, v9 offset:4""" % (TAB + 896))
        issue(1); issue(2)
        self.tag_ready()
        def consume(s, n):
            base = (s % 3) * BUF
            e('s_waitcnt vmcnt(%d)\ns_barrier' % n)
            for j in range(5):
                e('v_add_u32 v8, %d, v%d' % (base, 18 + j))
                for hh in range(2):
                    e('ds_read_b64_tr_b16 %s, v8 offset:%d' % (vr(WD + 20 * s + 4 * j + 2 * hh, 2), 5120 * hh))
        consume(0, 10)
        e('s_waitcnt lgkmcnt(0)\ns_barrier')
        self.count_in(7)
        issue(3)
        consume(1, 10)
        consume(2, 5)
        e('s_waitcnt lgkmcnt(0)\ns_barrier')
        e('s_cmp_eq_u32 s5, 0\ns_cbranch_scc1 L_dn0\ns_sub_u32 s71, s5, 1')
        self.wo_block(11, 's71')
        e('s_waitcnt vmcnt(5)\ns_branch L_dn0b\nL_dn0:\ns_waitcnt vmcnt(0)\nL_dn0b:')
        consume(3, 63)
        e('s_cmp_eq_u32 s5, 0\ns_cbranch_scc1 L_dn1\ns_add_u32 s71, s5, 6')
        self.wo_block(11, 's71')
        e('s_cmp_eq_u32 s5, 7\ns_cbranch_scc1 L_dn2\ns_add_u32 s71, s5, 13')
        self.wo_block(11, 's71')
        e('s_branch L_dn2\nL_dn1:\ns_setprio 3')
        self.ts(2)
        HB = 132
        e("""s_lshl_b32 s12, s68, 13
        s_add_u32 s12, s12, %d
        s_add_u32 s13, s12, 4096
        s_mov_b32 s15, %d
        HINTSKIP
        s_mov_b64 exec, 1
        L_hp0:
        buffer_load_dwordx4 %s, v254, %s, s12 offen sc1
        buffer_load_dwordx4 %s, v254, %s, s13 offen sc1
        s_waitcnt vmcnt(0)
        v_xor_b32 v4, s10, v%d
        v_xor_b32 v5, s10, v%d
        v_or_b32 v3, v4, v5
        v_cmp_ne_u32 vcc, 0, v3
        s_cmp_eq_u64 vcc, 0
        s_cbranch_scc1 L_hp1
        s_sleep 2
        s_sub_u32 s15, s15, 1
        s_cmp_lg_u32 s15, 0
        s_cbranch_scc1 L_hp0
        L_hp1:
        s_mov_b64 exec, -1
        s_mov_b32 s15, %d
        L_hp:""" % (WS_H, SPIN, vr(HB, 4), sq(rWS), vr(HB + 4, 4), sq(rWS), HB + 2, HB + 6, SPIN))
        for k in range(8):
            e('buffer_load_dwordx4 %s, v254, %s, s%d offen offset:%d sc1' % (vr(HB + 4 * k, 4), sq(rWS), 12 + k // 4, 1024 * (k % 4)))
        e('s_waitcnt vmcnt(0)\nv_mov_b32 v3, 0')
        for k in range(0, 8, 2):
            e('v_xor_b32 v4, s10, v%d\nv_xor_b32 v5, s10, v%d\nv_or3_b32 v3, v3, v4, v5' % (HB + 4 * k + 2, HB + 4 * k + 6))
        e("""v_cmp_ne_u32 vcc, 0, v3
        s_cmp_eq_u64 vcc, 0
        s_cbranch_scc1 L_hok
        s_mov_b64 exec, vcc
        s_sleep 2
        s_sub_u32 s15, s15, 1
        s_cmp_lg_u32 s15, 0
        s_cbranch_scc1 L_hp
        L_hok:
        s_mov_b64 exec, -1""")
        if self.opt.get('ets') == 2: self.ts(6)
        for k in range(4):
            e('v_pk_add_f32 %s, %s, %s' % (vr(HB + 4 * k, 2), vr(HB + 4 * k, 2), vr(HB + 16 + 4 * k, 2)))
        for k in range(4):
            e('v_cvt_pk_bf16_f32 v%d, v%d, v%d' % (4 + k, HB + 4 * k, HB + 4 * k + 1))
        for k in range(4):
            e('v_lshlrev_b32 v%d, 16, v%d\nv_and_b32 v%d, 0xffff0000, v%d' % (HB + 2 * k, 4 + k, HB + 2 * k + 1, 4 + k))
        F = HB + 8
        for r in range(4): e('v_mul_f32 v%d, 0xbfb8aa3b, v%d' % (F + r, HB + r))
        for r in range(4): e('v_exp_f32 v%d, v%d' % (F + r, F + r))
        for r in range(4): e('v_add_f32 v%d, 1.0, v%d' % (F + r, F + r))
        for r in range(4): e('v_rcp_f32 v%d, v%d' % (F + r, F + r))
        for r in range(4): e('v_mul_f32 v%d, v%d, v%d' % (HB + r, HB + r, F + r))
        for k in range(2):
            e('v_cvt_pk_bf16_f32 v%d, v%d, v%d' % (4 + k, HB + 2 * k, HB + 2 * k + 1))
        for k in range(2):
            e('v_lshlrev_b32 v%d, 16, v%d\nv_and_b32 v%d, 0xffff0000, v%d' % (HB + 2 * k, 4 + k, HB + 2 * k + 1, 4 + k))
        for r in range(4): e('v_mul_f32 v%d, v%d, v%d' % (HB + r, HB + r, HB + 4 + r))
        e("""v_cvt_pk_bf16_f32 v24, v%d, v%d
        v_cvt_pk_bf16_f32 v25, v%d, v%d
        v_and_b32 v3, 1, v0
        v_lshrrev_b32 v4, 1, v0
        v_lshlrev_b32 v3, 8, v3
        v_lshl_add_u32 v3, v4, 3, v3
        v_add_u32 v3, %d, v3
        ds_write_b64 v3, v[24:25]
        L_dn2:
        v_and_b32 v5, 1, v1
        v_lshlrev_b32 v6, 8, v5
        v_lshl_add_u32 v6, v2, 4, v6
        v_add_u32 v6, %d, v6
        v_lshlrev_b32 v7, 5, v2
        v_lshl_add_u32 v7, v1, 4, v7
        s_mul_i32 s11, s68, 10240
        s_mul_i32 s12, s5, 1280
        s_add_u32 s11, s11, s12
        s_add_u32 s11, s11, %d""" % (HB, HB + 1, HB + 2, HB + 3, MH, MH, WS_Y))
        YG = 168
        for k in range(10):
            e('v_mov_b32 v%d, s10\nv_mov_b32 v%d, 0' % (YG + 4 * k + 2, YG + 4 * k + 3))
        e('s_waitcnt lgkmcnt(0)\ns_barrier')
        for ks in range(4):
            e('ds_read_b128 %s, v6 offset:%d' % (vr(16 + 4 * ks, 4), 64 * ks))
        for ks in range(4):
            e('s_waitcnt lgkmcnt(%d)' % (3 - ks))
            for j in range(5):
                e('v_mfma_f32_16x16x32_bf16 %s, %s, %s, %s' % (vr(YA + 4 * j, 4), vr(WD + 20 * ks + 4 * j, 4), vr(16 + 4 * ks, 4), '0' if ks == 0 else vr(YA + 4 * j, 4)))
        e('v_cmp_gt_u32 vcc, 2, v1\ns_and_b64 exec, exec, vcc')
        for j in range(5):
            for h in range(2):
                d = YG + 4 * (2 * j + h)
                e('v_mov_b32 v%d, v%d\nv_mov_b32 v%d, v%d' % (d, YA + 4 * j + 2 * h, d + 1, YA + 4 * j + 2 * h + 1))
                e('buffer_store_dwordx4 %s, v7, %s, s11 offen offset:%d sc1' % (vr(d, 4), sq(rWS), 256 * j + 128 * h))
        e('s_mov_b64 exec, -1')
        self.ts(3)

    def build(self):
        self.tail = []
        for txt, f in (('start-up, role split, first loads of the row statistics', self.prologue),
                       ('loader waves, first chunk', self.loader),
                       ('gate/up workgroups, first stage', self.expert),
                       ('down workgroups, first stage', self.down),
                       ('loader waves, ring loop, row table, wo image', lambda: self.loader_rest()),
                       ('gate/up workgroups, top-2, partial pre-activations', lambda: self.expert_rest()),
                       ('down workgroups, h and partial y', lambda: self.down_rest()),
                       ('waves outside the attention stage, epoch word, expert update of this row block', self.p2wo),
                       ('compute waves without statistics', self.w23),
                       ('row statistics and router key', self.stats),
                       ('q k v gemm', self.gemm1),
                       ('attention', self.attention),
                       ('output stage', self.phase2)):
            self.L.append('; ======== ' + txt)
            f()
        self.L.append('; ======== out-of-line waits and retries')
        for f in self.tail: f()
        self.e('L_end:\ns_endpgm')
        return self.L

DOC = """; ---------------------------------------------------------------------------------------------------------------
; One launch, 256 workgroups of 8 waves, one per CU (all resident; every wait is bounded).  id&7 is the expected die,
; id>>3 the slot; the id map only serves L2 locality, every hand-off is checked and works under any placement.
;
; gemm workgroups (220): row tile i (96 rows + 14 halo rows) x column line l (64 columns of each of q, k, v).
;   waves 4-7 stream x and W through a 4-slot LDS ring (LDS-DMA), waves 0-3 run the MFMAs on raw x; layer norm is
;   attention per 16-row tile with MFMAs (k q^T, true-max softmax, p v); heads cut by a line boundary swap their
;   partial logits with the neighbour workgroup.  o is stored in MFMA operand order for the output stage.
;
; hand-offs through d_ws carry the launch tag = (epoch word found in d_ws) + 1; the word is advanced once every
; workgroup has read it.  o blocks carry check sums.  Stores stay in the local L2 only when the 32 workgroups
; of this id class have all reported the same die; otherwise (and across dies) they are written through.
; ---------------------------------------------------------------------------------------------------------------
"""
HEAD = open('cdna_kernels/%s.s.ref' % NAME).read().split('; Override launch')[0]

def generate(opt):
    g = G(opt)
    L = g.build()
    L = [x.replace('HINTSKIP', 's_branch L_hp' if opt.get('nohint') else 's_nop 0') for x in L]
    L = [x.replace('IMSLEEP', 's_sleep %d' % opt.get('ims', 1) if opt.get('ims', 1) else 's_nop 0') for x in L]
    L = [x.replace('COLOC', str(opt.get('coloc', 1))) for x in L]
    L = [x.replace(' OUTF', ('', ' nt', ' sc1', ' sc0 sc1')[opt.get('outf', 0)]) for x in L]
    L = [x.replace('OMODE', str(opt.get('omode', 2))) for x in L]
    if opt.get('noxch'): L = [x for x in L if not (any('v254, s[52:55], s7%d offen' % k in x for k in range(4)) or 's_cbranch_scc1 L_xretry' in x)]
    if opt.get('noval'): L = [x for x in L if 's_cbranch_scc1 L_oretry' not in x]; L = [x.replace('s_cmp_ge_u32 s11, 6', 's_cmp_ge_u32 s11, 0') for x in L]
    if opt.get('nopub'): L = [x for x in L if not ('s25 offen' in x or 's26 offen' in x)]
    if opt.get('noold'): L = [x for x in L if not (('s22 offen' in x or 's23 offen' in x or 's24 offen' in x or 's27 offen' in x) and 'load' in x)]
    if opt.get('nost'): L = [x for x in L if 's[56:59]' not in x]
    L = [x.replace('LTH', str(opt.get('lth', 6))).replace('RTH', str(opt.get('rth', 6))) for x in L]
    L = [x.replace('HSL', str(opt.get('hsl', 2))) for x in L]
    if opt.get('ntx'): L = [x + ' nt' if 'buffer_store' in x and 'sc1' not in x and any(k in x for k in ('s70 offen', 's71 offen', 's74 offen')) else x for x in L]
    if opt.get('nto'): L = [x + ' nt' if 'buffer_store' in x and 'sc1' not in x and any(k in x for k in ('s25 offen', 's26 offen', 's30 offen')) else x for x in L]
    if opt.get('ntw'): L = [x.replace('offen lds', 'offen nt lds') if 's[44:47]' in x or (opt['ntw'] > 1 and 's[40:43]' in x) else x for x in L]
    FL = {1: ' nt', 2: ' sc0', 3: ' sc0 sc1', 4: ' nt sc1'}
    if opt.get('lo'): L = [x.replace(' sc1', FL[opt['lo']]) if 'buffer_load' in x and any(k in x for k in ('s22 offen', 's23 offen', 's24 offen', 's63 offen')) else x for x in L]
    if opt.get('lx'): L = [x.replace(' sc1', FL[opt['lx']]) if 'buffer_load' in x and 'v230' in x else x for x in L]
    L, added = hz.fix(L)
    k = NAME + '_kernel'
    s = HEAD + '; @launch grid=(256,1,1) block=(512,1,1) lds=%d\n' % LDS_BYTES
    s += '.amdgcn_target "amdgcn-amd-amdhsa--gfx950"\n' + DOC + '.text\n.globl %s\n.p2align 8\n.type %s,@function\n%s:\n' % (k, k, k)
    s += '\n'.join(L) + '\n'
    s += """.section .rodata,"a"
.p2align 6
.amdhsa_kernel %s
  .amdhsa_next_free_vgpr 256
  .amdhsa_next_free_sgpr 102
  .amdhsa_accum_offset 256
  .amdhsa_group_segment_fixed_size 0
  .amdhsa_kernarg_size 88
  .amdhsa_user_sgpr_count 2
  .amdhsa_user_sgpr_kernarg_segment_ptr 1
  .amdhsa_system_sgpr_workgroup_id_x 1
  .amdhsa_float_denorm_mode_32 3
.end_amdhsa_kernel
""" % k
    import subprocess, re, os, tempfile
    d = tempfile.mkdtemp()
    open(d + '/a.s', 'w').write(s.replace('CODE_LAST', '0x1000'))
    subprocess.run(['clang', '-x', 'assembler', '-target', 'amdgcn-amd-amdhsa', '-mcpu=gfx950', '-c', d + '/a.s', '-o', d + '/a.o'], check=True)
    h = subprocess.run(['llvm-objdump', '-h', d + '/a.o'], capture_output=True, text=True).stdout
    size = int(re.search(r'\.text\s+([0-9a-f]+)', h).group(1), 16)
    generate.size = size
    sy = subprocess.run(['llvm-objdump', '-t', d + '/a.o'], capture_output=True, text=True).stdout
    pc = int(re.search(r'^([0-9a-f]+) .* L_pc$', sy, re.M).group(1), 16)
    return s.replace('CODE_LAST', hex((size - pc - 4) & ~3))

if __name__ == '__main__':
    opt = {}
    out = 'cdna_kernels/%s.s' % NAME
    for a in sys.argv[1:]:
        if a.startswith('-o'):
            out = a[2:]
        else:
            kx, vx = a.split('=')
            opt[kx] = int(vx)
    open(out, 'w').write(generate(opt))
    print('wrote', out, 'code bytes', generate.size)
```

```python
import sys
sys.path.insert(0, 'dev')
import hz

NAME = 'parallel_sum__sliding_local_dilated__moe_arch_mod__prompt'
XB, WB, WOB, GB = 2621440, 2457600, 819200, 1966080
WSB = 0xb00000
WS_EPOCH, WS_SEL, WS_YFLAG, WS_STAT, WS_KEY, WS_FLAG = 0x0, 0x100, 0x9000, 0x1000, 0x5000, 0x2b0000
WS_XCH, WS_O, WS_Y, WS_XCB = 0x10000, 0x300000, 0x600000, 0x800000
WS_TS = 0x7c0000
WS_CHK = 0x580000
WS_PRES = 0x2e0000
WS_H = 0x5d0000
WS_XN = 0xe000
SLOT, XPART, DEPTH = 38912, 14336, 3
P = 496
WOIMG = 55552
TAB = 157952
LDS_BYTES = 163840
SPIN = 200000

sXCD, sSLOT, sWAVE, sI, sLL, sL, sROLE, sTAG = 's3', 's4', 's5', 's6', 's7', 's8', 's9', 's10'
pX, pW, pWO, pWR, pG, pU, pD, pOUT, pDBG, pWS = 16, 18, 20, 24, 26, 28, 30, 32, 34, 36
rX, rW, rWO, rWS, rOUT, rU, rD = 40, 44, 48, 52, 56, 60, 64

def sp(n): return 's[%d:%d]' % (n, n + 1)
def sq(n): return 's[%d:%d]' % (n, n + 3)
def vr(n, k=1): return 'v%d' % n if k == 1 else 'v[%d:%d]' % (n, n + k - 1)

class G:
    def __init__(self, opt):
        self.L = []; self.opt = opt; self.nl = 0; self.nts = 0
        self.D = opt.get('depth', 4); self.S0 = (2 - 9) % self.D
    def e(self, s):
        for ln in s.strip('\n').split('\n'):
            ln = ln.strip()
            if not ln: continue
            if ln == 'CLEAN':
                if self.opt.get('cl', 0):
                    self.e('s_cmp_eq_u32 s38, 0\ns_cbranch_scc1 L_fin')
                    self.e('buffer_store_dwordx4 v[240:243], v254, s[52:55], s30 offen sc1\nbuffer_store_dwordx4 v[248:251], v254, s[52:55], s30 offen offset:1024 sc1')
                if self.opt.get('cl', 0) > 1:
                    self.e('v_lshlrev_b32 v3, 3, v0\nbuffer_store_dwordx2 v[252:253], v3, s[52:55], s70 offen sc1\nbuffer_store_dwordx2 v[14:15], v3, s[52:55], s71 offen sc1')
                continue
            if ln == 'XNPREP':
                self.xn_prep(); continue
            self.L.append(ln if ln.endswith(':') else '    ' + ln)
    def lab(self, base):
        self.nl += 1
        return 'L_%s_%d' % (base, self.nl)
    def srd(self, r, p, nbytes):
        self.e('s_mov_b32 s%d, s%d\ns_mov_b32 s%d, s%d\ns_mov_b32 s%d, %d\ns_mov_b32 s%d, 0x20000' % (r, p, r + 1, p + 1, r + 2, nbytes, r + 3))
    def ts(self, k, force=False):
        if self.opt.get('lt2') and not force and k not in (0, 9): return
        if self.opt.get('clk'):
            m = {0: (0, 1), 3: (2, 3), 7: (4, 5), 9: (6, 7)}
            if k in m:
                self.e('s_memrealtime s[%d:%d]\ns_memtime s[%d:%d]' % (80 + 2 * m[k][0], 81 + 2 * m[k][0], 80 + 2 * m[k][1], 81 + 2 * m[k][1]))
            return
        if self.opt.get('ts') and not (self.opt.get('ts_off') and k in (4, 5, 6)):
            self.e('%s s[%d:%d]' % ('s_memtime' if self.opt.get('cyc') else 's_memrealtime', 80 + 2 * k, 81 + 2 * k))
    def allreduce16(self, v, op='v_add_f32'):
        for n in (8, 4, 2, 1):
            self.e('%s_dpp v%d, v%d, v%d row_ror:%d row_mask:0xf bank_mask:0xf' % (op, v, v, v, n))
    def tag_load(self):
        self.e('s_load_dword s10, s[36:37], %d' % WS_EPOCH)
    def count_in(self, wave, va=4):
        lab = self.lab('cnt')
        self.e('''s_cmp_lg_u32 s5, %d
        s_cbranch_scc1 %s
        s_lshl_b32 s11, s3, 5
        s_add_u32 s11, s11, s4
        s_lshl_b32 s11, s11, 2
        s_add_u32 s11, s11, %d
        v_mov_b32 v%d, s11
        s_getreg_b32 s11, hwreg(HW_REG_XCC_ID, 0, 4)
        s_lshl_b32 s11, s11, 28
        s_xor_b32 s11, s11, s10
        v_mov_b32 v%d, s11
        s_mov_b64 exec, 1
        buffer_store_dword v%d, v%d, %s, 0 offen sc1
        s_mov_b64 exec, -1
        %s:''' % (wave, lab, WS_PRES, va, va + 1, va + 1, va, sq(rWS), lab))
    def tag_ready(self):
        self.e('s_waitcnt lgkmcnt(0)\ns_add_u32 s10, s10, 1')

    def prologue(self):
        e = self.e
        self.ts(0)
        e("""s_load_dwordx16 s[16:31], s[0:1], 0
        s_load_dwordx4 s[32:35], s[0:1], 64
        s_load_dwordx2 s[36:37], s[0:1], 80
        s_cmp_ge_u32 s2, 256
        s_cbranch_scc1 L_end
        v_lshrrev_b32 v1, 6, v0
        v_and_b32 v0, 63, v0
        s_lshr_b32 s4, s2, 3
        v_readfirstlane_b32 s5, v1
        s_and_b32 s3, s2, 7""")
        e("""s_cmp_lg_u32 s5, 3
        s_cbranch_scc1 L_nopf
        s_getpc_b64 s[12:13]
        L_pc:
        s_and_b32 s14, s4, %d
        s_lshl_b32 s14, s14, 13
        v_lshl_add_u32 v2, v0, 7, s14
        v_min_u32 v2, CODE_LAST, v2
        global_load_dword v255, v2, s[12:13]
        L_nopf:""" % (self.opt.get('pfblocks', 4) - 1))
        if self.opt.get('ts'):
            for k in range(2 if self.opt.get('clk') else 1, 10): e('s_mov_b32 s%d, 0' % (80 + 2 * k))
        e("""s_bfe_u32 s76, s2, 0x10001
        s_and_b32 s77, s2, 1
        s_bfe_u32 s78, s2, 0x10002
        s_mul_i32 s11, s4, 52
        s_lshr_b32 s11, s11, 8
        s_mul_i32 s12, s11, 5
        s_sub_u32 s7, s4, s12
        s_mul_i32 s12, s78, 11
        s_add_u32 s6, s11, s12
        s_mul_i32 s12, s76, 6
        s_add_u32 s6, s6, s12
        s_mul_i32 s12, s77, 5
        s_add_u32 s8, s7, s12
        s_mul_i32 s12, s76, 5
        s_sub_u32 s12, 30, s12
        s_sub_u32 s79, s4, s12
        s_cmp_ge_u32 s4, s12
        s_cbranch_scc1 L_aux
        s_cmp_ge_u32 s5, 4
        s_cbranch_scc1 L_loader
        s_mul_i32 s12, s5, 10
        s_add_u32 s12, s12, s8
        s_cmp_ge_u32 s12, 24
        s_cbranch_scc1 L_w23
        s_mul_i32 s11, s6, 96
        s_lshl_b32 s12, s12, 2
        s_add_u32 s11, s11, s12""")
        e("""L_stats:
        s_setprio 3
        v_lshrrev_b32 v2, 4, v0
        v_add_u32 v2, s11, v2
        v_and_b32 v3, 15, v0
        v_lshlrev_b32 v4, 4, v3
        v_mul_u32_u24 v5, 1280, v2
        v_add_u32 v5, v5, v4
        s_waitcnt lgkmcnt(0)""")
        for j in range(5):
            e('global_load_dwordx4 %s, v4, %s offset:%d' % (vr(40 + 4 * j, 4), sp(pWR), 256 * j))
        self.srd(rX, pX, XB)
        for j in range(5):
            e('buffer_load_dwordx4 %s, v5, %s, 0 offen offset:%d' % (vr(20 + 4 * j, 4), sq(rX), 256 * j))
        e('s_branch L_stats2')

    def att_setup(self):
        self.e("""v_and_b32 v100, 15, v0
        v_lshrrev_b32 v101, 4, v0
        s_lshl_b32 s11, s5, 4
        v_add_u32 v102, s11, v100
        v_mul_u32_u24 v102, %d, v102
        v_lshlrev_b32 v103, 3, v101
        v_mov_b32 v104, 0x08100800
        v_lshrrev_b32 v103, v103, v104
        v_and_b32 v103, 0xff, v103
        v_add_u32 v231, v102, v103
        v_add_u32 v228, %d, v231
        v_lshrrev_b32 v102, 2, v0
        v_add_u32 v102, s11, v102
        v_mul_u32_u24 v102, %d, v102
        v_and_b32 v103, 3, v0
        v_lshl_add_u32 v229, v103, 3, v102
        v_and_b32 v102, 1, v0
        v_lshl_add_u32 v103, v101, 2, v102
        v_lshlrev_b32 v102, 4, v102
        v_mov_b32 v104, 0xffff
        v_lshlrev_b32 v104, v102, v104
        v_cmp_le_u32 vcc, v103, v100
        v_cndmask_b32 v212, 0, v104, vcc
        v_xor_b32 v214, v212, v104
        v_add_u32 v103, 2, v103
        v_cmp_le_u32 vcc, v103, v100
        v_cndmask_b32 v213, 0, v104, vcc
        v_xor_b32 v215, v213, v104""" % (P, 16 * P, P))
        for r in range(16):
            self.e('v_mov_b32 v%d, 0' % (196 + r))

    def att_scalars(self):
        CUR0, CUR1 = 0xf000ff00fff0ffff, 0xc000fc00ffc0fffc
        txt = ("""s_mov_b32 s64, 0xaaaaaaaa
        s_mov_b32 s65, 0xaaaaaaaa
        s_mov_b32 s66, 0x%x
        s_mov_b32 s67, 0x%x
        s_mov_b32 s68, 0x%x
        s_mov_b32 s69, 0x%x
        s_getreg_b32 s74, hwreg(HW_REG_XCC_ID, 0, 4)
        s_lshl_b32 s74, s74, 12
        s_xor_b32 s74, s74, s10
        s_and_b32 s74, s74, 0xffff
        s_and_b32 s75, s74, 0xff
        s_lshr_b32 s39, s74, 8
        s_mul_i32 s12, s6, 10
        s_add_u32 s12, s12, s8
        s_mul_i32 s12, s12, 12
        s_add_u32 s12, s12, s5
        s_lshl_b32 s12, s12, 9
        s_add_u32 s12, s12, %d
        s_mov_b32 s13, 0x7f000000
        s_sub_u32 s14, s12, 3072
        s_cmp_ge_u32 s7, 1
        s_cselect_b32 s70, s12, s13
        s_cselect_b32 s72, s14, s13
        s_cselect_b32 s76, s74, 0
        s_add_u32 s14, s12, 3072
        s_add_u32 s12, s12, 6144
        s_cmp_le_u32 s7, 3
        s_cselect_b32 s71, s14, s13
        s_cselect_b32 s73, s12, s13
        s_cselect_b32 s77, s74, 0
        s_lshl_b32 s11, s7, 3
        s_lshl_b64 s[28:29], -1, s11
        s_lshl_b64 s[28:29], s[28:29], s11
        s_mul_i32 s12, s6, 6
        s_add_u32 s12, s12, s5
        s_lshr_b32 s11, s12, 4
        s_cmp_eq_u32 s11, s3
        s_cselect_b32 s31, 1, 0
        s_mul_i32 s14, s12, 10
        s_add_u32 s14, s14, s8
        s_lshl_b32 s25, s14, 11
        s_add_u32 s25, s25, %d
        s_lshl_b32 s26, s14, 7
        s_add_u32 s26, s26, %d
        s_cmpk_ge_u32 s12, 128
        s_cselect_b32 s25, s13, s25
        s_cselect_b32 s26, s13, s26
        s_mov_b32 s38, 3""" % (CUR0 & 0xffffffff, CUR0 >> 32, CUR1 & 0xffffffff, CUR1 >> 32, WS_XCH, WS_O, WS_FLAG))
        return [x.strip() for x in txt.split('\n')]


    def p2_setup(self):
        self.e("""s_lshl_b32 s60, s3, 2
        s_and_b32 s11, s4, 3
        s_add_u32 s60, s60, s11
        s_lshl_b32 s60, s60, 2
        s_and_b32 s12, s5, 3
        s_add_u32 s60, s60, s12
        s_lshr_b32 s61, s5, 2
        s_xor_b32 s61, s61, s3
        s_and_b32 s61, s61, 1
        s_lshr_b32 s62, s4, 2
        s_mul_i32 s62, s62, 80
        s_mov_b32 s38, 0
        v_and_b32 v100, 15, v0
        v_lshrrev_b32 v101, 4, v0
        s_lshl_b32 s12, s60, 4
        v_add_u32 v102, s12, v100
        v_lshlrev_b32 v235, 3, v102
        v_add_u32 v235, %d, v235
        v_mul_u32_u24 v102, 1280, v102
        v_lshl_add_u32 v102, v101, 3, v102
        s_lshl_b32 s12, s62, 1
        v_add_u32 v234, s12, v102
        v_lshlrev_b32 v254, 4, v0
        v_and_b32 v102, 1, v101
        v_mul_u32_u24 v102, 24, v102
        v_add_u32 v233, v234, v102
        v_lshrrev_b32 v102, 2, v0
        v_and_b32 v103, 3, v0
        v_mul_u32_u24 v102, 160, v102
        v_lshl_add_u32 v102, v103, 3, v102
        s_xor_b32 s12, s61, s11
        s_and_b32 s12, s12, 1
        s_mul_i32 s12, s12, 51200
        s_add_u32 s12, s12, %d
        v_add_u32 v244, s12, v102
        v_add_u32 v103, 10240, v244
        v_cmp_gt_u32 vcc, 16, v0
        v_cndmask_b32 v245, v244, v103, vcc
        v_cmp_gt_u32 vcc, 32, v0
        v_cndmask_b32 v246, v244, v103, vcc
        v_cmp_gt_u32 vcc, 48, v0
        v_cndmask_b32 v247, v244, v103, vcc""" % (WS_STAT, WOIMG))
        self.srd(rOUT, pOUT, XB)
        self.e('''s_mul_i32 s12, s60, 10
        s_mul_i32 s11, s61, 5
        s_add_u32 s12, s12, s11
        s_lshl_b32 s63, s12, 7
        s_add_u32 s63, s63, %d
        s_and_b32 s11, s5, 3
        s_mul_i32 s11, s11, %d
        s_add_u32 s11, s11, 160
        v_mul_u32_u24 v101, %d, v101
        v_add3_u32 v232, v101, v254, s11
        s_lshl_b32 s22, s12, 11
        s_add_u32 s22, s22, %d
        s_add_u32 s23, s22, 4096
        s_add_u32 s24, s22, 8192''' % (WS_FLAG, 20 * P, P - 256, WS_O))
        self.e('''s_cmp_ge_u32 s60, 36
        s_cselect_b32 s11, 1, 0
        s_cmpk_ge_u32 s60, 66
        s_addc_u32 s11, s11, 0
        s_cmpk_ge_u32 s60, 102
        s_addc_u32 s11, s11, 0
        s_lshl_b32 s11, s11, 1
        s_add_u32 s11, s11, s61
        s_cmp_eq_u32 s11, s3
        s_cselect_b32 s100, %d, 0''' % self.opt.get('lf', 1))

    def p2_loads(self):
        self.e('buffer_load_dwordx2 v[160:161], v235, %s, 0 offen sc1' % sq(rWS))
        self.e('buffer_load_dwordx4 v[162:165], v233, %s, 0 offen\nbuffer_load_dwordx4 v[166:169], v233, %s, 0 offen offset:64' % (sq(rX), sq(rX)))
        self.e('buffer_load_dwordx2 v[170:171], v234, %s, 0 offen offset:128' % sq(rX))

    def w23(self):
        e = self.e
        e('L_w23:\ns_waitcnt lgkmcnt(0)')
        self.tag_load()
        self.srd(rX, pX, XB); self.srd(rWS, pWS, WSB)
        self.att_setup(); self.p2_setup()
        self.tag_ready()
        e('s_branch L_gemm')

    def stats(self):
        e = self.e
        X, Wr, F = 20, 40, 60
        e('L_stats2:')
        self.tag_load()
        self.srd(rWS, pWS, WSB)
        self.att_setup(); self.p2_setup()
        e('v_mov_b32 v9, 0x3f803f80\nv_mov_b32 v10, 0\nv_mov_b32 v11, 0\nv_mov_b32 v12, 0\nv_mov_b32 v13, 0')
        e('s_waitcnt vmcnt(0)')
        if self.opt.get('sts') == 1: self.ts(2)
        for d in range(20):
            e('v_dot2c_f32_bf16 v%d, v%d, v9' % (10 + (d & 3), X + d))
        for d in range(10):
            e('v_lshlrev_b32 v%d, 16, v%d\nv_and_b32 v%d, 0xffff0000, v%d' % (F + 2 * d, X + d, F + 2 * d + 1, X + d))
        e('v_add_f32 v10, v10, v11\nv_add_f32 v12, v12, v13\nv_add_f32 v6, v10, v12')
        for k, n in enumerate((8, 4, 2, 1)):
            for d in (10 + 2 * k, 11 + 2 * k):
                e('v_lshlrev_b32 v%d, 16, v%d\nv_and_b32 v%d, 0xffff0000, v%d' % (F + 2 * d, X + d, F + 2 * d + 1, X + d))
            e('v_add_f32_dpp v6, v6, v6 row_ror:%d row_mask:0xf bank_mask:0xf' % n)
        for d in (18, 19):
            e('v_lshlrev_b32 v%d, 16, v%d\nv_and_b32 v%d, 0xffff0000, v%d' % (F + 2 * d, X + d, F + 2 * d + 1, X + d))
        e("""v_mul_f32 v7, 0x3acccccd, v6
        v_cvt_pk_bf16_f32 v8, v7, v7
        v_lshlrev_b32 v6, 16, v8
        v_mov_b32 v10, 0
        v_mov_b32 v11, 0
        v_mov_b32 v12, 0
        v_mov_b32 v13, 0""")
        for r in range(40):
            e('v_sub_f32 v%d, v%d, v6' % (F + r, F + r))
        for r in range(40):
            e('v_fmac_f32 v%d, v%d, v%d' % (10 + (r & 3), F + r, F + r))
        e('v_sub_f32 v7, v7, v6\nv_add_f32 v10, v10, v11\nv_add_f32 v12, v12, v13\nv_add_f32 v14, v10, v12')
        e('v_mov_b32 v10, 0\nv_mov_b32 v11, 0')
        for k, n in enumerate((8, 4, 2, 1)):
            for d in range(5 * k, 5 * k + 5):
                e('v_cvt_pk_bf16_f32 v%d, v%d, v%d' % (X + d, F + 2 * d, F + 2 * d + 1))
            e('v_add_f32_dpp v14, v14, v14 row_ror:%d row_mask:0xf bank_mask:0xf' % n)
        e('s_waitcnt vmcnt(0)')
        for d in range(20):
            e('v_dot2c_f32_bf16 v%d, v%d, v%d' % (10 + (d & 1), X + d, Wr + d))
        e("""v_mul_f32 v14, 0x3acccccd, v14
        v_fma_f32 v14, -v7, v7, v14
        v_max_f32 v14, 0, v14
        v_cvt_pk_bf16_f32 v14, v14, v14
        v_add_f32 v10, v10, v11
        v_and_b32 v14, 0xffff0000, v14
        v_add_f32 v14, 0x3727c5ac, v14
        v_add_f32_dpp v10, v10, v10 row_ror:8 row_mask:0xf bank_mask:0xf
        v_cvt_pk_bf16_f32 v14, v14, v14
        v_and_b32 v14, 0xffff0000, v14
        v_add_f32_dpp v10, v10, v10 row_ror:4 row_mask:0xf bank_mask:0xf
        v_sqrt_f32 v14, v14
        v_and_b32 v8, 0xffff, v8
        v_add_f32_dpp v10, v10, v10 row_ror:2 row_mask:0xf bank_mask:0xf
        v_cvt_pk_bf16_f32 v14, v14, v14
        v_and_b32 v14, 0xffff0000, v14
        v_add_f32_dpp v10, v10, v10 row_ror:1 row_mask:0xf bank_mask:0xf
        v_rcp_f32 v12, v14
        v_or_b32 v16, v8, v14
        v_mul_f32 v10, v10, v12""")
        e("""v_cvt_pk_bf16_f32 v10, v10, v10
        v_bfe_i32 v11, v10, 15, 1
        v_or_b32 v11, 0x8000, v11
        v_xor_b32 v10, v10, v11
        v_lshlrev_b32 v10, 16, v10
        v_sub_u32 v11, 2047, v2
        v_or_b32 v18, v10, v11
        v_cmp_eq_u32 vcc, 0, v3
        v_cndmask_b32 v16, v18, v16, vcc
        v_lshlrev_b32 v5, 14, v3
        v_lshl_add_u32 v5, v2, 3, v5
        s_movk_i32 s14, 2048
        v_cmp_gt_u32 vcc, 2, v3
        v_cmp_gt_u32 s[12:13], s14, v2
        s_and_b64 s[70:71], vcc, s[12:13]""")
        if self.opt.get('sts') == 2: self.ts(2)
        self.tag_ready()
        if self.opt.get('sts') == 3: self.ts(2)
        e("""v_mov_b32 v17, s10
        s_mov_b32 s11, %d
        s_mov_b64 exec, s[70:71]
        s_cbranch_execz L_stend
        buffer_store_dwordx2 v[16:17], v5, %s, s11 offen sc1
        L_stend:
        s_mov_b64 exec, -1""" % (WS_STAT, sq(rWS)))
        assert WS_KEY - WS_STAT == 1 << 14

    def wo_setup(self, vb):
        e = self.e
        self.srd(rWO, pWO, WOB)
        e('''s_lshr_b32 s11, s4, 2
        s_mul_i32 s11, s11, 160
        s_and_b32 s70, s4, 1
        s_mul_i32 s70, s70, 10''')
        for j in range(5):
            e('''v_add_u32 v2, %d, v0
            v_mul_u32_u24 v3, 6554, v2
            v_lshrrev_b32 v3, 16, v3
            v_mul_u32_u24 v4, 10, v3
            v_sub_u32 v4, v2, v4
            v_mul_u32_u24 v3, 1280, v3
            v_lshl_add_u32 v3, v4, 4, v3
            v_add_u32 v%d, s11, v3''' % (64 * j, vb + j))
    def wo_block(self, vb, spos):
        e = self.e
        e('''s_add_u32 s12, %s, s70
        s_cmp_ge_u32 s12, 20
        s_cselect_b32 s13, 20, 0
        s_sub_u32 s12, s12, s13
        s_mul_i32 s12, s12, 40960
        s_mul_i32 s13, %s, 5120
        s_add_u32 s13, s13, %d''' % (spos, spos, WOIMG))
        for j in range(5):
            e('s_add_u32 m0, s13, %d' % (1024 * j))
            e('buffer_load_dwordx4 v%d, %s, s12 offen lds' % (vb + j, sq(rWO)))

    def loader(self):
        e = self.e
        e('L_loader:')
        RA, RB, RM, RS = (self.opt.get(k, d) for k, d in (('ra', 1), ('rb', 1), ('rm', 3), ('rs', 7)))
        assert all((x * (65536 // RM + 1)) >> 16 == x // RM for x in range(200)) and (RM - 1) * RS < 20
        e('''s_sub_u32 s14, s5, 4
        s_and_b32 s15, s14, 1
        v_lshrrev_b32 v2, 3, v0
        v_and_b32 v3, 7, v0
        v_lshrrev_b32 v4, 4, v0
        s_lshl_b32 s11, s15, 2
        v_add_u32 v5, s11, v4
        v_xor_b32 v5, v3, v5
        s_mul_i32 s11, s6, 96
        s_lshl_b32 s12, s14, 3
        s_add_u32 s11, s11, s12
        s_sub_u32 s11, s11, 16
        s_mul_i32 s11, s11, 1280
        v_mul_u32_u24 v6, 1280, v2
        v_lshl_add_u32 v6, v5, 4, v6
        v_add_u32 v10, s11, v6
        v_add_u32 v11, 40960, v10
        v_add_u32 v12, 0x14000, v10
        v_add_u32 v13, 0x1e000, v10
        v_and_b32 v4, 1, v4
        v_lshl_or_b32 v4, s15, 1, v4
        v_lshlrev_b32 v4, 1, v4
        v_xor_b32 v4, v3, v4
        v_add_u32 v2, s12, v2
        v_mul_u32_u24 v2, 3840, v2
        v_lshl_add_u32 v2, v4, 4, v2
        s_lshl_b32 s11, s8, 7
        v_add_u32 v14, s11, v2
        s_mul_i32 s68, s7, %d
        s_mul_i32 s11, s6, %d
        s_add_u32 s68, s68, s11
        s_mul_i32 s11, s68, %d
        s_lshr_b32 s11, s11, 16
        s_mul_i32 s11, s11, %d
        s_sub_u32 s68, s68, s11
        s_mul_i32 s68, s68, %d
        s_lshr_b32 s68, s68, 1
        s_lshl_b32 s69, s14, 10
        s_cmp_eq_u32 s14, 0
        s_cselect_b32 s72, 0xffff0000, -1
        s_mov_b32 s73, -1
        s_waitcnt lgkmcnt(0)''' % (RA, RB, 65536 // RM + 1, RM, RS))
        self.srd(rX, pX, XB); self.srd(rW, pW, WB)
        self.ts(1)
        def issue(c, parts=(0, 1, 2)):
            base = ((c + self.S0) % self.D) * SLOT
            if 0 in parts:
                sk = self.lab('xs')
                e('s_lshl_b32 s11, s68, 7\ns_mul_i32 s39, s68, 245760')
                e('s_add_u32 m0, s69, %d\ns_mov_b64 exec, s[72:73]' % base)
                e('buffer_load_dwordx4 v10, %s, s11 offen lds\ns_mov_b64 exec, -1' % sq(rX))
                for a in (1, 2):
                    e('s_add_u32 m0, s69, %d' % (base + a * 4096))
                    e('buffer_load_dwordx4 v%d, %s, s11 offen lds' % (10 + a, sq(rX)))
                e('s_cmp_ge_u32 s14, 2\ns_cbranch_scc1 %s' % sk)
                e('s_add_u32 m0, s69, %d' % (base + 3 * 4096))
                e('buffer_load_dwordx4 v13, %s, s11 offen lds' % sq(rX))
                e('%s:' % sk)
                e('s_add_u32 s68, s68, 1\ns_cmp_eq_u32 s68, 10\ns_cselect_b32 s68, 0, s68')
            for hb in range(2):
                if hb + 1 in parts:
                    for y in range(3):
                        e('s_add_u32 m0, s69, %d\ns_add_u32 s13, s39, %d' % (base + XPART + y * 8192 + hb * 4096, y * 1280 + hb * 122880))
                        e('buffer_load_dwordx4 v14, %s, s13 offen lds' % sq(rW))
        issue(0)
        e('s_branch L_loader2')
        self.loader_rest = lambda: self.loader2(issue)

    def loader2(self, issue):
        e = self.e
        e('L_loader2:')
        self.tag_load()
        self.srd(rWS, pWS, WSB)
        self.wo_setup(20)
        e('''s_mul_i32 s11, s6, 96
        s_lshl_b32 s12, s14, 6
        s_add_u32 s11, s11, s12
        s_sub_u32 s11, s11, 16
        v_add_u32 v26, s11, v0
        v_lshlrev_b32 v27, 3, v26
        v_add_u32 v27, %d, v27
        v_add_u32 v28, s12, v0''' % WS_STAT)
        self.att_setup(); self.p2_setup()
        e('''v_lshrrev_b32 v3, 4, v28
        v_subrev_u32 v4, 96, v28
        v_cmp_gt_u32 vcc, 96, v28
        v_cndmask_b32 v3, v4, v3, vcc
        s_mul_i32 s13, s6, 6
        v_add_u32 v4, s13, v3
        v_mul_u32_u24 v5, 10, v4
        v_add_u32 v5, s8, v5
        v_and_b32 v36, 15, v28
        v_lshl_add_u32 v36, v5, 4, v36
        v_add_u32 v36, %d, v36
        v_add_u32 v5, %d, v5
        v_cndmask_b32 v36, v5, v36, vcc
        v_lshrrev_b32 v4, 4, v4
        v_cmp_eq_u32 vcc, s3, v4
        v_cmp_gt_u32 s[12:13], NCLO, v3
        s_and_b64 vcc, vcc, s[12:13]
        v_mov_b32 v37, 0xfe0000
        v_cndmask_b32 v36, v37, v36, vcc
        s_mul_i32 s11, s6, 10
        s_add_u32 s11, s11, s8
        s_mul_i32 s11, s11, 48
        s_add_u32 s11, s11, %d
        v_add_u32 v5, s11, v28
        s_cmp_eq_u32 s7, 0
        s_cselect_b32 s12, 24, 0
        s_add_u32 s12, s12, 128
        s_cmp_eq_u32 s7, 4
        s_cselect_b32 s13, 24, 48
        s_add_u32 s13, s13, 128
        v_cmp_le_u32 vcc, s12, v28
        v_cndmask_b32 v36, v36, v5, vcc
        v_cmp_le_u32 vcc, s13, v28
        v_cndmask_b32 v36, v36, v37, vcc
        v_lshlrev_b32 v36, 7, v36''' % (WS_O // 128, WS_FLAG // 128, WS_XCH // 128 - 128))
        INI = self.opt.get('ini', 6)
        issue(1, tuple(range(INI - 3)))
        self.tag_ready()
        assert WOIMG + 12 * 5120 >= 3 * SLOT and WOIMG + 4 * 5120 <= 2 * SLOT
        WOA, WOB_, STB = self.opt.get('woa', 7), self.opt.get('wob', 9), self.opt.get('stb', 5)
        assert self.D == 3 or (min(WOA, WOB_) >= 7 and 4 * SLOT <= TAB and STB + self.D - 1 <= 8)
        TBL = STB + self.opt.get('tbl', self.D - 1); seq = [('c', k) for k in range(INI)]; nxt = INI
        extra = {}
        for c in range(10):
            if c: seq.append(('x', extra.get(c - 1, 0)))
            need = [('c', 3 * c + 2)] + ([('t', 2)] if c == TBL else [])
            n = min(sum(3 if k == 'c' else v for k, v in seq[seq.index(nd) + 1:]) for nd in need)
            e('s_waitcnt vmcnt(%d)' % n)
            if self.opt.get('lts') and c in (0, 1, 2): self.ts(4 + c)
            e('s_barrier')
            if c == 0: self.ts(2)
            if self.opt.get('lt2') and 0 <= c - self.opt['lt2'] + 1 < 8: self.ts(c - self.opt['lt2'] + 2, True)
            ahead = min(3, max(0, (c - self.opt.get('deep', 4) + 1) * self.opt.get('ramp', 1))) if self.D == 4 else 0
            if c < self.opt.get('lag', 0): ahead -= 6 - INI
            while nxt < 30 and nxt < 3 * (c + 3) + ahead:
                issue(nxt // 3, (nxt % 3,)); seq.append(('c', nxt)); nxt += 1
            if c == 9: self.zero_fill()
            if c == self.opt.get('clm', 6):
                e('buffer_load_dword v37, v36, %s, 0 offen' % sq(rWS))
                extra[c] = extra.get(c, 0) + 1
            if c == STB:
                e('''v_and_b32 v34, 31, v0
                v_lshlrev_b32 v34, 2, v34
                s_lshl_b32 s11, s3, 7
                s_add_u32 s11, s11, %d
                buffer_load_dword v35, v34, %s, s11 offen sc1''' % (WS_PRES, sq(rWS)))
                e('buffer_load_dwordx2 v[30:31], v27, %s, 0 offen sc1' % sq(rWS)); assert c not in extra; seq.append(('t', 2))
            if self.opt.get('nowo'):
                pass
            elif c == WOA:
                e('s_and_b32 s71, s4, 2\ns_lshl_b32 s71, s71, 1\ns_add_u32 s71, s71, s14\ns_add_u32 s71, s71, 12'); self.wo_block(20, 's71'); extra[c] = extra.get(c, 0) + 5
            elif c == WOB_:
                e('s_and_b32 s71, s4, 2\ns_lshl_b32 s71, s71, 1\ns_sub_u32 s71, s14, s71\ns_add_u32 s71, s71, 16'); self.wo_block(20, 's71'); extra[c] = extra.get(c, 0) + 5
            if c == TBL:
                e('''s_mov_b32 s15, %d
                s_movk_i32 s75, 2048
                v_cmp_gt_u32 s[76:77], s75, v26
                L_tchk:
                v_cmp_ne_u32 vcc, s10, v31
                s_and_b64 vcc, vcc, s[76:77]
                s_cmp_eq_u64 vcc, 0
                s_cbranch_scc1 L_tok
                s_sub_u32 s15, s15, 1
                s_cmp_eq_u32 s15, 0
                s_cbranch_scc1 L_tok
                s_sleep 4
                buffer_load_dwordx2 v[30:31], v27, %s, 0 offen sc1
                s_waitcnt vmcnt(0)
                s_branch L_tchk
                L_tok:
                v_mov_b32 v32, 0x3f800000
                v_cndmask_b32 v30, v32, v30, s[76:77]
                v_and_b32 v32, 0xffff0000, v30
                v_rcp_f32 v32, v32
                v_lshlrev_b32 v30, 16, v30
                v_mul_f32 v33, -v30, v32
                v_lshlrev_b32 v29, 3, v28
                v_add_u32 v29, %d, v29
                v_cmp_le_u32 vcc, 112, v28
                v_cndmask_b32 v32, v32, 0, vcc
                v_cndmask_b32 v33, v33, 0, vcc
                s_getreg_b32 s11, hwreg(HW_REG_XCC_ID, 0, 4)
                s_lshl_b32 s11, s11, 28
                s_xor_b32 s11, s11, s10
                v_cmp_ne_u32 vcc, s11, v35
                s_cmp_eq_u64 vcc, 0
                s_cselect_b32 s9, COLOC, 0
                v_mov_b32 v30, s9
                v_cmp_eq_u32 vcc, 114, v28
                v_cndmask_b32 v32, v32, v30, vcc
                v_cmp_ge_u32 vcc, 114, v28
                s_and_b64 exec, exec, vcc
                ds_write_b64 v29, v[32:33]
                s_mov_b64 exec, -1
                s_waitcnt lgkmcnt(0)''' % (SPIN, sq(rWS), TAB))
        self.ts(3)
        e('s_cmp_ge_u32 s14, 2\ns_cbranch_scc1 L_w67')
        self.p2_loads()
        for x in self.att_scalars(): e(x)
        e('s_branch L_img2\nL_w67:')
        e('s_mov_b32 s38, 2\ns_cmp_eq_u32 s14, 3\ns_cbranch_scc1 L_w7')
        if not self.opt.get('nowo'):
            e('s_mov_b32 s71, 0\nL_w6:')
            self.wo_block(20, 's71')
            if self.opt.get('thr', 63) < 63: e('s_waitcnt vmcnt(%d)' % self.opt.get('thr', 63))
            e('s_add_u32 s71, s71, 1\ns_cmp_lt_u32 s71, 4\ns_cbranch_scc1 L_w6')
        e('''s_branch L_p2wo
        L_w7:
        s_mov_b32 s15, %d
        L_w7a:
        ds_read_b32 v3, v8 offset:8
        s_waitcnt lgkmcnt(0)
        v_readfirstlane_b32 s11, v3
        s_cmp_ge_u32 s11, 4
        s_cbranch_scc1 L_w7b
        s_sleep 1
        s_sub_u32 s15, s15, 1
        s_cmp_lg_u32 s15, 0
        s_cbranch_scc1 L_w7a
        L_w7b:''' % (SPIN * 4))
        if not self.opt.get('nowo'):
            e('s_mov_b32 s71, 4\nL_w7c:')
            self.wo_block(20, 's71')
            if self.opt.get('thr', 63) < 63: e('s_waitcnt vmcnt(%d)' % self.opt.get('thr', 63))
            e('s_add_u32 s71, s71, 1\ns_cmp_lt_u32 s71, 12\ns_cbranch_scc1 L_w7c')
        e('s_branch L_p2wo')

    def zero_fill(self):
        e = self.e
        e('''v_lshrrev_b32 v3, 1, v28
        v_and_b32 v4, 1, v28
        v_mul_u32_u24 v3, %d, v3
        v_mul_u32_u24 v4, 160, v4
        v_add_u32 v3, v3, v4
        v_mov_b32 v4, 0
        v_mov_b32 v5, 0
        v_cmp_gt_u32 vcc, 224, v28
        s_and_b64 exec, exec, vcc''' % P)
        for z in range(4):
            e('''s_cmp_gt_u32 s7, %d
            s_cselect_b32 s11, %d, %d
            v_add_u32 v6, s11, v3
            ds_write_b64 v6, v[4:5]''' % (z, 8 * z, 8 * (16 + z)))
        e('''s_mov_b64 exec, -1
        v_mov_b32 v8, %d
        v_mov_b32 v3, 1
        s_waitcnt lgkmcnt(0)
        s_mov_b64 exec, 1
        ds_add_u32 v8, v3 offset:12
        s_mov_b64 exec, -1''' % (TAB + 896))

    def gemm1(self):
        e = self.e
        ACC, BA, BB, ST = 16, 100, 140, 180
        def acc(y, T): return ACC + (y * 7 + T) * 4
        e('''L_gemm:
        s_setprio 3
        s_cmp_lg_u32 s5, 3
        s_cbranch_scc1 L_noones
        v_mov_b32 v8, 0x3f803f80
        v_mov_b32 v9, v8
        v_mov_b32 v10, v8
        v_mov_b32 v11, v8
        v_and_b32 v2, 15, v0
        v_lshlrev_b32 v2, 4, v2
        v_lshrrev_b32 v3, 4, v0
        v_min_u32 v3, %d, v3
        v_mul_u32_u24 v3, %d, v3
        v_add_u32 v2, v2, v3
        ds_write_b128 v2, v[8:11]
        s_waitcnt lgkmcnt(0)
        L_noones:''' % (self.D - 1, SLOT))
        e('''v_and_b32 v1, 15, v0
        v_lshrrev_b32 v2, 4, v0
        v_lshrrev_b32 v3, 1, v1
        v_xor_b32 v3, v2, v3
        v_lshlrev_b32 v3, 4, v3
        v_lshl_add_u32 v8, v1, 7, v3
        v_xor_b32 v9, 64, v8
        v_lshrrev_b32 v3, 2, v1
        v_and_b32 v14, 3, v1
        v_lshrrev_b32 v15, 1, v3
        v_and_b32 v10, 1, v2
        v_lshl_or_b32 v15, v10, 1, v15
        v_xor_b32 v15, s5, v15
        v_lshl_add_u32 v3, v2, 3, v3
        v_lshlrev_b32 v3, 7, v3
        v_lshl_add_u32 v3, v15, 5, v3
        v_lshl_add_u32 v3, v14, 3, v3
        v_add_u32 v10, %d, v3
        v_add_u32 v11, SL0, v8
        v_add_u32 v12, SL0, v9
        v_add_u32 v13, SL0, v10
        v_lshlrev_b32 v14, 3, v1
        v_add_u32 v14, %d, v14
        s_lshl_b32 s11, s5, 2
        s_add_u32 s11, s11, s7
        v_add_u32 v3, s11, v2
        v_mul_u32_u24 v15, %d, v1
        v_lshl_add_u32 v15, v3, 3, v15
        v_mov_b32 v6, %d
        v_mov_b32 v7, 1
        s_mov_b32 s78, 1
        s_mov_b32 s79, SL1'''.replace('SL0', str(self.S0 * SLOT)).replace('SL1', str((self.S0 + 1) % self.D * SLOT)) % (XPART, TAB, P, TAB + 896))
        assert 2 * SLOT == 77824
        def reads(buf, t):
            ops = []
            for y in range(3):
                for hh in range(2):
                    ops.append('ds_read_b64_tr_b16 %s, v13 offset:%d' % (vr(buf + 28 + 4 * y + 2 * hh, 2), y * 8192 + (32 * t + 4 * hh) * 128))
            for T in range(7):
                ops.append('ds_read_b128 %s, v%d offset:%d' % (vr(buf + 4 * T, 4), 11 + t, T * 2048))
            return [] if self.opt.get('noread') else ops
        def mf(buf, y, T, first=False):
            return 'v_mfma_f32_16x16x32_bf16 %s, %s, %s, %s' % (vr(acc(y, T), 4), vr(buf + 28 + 4 * y, 4), vr(buf + 4 * T, 4), '0' if first else vr(acc(y, T), 4))
        def half(rbuf, t, mbuf, tail=(), first=False):
            R = reads(rbuf, t) + list(tail); M = [mf(mbuf, y, T, first) for T in range(7) for y in range(3)]
            X = []
            if self.opt.get('csv'):
                M[0] = None
                if self.opt['csv'] == 1:
                    for r in range(4):
                        X += ['v_lshlrev_b32 v194, 16, v%d' % (mbuf + 28 + r), 'v_and_b32 v195, 0xffff0000, v%d' % (mbuf + 28 + r), 'v_add_f32 v16, v16, v194', 'v_add_f32 v17, v17, v195']
            for k in range(21):
                if k == 20: e('s_waitcnt lgkmcnt(0)')
                if not self.opt.get('nomfma') and M[k]: e(M[k])
                if k < len(R): e(R[k])
                if X and k >= 3: e(X.pop(0))
            assert len(R) <= 20
        nxt = ['v_add_u32 v11, s79, v8\nv_add_u32 v12, s79, v9', 'v_add_u32 v13, s79, v10\ns_add_u32 s79, s79, %d' % SLOT,
               's_cmp_eq_u32 s79, %d\ns_cselect_b32 s79, 0, s79' % (SLOT * self.D)]
        if self.opt.get('clm', 6) == -1:
            e('''s_mul_i32 s11, s6, 10
            s_add_u32 s11, s11, s8
            s_lshl_b32 s11, s11, 2
            s_add_u32 s11, s11, s5
            s_mul_i32 s11, s11, 3072
            s_add_u32 s11, s11, %d
            v_mov_b32 v216, 0
            v_mov_b32 v217, 0
            v_xor_b32 v218, s10, 1
            v_mov_b32 v219, 0''' % WS_XCH)
            for k in range(3):
                e('buffer_store_dwordx4 v[216:219], v254, %s, s11 offen offset:%d' % (sq(rWS), 1024 * k))
        self.ts(1)
        e('s_barrier')
        for x in reads(BA, 0): e(x)
        self.count_in(3)
        if self.opt.get('pre2'):
            e('v_mov_b32 v216, 0\nv_mov_b32 v217, 0\nv_xor_b32 v218, s10, 1\nv_mov_b32 v219, 0')
            for k in range(3):
                e('''s_mul_i32 s11, s5, 3
                s_add_u32 s11, s11, %d
                s_lshr_b32 s12, s11, 1
                s_and_b32 s11, s11, 1
                s_mul_i32 s13, s6, 6
                s_add_u32 s12, s12, s13
                s_min_u32 s12, s12, 127
                s_mul_i32 s12, s12, 10
                s_add_u32 s12, s12, s8
                s_lshl_b32 s12, s12, 1
                s_add_u32 s12, s12, s11
                s_lshl_b32 s12, s12, 10
                s_add_u32 s12, s12, %d
                buffer_store_dwordx4 v[216:219], v254, %s, s12 offen sc1''' % (k, WS_O, sq(rWS)))
        e('s_waitcnt lgkmcnt(0)')
        half(BB, 1, BA, nxt, True)
        e('L_kloop:\ns_barrier')
        half(BA, 0, BB, ['s_add_u32 s78, s78, 1\ns_cmp_ge_u32 s78, 10'])
        e('s_cbranch_scc1 L_ktail')
        half(BB, 1, BA, nxt)
        e('s_branch L_kloop\nL_ktail:')
        CS = (BA + 28, BA + 32, BB + 28)
        MR = (194, 216, 218, 220, 222, 224, 226)
        def fixt(y, T, pk):
            a = acc(y, T); st = vr(ST + 2 * T, 2); ops = []
            for h in range(2):
                ops.append('v_pk_mul_f32 %s, %s, %s op_sel_hi:[1,0]' % (vr(a + 2 * h, 2), vr(a + 2 * h, 2), st))
            for h in range(2):
                ops.append('v_pk_fma_f32 %s, %s, %s, %s op_sel_hi:[1,0,1]' % (vr(a + 2 * h, 2), vr(CS[y] + 2 * h, 2), vr(MR[T], 2), vr(a + 2 * h, 2)))
            ops.append('v_cvt_pk_bf16_f32 v%d, v%d, v%d' % (a, a, a + 1))
            ops.append('v_cvt_pk_bf16_f32 v%d, v%d, v%d' % (a + 1, a + 2, a + 3))
            ops.append('ds_write_b64 v15, %s offset:%d' % (vr(a, 2), T * 16 * P + y * 160))
            return ops
        def csum(y):
            return ['v_mov_b32_dpp v%d, v%d row_newbcast:0 row_mask:0xf bank_mask:0xf' % (CS[y] + r, acc(y, 0) + r) for r in range(4)]
        self.fixv = lambda: csum(2) + [x for T in range(7) for x in fixt(2, T, True)]
        R = reads(BB, 1)
        R = R[:2] + R[6:] + R[2:6] + ['ds_read_b64 %s, v14 offset:%d' % (vr(ST + 2 * T, 2), 128 * T) for T in range(7)]
        M = [mf(bf, y, T) for bf, y in ((BA, 0), (BA, 1), (BB, 0), (BB, 1), (BA, 2), (BB, 2)) for T in range(7)]
        units = [('c', 0, 0)] + [('t', 0, T) for T in range(1, 7)] + [('c', 1, 0)] + [('t', 1, T) for T in range(7)]
        SC = self.att_scalars(); assert len(SC) <= 56
        MV = ['v_mov_b32 v%d, v%d' % (MR[T], ST + 2 * T + 1) for T in (1, 2, 3, 4, 5, 6, 0)]
        q = []; FILL = self.opt.get('fill', 4)
        for k in range(42):
            if k == 14: e('s_waitcnt lgkmcnt(11)')
            if k == 17:
                e('s_waitcnt lgkmcnt(0)\ns_mov_b64 exec, 1\nds_add_u32 v6, v7 offset:8\ns_mov_b64 exec, -1')
            e(M[k])
            if k < 10:
                e(R[2 * k]); e(R[2 * k + 1])
            if k < 14:
                for _ in range(4):
                    if SC: e(SC.pop(0))
            if k >= 17 and MV: e(MV.pop(0))
            if k >= 18:
                for _ in range(FILL):
                    if not q and units:
                        u = units.pop(0)
                        assert k >= 14 + 7 * u[1] + u[2]
                        q = csum(u[1]) if u[0] == 'c' else fixt(u[1], u[2], False)
                    if q: e(q.pop(0))
        self.ts(3)
        for x in q: e(x)
        first = True
        for u in units:
            for x in (csum(u[1]) if u[0] == 'c' else fixt(u[1], u[2], not first)): e(x)
            first = False

    def attention(self):
        e = self.e
        e('L_img:')
        e('''s_mov_b64 exec, 1
        ds_add_u32 v6, v7 offset:12
        s_mov_b64 exec, -1
        L_img2:
        v_mov_b32 v8, %d
        s_mov_b32 s15, %d
        L_imw:
        ds_read_b32 v3, v8 offset:12
        s_waitcnt lgkmcnt(0)
        v_readfirstlane_b32 s11, v3
        s_cmp_ge_u32 s11, 8
        s_cbranch_scc1 L_imok
        IMSLEEP
        s_sub_u32 s15, s15, 1
        s_cmp_lg_u32 s15, 0
        s_cbranch_scc1 L_imw
        L_imok:
        s_setprio 3''' % (TAB + 896, SPIN * 8))
        if self.opt.get('lts'): self.opt['ts_off'] = 1
        self.ts(4)
        if self.opt.get('dump_img'):
            e("""s_mul_i32 s11, s6, 10
            s_add_u32 s11, s11, s8
            s_mul_i32 s11, s11, 0x10000
            s_add_u32 s11, s11, 0x1000000
            s_lshl_b32 s12, s5, 10
            v_lshlrev_b32 v2, 4, v0
            v_add_u32 v2, s12, v2
            s_mov_b32 s54, 0x10000000""")
            for j in range(10):
                e("""ds_read_b128 v[100:103], v2
                s_waitcnt lgkmcnt(0)
                buffer_store_dwordx4 v[100:103], v2, %s, s11 offen
                v_add_u32 v2, 6144, v2
                s_waitcnt vmcnt(0)""" % sq(rWS))
        Qr, Kr, Vr, Sr, Er, Xr, Pr, Rr = 196, 16, 48, 100, 132, 148, 72, 88
        def qrd(sgs):
            e('s_mov_b32 exec_hi, 0')
            for sg in sgs: e('ds_read_b64 %s, v228 offset:%d' % (vr(Qr + 4 * sg, 2), 40 * sg))
            e('s_mov_b32 exec_hi, 0xffff')
            for sg in sgs: e('ds_read_b64 %s, v228 offset:%d' % (vr(Qr + 4 * sg + 2, 2), 40 * sg + 16))
            e('s_mov_b64 exec, -1')
        def krd(sg):
            for h, av in enumerate((228, 231)):
                for u in range(2):
                    e('ds_read_b64 %s, v%d offset:%d' % (vr(Kr + 8 * sg + 4 * h + 2 * u, 2), av, 160 + 40 * sg + 16 * u))
        qrd((0, 3)); krd(0); krd(3)
        e('v_mov_b32 v9, 0xffffff00\nv_lshlrev_b32 v230, 3, v0\nv_mov_b32 v10, 0x0c0c0400')
        def smf(sg):
            for h in range(2):
                e('v_mfma_f32_16x16x32_bf16 %s, %s, %s, 0' % (vr(Sr + 8 * sg + 4 * h, 4), vr(Kr + 8 * sg + 4 * h, 4), vr(Qr + 4 * sg, 4)))
        def sel(sg):
            c = Sr + 8 * sg; p = c + 4
            e('v_cndmask_b32 v%d, v%d, v%d, s[64:65]' % (c, c, c + 1)); e('v_cndmask_b32 v%d, v%d, v%d, s[64:65]' % (c + 2, c + 2, c + 3))
            e('v_cndmask_b32 v%d, v%d, v%d, s[64:65]' % (p, p, p + 1)); e('v_cndmask_b32 v%d, v%d, v%d, s[64:65]' % (p + 2, p + 2, p + 3))
            e('v_cndmask_b32 v%d, v%d, v%d, s[66:67]' % (Er + 4 * sg, p, c)); e('v_cndmask_b32 v%d, v%d, v%d, s[68:69]' % (Er + 4 * sg + 1, p + 2, c + 2))
        vrd = []
        for j in range(5):
            vrd.append('ds_read_b64_tr_b16 %s, v229 offset:%d' % (vr(Vr + 4 * j, 2), 16 * P + 320 + 32 * j))
            vrd.append('ds_read_b64_tr_b16 %s, v229 offset:%d' % (vr(Vr + 4 * j + 2, 2), 320 + 32 * j))
        e('s_waitcnt lgkmcnt(4)'); smf(0)
        e('s_waitcnt lgkmcnt(0)'); smf(3)
        qrd((1, 2)); krd(1)
        sel(0)
        e('v_and_or_b32 v%d, v%d, v9, s75\nv_and_or_b32 v%d, v%d, v9, s39\nbuffer_store_dwordx2 %s, v230, %s, s70 offen' % (Er + 2, Er + 0, Er + 3, Er + 1, vr(Er + 2, 2), sq(rWS)))
        sel(3)
        e('v_and_or_b32 v%d, v%d, v9, s75\nv_and_or_b32 v%d, v%d, v9, s39\nbuffer_store_dwordx2 %s, v230, %s, s71 offen' % (Er + 14, Er + 12, Er + 15, Er + 13, vr(Er + 14, 2), sq(rWS)))
        self.ts(5)
        krd(2)
        e('s_waitcnt lgkmcnt(4)'); smf(1)
        e('s_waitcnt lgkmcnt(0)'); smf(2)
        sel(1); sel(2)
        xl = ['buffer_load_dwordx2 %s, v230, %s, s%d offen sc1' % (vr(Xr + 4 * k, 2), sq(rWS), 72 + k) for k in range(2)]
        XW = self.opt.get('xw', 1)
        e('v_mov_b32 v12, 0x3ea52b5c')
        e('s_cmp_ge_u32 s5, 4\ns_cbranch_scc1 L_nov')
        FV = self.fixv()
        for n, x in enumerate(FV):
            if n == 4 + 7 * XW:
                for y in xl: e(y)
            e(x)
        e('s_mov_b64 exec, 1\nds_add_u32 v6, v7\ns_mov_b64 exec, -1\n%s\ns_branch L_nov2\nL_nov:\n%s' % (('s_setprio 2', 's_setprio 1') if self.opt.get('ap', 1) else ('s_nop 0', 's_nop 0')))
        for y in xl: e(y)
        e('s_waitcnt vmcnt(4)'); self.xn_prep(); e('s_setprio 3\nL_nov2:')
        if self.opt.get('ats'): self.ts(1)
        e('s_waitcnt vmcnt(0)')
        if self.opt.get('ats') == 1: self.ts(3)
        for k in range(2):
            e("""v_perm_b32 v3, v%d, v%d, v10
            v_cmp_ne_u32 vcc, s%d, v3
            s_cmp_lg_u64 vcc, 0
            s_cbranch_scc1 L_xretry%d
            L_xok%d:""" % (Xr + 4 * k + 1, Xr + 4 * k, 76 + k, k, k))
        e('s_mov_b64 exec, 1\nv_mov_b32 v11, 1\nds_add_u32 v8, v11 offset:4\ns_mov_b64 exec, -1')
        if self.opt.get('cl', 0) > 1:
            e('v_and_or_b32 v252, v%d, v9, s75\nv_and_or_b32 v253, v%d, v9, s39\nv_and_or_b32 v14, v%d, v9, s75\nv_and_or_b32 v15, v%d, v9, s39' % (Er, Er + 1, Er + 12, Er + 13))
        for r in (0, 1, 4, 5): e('v_and_b32 v%d, v9, v%d' % (Xr + r, Xr + r))
        e('v_pk_add_f32 %s, %s, %s' % (vr(Er, 2), vr(Er, 2), vr(Xr, 2)))
        e('v_pk_add_f32 %s, %s, %s' % (vr(Er + 12, 2), vr(Er + 12, 2), vr(Xr + 4, 2)))
        self.ts(6)
        e("""s_or_b32 s11, s6, s5
        s_cmp_lg_u32 s11, 0
        s_cbranch_scc1 L_nomask
        v_mov_b32 v3, 0xce6e6b28""")
        for sg in range(4):
            e('v_cndmask_b32 v%d, v3, v%d, s[66:67]\nv_cndmask_b32 v%d, v3, v%d, s[68:69]' % (Er + 4 * sg, Er + 4 * sg, Er + 4 * sg + 1, Er + 4 * sg + 1))
        e('L_nomask:')
        A, B_, C, D_ = Rr, Rr + 2, Rr + 4, Rr + 6
        def allred(op, mid=None):
            for sg in range(4):
                e('%s v%d, v%d, v%d' % (op, Rr + 2 * sg, Er + 4 * sg, Er + 4 * sg + 1))
            e('v_permlane32_swap_b32 v%d, v%d\nv_permlane32_swap_b32 v%d, v%d' % (A, C, B_, D_))
            e('%s v%d, v%d, v%d\n%s v%d, v%d, v%d' % (op, A, A, C, op, B_, B_, D_))
            e('v_permlane16_swap_b32 v%d, v%d' % (A, B_))
            e('%s v%d, v%d, v%d' % (op, A, A, B_))
            if mid: e(mid % (A, A))
            e('v_mov_b32 v%d, v%d\nv_permlane16_swap_b32 v%d, v%d' % (B_, A, A, B_))
            e('v_mov_b32 v%d, v%d\nv_mov_b32 v%d, v%d' % (C, A, D_, B_))
            e('v_permlane32_swap_b32 v%d, v%d\nv_permlane32_swap_b32 v%d, v%d' % (A, C, B_, D_))
        e('ds_read_b32 v4, v8 offset:16\nds_read_b32 v3, v8')
        allred('v_max_f32', 'v_mul_f32 v%d, v12, v%d')
        e('''s_waitcnt lgkmcnt(0)
        v_readfirstlane_b32 s11, v3
        v_readfirstlane_b32 s9, v4
        s_cmp_lt_u32 s11, 4
        s_cbranch_scc1 L_vw
        L_vok:''')
        self.tail.append(lambda: e('''L_vw:
        s_mov_b32 s15, 800000
        L_vw2:
        ds_read_b32 v3, v8
        s_waitcnt lgkmcnt(0)
        v_readfirstlane_b32 s11, v3
        s_cmp_ge_u32 s11, 4
        s_cbranch_scc1 L_vok
        s_sub_u32 s15, s15, 1
        s_cmp_lg_u32 s15, 0
        s_cbranch_scc1 L_vw2
        s_branch L_vok'''))
        if self.opt.get('ats'): self.ts(2)
        for x in vrd: e(x)
        for sg in range(4):
            e('v_pk_fma_f32 %s, %s, v[12:13], %s op_sel_hi:[1,0,0] neg_lo:[0,0,1] neg_hi:[0,0,1]' % (vr(Er + 4 * sg, 2), vr(Er + 4 * sg, 2), vr(Rr + 2 * sg, 2)))
        for sg in range(4):
            e('v_exp_f32 v%d, v%d\nv_exp_f32 v%d, v%d' % (Er + 4 * sg, Er + 4 * sg, Er + 4 * sg + 1, Er + 4 * sg + 1))
        allred('v_add_f32', 'v_rcp_f32 v%d, v%d')
        e('s_waitcnt lgkmcnt(0)')
        for sg in range(4):
            e('v_pk_mul_f32 %s, %s, %s op_sel_hi:[1,0]' % (vr(Er + 4 * sg, 2), vr(Er + 4 * sg, 2), vr(Rr + 2 * sg, 2)))
        def pv(j, sg, k):
            e('v_mfma_f32_16x16x32_bf16 %s, %s, %s, 0' % (vr(Sr + 4 * k, 4), vr(Vr + 4 * j, 4), vr(Pr + 4 * sg, 4)))
        for sg in range(4):
            x0, x1 = Er + 4 * sg + 2, Er + 4 * sg + 3
            e('v_cvt_pk_bf16_f32 v%d, v%d, v%d\nv_cvt_pk_bf16_f32 v%d, v%d, v%d' % (x0, Er + 4 * sg, Er + 4 * sg, x1, Er + 4 * sg + 1, Er + 4 * sg + 1))
            for r in range(4):
                e('v_and_b32 v%d, v%d, v%d' % (Pr + 4 * sg + r, 212 + r, (x0, x1)[r & 1]))
            if sg: pv(sg - 1, sg - 1, 2 * sg - 2); pv(sg, sg - 1, 2 * sg - 1)
        pv(3, 3, 6); pv(4, 3, 7)
        if self.opt.get('ats') == 2: self.ts(3)
        Or = 220
        def cv(j, k):
            e('v_cvt_pk_bf16_f32 v%d, v%d, v%d\nv_cvt_pk_bf16_f32 v%d, v%d, v%d' % (Or + 2 * j, Sr + 4 * k, Sr + 4 * k + 1, Or + 2 * j + 1, Sr + 4 * k + 2, Sr + 4 * k + 3))
        e('v_mov_b32 v4, 64\nv_cndmask_b32 v4, v0, v4, s[64:65]\nv_mov_b32 v6, 0x10000')
        cv(0, 0); cv(1, 2); cv(2, 4)
        e('s_mov_b64 exec, 0xffff'); cv(1, 1)
        e('s_mov_b32 exec_lo, -1'); cv(2, 3)
        e('s_mov_b64 exec, -1'); cv(3, 6)
        e('s_mov_b32 exec_hi, 0xffff'); cv(3, 5)
        e('s_not_b64 exec, s[28:29]'); cv(0, 7)
        e('s_mov_b64 exec, -1')
        e("""s_and_b32 s11, s31, s9
        s_cbranch_scc1 L_oloc
        buffer_store_dwordx4 v[220:223], v254, s[52:55], s25 offen sc1
        buffer_store_dwordx4 v[224:227], v254, s[52:55], s25 offen offset:1024 sc1
        v_add3_u32 v3, v222, v223, v224
        v_add3_u32 v7, v225, v226, v227
        v_add3_u32 v3, v3, v220, v221
        v_add_u32 v3, v3, v7
        v_add_u32_dpp v3, v3, v3 quad_perm:[1,0,3,2] row_mask:0xf bank_mask:0xf
        v_add_u32_dpp v3, v3, v3 quad_perm:[2,3,0,1] row_mask:0xf bank_mask:0xf
        v_cndmask_b32 v3, v3, 0, s[64:65]
        v_add_u32 v3, s10, v3
        s_mov_b32 exec_lo, 0x11111113
        s_mov_b32 exec_hi, 0x11111111
        buffer_store_dword v3, v4, s[52:55], s26 offen sc1
        s_branch L_opub
        L_oloc:
        buffer_store_dwordx4 v[220:223], v254, s[52:55], s25 offen
        buffer_store_dwordx4 v[224:227], v254, s[52:55], s25 offen offset:1024
        v_add3_u32 v3, v222, v223, v224
        v_add3_u32 v7, v225, v226, v227
        v_add3_u32 v3, v3, v220, v221
        v_add_u32 v3, v3, v7
        v_add_u32_dpp v3, v3, v3 quad_perm:[1,0,3,2] row_mask:0xf bank_mask:0xf
        v_add_u32_dpp v3, v3, v3 quad_perm:[2,3,0,1] row_mask:0xf bank_mask:0xf
        v_cndmask_b32 v3, v3, 0, s[64:65]
        v_add_u32 v3, s10, v3
        s_mov_b32 exec_lo, 0x11111113
        s_mov_b32 exec_hi, 0x11111111
        buffer_store_dword v3, v4, s[52:55], s26 offen
        L_opub:
        s_mov_b64 exec, 1
        ds_add_u32 v8, v6 offset:4
        s_mov_b64 exec, -1""")
        if self.opt.get('cl', 0):
            for r in range(4): e('v_mov_b32 v%d, v%d\nv_mov_b32 v%d, v%d' % (240 + r, 220 + r, 248 + r, 224 + r))
            e('s_cmp_lg_u32 s11, 0\ns_cselect_b32 s30, s25, 0x7f000000')
        self.tail.append(lambda: self.xretry(Er, Xr))

    def xretry(self, Er, Xr):
        e = self.e
        for k in range(2):
            own, got = Er + 12 * k, Xr + 4 * k
            e("""L_xretry%d:
            s_mov_b32 s15, 0
            L_xr%d:
            s_add_u32 s15, s15, 1
            s_cmp_ge_u32 s15, %d
            s_cbranch_scc1 L_xok%d
            s_cmp_lt_u32 s15, 48
            s_cbranch_scc1 L_xf%d
            s_cmp_lg_u32 s15, 48
            s_cbranch_scc1 L_xs%d
            s_lshl_b32 s12, s%d, 1
            s_add_u32 s12, s12, %d
            v_mov_b32 v%d, s10
            buffer_store_dwordx3 %s, v254, %s, s12 offen sc1
            L_xs%d:
            s_lshl_b32 s12, s%d, 1
            s_add_u32 s12, s12, %d
            buffer_load_dwordx3 %s, v254, %s, s12 offen sc1
            s_waitcnt vmcnt(0)
            v_cmp_ne_u32 vcc, s10, v%d
            s_cmp_eq_u64 vcc, 0
            s_cbranch_scc1 L_xok%d
            L_xf%d:
            buffer_load_dwordx2 %s, v230, %s, s%d offen sc1
            s_waitcnt vmcnt(0)
            v_perm_b32 v3, v%d, v%d, v10
            v_cmp_ne_u32 vcc, s74, v3
            s_cmp_lg_u64 vcc, 0
            s_cbranch_scc1 L_xr%d
            s_branch L_xok%d""" % (k, k, SPIN, k, k, k, 70 + k, WS_XCB - 2 * WS_XCH, own + 2, vr(own, 3), sq(rWS), k, 72 + k, WS_XCB - 2 * WS_XCH,
                                   vr(got, 3), sq(rWS), got + 2, k, k, vr(got, 2), sq(rWS), 72 + k, got + 1, got, k, k))

    def xn_prep(self):
        e = self.e
        XF, XN, T = 16, 176, 36
        a, b = self.lab('pc'), self.lab('pk')
        e("""s_mov_b32 s15, %d
        %s:
        v_cmp_ne_u32 vcc, s10, v161
        s_cmp_eq_u64 vcc, 0
        s_cbranch_scc1 %s
        s_sub_u32 s15, s15, 1
        s_cmp_eq_u32 s15, 0
        s_cbranch_scc1 %s
        s_sleep 8
        buffer_load_dwordx2 v[160:161], v235, %s, 0 offen sc1
        s_waitcnt vmcnt(0)
        s_branch %s
        %s:
        v_permlane16_swap_b32 v162, v164
        v_permlane16_swap_b32 v163, v165
        v_permlane16_swap_b32 v166, v168
        v_permlane16_swap_b32 v167, v169
        v_and_b32 v46, 0xffff0000, v160
        v_rcp_f32 v46, v46
        v_lshlrev_b32 v160, 16, v160""" % (SPIN, a, b, b, sq(rWS), a, b))
        def rnd():
            for d in range(10): e('v_cvt_pk_bf16_f32 v%d, v%d, v%d' % (T + d, XN + 2 * d, XN + 2 * d + 1))
            for d in range(10): e('v_lshlrev_b32 v%d, 16, v%d\nv_and_b32 v%d, 0xffff0000, v%d' % (XN + 2 * d, T + d, XN + 2 * d + 1, T + d))
        for d in range(10):
            e('v_lshlrev_b32 v%d, 16, v%d\nv_and_b32 v%d, 0xffff0000, v%d' % (XF + 2 * d, 162 + d, XF + 2 * d + 1, 162 + d))
        for d in range(10):
            e('v_pk_add_f32 %s, %s, v[160:161] op_sel_hi:[1,0] neg_lo:[0,1] neg_hi:[0,1]' % (vr(XN + 2 * d, 2), vr(XF + 2 * d, 2)))
        rnd()
        for d in range(10):
            e('v_pk_mul_f32 %s, %s, v[46:47] op_sel_hi:[1,0]' % (vr(XN + 2 * d, 2), vr(XN + 2 * d, 2)))
        rnd()
        for d in range(10):
            e('v_pk_add_f32 %s, %s, %s' % (vr(XN + 2 * d, 2), vr(XN + 2 * d, 2), vr(XF + 2 * d, 2)))

    def phase2(self):
        e = self.e
        NPRE = 8
        WF, XN = 16, 196
        OFL = [196 + 4 * k for k in range(9)] + [236]
        ACL = [176 + 4 * k for k in range(5)]
        CKL = [1, 2, 4, 10, 11]
        OF = 176
        UPD = TAB + 1024
        e('L_phase2:\ns_setprio 0')
        self.ts(7)
        e('s_cmp_ge_u32 s5, 4\ns_cbranch_scc1 L_nz')
        for r in range(20): e('v_mov_b32 v%d, 0' % (176 + r))
        e('L_nz:')
        def wrd(ks, slot):
            ops = []
            for t in range(5):
                for hh in range(2):
                    ll, jq = ks // 2, 2 * (ks % 2) + hh
                    av, rows = 244, 64 * ll + 16 * jq - 4 * ll
                    if jq == 0 and ll == 4: rows += 64
                    elif jq == 0: av = 244 + ll
                    ops.append('ds_read_b64_tr_b16 %s, v%d offset:%d' % (vr(WF + 20 * slot + 4 * t + 2 * hh, 2), av, rows * 160 + 32 * t))
            return ops
        e('v_mov_b32 v8, %d\nv_and_b32 v9, 60, v0\nds_read_b32 v7, v8 offset:4' % (TAB + 896))
        e("""s_waitcnt lgkmcnt(0)
        v_readfirstlane_b32 s11, v7
        s_mov_b32 s72, 0
        s_mov_b32 s73, 1
        s_and_b32 s11, s11, 0xff
        LDEFER
        s_cmp_lt_u32 s11, 8
        s_cselect_b32 s11, s38, 0
        s_cmp_eq_u32 s11, 3
        s_cbranch_scc1 L_wskip
        s_mov_b32 s73, 0
        L_wrd:
        s_mov_b32 s15, %d
        L_wochk:
        ds_read_b32 v7, v8 offset:4
        s_waitcnt lgkmcnt(0)
        v_readfirstlane_b32 s11, v7
        s_and_b32 s11, s11, 0xff
        s_cmp_ge_u32 s11, 8
        s_cbranch_scc1 L_wook
        s_sleep 1
        s_sub_u32 s15, s15, 1
        s_cmp_lg_u32 s15, 0
        s_cbranch_scc1 L_wochk
        L_wook:""" % (SPIN * 4))
        for ks in range(NPRE):
            for x in wrd(ks, ks): e(x)
        e("""s_mov_b32 s15, %d
        s_cmp_lg_u32 s73, 0
        s_cbranch_scc1 L_wdone
        L_wskip:""" % SPIN)
        if self.opt.get('yl', 1): e('s_cmp_eq_u32 s5, 6\ns_cbranch_scc1 L_selok\nL_yret:')
        if self.opt.get('pts') in (1, 2): self.ts(3)
        e("""s_mov_b32 s15, %d
        s_cmp_eq_u32 s38, 0
        s_cbranch_scc1 L_ohint
        s_and_b32 s101, s100, s9
        s_mov_b32 s13, 0x80008
        s_cselect_b32 s13, 0x80010, s13
        s_cselect_b32 s14, LTH, RTH
        s_cbranch_scc1 L_ow2
        s_cmp_eq_u32 s38, 3
        s_cbranch_scc0 L_ow2
        s_waitcnt vmcnt(0)
        s_mov_b64 exec, 1
        v_mov_b32 v6, 0x100
        ds_add_u32 v8, v6 offset:4
        s_mov_b64 exec, -1
        s_mov_b32 s38, 2
        L_ow2:
        ds_read_b32 v3, v8 offset:4
        s_waitcnt lgkmcnt(0)
        v_readfirstlane_b32 s11, v3
        s_bfe_u32 s11, s11, s13
        s_cmp_ge_u32 s11, s14
        s_cbranch_scc1 L_ook
        s_sleep 1
        s_sub_u32 s15, s15, 1
        s_cmp_lg_u32 s15, 0
        s_cbranch_scc1 L_ow2
        L_ook:
        s_mov_b32 s15, %d""" % (SPIN * 4, SPIN))
        self.ts(8)
        if self.opt.get('wb'):
            e('''s_lshl_b32 s11, s4, 3
            s_add_u32 s11, s11, s5
            s_cmpk_lg_u32 s11, %d
            s_cbranch_scc1 L_nowb
            buffer_wbl2 sc1
            L_nowb:''' % (31 * 8 + 5))
        for j in range(5):
            e('L_old%d:' % j)
            for h in range(2):
                e('buffer_load_dwordx4 %s, v254, %s, s%d offen offset:%d sc1' % (vr(OFL[2 * j + h], 4), sq(rWS), 22 + j // 2, 2048 * (j % 2) + 1024 * h))
            e('buffer_load_dword v%d, v9, %s, s63 offen offset:%d sc1' % (CKL[j], sq(rWS), 128 * j))
        e('''s_cmp_eq_u32 s38, 3
        s_cbranch_scc0 L_noack
        s_waitcnt vmcnt(15)
        s_mov_b64 exec, 1
        v_mov_b32 v6, 0x100
        ds_add_u32 v8, v6 offset:4
        s_mov_b64 exec, -1
        s_mov_b32 s38, 2
        L_noack:''')
        e('s_cmp_lg_u32 s72, 0\ns_cbranch_scc1 L_odisp\ns_cmp_lg_u32 s73, 0\ns_cbranch_scc1 L_wrd\nL_wdone:\ns_waitcnt lgkmcnt(0)')
        def val(j):
            o, p = OFL[2 * j], OFL[2 * j + 1]
            return ['v_add3_u32 v3, v%d, v%d, v%d' % (o, o + 1, o + 2), 'v_add3_u32 v5, v%d, v%d, v%d' % (o + 3, p, p + 1),
                    'v_add3_u32 v3, v3, v%d, v%d\nv_add_u32 v3, v3, v5' % (p + 2, p + 3),
                    'v_subrev_u32 v5, s10, v%d\nv_add_u32_dpp v3, v3, v3 quad_perm:[1,0,3,2] row_mask:0xf bank_mask:0xf' % CKL[j],
                    's_nop 0\nv_add_u32_dpp v3, v3, v3 quad_perm:[2,3,0,1] row_mask:0xf bank_mask:0xf\nv_cmp_ne_u32 vcc, v3, v5']
        def chk(j): e('s_mov_b32 s72, %d\ns_cmp_lg_u64 vcc, 0\ns_cbranch_scc1 L_oretry' % (j + 1))
        def mm(ks, fill=()):
            slot = ks if ks < NPRE else ks - NPRE
            for t in range(5):
                c = vr(ACL[t], 4)
                e('v_mfma_f32_16x16x32_bf16 %s, %s, %s, %s' % (vr(ACL[t], 4), vr(WF + 20 * slot + 4 * t, 4), vr(OFL[ks], 4), c))
                for x in fill[t::5]: e(x)
        e('s_waitcnt vmcnt(12)')
        for x in val(0): e(x)
        chk(0); e('L_ogo0:')
        for j in range(5):
            if self.opt.get('pts') == 3 and j in (0, 2, 4): self.ts(1 + j // 2)
            if j == 4: e('s_waitcnt lgkmcnt(0)\nds_read2_b32 v[6:7], v8 offset0:1 offset1:5')
            mm(2 * j, wrd(9, 1) if j == 1 else ())
            if j < 4:
                e('s_waitcnt vmcnt(%d)' % (3 * (3 - j)))
                mm(2 * j + 1, val(j + 1) + (wrd(8, 0) if j == 0 else []))
                chk(j + 1); e('L_ogo%d:' % (j + 1))
        def ovals():
            for j in range(5):
                e('L_oval%d:\ns_waitcnt vmcnt(%d)' % (j, 3 * (4 - j)))
                for x in val(j): e(x)
                chk(j); e('s_branch L_ogo%d' % j)
        self.tail.append(ovals)
        def otail():
            e("""L_oretry:
            s_waitcnt vmcnt(0)
            s_sub_u32 s15, s15, 1
            s_cmp_eq_u32 s15, 0
            s_cbranch_scc1 L_ogive
            s_sleep %d""" % self.opt.get('osl', 2))
            for j in range(5):
                e('s_cmp_eq_u32 s72, %d\ns_cbranch_scc1 L_old%d' % (j + 1, j))
            e('L_odisp:')
            for j in range(4):
                e('s_cmp_eq_u32 s72, %d\ns_cbranch_scc1 L_oval%d' % (j + 1, j))
            e('s_branch L_oval4\nL_ogive:\ns_mov_b32 s15, 1')
            for j in range(4):
                e('s_cmp_eq_u32 s72, %d\ns_cbranch_scc1 L_ogo%d' % (j + 1, j))
            e('s_branch L_ogo4')
            e("""L_ohint:
            v_lshlrev_b32 v3, 7, v0
            s_mov_b64 exec, 31
            L_of:
            buffer_load_dword v5, v3, %s, s63 offen offset:64 sc1
            s_waitcnt vmcnt(0)
            v_cmp_ne_u32 vcc, s10, v5
            s_cmp_eq_u64 vcc, 0
            s_cbranch_scc1 L_of2
            s_mov_b64 exec, vcc
            s_sleep HSL
            s_sub_u32 s15, s15, 1
            s_cmp_lg_u32 s15, 0
            s_cbranch_scc1 L_of
            L_of2:
            s_mov_b64 exec, -1
            s_branch L_ook""" % sq(rWS))
        self.tail.append(otail)
        PR = 56
        e('s_cmp_ge_u32 s5, 4\ns_cbranch_scc1 L_fini')
        mm(9)
        if self.opt.get('pts') == 1: self.ts(1)
        e('s_lshl_b32 s11, s5, 3\ns_lshl_b32 s11, 1, s11\nv_mov_b32 v3, s11')
        for t in range(5):
            e('ds_write_b128 v232, %s offset:%d' % (vr(ACL[t], 4), 4 * P * t))
        e("""s_mov_b64 exec, 1
        ds_add_u32 v8, v3 offset:20
        s_mov_b64 exec, -1
        CLEAN
        s_branch L_fin
        L_fini:
        s_and_b32 s13, s5, 3
        s_lshl_b32 s13, s13, 3
        s_mov_b32 s15, %d
        L_fw:
        s_waitcnt lgkmcnt(0)
        v_readfirstlane_b32 s11, v6
        v_readfirstlane_b32 s12, v7
        s_lshr_b32 s11, s11, 24
        s_lshr_b32 s12, s12, s13
        s_and_b32 s11, s11, s12
        s_bitcmp1_b32 s11, 0
        s_cbranch_scc0 L_fre
        L_fok:
        ds_read2_b32 v[6:7], v8 offset0:32 offset1:33""" % (SPIN * 4))
        self.tail.append(lambda: e("""L_fre:
        s_sub_u32 s15, s15, 1
        s_cmp_eq_u32 s15, 0
        s_cbranch_scc1 L_fok
        ds_read2_b32 v[6:7], v8 offset0:1 offset1:5
        s_branch L_fw"""))
        assert UPD - (TAB + 896) == 128
        mm(9, ['ds_read_b128 %s, v232 offset:%d' % (vr(PR + 4 * t, 4), 4 * P * t) for t in range(5)])
        if self.opt.get('pts') == 1: self.ts(1)
        e("""s_waitcnt lgkmcnt(5)
        v_readfirstlane_b32 s76, v6
        v_readfirstlane_b32 s77, v7
        s_lshr_b32 s11, s76, 4
        s_cmp_eq_u32 s11, s60
        s_cbranch_scc1 L_exrow0
        L_exb0:
        s_lshr_b32 s11, s77, 4
        s_cmp_eq_u32 s11, s60
        s_cbranch_scc1 L_exrow1
        L_exb1:
        s_waitcnt lgkmcnt(0)""")
        for d in range(10):
            e('v_pk_add_f32 %s, %s, %s' % (vr(PR + 2 * d, 2), vr(PR + 2 * d, 2), vr(176 + 2 * d, 2)))
            e('v_cvt_pk_bf16_f32 v%d, v%d, v%d' % (80 + d, PR + 2 * d, PR + 2 * d + 1))
            if d in (5, 9):
                q = 80 + (d - 5)
                e('v_permlane16_swap_b32 v%d, v%d\nv_permlane16_swap_b32 v%d, v%d' % (q, q + 2, q + 1, q + 3))
                e('buffer_store_dwordx4 %s, v233, %s, 0 offen offset:%d OUTF' % (vr(q, 4), sq(rOUT), 16 * (d - 5)))
        e('buffer_store_dwordx2 v[88:89], v234, %s, 0 offen offset:128 OUTF' % sq(rOUT))
        e('L_fin:')
        if self.opt.get('ts'):
            if self.opt.get('pts') in (1, 2): self.ts(2)
            if self.opt.get('rcnt'): e('s_waitcnt lgkmcnt(0)\ns_sub_u32 s11, %d, s15\ns_add_u32 s84, s80, s11' % SPIN)
            e('s_waitcnt vmcnt(0)')
            self.ts(9)
            e('s_waitcnt lgkmcnt(0)\nv_mov_b32 v15, 0')
            for k in range(10):
                e('v_mov_b32 v%d, s%d' % (16 + k, 80 + 2 * k))
            e("""s_lshl_b32 s11, s2, 3
            s_add_u32 s11, s11, s5
            s_lshl_b32 s11, s11, 6
            s_add_u32 s11, s11, %d
            s_mov_b64 exec, 1
            buffer_store_dwordx4 v[16:19], v15, %s, s11 offen
            buffer_store_dwordx4 v[20:23], v15, %s, s11 offen offset:16
            buffer_store_dwordx2 v[24:25], v15, %s, s11 offen offset:32""" % (WS_TS, sq(rWS), sq(rWS), sq(rWS)))
        e('s_endpgm')
        for k in range(2):
            e("""L_exrow%d:
            v_and_b32 v3, 48, v0
            v_add_u32 v3, %d, v3""" % (k, UPD + 16 + 1536 * k))
            for t in range(5):
                e('ds_read_b128 %s, v3 offset:%d' % (vr(96 + 4 * t, 4), 64 * t))
            e("""v_and_b32 v3, 15, v0
            s_and_b32 s11, s%d, 15
            v_cmp_eq_u32 vcc, s11, v3
            s_waitcnt lgkmcnt(0)
            s_mov_b64 exec, vcc""" % (76 + k))
            for d in range(10):
                e('v_pk_add_f32 %s, %s, %s' % (vr(PR + 2 * d, 2), vr(PR + 2 * d, 2), vr(96 + 2 * d, 2)))
            e('s_mov_b64 exec, -1\ns_branch L_exb%d' % k)

    def p2wo(self):
        e = self.e
        UPD = TAB + 1024
        e('L_p2wo:\ns_cmp_lt_u32 s5, 4\ns_cbranch_scc1 L_p2w1')
        self.p2_loads()
        e('L_p2w1:')
        e("""v_mov_b32 v8, %d
        v_mov_b32 v3, 1
        s_waitcnt vmcnt(0)
        s_mov_b64 exec, 1
        ds_add_u32 v8, v3 offset:4
        s_mov_b64 exec, -1
        s_cmp_lt_u32 s5, 4
        s_cbranch_scc1 L_phase2
        XNPREP
        s_lshl_b32 s11, s2, 3
        s_add_u32 s11, s11, s5
        s_cmpk_lg_u32 s11, 1927
        s_cbranch_scc1 L_noep
        v_add_u32 v4, 0x2e0000, v254
        s_mov_b32 s15, 200000
        L_ep:
        buffer_load_dwordx4 v[16:19], v4, s[52:55], 0 offen sc1
        s_waitcnt vmcnt(0)
        v_xor_b32 v16, s10, v16
        v_xor_b32 v17, s10, v17
        v_xor_b32 v18, s10, v18
        v_xor_b32 v19, s10, v19
        v_or3_b32 v16, v16, v17, v18
        v_or_b32 v16, v16, v19
        v_lshlrev_b32 v16, 4, v16
        v_cmp_ne_u32 vcc, 0, v16
        s_cmp_eq_u64 vcc, 0
        s_cbranch_scc1 L_ep2
        s_sleep 8
        s_sub_u32 s15, s15, 1
        s_cmp_lg_u32 s15, 0
        s_cbranch_scc1 L_ep
        L_ep2:
        v_mov_b32 v4, 0
        v_mov_b32 v5, s10
        s_mov_b64 exec, 1
        global_store_dword v4, v5, s[36:37] sc1
        s_mov_b64 exec, -1
        L_noep:
        s_cmp_lg_u32 s5, 6
        s_cbranch_scc1 L_phase2
        v_mov_b32 v4, 0
        s_mov_b32 s15, %d
        L_sel:
        buffer_load_dwordx4 v[16:19], v4, %s, 0 offen offset:%d sc1
        s_waitcnt vmcnt(0)
        v_readfirstlane_b32 s11, v17
        v_readfirstlane_b32 s12, v19
        v_readfirstlane_b32 s76, v16
        v_readfirstlane_b32 s79, v18
        s_cmp_eq_u32 s11, s12
        s_cselect_b32 s11, s11, 0
        s_cselect_b32 s12, s10, 1
        s_mov_b32 s78, 0
        s_cmp_eq_u32 s11, s12
        s_cbranch_scc1 SELGO
        s_sleep 8
        s_sub_u32 s15, s15, 1
        s_cmp_lg_u32 s15, 0
        s_cbranch_scc1 L_sel
        s_branch SELGO
        L_selok:
        s_and_b32 s77, s76, 0xffff
        s_sub_u32 s77, 2047, s77
        s_lshl_b32 s11, s78, 2
        s_add_u32 s11, s11, %d
        v_mov_b32 v3, s11
        v_mov_b32 v4, s77
        ds_write_b32 v3, v4
        s_lshr_b32 s11, s77, 6
        s_lshr_b32 s12, s60, 2
        s_cmp_lg_u32 s11, s12
        s_cbranch_scc1 L_selnext
        v_mul_u32_u24 v3, 13, v0
        v_lshrrev_b32 v3, 8, v3
        v_mul_u32_u24 v4, 20, v3
        v_sub_u32 v4, v0, v4
        v_mul_u32_u24 v5, 40960, v3
        v_lshl_add_u32 v5, v4, 5, v5
        v_lshrrev_b32 v4, 2, v4
        v_lshl_add_u32 v5, v4, 7, v5
        s_lshr_b32 s14, s4, 2
        s_mul_i32 s14, s14, 1280
        s_lshl_b32 s13, s78, 4
        s_add_u32 s14, s14, s13
        s_add_u32 s14, s14, %d
        s_lshr_b32 s11, s76, 16
        s_bitcmp1_b32 s11, 15
        s_mov_b32 s13, 0xffff
        s_cmov_b32 s13, 0x8000
        s_xor_b32 s11, s11, s13
        s_lshl_b32 s11, s11, 16
        v_mov_b32 v6, 0xbfb8aa3b
        v_mul_f32 v6, s11, v6
        v_exp_f32 v6, v6
        v_add_f32 v6, 1.0, v6
        v_rcp_f32 v6, v6
        v_cvt_pk_bf16_f32 v6, v6, v6
        v_and_b32 v6, 0xffff0000, v6
        s_mul_i32 s11, s78, 1536
        s_add_u32 s11, s11, %d
        v_add_u32 v7, s11, v254
        s_mov_b32 s15, %d
        s_mov_b32 exec_hi, 0xfffffff
        L_yf:
        s_mov_b32 s12, s14""" % (TAB + 896, SPIN, sq(rWS), WS_SEL, UPD, WS_Y, UPD + 16, SPIN))
        assert all((x * 13) >> 8 == x // 20 for x in range(60))
        YB = (196, 204, 212, 220); S0, S1, S2 = 236, 240, 228
        for j in range(4):
            for h in range(2):
                e('buffer_load_dwordx3 %s, v5, %s, s12 offen offset:%d sc1' % (vr(YB[j] + 4 * h, 3), sq(rWS), 128 * h))
            if j < 3: e('s_add_u32 s12, s12, 10240')
        e('s_waitcnt vmcnt(0)\nv_mov_b32 v3, 0')
        for j in range(4):
            e('v_xor_b32 v4, s10, v%d\nv_xor_b32 v10, s10, v%d\nv_or3_b32 v3, v3, v4, v10' % (YB[j] + 2, YB[j] + 6))
        e("""v_cmp_ne_u32 vcc, 0, v3
        s_cmp_eq_u64 vcc, 0
        s_cbranch_scc1 L_yok
        s_mov_b64 exec, vcc
        s_sleep 4
        s_sub_u32 s15, s15, 1
        s_cmp_lg_u32 s15, 0
        s_cbranch_scc1 L_yf
        L_yok:
        s_mov_b32 exec_lo, -1
        s_mov_b32 exec_hi, 0xfffffff""")
        for h in range(2):
            e('v_pk_add_f32 %s, %s, %s' % (vr(S0 + 2 * h, 2), vr(YB[0] + 4 * h, 2), vr(YB[1] + 4 * h, 2)))
        for j in (2, 3):
            for h in range(2):
                e('v_pk_add_f32 %s, %s, %s' % (vr(S0 + 2 * h, 2), vr(S0 + 2 * h, 2), vr(YB[j] + 4 * h, 2)))
        e("""ds_write_b128 v7, %s offset:320
        s_mov_b64 exec, 0xfffff
        ds_read_b128 %s, v7 offset:640
        ds_read_b128 %s, v7 offset:960
        s_waitcnt lgkmcnt(0)""" % (vr(S0, 4), vr(S1, 4), vr(S2, 4)))
        for sj in (S1, S2):
            for h in range(2):
                e('v_pk_add_f32 %s, %s, %s' % (vr(S0 + 2 * h, 2), vr(S0 + 2 * h, 2), vr(sj + 2 * h, 2)))
        def rnd2():
            for h in range(2): e('v_cvt_pk_bf16_f32 v%d, v%d, v%d' % (S1 + h, S0 + 2 * h, S0 + 2 * h + 1))
            for h in range(2): e('v_lshlrev_b32 v%d, 16, v%d\nv_and_b32 v%d, 0xffff0000, v%d' % (S0 + 2 * h, S1 + h, S0 + 2 * h + 1, S1 + h))
        rnd2()
        for r in range(4): e('v_mul_f32 v%d, v%d, v6' % (S0 + r, S0 + r))
        rnd2()
        e("""ds_write_b128 v7, %s
        s_waitcnt lgkmcnt(0)
        s_mov_b64 exec, -1
        L_selnext:
        s_mov_b32 s76, s79
        s_add_u32 s78, s78, 1
        s_cmp_lt_u32 s78, 2
        s_cbranch_scc1 L_selok
        v_mov_b32 v3, 0x1000000
        s_mov_b64 exec, 1
        ds_add_u32 v8, v3 offset:4
        s_mov_b64 exec, -1
        s_branch L_yret""" % vr(S0, 4))

    def expert(self):
        e = self.e
        BUF = 32768
        ETS = self.opt.get('ets', 0)
        e("""L_aux:
        s_cmp_ge_u32 s79, 4
        s_cbranch_scc1 L_idle""")
        e("""s_mul_i32 s68, s78, 12
        s_add_u32 s68, s68, s79
        s_lshl_b32 s11, s77, 1
        s_lshl_b32 s11, s11, s76
        s_add_u32 s68, s68, s11
        s_lshl_b32 s11, s76, 2
        s_add_u32 s68, s68, s11
        s_and_b32 s14, s5, 1
        s_lshr_b32 s69, s5, 1
        v_lshrrev_b32 v2, 3, v0
        v_and_b32 v3, 7, v0
        v_bfe_u32 v4, v0, 4, 1
        v_lshl_or_b32 v4, s14, 1, v4
        v_lshlrev_b32 v4, 1, v4
        v_xor_b32 v4, v3, v4
        s_and_b32 s12, s68, 1
        s_mul_i32 s12, s12, 320
        s_lshl_b32 s11, s14, 3
        s_add_u32 s11, s11, s12
        v_add_u32 v2, s11, v2
        v_mul_u32_u24 v2, 3072, v2
        v_lshl_add_u32 v2, v4, 4, v2
        s_and_b32 s11, s68, 30
        s_and_b32 s12, s69, 1
        s_add_u32 s11, s11, s12
        s_lshl_b32 s11, s11, 7
        v_add_u32 v10, s11, v2
        s_lshl_b32 s74, s69, 13
        s_lshl_b32 s11, s14, 10
        s_add_u32 s75, s74, s11
        s_waitcnt lgkmcnt(0)
        s_cmp_lt_u32 s5, 4
        s_cselect_b32 s44, s26, s28
        s_cselect_b32 s45, s27, s29
        s_mov_b32 s46, %d
        s_mov_b32 s47, 0x20000""" % GB)
        nt = ' nt' if self.opt.get('nt', 1) else ''
        def issue(s):
            base = (s % 4) * BUF
            for a in range(4):
                e('s_add_u32 m0, s75, %d\ns_mov_b32 s12, %d' % (base + a * 2048, (64 * s + 16 * a) * 3072))
                e('buffer_load_dwordx4 v10, %s, s12 offen%s lds' % (sq(rW), nt))
        if ETS == 1: self.ts(1)
        issue(0)
        e('s_branch L_expert2')
        self.expert_rest = lambda: self.expert2(issue)

    def expert2(self, issue):
        e = self.e
        WG_, XS = 32, 112
        BUF = 32768
        MX = TAB + 4096
        ETS = self.opt.get('ets', 0)
        e('L_expert2:')
        self.tag_load()
        self.srd(rX, pX, XB); self.srd(rWS, pWS, WSB)
        self.p2_setup()
        self.wo_setup(11)
        e("""v_and_b32 v1, 15, v0
        v_lshrrev_b32 v2, 4, v0
        v_lshrrev_b32 v3, 2, v1
        v_and_b32 v4, 3, v1
        v_lshrrev_b32 v5, 1, v3
        v_and_b32 v6, 1, v2
        v_lshl_or_b32 v5, v6, 1, v5
        s_lshl_b32 s11, s14, 1
        v_xor_b32 v5, s11, v5
        v_lshl_add_u32 v7, v2, 3, v3
        v_lshlrev_b32 v8, 7, v7
        v_lshl_add_u32 v8, v5, 5, v8
        v_lshl_add_u32 v8, v4, 3, v8
        v_add_u32 v16, s74, v8
        s_lshl_b32 s11, s5, 6
        v_add_u32 v21, s11, v0
        v_lshlrev_b32 v17, 4, v21
        v_add_u32 v17, %d, v17
        v_and_b32 v5, 1, v1
        v_mul_u32_u24 v19, 656, v5
        v_lshl_add_u32 v19, v2, 4, v19
        v_add_u32 v19, %d, v19
        v_lshlrev_b32 v20, 5, v2
        v_lshl_add_u32 v20, v1, 4, v20
        s_lshl_b32 s72, s68, 1
        s_lshr_b32 s11, s5, 2
        s_add_u32 s72, s72, s11
        s_lshl_b32 s72, s72, 11
        s_and_b32 s11, s5, 3
        s_lshl_b32 s11, s11, 8
        s_add_u32 s72, s72, s11
        s_add_u32 s72, s72, %d
        v_mov_b32 v8, %d
        v_mov_b32 v9, 0
        ds_write_b32 v8, v9 offset:4
        ds_write_b32 v8, v9 offset:20""" % (WS_KEY, MX, WS_H, TAB + 896))
        issue(1); issue(2); issue(3)
        self.tag_ready()
        def consume(s, n):
            base = (s % 4) * BUF
            e('s_waitcnt vmcnt(%d)\ns_barrier' % n)
            if ETS == 1 and s in (0, 2, 4): self.ts({0: 4, 2: 5, 4: 6}[s])
            e('v_add_u32 v8, %d, v16\nv_xor_b32 v9, 32, v8' % base)
            for t in range(2):
                for tl in range(2):
                    for hh in range(2):
                        e('ds_read_b64_tr_b16 %s, v%d offset:%d' % (vr(WG_ + 40 * tl + 4 * (2 * s + t) + 2 * hh, 2), 8 + tl, (32 * t + 4 * hh) * 128))
        B = 120
        v = lambda k: 'v%d' % (B + k)
        def sweep():
            e('s_mov_b32 s12, 8192')
            e('buffer_load_dwordx4 %s, v17, %s, 0 offen sc1\nbuffer_load_dwordx4 %s, v17, %s, s12 offen sc1' % (vr(B + 2, 4), sq(rWS), vr(B + 6, 4), sq(rWS)))
        SW = self.opt.get('sw', 0)
        consume(0, 12)
        e('s_waitcnt lgkmcnt(0)\ns_barrier')
        self.count_in(7)
        if SW == 0: sweep()
        issue(4)
        consume(1, 12 + 2 * (SW == 0))
        if SW == 1: sweep()
        consume(2, 8 + 2 * (SW <= 1))
        if SW == 2: sweep()
        consume(3, 6)
        if SW: consume(4, 2)
        MK = TAB
        e("""s_mov_b32 s15, %d
        s_waitcnt vmcnt(%d)
        L_sweep:
        v_xor_b32 v5, s10, %s
        v_xor_b32 v6, s10, %s
        v_xor_b32 v7, s10, %s
        v_xor_b32 v8, s10, %s
        v_or3_b32 v5, v5, v6, v7
        v_or_b32 v5, v5, v8
        v_cmp_ne_u32 vcc, 0, v5
        s_cmp_eq_u64 vcc, 0
        s_cbranch_scc1 L_swok
        s_mov_b64 exec, vcc
        s_sub_u32 s15, s15, 1
        s_cmp_eq_u32 s15, 0
        s_cbranch_scc1 L_swok
        s_sleep 4""" % (SPIN, 0 if SW else 4, v(3), v(5), v(7), v(9)))
        sweep()
        e('s_waitcnt vmcnt(0)\ns_branch L_sweep\nL_swok:\ns_mov_b64 exec, -1')
        if ETS == 2: self.ts(1)
        e("""v_max_u32 v5, %s, %s
        v_min_u32 v6, %s, %s
        v_max_u32 v7, %s, %s
        v_min_u32 v8, %s, %s
        v_max_u32 v3, v5, v7
        v_min_u32 v5, v5, v7
        v_max3_u32 v4, v5, v6, v8""" % (v(2), v(4), v(2), v(4), v(6), v(8), v(6), v(8)))
        def merge16():
            for n in (8, 4, 2, 1):
                d = 'row_ror:%d row_mask:0xf bank_mask:0xf' % n
                e("""v_min_u32_dpp v5, v3, v3 %s
                v_max_u32_dpp v4, v4, v4 %s
                v_max_u32_dpp v3, v3, v3 %s
                v_max_u32 v4, v4, v5""" % (d, d, d))
        merge16()
        e("""s_lshl_b32 s11, s5, 5
        s_add_u32 s11, s11, %d
        v_lshl_add_u32 v7, v2, 3, s11
        v_mov_b32 v8, v3
        v_mov_b32 v9, v4
        ds_write_b64 v7, v[8:9]
        v_lshlrev_b32 v7, 4, v1
        v_add_u32 v7, %d, v7
        s_waitcnt lgkmcnt(0)
        s_barrier
        s_cmp_ge_u32 s5, 3
        s_cbranch_scc1 L_noxn
        ds_read_b128 %s, v7
        s_waitcnt lgkmcnt(0)
        v_max_u32 v3, %s, %s
        v_min_u32 v5, %s, %s
        v_max3_u32 v4, v5, %s, %s""" % (MK, MK, vr(B + 2, 4), v(2), v(4), v(2), v(4), v(3), v(5)))
        merge16()
        if ETS == 2: self.ts(4)
        e("""v_readfirstlane_b32 s76, v3
        v_readfirstlane_b32 s77, v4
        s_cmp_lg_u32 s5, 2
        s_cbranch_scc1 L_rx
        s_cmp_lg_u32 s68, 0
        s_cbranch_scc1 L_noxn
        v_mov_b32 v4, s76
        v_mov_b32 v5, s10
        v_mov_b32 v6, s77
        v_mov_b32 v7, s10
        v_mov_b32 v3, 0
        s_mov_b64 exec, 1
        buffer_store_dwordx4 v[4:7], v3, %s, 0 offen offset:%d sc1
        s_mov_b64 exec, -1
        s_branch L_noxn
        L_rx:
        s_cmp_eq_u32 s5, 0
        s_cselect_b32 s11, s76, s77
        s_and_b32 s11, s11, 0xffff
        s_sub_u32 s11, 2047, s11
        s_lshl_b32 s13, s11, 3
        s_add_u32 s13, s13, %d
        s_mul_i32 s11, s11, 1280
        s_and_b32 s12, s68, 1
        s_mul_i32 s12, s12, 640
        s_add_u32 s11, s11, s12
        s_mul_i32 s12, s5, 656
        s_add_u32 s12, s12, %d
        v_add_u32 v9, s12, v254
        v_mov_b32 v7, 0
        s_mov_b32 exec_hi, 0xff
        s_mov_b32 s15, %d
        buffer_load_dwordx4 %s, v254, %s, s11 offen
        L_rst:
        buffer_load_dwordx2 %s, v7, %s, s13 offen sc1
        s_waitcnt vmcnt(0)
        v_cmp_ne_u32 vcc, s10, %s
        s_cmp_eq_u64 vcc, 0
        s_cbranch_scc1 L_rstok
        s_sub_u32 s15, s15, 1
        s_cmp_lg_u32 s15, 0
        s_cbranch_scc1 L_rst
        L_rstok:
        v_and_b32 v3, 0xffff0000, %s
        v_rcp_f32 v3, v3
        v_lshlrev_b32 v4, 16, %s""" % (sq(rWS), WS_SEL, WS_STAT, MX, SPIN, vr(B + 2, 4), sq(rX), vr(B + 6, 2), sq(rWS), v(7), v(6), v(6)))
        F = B + 8
        def unp():
            for d in range(4):
                e('v_lshlrev_b32 v%d, 16, v%d\nv_and_b32 v%d, 0xffff0000, v%d' % (F + 2 * d, B + 2 + d, F + 2 * d + 1, B + 2 + d))
        def pk():
            for d in range(4): e('v_cvt_pk_bf16_f32 v%d, v%d, v%d' % (B + 2 + d, F + 2 * d, F + 2 * d + 1))
        unp()
        for r in range(8): e('v_sub_f32 v%d, v%d, v4' % (F + r, F + r))
        pk(); unp()
        for r in range(8): e('v_mul_f32 v%d, v%d, v3' % (F + r, F + r))
        pk()
        e('ds_write_b128 v9, %s\ns_mov_b64 exec, -1\nL_noxn:\ns_waitcnt lgkmcnt(0)' % vr(B + 2, 4))
        if SW:
            e('s_barrier')
        else:
            consume(4, 0)
            e('s_waitcnt lgkmcnt(0)')
        if ETS == 2: self.ts(5)
        for ks in range(10):
            e('ds_read_b128 %s, v19 offset:%d' % (vr(XS + 4 * ks, 4), 64 * ks))
        R = 160
        for k in range(4):
            e('v_mov_b32 v%d, s10\nv_mov_b32 v%d, 0' % (R + 8 + 4 * k + 2, R + 8 + 4 * k + 3))
        for ks in range(10):
            e('s_waitcnt lgkmcnt(%d)' % (9 - ks))
            for tl in range(2):
                e('v_mfma_f32_16x16x32_bf16 %s, %s, %s, %s' % (vr(R + 4 * tl, 4), vr(WG_ + 40 * tl + 4 * ks, 4), vr(XS + 4 * ks, 4), '0' if ks == 0 else vr(R + 4 * tl, 4)))
        e('v_cmp_gt_u32 vcc, 2, v1\ns_and_b64 exec, exec, vcc')
        for tl in range(2):
            for h in range(2):
                d = R + 8 + 4 * (2 * tl + h)
                e('v_mov_b32 v%d, v%d\nv_mov_b32 v%d, v%d' % (d, R + 4 * tl + 2 * h, d + 1, R + 4 * tl + 2 * h + 1))
                e('buffer_store_dwordx4 %s, v20, %s, s72 offen offset:%d sc1' % (vr(d, 4), sq(rWS), 1024 * h + 128 * tl))
        e('s_mov_b64 exec, -1')
        self.ts(2)
        e('s_barrier')
        e('L_woall:')
        self.wo_block(11, 's5')
        e('s_add_u32 s71, s5, 8'); self.wo_block(11, 's71')
        e('s_cmp_lt_u32 s5, 4\ns_cbranch_scc1 L_p2wo\ns_add_u32 s71, s5, 12')
        self.wo_block(11, 's71')
        e('s_branch L_p2wo')

    def down(self):
        e = self.e
        WD, YA = 32, 112
        BUF = 40960
        MH = TAB + 384
        nt = ' nt' if self.opt.get('nt', 1) else ''
        e("""L_idle:
        s_lshl_b32 s68, s78, 1
        s_add_u32 s68, s68, s77
        s_mul_i32 s68, s68, 3
        s_add_u32 s68, s68, s79
        s_sub_u32 s68, s68, 4
        s_mul_i32 s72, s5, 5120
        s_mul_i32 s73, s68, 163840
        s_add_u32 s73, s73, s72
        s_bfe_u32 s11, s5, 0x10001
        s_lshl_b32 s11, s11, 2""")
        for a in range(5):
            e("""v_add_u32 v2, %d, v0
            v_mul_u32_u24 v3, 820, v2
            v_lshrrev_b32 v3, 16, v3
            v_mul_u32_u24 v4, 80, v3
            v_sub_u32 v4, v2, v4
            v_or_b32 v5, s11, v3
            v_lshlrev_b32 v5, 1, v5
            v_xor_b32 v4, v4, v5
            v_mul_u32_u24 v3, 1280, v3
            v_lshl_add_u32 v%d, v4, 4, v3""" % (64 * a, 26 + a))
        def issue(s):
            base = (s % 3) * BUF
            for a in range(5):
                e('s_add_u32 m0, s72, %d\ns_add_u32 s12, s73, %d' % (base + a * 1024, s * 40960))
                e('buffer_load_dwordx4 v%d, %s, s12 offen%s lds' % (26 + a, sq(rD), nt))
        e('s_waitcnt lgkmcnt(0)')
        self.srd(rD, pD, GB)
        issue(0)
        e('s_branch L_down2')
        self.down_rest = lambda: self.down2(issue)

    def down2(self, issue):
        e = self.e
        WD, YA = 32, 112
        BUF = 40960
        MH = TAB + 384
        e('L_down2:')
        self.tag_load()
        self.srd(rX, pX, XB); self.srd(rWS, pWS, WSB)
        self.p2_setup()
        self.wo_setup(11)
        e("""v_and_b32 v1, 15, v0
        v_lshrrev_b32 v2, 4, v0
        v_lshrrev_b32 v3, 2, v1
        v_and_b32 v4, 3, v1
        v_and_b32 v6, 1, v2
        v_lshl_add_u32 v7, v2, 3, v3
        v_lshl_or_b32 v5, v6, 2, v3
        v_mul_u32_u24 v7, 1280, v7
        v_lshl_add_u32 v7, v4, 3, v7
        s_mul_i32 s11, s5, 5""")
        for j in range(5):
            e("""s_add_u32 s12, s11, %d
            v_xor_b32 v8, s12, v5
            v_lshl_add_u32 v%d, v8, 5, v7""" % (j, 18 + j))
        e("""v_mov_b32 v8, %d
        v_mov_b32 v9, 0
        ds_write_b32 v8, v9 offset:4
        ds_write_b32 v8, v9 offset:20""" % (TAB + 896))
        issue(1); issue(2)
        self.tag_ready()
        def consume(s, n):
            base = (s % 3) * BUF
            e('s_waitcnt vmcnt(%d)\ns_barrier' % n)
            for j in range(5):
                e('v_add_u32 v8, %d, v%d' % (base, 18 + j))
                for hh in range(2):
                    e('ds_read_b64_tr_b16 %s, v8 offset:%d' % (vr(WD + 20 * s + 4 * j + 2 * hh, 2), 5120 * hh))
        consume(0, 10)
        e('s_waitcnt lgkmcnt(0)\ns_barrier')
        self.count_in(7)
        issue(3)
        consume(1, 10)
        consume(2, 5)
        e('s_waitcnt lgkmcnt(0)\ns_barrier')
        e('s_cmp_eq_u32 s5, 0\ns_cbranch_scc1 L_dn0\ns_sub_u32 s71, s5, 1')
        self.wo_block(11, 's71')
        e('s_waitcnt vmcnt(5)\ns_branch L_dn0b\nL_dn0:\ns_waitcnt vmcnt(0)\nL_dn0b:')
        consume(3, 63)
        e('s_cmp_eq_u32 s5, 0\ns_cbranch_scc1 L_dn1\ns_add_u32 s71, s5, 6')
        self.wo_block(11, 's71')
        e('s_cmp_eq_u32 s5, 7\ns_cbranch_scc1 L_dn2\ns_add_u32 s71, s5, 13')
        self.wo_block(11, 's71')
        e('s_branch L_dn2\nL_dn1:\ns_setprio 3')
        self.ts(2)
        HB = 132
        e("""s_lshl_b32 s12, s68, 13
        s_add_u32 s12, s12, %d
        s_add_u32 s13, s12, 4096
        s_mov_b32 s15, %d
        HINTSKIP
        s_mov_b64 exec, 1
        L_hp0:
        buffer_load_dwordx4 %s, v254, %s, s12 offen sc1
        buffer_load_dwordx4 %s, v254, %s, s13 offen sc1
        s_waitcnt vmcnt(0)
        v_xor_b32 v4, s10, v%d
        v_xor_b32 v5, s10, v%d
        v_or_b32 v3, v4, v5
        v_cmp_ne_u32 vcc, 0, v3
        s_cmp_eq_u64 vcc, 0
        s_cbranch_scc1 L_hp1
        s_sleep 2
        s_sub_u32 s15, s15, 1
        s_cmp_lg_u32 s15, 0
        s_cbranch_scc1 L_hp0
        L_hp1:
        s_mov_b64 exec, -1
        s_mov_b32 s15, %d
        L_hp:""" % (WS_H, SPIN, vr(HB, 4), sq(rWS), vr(HB + 4, 4), sq(rWS), HB + 2, HB + 6, SPIN))
        for k in range(8):
            e('buffer_load_dwordx4 %s, v254, %s, s%d offen offset:%d sc1' % (vr(HB + 4 * k, 4), sq(rWS), 12 + k // 4, 1024 * (k % 4)))
        e('s_waitcnt vmcnt(0)\nv_mov_b32 v3, 0')
        for k in range(0, 8, 2):
            e('v_xor_b32 v4, s10, v%d\nv_xor_b32 v5, s10, v%d\nv_or3_b32 v3, v3, v4, v5' % (HB + 4 * k + 2, HB + 4 * k + 6))
        e("""v_cmp_ne_u32 vcc, 0, v3
        s_cmp_eq_u64 vcc, 0
        s_cbranch_scc1 L_hok
        s_mov_b64 exec, vcc
        s_sleep 2
        s_sub_u32 s15, s15, 1
        s_cmp_lg_u32 s15, 0
        s_cbranch_scc1 L_hp
        L_hok:
        s_mov_b64 exec, -1""")
        if self.opt.get('ets') == 2: self.ts(6)
        for k in range(4):
            e('v_pk_add_f32 %s, %s, %s' % (vr(HB + 4 * k, 2), vr(HB + 4 * k, 2), vr(HB + 16 + 4 * k, 2)))
        for k in range(4):
            e('v_cvt_pk_bf16_f32 v%d, v%d, v%d' % (4 + k, HB + 4 * k, HB + 4 * k + 1))
        for k in range(4):
            e('v_lshlrev_b32 v%d, 16, v%d\nv_and_b32 v%d, 0xffff0000, v%d' % (HB + 2 * k, 4 + k, HB + 2 * k + 1, 4 + k))
        F = HB + 8
        for r in range(4): e('v_mul_f32 v%d, 0xbfb8aa3b, v%d' % (F + r, HB + r))
        for r in range(4): e('v_exp_f32 v%d, v%d' % (F + r, F + r))
        for r in range(4): e('v_add_f32 v%d, 1.0, v%d' % (F + r, F + r))
        for r in range(4): e('v_rcp_f32 v%d, v%d' % (F + r, F + r))
        for r in range(4): e('v_mul_f32 v%d, v%d, v%d' % (HB + r, HB + r, F + r))
        for k in range(2):
            e('v_cvt_pk_bf16_f32 v%d, v%d, v%d' % (4 + k, HB + 2 * k, HB + 2 * k + 1))
        for k in range(2):
            e('v_lshlrev_b32 v%d, 16, v%d\nv_and_b32 v%d, 0xffff0000, v%d' % (HB + 2 * k, 4 + k, HB + 2 * k + 1, 4 + k))
        for r in range(4): e('v_mul_f32 v%d, v%d, v%d' % (HB + r, HB + r, HB + 4 + r))
        e("""v_cvt_pk_bf16_f32 v24, v%d, v%d
        v_cvt_pk_bf16_f32 v25, v%d, v%d
        v_and_b32 v3, 1, v0
        v_lshrrev_b32 v4, 1, v0
        v_lshlrev_b32 v3, 8, v3
        v_lshl_add_u32 v3, v4, 3, v3
        v_add_u32 v3, %d, v3
        ds_write_b64 v3, v[24:25]
        L_dn2:
        v_and_b32 v5, 1, v1
        v_lshlrev_b32 v6, 8, v5
        v_lshl_add_u32 v6, v2, 4, v6
        v_add_u32 v6, %d, v6
        v_lshlrev_b32 v7, 5, v2
        v_lshl_add_u32 v7, v1, 4, v7
        s_mul_i32 s11, s68, 10240
        s_mul_i32 s12, s5, 1280
        s_add_u32 s11, s11, s12
        s_add_u32 s11, s11, %d""" % (HB, HB + 1, HB + 2, HB + 3, MH, MH, WS_Y))
        YG = 168
        for k in range(10):
            e('v_mov_b32 v%d, s10\nv_mov_b32 v%d, 0' % (YG + 4 * k + 2, YG + 4 * k + 3))
        e('s_waitcnt lgkmcnt(0)\ns_barrier')
        for ks in range(4):
            e('ds_read_b128 %s, v6 offset:%d' % (vr(16 + 4 * ks, 4), 64 * ks))
        for ks in range(4):
            e('s_waitcnt lgkmcnt(%d)' % (3 - ks))
            for j in range(5):
                e('v_mfma_f32_16x16x32_bf16 %s, %s, %s, %s' % (vr(YA + 4 * j, 4), vr(WD + 20 * ks + 4 * j, 4), vr(16 + 4 * ks, 4), '0' if ks == 0 else vr(YA + 4 * j, 4)))
        e('v_cmp_gt_u32 vcc, 2, v1\ns_and_b64 exec, exec, vcc')
        for j in range(5):
            for h in range(2):
                d = YG + 4 * (2 * j + h)
                e('v_mov_b32 v%d, v%d\nv_mov_b32 v%d, v%d' % (d, YA + 4 * j + 2 * h, d + 1, YA + 4 * j + 2 * h + 1))
                e('buffer_store_dwordx4 %s, v7, %s, s11 offen offset:%d sc1' % (vr(d, 4), sq(rWS), 256 * j + 128 * h))
        e('s_mov_b64 exec, -1')
        self.ts(3)

    def build(self):
        self.tail = []
        for txt, f in (('start-up, role split, first loads of the row statistics', self.prologue),
                       ('loader waves, first chunk', self.loader),
                       ('gate/up workgroups, first stage', self.expert),
                       ('down workgroups, first stage', self.down),
                       ('loader waves, ring loop, row table, wo image', lambda: self.loader_rest()),
                       ('gate/up workgroups, top-2, partial pre-activations', lambda: self.expert_rest()),
                       ('down workgroups, h and partial y', lambda: self.down_rest()),
                       ('waves outside the attention stage, epoch word, expert update of this row block', self.p2wo),
                       ('compute waves without statistics', self.w23),
                       ('row statistics and router key', self.stats),
                       ('q k v gemm', self.gemm1),
                       ('attention', self.attention),
                       ('output stage', self.phase2)):
            self.L.append('; ======== ' + txt)
            f()
        self.L.append('; ======== out-of-line waits and retries')
        for f in self.tail: f()
        self.e('L_end:\ns_endpgm')
        return self.L

DOC = """; ---------------------------------------------------------------------------------------------------------------
; One launch, 256 workgroups of 8 waves, one per CU (all resident; every wait is bounded).  id&7 is the expected die,
; id>>3 the slot; the id map only serves L2 locality, every hand-off is checked and works under any placement.
;
; gemm workgroups (220): row tile i (96 rows + 14 halo rows) x column line l (64 columns of each of q, k, v).
;   waves 4-7 stream x and W through a 4-slot LDS ring (LDS-DMA), waves 0-3 run the MFMAs on raw x; layer norm is
;   attention per 16-row tile with MFMAs (k q^T, true-max softmax, p v); heads cut by a line boundary swap their
;   partial logits with the neighbour workgroup.  o is stored in MFMA operand order for the output stage.
;
; hand-offs through d_ws carry the launch tag = (epoch word found in d_ws) + 1; the word is advanced once every
; workgroup has read it.  o blocks carry check sums.  Stores stay in the local L2 only when the 32 workgroups
; of this id class have all reported the same die; otherwise (and across dies) they are written through.
; ---------------------------------------------------------------------------------------------------------------
"""
HEAD = open('cdna_kernels/%s.s.ref' % NAME).read().split('; Override launch')[0]

def generate(opt):
    g = G(opt)
    L = g.build()
    L = [x.replace('HINTSKIP', 's_branch L_hp' if opt.get('nohint') else 's_nop 0') for x in L]
    L = [x.replace('IMSLEEP', 's_sleep %d' % opt.get('ims', 1) if opt.get('ims', 1) else 's_nop 0') for x in L]
    L = [x.replace('COLOC', str(opt.get('coloc', 1))) for x in L]
    L = [x.replace(' OUTF', ('', ' nt', ' sc1', ' sc0 sc1')[opt.get('outf', 1)]) for x in L]
    L = [x.replace('OMODE', str(opt.get('omode', 2))) for x in L]
    if opt.get('noxch'): L = [x for x in L if not (any('v230, s[52:55], s7%d offen' % k in x for k in range(4)) or 's_cbranch_scc1 L_xretry' in x)]
    if opt.get('noval'): L = [x for x in L if 's_cbranch_scc1 L_oretry' not in x]; pass
    if opt.get('nopub'): L = [x for x in L if 's25 offen' not in x]
    if opt.get('noold'): L = [x for x in L if not (('s22 offen' in x or 's23 offen' in x or 's24 offen' in x or 'v9, s[52:55], s63' in x) and 'load' in x)]
    if opt.get('nost'): L = [x for x in L if 's[56:59]' not in x]
    L = [x.replace('LTH', str(opt.get('lth', 6))).replace('RTH', str(opt.get('rth', 6))) for x in L]
    L = [x.replace('HSL', str(opt.get('hsl', 2))) for x in L]
    if opt.get('ntx', 1): L = [x + ' nt' if 'buffer_store' in x and 'sc1' not in x and any(k in x for k in ('s70 offen', 's71 offen', 's74 offen')) else x for x in L]
    if opt.get('nto', 1): L = [x + ' nt' if 'buffer_store' in x and 'sc1' not in x and any(k in x for k in ('s25 offen', 's26 offen', 's30 offen')) else x for x in L]
    if opt.get('ntw'): L = [x.replace('offen lds', 'offen nt lds') if 's[44:47]' in x or (opt['ntw'] > 1 and 's[40:43]' in x) else x for x in L]
    FL = {1: ' nt', 2: ' sc0', 3: ' sc0 sc1', 4: ' nt sc1'}
    if opt.get('lo'): L = [x.replace(' sc1', FL[opt['lo']]) if 'buffer_load' in x and any(k in x for k in ('s22 offen', 's23 offen', 's24 offen', 's63 offen')) else x for x in L]
    if opt.get('lx'): L = [x.replace(' sc1', FL[opt['lx']]) if 'buffer_load' in x and 'v230' in x else x for x in L]
    L = [x.replace('SELGO', 'L_phase2' if opt.get('yl', 1) else 'L_selok') for x in L]
    L = [y for x in L for y in (([] if not opt.get('ld', 0) else ['    s_cmp_lg_u32 s100, 0', '    s_cselect_b32 s11, 0, s11']) if 'LDEFER' in x else [x])]
    L = [x.replace('NCLO', '6' if opt.get('coloc', 1) else '0') for x in L]
    L, added = hz.fix(L)
    k = NAME + '_kernel'
    s = HEAD + '; @launch grid=(256,1,1) block=(512,1,1) lds=%d\n' % LDS_BYTES
    s += '.amdgcn_target "amdgcn-amd-amdhsa--gfx950"\n' + DOC + '.text\n.globl %s\n.p2align 8\n.type %s,@function\n%s:\n' % (k, k, k)
    s += '\n'.join(L) + '\n'
    s += """.section .rodata,"a"
.p2align 6
.amdhsa_kernel %s
  .amdhsa_next_free_vgpr 256
  .amdhsa_next_free_sgpr 102
  .amdhsa_accum_offset 256
  .amdhsa_group_segment_fixed_size 0
  .amdhsa_kernarg_size 88
  .amdhsa_user_sgpr_count 2
  .amdhsa_user_sgpr_kernarg_segment_ptr 1
  .amdhsa_system_sgpr_workgroup_id_x 1
  .amdhsa_float_denorm_mode_32 3
.end_amdhsa_kernel
""" % k
    import subprocess, re, os, tempfile
    d = tempfile.mkdtemp()
    open(d + '/a.s', 'w').write(s.replace('CODE_LAST', '0x1000'))
    subprocess.run(['clang', '-x', 'assembler', '-target', 'amdgcn-amd-amdhsa', '-mcpu=gfx950', '-c', d + '/a.s', '-o', d + '/a.o'], check=True)
    h = subprocess.run(['llvm-objdump', '-h', d + '/a.o'], capture_output=True, text=True).stdout
    size = int(re.search(r'\.text\s+([0-9a-f]+)', h).group(1), 16)
    generate.size = size
    sy = subprocess.run(['llvm-objdump', '-t', d + '/a.o'], capture_output=True, text=True).stdout
    pc = int(re.search(r'^([0-9a-f]+) .* L_pc$', sy, re.M).group(1), 16)
    return s.replace('CODE_LAST', hex((size - pc - 4) & ~3))

if __name__ == '__main__':
    opt = {}
    out = 'cdna_kernels/%s.s' % NAME
    for a in sys.argv[1:]:
        if a.startswith('-o'):
            out = a[2:]
        else:
            kx, vx = a.split('=')
            opt[kx] = int(vx)
    open(out, 'w').write(generate(opt))
    print('wrote', out, 'code bytes', generate.size)
```
